```python
import torch

def _softmax(x, axis=-1):
    return torch.softmax(x, dim=axis)
def _gelu(x):
    return torch.nn.functional.gelu(x, approximate="tanh")
def _silu(x):
    return torch.nn.functional.silu(x)
def _sigmoid(x):
    return torch.sigmoid(x)
def _layernorm(x, axis=-1, eps=1e-5):
    m = x.mean(dim=axis, keepdim=True)
    v = x.var(dim=axis, keepdim=True, unbiased=False)
    return (x - m) / torch.sqrt(v + eps)
def _scatter_add(tgt, idx, src, axis=0):
    return tgt.clone().index_add_(axis, idx, src)
def _segment_sum(src, seg, n):
    out = torch.zeros((n,) + src.shape[1:], dtype=src.dtype)
    return out.index_add_(0, seg, src)
def _pad(x, pw):
    flat = tuple(v for pair in reversed(pw) for v in pair)
    return torch.nn.functional.pad(x, flat)

kernel_name = 'standalone__dense_activation_gelu__prompt'

def setup_inputs():

    _w = (lambda a: (lambda t: t.to(torch.bfloat16) if t.is_floating_point() else t)(torch.as_tensor(a)))
    B, S, D, F = 1, 2048, 576, 4608
    return {
        "x": _w((lambda *s: torch.randn(*s, dtype=torch.bfloat16) * 0.05)(B, S, D)),
        "w1": _w((lambda *s: torch.randn(*s, dtype=torch.bfloat16) * 3.2)(D, F) * (D ** -0.5)),
        "b1": _w((lambda *s: torch.randn(*s, dtype=torch.bfloat16) * 3.2)(F) * 0.01),
        "w2": _w((lambda *s: torch.randn(*s, dtype=torch.bfloat16) * 0.05)(F, D) * (F ** -0.5)),
        "b2": _w((lambda *s: torch.randn(*s, dtype=torch.bfloat16) * 0.1)(D) * 0.01),
    }

def reference(x, w1, b1, w2, b2):
    h = torch.einsum("bsd,df->bsf", x, w1) + b1
    h = _gelu(h)
    return torch.einsum("bsf,fd->bsd", h, w2) + b2
```

```python
import re

def vr(b, n=1):
    return f"v{b}" if n == 1 else f"v[{b}:{b+n-1}]"
def sr(b, n=1):
    return f"s{b}" if n == 1 else f"s[{b}:{b+n-1}]"

class Ins:
    __slots__ = ("text", "kind", "rd", "wr", "srcC", "passes", "swr", "srd")
    def __init__(self, text, kind, rd=(), wr=(), srcC=(), passes=0, swr=(), srd=()):
        self.text = text; self.kind = kind
        self.rd = frozenset(rd); self.wr = frozenset(wr); self.srcC = frozenset(srcC)
        self.passes = passes; self.swr = frozenset(swr); self.srd = frozenset(srd)

def rng(b, n): return range(b, b + n)

class Tok:
    __slots__ = ("q", "idx")
    def __init__(self, q, idx): self.q = q; self.idx = idx

class Stream:
    def __init__(self, parent=None):
        self.ins = []
        if parent is None:
            self.n = {"l": 0, "v": 0}
            self.done = {"l": 0, "v": 0}
            self.hist = []
        else:
            self.n = dict(parent.n); self.done = dict(parent.done)
            self.hist = list(parent.hist[-24:])
        self.nops = 0
    def _need(self, p, c):
        need = 0
        valu_p = p.kind in ("valu", "trans")
        valu_c = c.kind in ("valu", "trans")
        if valu_p and c.kind == "mfma" and (p.wr & (c.rd | c.srcC)): need = max(need, 2)
        if p.kind == "mfma":
            big = {4: 8, 8: 12}[p.passes]; ov = {4: 6, 8: 10}[p.passes]; war = {4: 3, 8: 7}[p.passes]
            if c.kind == "mfma":
                if p.wr & c.rd: need = max(need, big)
                if p.wr & c.srcC:
                    if not (p.wr == c.srcC and p.passes == c.passes): need = max(need, ov)
                elif p.wr & c.wr: need = max(need, big)
            else:
                if p.wr & (c.rd | c.wr): need = max(need, big)
                if valu_c and (p.srcC & c.wr): need = max(need, war)
                if c.kind in ("ldsr", "vld") and (p.srcC & c.wr): need = max(need, war)
        if p.kind == "trans" and valu_c and (p.wr & c.rd): need = max(need, 1)
        if p.kind == "trans" and c.kind in ("ldsw", "vst") and (p.wr & c.rd): need = max(need, 1)
        if p.kind == "vst" and (p.rd & c.wr): need = max(need, 2)
        if p.kind == "ldsw" and (p.rd & c.wr): need = max(need, 2)
        if valu_p and p.swr and c.kind in ("vld", "vst", "dma") and (p.swr & c.srd): need = max(need, 5)
        if valu_p and p.swr and valu_c and (p.swr & c.srd): need = max(need, 2)
        if valu_p and p.swr and c.kind == "salu" and (p.swr & c.srd): need = max(need, 4)
        if valu_p and c.text.startswith(("v_readfirstlane", "v_readlane")) and (p.wr & c.rd): need = max(need, 1)
        if valu_p and c.text.startswith("v_permlane") and (p.wr & (c.rd | c.wr)): need = max(need, 2)
        if valu_p and valu_c and "row_" in c.text and (p.wr & c.rd): need = max(need, 2)
        if p.kind == "salu" and "m0" in p.swr and c.kind == "dma": need = max(need, 1)
        if valu_p and "exec" in p.swr and c.kind == "mfma": need = max(need, 4)
        return need
    def _states(self, i):
        if i.kind == "nop": return int(i.text.split()[1]) + 1
        return 1
    def add(self, i):
        dist = 0; pad = 0
        for p in reversed(self.hist):
            nd = self._need(p, i)
            if nd > dist: pad = max(pad, nd - dist)
            dist += self._states(p)
            if dist >= 20: break
        while pad > 0:
            k = min(pad, 16)
            n = Ins(f"s_nop {k-1}", "nop"); self.ins.append(n); self.hist.append(n); pad -= k; self.nops += 1
        self.ins.append(i); self.hist.append(i)
        if len(self.hist) > 64: self.hist = self.hist[-32:]
    def raw(self, text):
        self.ins.append(Ins(text, "raw"))
    def salu(self, text, swr=(), srd=()):
        self.add(Ins(text, "salu", swr=swr, srd=srd))
    def valu(self, text, wr=(), rd=(), swr=(), srd=(), trans=False):
        self.add(Ins(text, "trans" if trans else "valu", rd=rd, wr=wr, swr=swr, srd=srd))
    def mfma32(self, d, a, b, c=None):
        cs = vr(d, 16) if c == d else (vr(c, 16) if c is not None else "0")
        self.add(Ins(f"v_mfma_f32_32x32x16_bf16 {vr(d,16)}, {vr(a,4)}, {vr(b,4)}, {cs}", "mfma",
                     rd=list(rng(a,4))+list(rng(b,4)), wr=rng(d,16), srcC=(rng(c,16) if c is not None else ()), passes=8))
    def mfma16(self, d, a, b, c=None):
        cs = vr(c, 4) if c is not None else "0"
        self.add(Ins(f"v_mfma_f32_16x16x32_bf16 {vr(d,4)}, {vr(a,4)}, {vr(b,4)}, {cs}", "mfma",
                     rd=list(rng(a,4))+list(rng(b,4)), wr=rng(d,4), srcC=(rng(c,4) if c is not None else ()), passes=4))
    def _tok(self, q):
        self.n[q] += 1
        return Tok(q, self.n[q])
    def ds_read(self, op, d, n, addr, off):
        assert 0 <= off < 65536, off
        self.add(Ins(f"{op} {vr(d,n)}, {vr(addr)} offset:{off}", "ldsr", rd=[addr], wr=rng(d,n)))
        return self._tok("l")
    def ds_write(self, op, addr, s, n, off):
        assert 0 <= off < 65536, off
        self.add(Ins(f"{op} {vr(addr)}, {vr(s,n)} offset:{off}", "ldsw", rd=[addr]+list(rng(s,n))))
        return self._tok("l")
    def dma(self, voff, srd, soff, flags=""):
        self.add(Ins(f"buffer_load_dwordx4 {vr(voff)}, {sr(srd,4)}, {soff} offen {flags} lds".replace("  ", " "), "dma",
                     rd=[voff], srd=list(rng(srd,4))+[soff, "m0"]))
        return self._tok("v")
    def vload(self, op, d, n, voff, srd, soff, off=0, flags=""):
        o = f" offset:{off}" if off else ""
        self.add(Ins(f"{op} {vr(d,n)}, {vr(voff)}, {sr(srd,4)}, {soff} offen{o} {flags}".rstrip(), "vld",
                     rd=[voff], wr=rng(d,n), srd=list(rng(srd,4))+[soff]))
        return self._tok("v")
    def vstore(self, op, s, n, voff, srd, soff, off=0, flags=""):
        o = f" offset:{off}" if off else ""
        self.add(Ins(f"{op} {vr(s,n)}, {vr(voff)}, {sr(srd,4)}, {soff} offen{o} {flags}".rstrip(), "vst",
                     rd=[voff]+list(rng(s,n)), srd=list(rng(srd,4))+[soff]))
        return self._tok("v")
    def wait(self, *toks):
        need = {}
        for t in toks:
            if t is None: continue
            if t.idx > self.done[t.q]:
                need[t.q] = max(need.get(t.q, 0), t.idx)
        if not need: return
        parts = []
        for q, name, mx in (("v", "vmcnt", 63), ("l", "lgkmcnt", 15)):
            if q in need:
                k = min(self.n[q] - need[q], mx)
                parts.append(f"{name}({k})")
                self.done[q] = max(self.done[q], self.n[q] - k)
        self.add(Ins("s_waitcnt " + " ".join(parts), "wait"))
    def wait_all(self, v=True, l=True):
        parts = []
        if v: parts.append("vmcnt(0)"); self.done["v"] = self.n["v"]
        if l: parts.append("lgkmcnt(0)"); self.done["l"] = self.n["l"]
        self.add(Ins("s_waitcnt " + " ".join(parts), "wait"))
    def barrier(self):
        self.add(Ins("s_barrier", "bar"))
    def text(self):
        out = []
        for i in self.ins:
            if i.kind == "raw": out.append(i.text)
            else: out.append("    " + i.text)
        return "\n".join(out)
```

```python
import sys, struct
from emit import Stream, vr, sr, rng

NAME = "standalone__dense_activation_gelu__prompt"
M, D, F = 2048, 576, 4608
def f2u(x): return struct.unpack("<I", struct.pack("<f", x))[0]
GA = -2.0*0.7978845608028654*1.4426950408889634
GB = GA*0.044715

class Cfg:
    store_flags = ""
    mapping = "8x4"
    prefetch = False
    dbg = False
cfg = Cfg()

S_X, S_W1, S_B1, S_W2, S_B2, S_OUT, S_DBG, S_WS = 4, 6, 8, 10, 12, 14, 16, 18
R_X, R_W1, R_W2, R_WS, R_B1 = 20, 24, 28, 32, 36
sW, sRG, sMT, sFS, sD0, sS0 = 40, 41, 42, 43, 44, 45
sXo, sW1d, sW1s, sLx, sLw, sT0, sT1, sGB, sPo = 46, 47, 48, 49, 50, 51, 52, 53, 54
sW2c = 56
sW2s = 65
sPc = 70
vLane, vL16 = 1, 2
vX0, vX1, vW1d, vW1s, vW2 = 3, 4, 5, 6, 7
vW1dR = 8
vW1sR = 11
vW2R = 14
vHW, vHW8, vHR, vHR8 = 20, 21, 22, 23
vBias, vBiasS, vEXW, vEXR, vGA, vTmp, vTmp2 = 24, 25, 26, 27, 28, 29, 30
vXR = 32
vT = 48
vP = 56
vWF = 64
vS = (80, 96)
vXF = 112

NBLK = 19
HB = 10
HBASE = HB*8192
BIAS = 19*8192
EXB = 18*8192
XWIN0 = 7*8192

class St: pass
def build_stages():
    st = []
    for j in range(4):
        for s in range(9):
            a = St(); a.kind = "d"; a.j = j; a.s = s; a.nm = 4; st.append(a)
    for i in range(5):
        a = St(); a.kind = "s"; a.i = i; a.nm = 4 if i < 4 else 2; a.rowbase = 128*i if i < 4 else 448; st.append(a)
    def full(step, i):
        a = St(); a.kind = "b"; a.nm = 8; a.shared = False; a.step = step; a.i = i
        a.parts = [(step, dt, 2*i+kk, kk) for dt in range(2) for kk in range(2)]
        return a
    def shared(sa, sb, pair):
        a = St(); a.kind = "b"; a.shared = True; a.pair = pair; a.sa = sa; a.sb = sb
        a.parts = [(sa, 0, 8, 0), (sa, 1, 8, 0)] + ([(sb, 0, 8, 1), (sb, 1, 8, 1)] if sb is not None else [])
        a.nm = 2*len(a.parts)
        return a
    for i in range(4):
        st.append(full(0, i)); st.append(full(1, i))
    st.append(shared(0, 1, 0))
    for p in range(1, 4):
        a, b = 2*p, 2*p+1
        for i in range(4): st.append(full(a, i))
        st.append(shared(a, b, p))
        for i in range(4): st.append(full(b, i))
    for i in range(4): st.append(full(8, i))
    st.append(shared(8, None, 4))
    for n, a in enumerate(st): a.n = n
    return st
ST = build_stages()
NST = len(ST)
B0 = 41
HWSTAGE = {0: 9+3, 1: 18+3, 2: 27+3, 3: 36+2}

def alloc_blocks():
    res = {}
    for j in range(4):
        for k in (2*j, 2*j+1): res[HB+k] = HWSTAGE[j]
    res[HB+8] = B0
    units = []
    for n in range(NST):
        if n < 9: units.append(("x", n))
        units.append(("w", n))
    busy = {}
    issue = {}; blk = {}
    ui = 0
    def ok(b, m): return b not in busy and (b not in res or m+1 <= res[b])
    for bar in range(-2, NST):
        for b in [b for b, m in busy.items() if m+1 <= bar]: del busy[b]
        lst = []
        while ui < len(units):
            kind, m = units[ui]
            if kind == "x":
                c = [b for b in range(7, NBLK-1, 2) if ok(b, m) and ok(b+1, m)]
                if not c: break
                b = c[0]; busy[b] = m; busy[b+1] = m
            else:
                c = [b for b in list(range(0, HB)) + list(range(HB, NBLK)) if ok(b, m)]
                if m < 9:
                    c = [b for b in c if b < 7]
                elif any(k == "x" for k, _ in units[ui:]):
                    c = [b for b in c if b < 7]
                if not c: break
                b = c[0]; busy[b] = m
            blk[(kind, m)] = b; lst.append((kind, m)); ui += 1
            if bar >= 0 and len([u for u in lst if u[0] == "w"]) >= 2: break
        issue[bar] = lst
    assert ui == len(units)
    for (k, m), b in blk.items():
        ib = [bar for bar, l in issue.items() if (k, m) in l][0]
        assert ib <= m-1, (k, m, ib)
    return issue, blk
ISSUE, BLK = alloc_blocks()

def win(addr):
    return addr // 65536, addr % 65536

def prologue(p):
    p.salu("s_cmp_ge_u32 s2, 256"); p.salu("s_cbranch_scc1 L_main_end")
    p.salu("s_load_dwordx16 s[4:19], s[0:1], 0")
    p.valu(f"v_lshrrev_b32 v{vTmp}, 6, v0", wr=[vTmp])
    p.valu(f"v_and_b32 v{vLane}, 63, v0", wr=[vLane])
    p.valu(f"v_readfirstlane_b32 s{sW}, v{vTmp}", rd=[vTmp], swr=[sW])
    p.salu(f"s_and_b32 s{sT0}, s2, 7"); p.salu(f"s_lshr_b32 s{sT1}, s2, 3")
    if cfg.mapping == "8x4":
        p.salu(f"s_and_b32 s{sMT}, s{sT0}, 1"); p.salu(f"s_lshl_b32 s{sMT}, s{sMT}, 3")
        p.salu(f"s_lshr_b32 s{sFS}, s{sT1}, 2"); p.salu(f"s_add_u32 s{sMT}, s{sMT}, s{sFS}")
        p.salu(f"s_lshr_b32 s{sFS}, s{sT0}, 1"); p.salu(f"s_lshl_b32 s{sFS}, s{sFS}, 2")
        p.salu(f"s_and_b32 s{sT1}, s{sT1}, 3"); p.salu(f"s_add_u32 s{sFS}, s{sFS}, s{sT1}")
    else:
        p.salu(f"s_lshr_b32 s{sMT}, s{sT1}, 1")
        p.salu(f"s_lshl_b32 s{sFS}, s{sT0}, 1"); p.salu(f"s_and_b32 s{sT1}, s{sT1}, 1"); p.salu(f"s_add_u32 s{sFS}, s{sFS}, s{sT1}")
    p.salu(f"s_and_b32 s{sRG}, s{sW}, 3", srd=[sW])
    p.salu(f"s_and_b32 s{sT0}, s{sFS}, 1")
    p.salu(f"s_lshl_b32 s{sD0}, s{sT0}, 5")
    p.salu(f"s_xor_b32 s{sT0}, s{sT0}, 1"); p.salu(f"s_lshl_b32 s{sS0}, s{sT0}, 8")
    p.salu(f"s_lshl_b32 s{sT0}, s{sMT}, 7"); p.salu(f"s_lshl_b32 s{sT1}, s{sRG}, 5"); p.salu(f"s_add_u32 s{sT0}, s{sT0}, s{sT1}")
    p.salu(f"s_mul_i32 s{sXo}, s{sT0}, 1152")
    p.salu(f"s_lshl_b32 s{sLx}, s{sRG}, 12"); p.salu(f"s_lshl_b32 s{sLw}, s{sRG}, 11")
    p.salu(f"s_mul_i32 s{sT0}, s{sFS}, 576")
    p.salu(f"s_mul_i32 s{sT1}, s{sRG}, {16*9216}"); p.salu(f"s_add_u32 s{sW1d}, s{sT0}, s{sT1}")
    p.salu(f"s_lshl_b32 s{sT1}, s{sD0}, 1"); p.salu(f"s_add_u32 s{sW1d}, s{sW1d}, s{sT1}")
    p.salu(f"s_mul_i32 s{sT1}, s{sRG}, {32*9216}"); p.salu(f"s_add_u32 s{sW1s}, s{sT0}, s{sT1}")
    p.salu(f"s_lshl_b32 s{sT1}, s{sS0}, 1"); p.salu(f"s_add_u32 s{sW1s}, s{sW1s}, s{sT1}")
    L = vLane; a, b = vTmp, vTmp2
    p.valu(f"v_lshrrev_b32 v{a}, 3, v{L}", wr=[a], rd=[L])
    p.valu(f"v_mul_u32_u24 v{vX0}, 1152, v{a}", wr=[vX0], rd=[a])
    p.valu(f"v_mul_u32_u24 v{vW1d}, 9216, v{a}", wr=[vW1d], rd=[a])
    p.valu(f"v_mov_b32 v{vW2}, v{vX0}", wr=[vW2], rd=[vX0])
    p.valu(f"v_lshrrev_b32 v{a}, 4, v{L}", wr=[a], rd=[L])
    p.valu(f"v_and_b32 v{b}, 7, v{L}", wr=[b], rd=[L])
    p.valu(f"v_xor_b32 v{b}, v{a}, v{b}", wr=[b], rd=[a, b])
    p.valu(f"v_lshl_add_u32 v{vX0}, v{b}, 4, v{vX0}", wr=[vX0], rd=[b, vX0])
    p.valu(f"v_xor_b32 v{vX1}, 64, v{vX0}", wr=[vX1], rd=[vX0])
    p.valu(f"v_add_u32 v{vX1}, 9216, v{vX1}", wr=[vX1], rd=[vX1])
    p.valu(f"v_and_b32 v{b}, 1, v{a}", wr=[b], rd=[a])
    p.valu(f"v_lshlrev_b32 v{b}, 2, v{b}", wr=[b], rd=[b])
    p.valu(f"v_and_b32 v{vW1s}, 7, v{L}", wr=[vW1s], rd=[L])
    p.valu(f"v_xor_b32 v{b}, v{b}, v{vW1s}", wr=[b], rd=[b, vW1s])
    p.valu(f"v_lshl_add_u32 v{vW1d}, v{b}, 4, v{vW1d}", wr=[vW1d], rd=[b, vW1d])
    p.wait_all(v=False)
    def srd(r, base, size):
        p.salu(f"s_mov_b32 s{r}, s{base}"); p.salu(f"s_mov_b32 s{r+1}, s{base+1}")
        p.salu(f"s_mov_b32 s{r+2}, {size}"); p.salu(f"s_mov_b32 s{r+3}, 0x20000")
    srd(R_X, S_X, M*D*2); srd(R_W1, S_W1, D*F*2); srd(R_B1, S_B1, F*2)
    p.salu(f"s_mul_i32 s{sT0}, s{sFS}, 576")
    p.valu(f"v_lshlrev_b32 v{vBias}, 1, v0", wr=[vBias])
    tokb = p.vload("buffer_load_ushort", vBiasS, 1, vBias, R_B1, f"s{sT0}")
    return tokb

def issue_unit(s, half, u):
    kind, m = u
    b = BLK[u]
    tok = None
    if kind == "x":
        if half != 1: return None
        for pp in range(4):
            s.salu(f"s_add_u32 m0, s{sLx}, {b*8192 + pp*1024}", swr=["m0"])
            s.salu(f"s_add_u32 s{sT0}, s{sXo}, {16*(pp//2)*1152 + m*128}")
            tok = s.dma(vX0 if pp % 2 == 0 else vX1, R_X, f"s{sT0}")
        return tok
    if half != 0: return None
    a = ST[m]
    for pp in range(2):
        s.salu(f"s_add_u32 m0, s{sLw}, {b*8192 + pp*1024}", swr=["m0"])
        if a.kind == "d":
            s.salu(f"s_add_u32 s{sT0}, s{sW1d}, {(64*a.s + 8*pp)*9216 + a.j*128}")
            tok = s.dma(vW1d, R_W1, f"s{sT0}")
        elif a.kind == "s":
            s.salu(f"s_add_u32 s{sT0}, s{sW1s}, {(a.rowbase + 16*pp)*9216}")
            tok = s.dma(vW1s, R_W1, f"s{sT0}")
        elif not a.shared:
            s.salu(f"s_add_u32 s{sT0}, s{sW2c+a.step}, {(64*a.i + 8*pp)*1152}")
            tok = s.dma(vW2, R_W2, f"s{sT0}")
        else:
            s.salu(f"s_add_u32 s{sT0}, s{sW2s+a.pair}, {8*pp*1152}")
            tok = s.dma(vW2, R_W2, f"s{sT0}")
    return tok

def setup_rest(s, half):
    L = vLane; a, b = vTmp, vTmp2; ch = half
    s.valu(f"v_lshrrev_b32 v{a}, 2, v{L}", wr=[a], rd=[L])
    s.valu(f"v_mul_u32_u24 v{vW1s}, 9216, v{a}", wr=[vW1s], rd=[a])
    s.valu(f"v_and_b32 v{a}, 3, v{L}", wr=[a], rd=[L])
    s.valu(f"v_lshl_add_u32 v{vW1s}, v{a}, 4, v{vW1s}", wr=[vW1s], rd=[a, vW1s])
    s.valu(f"v_bfe_u32 v{a}, v{L}, 1, 2", wr=[a], rd=[L])
    s.valu(f"v_lshrrev_b32 v{b}, 4, v{L}", wr=[b], rd=[L])
    s.valu(f"v_xor_b32 v{a}, v{a}, v{b}", wr=[a], rd=[a, b])
    s.valu(f"v_lshl_add_u32 v{vW2}, v{a}, 5, v{vW2}", wr=[vW2], rd=[a, vW2])
    s.valu(f"v_and_b32 v{a}, 1, v{L}", wr=[a], rd=[L])
    s.valu(f"v_lshl_add_u32 v{vW2}, v{a}, 4, v{vW2}", wr=[vW2], rd=[a, vW2])
    s.valu(f"v_lshlrev_b32 v{vL16}, 4, v{L}", wr=[vL16], rd=[L])
    r, c8, t = vT, vT+1, vT+2
    s.valu(f"v_bfe_u32 v{r}, v{L}, 2, 2", wr=[r], rd=[L])
    s.valu(f"v_and_b32 v{c8}, 3, v{L}", wr=[c8], rd=[L])
    s.valu(f"v_lshlrev_b32 v{c8}, 3, v{c8}", wr=[c8], rd=[c8])
    s.valu(f"v_lshrrev_b32 v{a}, 5, v{L}", wr=[a], rd=[L])
    s.valu(f"v_lshl_add_u32 v{t}, v{a}, 3, v{r}", wr=[t], rd=[a, r])
    s.valu(f"v_bfe_u32 v{b}, v{L}, 4, 1", wr=[b], rd=[L])
    s.valu(f"v_lshl_add_u32 v{b}, v{b}, 5, v{c8}", wr=[b], rd=[b, c8])
    s.valu(f"v_lshl_add_u32 v{vW1sR}, v{t}, 6, v{b}", wr=[vW1sR], rd=[t, b])
    s.valu(f"v_lshl_add_u32 v{vW1dR}, v{t}, 7, v{b}", wr=[vW1dR], rd=[t, b])
    s.valu(f"v_lshrrev_b32 v{t}, 1, v{r}", wr=[t], rd=[r])
    if ch: s.valu(f"v_xor_b32 v{t}, 1, v{t}", wr=[t], rd=[t])
    s.valu(f"v_lshl_add_u32 v{vW1dR}, v{t}, 6, v{vW1dR}", wr=[vW1dR], rd=[t, vW1dR])
    for k in (1, 2):
        s.valu(f"v_add_u32 v{vW1dR+k}, {65536*k}, v{vW1dR}", wr=[vW1dR+k], rd=[vW1dR])
        s.valu(f"v_add_u32 v{vW1sR+k}, {65536*k}, v{vW1sR}", wr=[vW1sR+k], rd=[vW1sR])
    s.valu(f"v_and_b32 v{b}, 31, v{L}", wr=[b], rd=[L])
    s.valu(f"v_bfe_u32 v{t}, v{L}, 1, 3", wr=[t], rd=[L])
    s.valu(f"v_xor_b32 v{t}, v{t}, v{a}", wr=[t], rd=[t, a])
    s.valu(f"v_lshlrev_b32 v{t}, 4, v{t}", wr=[t], rd=[t])
    s.valu(f"v_lshl_add_u32 v{t}, v{b}, 7, v{t}", wr=[t], rd=[b, t])
    s.valu(f"v_add_u32 v{t}, s{sLx}, v{t}", wr=[t], rd=[t], srd=[sLx])
    for sp in range(4):
        s.valu(f"v_xor_b32 v{vXR+sp}, {32*sp}, v{t}", wr=[vXR+sp], rd=[t])
        s.valu(f"v_add_u32 v{vXR+4+sp}, {XWIN0+65536}, v{vXR+sp}", wr=[vXR+4+sp], rd=[vXR+sp])
        s.valu(f"v_add_u32 v{vXR+sp}, {XWIN0}, v{vXR+sp}", wr=[vXR+sp], rd=[vXR+sp])
    s.salu(f"s_lshl_b32 s{sT0}, s{sD0}, 2"); s.salu(f"s_add_u32 s{sT0}, s{sT0}, {BIAS + 128*ch}")
    s.salu(f"s_lshl_b32 s{sT1}, s{sS0}, 2"); s.salu(f"s_add_u32 s{sT1}, s{sT1}, {BIAS}")
    return a

def setup_late(s, half):
    L = vLane; a, b = vTmp, vTmp2; ch = half
    ops = []
    def V(text, **k): ops.append(lambda: s.valu(text, **k))
    def S(text, **k): ops.append(lambda: s.salu(text, **k))
    V(f"v_and_b32 v{a}, 15, v{L}", wr=[a], rd=[L])
    V(f"v_lshlrev_b32 v{vHW}, 4, v{a}", wr=[vHW], rd=[a])
    V(f"v_bfe_u32 v{a}, v{L}, 4, 1", wr=[a], rd=[L])
    V(f"v_lshl_add_u32 v{vHW}, v{a}, 10, v{vHW}", wr=[vHW], rd=[a, vHW])
    V(f"v_lshrrev_b32 v{a}, 5, v{L}", wr=[a], rd=[L])
    V(f"v_lshl_add_u32 v{vHW}, v{a}, 8, v{vHW}", wr=[vHW], rd=[a, vHW])
    V(f"v_add_u32 v{vHW}, s{sLw}, v{vHW}", wr=[vHW], rd=[vHW], srd=[sLw])
    V(f"v_add_u32 v{vHW8}, {HBASE + 8*8192 + ch*512}, v{vHW}", wr=[vHW8], rd=[vHW])
    V(f"v_add_u32 v{vHW}, {HBASE + ch*8192}, v{vHW}", wr=[vHW], rd=[vHW])
    V(f"v_add_u32 v{vHR}, s{sLw}, v{vL16}", wr=[vHR], rd=[vL16], srd=[sLw])
    V(f"v_add_u32 v{vEXW}, {EXB + ch*8192}, v{vHR}", wr=[vEXW], rd=[vHR])
    V(f"v_add_u32 v{vEXR}, {EXB + (1-ch)*8192}, v{vHR}", wr=[vEXR], rd=[vHR])
    V(f"v_add_u32 v{vHR8}, {HBASE + 65536}, v{vHR}", wr=[vHR8], rd=[vHR])
    V(f"v_add_u32 v{vHR}, {HBASE}, v{vHR}", wr=[vHR], rd=[vHR])
    V(f"v_bfe_u32 v{a}, v{L}, 2, 3", wr=[a], rd=[L])
    V(f"v_lshrrev_b32 v{b}, 5, v{L}", wr=[b], rd=[L])
    V(f"v_lshl_add_u32 v{b}, v{b}, 4, v{a}", wr=[b], rd=[a, b])
    V(f"v_lshlrev_b32 v{vW2R}, 7, v{b}", wr=[vW2R], rd=[b])
    V(f"v_and_b32 v{b}, 3, v{L}", wr=[b], rd=[L])
    V(f"v_lshl_add_u32 v{vW2R}, v{b}, 3, v{vW2R}", wr=[vW2R], rd=[b, vW2R])
    V(f"v_lshrrev_b32 v{a}, 1, v{a}", wr=[a], rd=[a])
    V(f"v_xor_b32 v{a}, {2*ch}, v{a}", wr=[a], rd=[a])
    V(f"v_lshl_add_u32 v{vW2R}, v{a}, 5, v{vW2R}", wr=[vW2R], rd=[a, vW2R])
    V(f"v_xor_b32 v{vW2R+3}, 32, v{vW2R}", wr=[vW2R+3], rd=[vW2R])
    for dt in range(2):
        for k in (1, 2):
            V(f"v_add_u32 v{vW2R+3*dt+k}, {65536*k}, v{vW2R+3*dt}", wr=[vW2R+3*dt+k], rd=[vW2R+3*dt])
    V(f"v_mov_b32 v{vGA}, 0x{f2u(GA):08x}", wr=[vGA])
    S(f"s_mov_b32 s{sGB}, 0x{f2u(GB):08x}")
    return ops

def setup_scalars_b(s):
    def srd(r, base, size):
        s.salu(f"s_mov_b32 s{r}, s{base}"); s.salu(f"s_mov_b32 s{r+1}, s{base+1}")
        s.salu(f"s_mov_b32 s{r+2}, {size}"); s.salu(f"s_mov_b32 s{r+3}, 0x20000")
    srd(R_W2, S_W2, F*D*2); srd(R_WS, S_WS, 16*144*16*1024)
    s.salu(f"s_mul_i32 s{sT0}, s{sFS}, 288"); s.salu(f"s_add_u32 s{sT1}, s{sT0}, s{sD0}")
    s.salu(f"s_lshl_b32 s{sPo}, s{sRG}, 4"); s.salu(f"s_add_u32 s{sT1}, s{sT1}, s{sPo}")
    s.salu(f"s_mul_i32 s{sT1}, s{sT1}, 1152")
    for st in range(9): s.salu(f"s_add_u32 s{sW2c+st}, s{sT1}, {st*128}")
    s.salu(f"s_add_u32 s{sT0}, s{sT0}, s{sS0}"); s.salu(f"s_and_b32 s{sT1}, s{sRG}, 1"); s.salu(f"s_lshl_b32 s{sT1}, s{sT1}, 4")
    s.salu(f"s_add_u32 s{sT0}, s{sT0}, s{sT1}"); s.salu(f"s_mul_i32 s{sT0}, s{sT0}, 1152")
    s.salu(f"s_lshr_b32 s{sT1}, s{sRG}, 1"); s.salu(f"s_lshl_b32 s{sT1}, s{sT1}, 7")
    for pr in range(5):
        s.salu(f"s_add_u32 s{sW2s+pr}, s{sT0}, {2*pr*128}")
        if pr < 4: s.salu(f"s_add_u32 s{sW2s+pr}, s{sW2s+pr}, s{sT1}")
    s.salu(f"s_mul_i32 s{sT0}, s{sMT}, 144"); s.salu(f"s_lshl_b32 s{sT1}, s{sW}, 1"); s.salu(f"s_add_u32 s{sT0}, s{sT0}, s{sT1}")
    s.salu(f"s_lshl_b32 s{sT0}, s{sT0}, 4"); s.salu(f"s_add_u32 s{sT0}, s{sT0}, s{sFS}"); s.salu(f"s_lshl_b32 s{sPo}, s{sT0}, 10")
    for st in range(9): s.salu(f"s_add_u32 s{sPc+st}, s{sPo}, {st*16*16*1024}")

def gelu_group(s, regs, tb):
    ops = []
    T = [vT + (tb + i) % 8 for i in range(len(regs))]
    def V(text, **k): ops.append(lambda: s.valu(text, **k))
    for x, t in zip(regs, T): V(f"v_mul_f32 v{t}, v{x}, v{x}", wr=[t], rd=[x])
    for x, t in zip(regs, T): V(f"v_fma_f32 v{t}, v{t}, s{sGB}, v{vGA}", wr=[t], rd=[t, vGA], srd=[sGB])
    for x, t in zip(regs, T): V(f"v_mul_f32 v{t}, v{x}, v{t}", wr=[t], rd=[x, t])
    for x, t in zip(regs, T): V(f"v_exp_f32 v{t}, v{t}", wr=[t], rd=[t], trans=True)
    for x, t in zip(regs, T): V(f"v_add_f32 v{t}, 1.0, v{t}", wr=[t], rd=[t])
    for x, t in zip(regs, T): V(f"v_rcp_f32 v{t}, v{t}", wr=[t], rd=[t], trans=True)
    for x, t in zip(regs, T): V(f"v_mul_f32 v{x}, v{x}, v{t}", wr=[x], rd=[x, t])
    return ops
def cvt(s, d, a, b):
    return lambda: s.valu(f"v_cvt_pk_bf16_f32 v{d}, v{a}, v{b}", wr=[d], rd=[a, b])

def body(p, half, tokb):
    s = Stream(p)
    ch = half
    utok = {}
    for u in ISSUE[-2]:
        t = issue_unit(s, half, u)
        if t: utok[u] = t
    setup_rest(s, half)
    hh = vTmp
    s.wait(tokb)
    s.valu(f"v_lshlrev_b32 v{vBiasS}, 16, v{vBiasS}", wr=[vBiasS], rd=[vBiasS])
    s.valu(f"v_lshlrev_b32 v{vBias}, 2, v0", wr=[vBias])
    s.valu(f"v_add_u32 v{vBias}, {BIAS}, v{vBias}", wr=[vBias], rd=[vBias])
    tb = s.ds_write("ds_write_b32", vBias, vBiasS, 1, 0)
    s.wait(tb)
    s.valu(f"v_lshl_add_u32 v{vBias}, v{hh}, 4, s{sT0}", wr=[vBias], rd=[hh], srd=[sT0])
    s.valu(f"v_lshl_add_u32 v{vBiasS}, v{hh}, 4, s{sT1}", wr=[vBiasS], rd=[hh], srd=[sT1])
    setup_scalars_b(s)
    late = setup_late(s, half)
    for o in late: o()

    xblk = lambda i: vXF + 16*i
    dead = [xblk(2*i + (1-ch)) for i in range(4)]
    used = [xblk(2*i + ch) for i in range(4)]
    Hreg = {}
    for k in range(8):
        for mt in range(2): Hreg[(k, mt)] = dead[k//2] + (k % 2)*8 + mt*4
    for mt in range(2): Hreg[(8, mt)] = xblk(8) + (1-ch)*8 + mt*4
    ACC = [used[0], used[1], used[2]]
    accof = lambda step: ACC[step % 3]
    extra_bufs = [used[3], used[3]+4]
    PK2 = used[3] + 8

    fill = {}
    cur = [-1]
    def F(n, i, f): fill.setdefault((n, i), []).append(f)
    def spread(ops, n0, i0, n1):
        gaps = []
        for n in range(n0, n1+1):
            for i in range(ST[n].nm):
                if n == n0 and i < i0: continue
                gaps.append((n, i, 1.0 if ST[n].kind != "b" else 0.5))
        tot = sum(g[2] for g in gaps); acc = 0; k = 0
        for (n, i, w) in gaps:
            acc += w
            tgt = int(round(len(ops)*acc/tot))
            while k < tgt: F(n, i, ops[k]); k += 1
    need_before_bar = {}
    def hold(): return [None]
    def before_bar(n, h): need_before_bar.setdefault(n, []).append(h)
    need_before_mfma = {}
    def before_mfma(n, i, h): need_before_mfma.setdefault((n, i), []).append(h)

    for j in range(4):
        S = vS[j % 2]
        ops = []
        for e in range(2):
            for g in (2*e, 2*e+1):
                ops += gelu_group(s, [S+4*g+i for i in range(4)], 4*g)
                ops.append(cvt(s, vP+2*g, S+4*g, S+4*g+1)); ops.append(cvt(s, vP+2*g+1, S+4*g+2, S+4*g+3))
            h = hold()
            def wr(h=h, e=e, j=j):
                assert cur[0] >= HWSTAGE[j], (j, cur[0])
                h[0] = s.ds_write("ds_write_b128", vHW, vP+4*e, 4, 2*j*8192 + e*512)
            ops.append(wr)
            before_bar(9*(j+2) if j < 3 else B0+5, h)
        if j < 3: spread(ops, 9*(j+1), 2, 9*(j+1)+7)
        else: spread(ops, 36, 2, B0+2)
    for j in range(1, 5):
        S = vS[j % 2]
        if j == 4 and ch == 1: continue
        for g in range(4):
            h = hold()
            def rd(h=h, g=g, j=j, S=S):
                h[0] = s.ds_read("ds_read_b128", S+4*g, 4, vBias if j < 4 else vBiasS, (j*256 if j < 4 else 0) + g*32)
            F(9*j-1, g, rd); before_mfma(9*j, 0, h)
    S = vS[0]
    snd = S + 8*(1-ch); own = S + 8*ch
    for e in range(2):
        h = hold()
        def wr(h=h, e=e): h[0] = s.ds_write("ds_write_b128", vEXW, snd+4*e, 4, e*1024)
        F(B0, 5+e, wr); before_bar(B0+1, h)
    hx = []
    for e in range(2):
        h = hold(); hx.append(h)
        def rd(h=h, e=e): h[0] = s.ds_read("ds_read_b128", snd+4*e, 4, vEXR, e*1024)
        F(B0+1, e, rd); before_bar(B0+2, h)
    ops = [lambda: s.wait(hx[0][0], hx[1][0])]
    for i in range(8):
        ops.append(lambda i=i: s.valu(f"v_add_f32 v{own+i}, v{own+i}, v{snd+i}", wr=[own+i], rd=[own+i, snd+i]))
    for g in range(2):
        ops += gelu_group(s, [own+4*g+i for i in range(4)], 4*g)
        ops.append(cvt(s, PK2+2*g, own+4*g, own+4*g+1)); ops.append(cvt(s, PK2+2*g+1, own+4*g+2, own+4*g+3))
    h = hold()
    def wr8(h=h): h[0] = s.ds_write("ds_write_b128", vHW8, PK2, 4, 0)
    ops.append(wr8); before_bar(B0+7, h)
    spread(ops, B0+3, 0, B0+6)
    hrd = {}
    def hread(k, n, i):
        for mt in range(2):
            h = hold(); hrd[(k, mt)] = h
            def rd(h=h, k=k, mt=mt):
                if k < 8: h[0] = s.ds_read("ds_read_b128", Hreg[(k, mt)], 4, vHR, k*8192 + mt*1024)
                else: h[0] = s.ds_read("ds_read_b128", Hreg[(k, mt)], 4, vHR8, mt*1024)
            F(n, i, rd)
    for k in range(6): hread(k, 37 + k//2, 1 + 2*(k % 2))
    hread(6, B0+5, 2); hread(7, B0+5, 5); hread(8, B0+7, 3)
    last_stage = {}
    for a in ST[B0:]:
        for (step, dt, k, kl) in a.parts: last_stage[step] = a.n
    pk_sets = [vP, PK2]
    tail_ops = []
    for step in range(9):
        A = accof(step); PK = pk_sets[step % 2] if step >= 2 else (vP if step == 0 else vT)
        ops = []
        for dt in range(2):
            for mt in range(2):
                for e in range(2):
                    ops.append(cvt(s, PK+4*dt+2*mt+e, A+8*dt+4*mt+2*e, A+8*dt+4*mt+2*e+1))
            def st_(dt=dt, step=step, PK=PK):
                s.salu(f"s_add_u32 s{sT1}, s{sPc+step}, {dt*16*1024}")
                s.vstore("buffer_store_dwordx4", PK+4*dt, 4, vL16, R_WS, f"s{sT1}", flags=cfg.store_flags)
            ops.append(st_)
        n = last_stage[step] + 1
        if step == 1: n += 1
        if n < NST: spread(ops, n, 2, n)
        else: tail_ops += ops

    freebufs = [vWF+4*i for i in range(4)]
    frag = {}
    def plan_frag(n, f):
        a = ST[n]; b = BLK[("w", n)]
        hs = [hold(), hold()]; ent = [None, hs]; frag[(n, f)] = ent
        def mk(rd):
            def go():
                if rd == 0: ent[0] = freebufs.pop(0)
                if a.kind == "d": base, off = vW1dR, b*8192 + (16*f + 4*rd)*128
                elif a.kind == "s":
                    ks = (4*ch + f) if a.i < 4 else (4 + 2*ch + f)
                    base, off = vW1sR, b*8192 + (16*ks + 4*rd)*64
                else:
                    (step, dt, k, kl) = a.parts[f]
                    base, off = vW2R + 3*dt, b*8192 + kl*4096 + rd*1024
                w_, o_ = win(off)
                hs[rd][0] = s.ds_read("ds_read_b64_tr_b16", ent[0] + 2*rd, 2, base + w_, o_)
            return go
        return [mk(0), mk(1)]
    def nfrag(n): return ST[n].nm if ST[n].kind != "b" else len(ST[n].parts)
    xtok = {}
    def xread(n, sp):
        b = BLK[("x", n)]
        off = b*8192 - XWIN0
        w_, o_ = win(off)
        def go(): xtok[(n, sp)] = s.ds_read("ds_read_b128", vXF + 16*n + 4*sp, 4, vXR + 4*w_ + sp, o_)
        return go
    pre = {}
    def P(n, i, f): pre.setdefault((n, i), []).append(f)
    for n in range(1, NST):
        prev = ST[n-1]
        rds = []
        for f in range(nfrag(n)): rds += plan_frag(n, f)
        if prev.kind != "b":
            per = -(-len(rds)//prev.nm)
            for k, r in enumerate(rds): P(n-1, min(k//per, prev.nm-1), r)
        else:
            per = -(-len(rds)//prev.nm)
            for k, r in enumerate(rds): P(n-1, min(k//per, prev.nm-1), r)
        if n < 9:
            for sp in range(4): P(n-1, sp, xread(n, sp))

    s.wait(utok.get(("w", 0)), utok.get(("x", 0)))
    s.barrier()
    for u in ISSUE[-1]:
        t = issue_unit(s, half, u)
        if t: utok[u] = t
    for g in range(4):
        h = hold(); h[0] = s.ds_read("ds_read_b128", vS[0]+4*g, 4, vBias, g*32); before_mfma(0, 0, h)
    for f in range(4):
        xread(0, f)()
        for r in plan_frag(0, f): r()

    started = set()
    for a in ST:
        n = a.n
        if n == B0 - 1: freebufs.extend(extra_bufs)
        for i in range(a.nm):
            toks = [h[0] for h in need_before_mfma.get((n, i), [])]
            assert all(t is not None for t in toks), (n, i)
            cur[0] = n
            if a.kind == "d":
                reg, hs = frag[(n, i)]
                toks += [hs[0][0], hs[1][0]]
                if a.j == 0: toks.append(xtok[(n, i)])
                s.wait(*toks)
                S = vS[a.j % 2]
                s.mfma32(S, reg, vXF + 16*a.s + 4*i, S)
                freebufs.append(reg)
            elif a.kind == "s":
                reg, hs = frag[(n, i)]
                toks += [hs[0][0], hs[1][0]]
                s.wait(*toks)
                ks = (8*a.i + 4*ch + i) if a.i < 4 else (32 + 2*ch + i)
                first = (a.i == 0 and i == 0)
                s.mfma32(vS[0], reg, vXF + 4*ks, None if (first and ch == 1) else vS[0])
                freebufs.append(reg)
            else:
                if not a.shared:
                    g = i//4; mt = (i//2) % 2; f = 2*g + i % 2
                    lastuse = (mt == 1)
                else:
                    f = i//2; mt = i % 2; lastuse = (mt == 1)
                (step, dt, k, kl) = a.parts[f]
                reg, hs = frag[(n, f)]
                toks += [hs[0][0], hs[1][0], hrd[(k, mt)][0]]
                assert all(t is not None for t in toks), (n, i)
                s.wait(*toks)
                d = accof(step) + 8*dt + 4*mt
                key = (step, dt, mt)
                s.mfma16(d, reg, Hreg[(k, mt)], d if key in started else None)
                started.add(key)
                if lastuse: freebufs.append(reg)
            if i == 0 and n < NST-1:
                assert all(h[0] is not None for h in need_before_bar.get(n, [])), n
                assert (("w", n+1) in utok) == (half == 0)
                toks = [utok.get(("w", n+1)), utok.get(("x", n+1))] + [h[0] for h in need_before_bar.get(n, [])]
                s.wait(*toks)
                s.barrier()
            for f in pre.get((n, i), []): f()
            if i == (1 if a.nm > 2 else 0):
                for u in ISSUE.get(n, []):
                    t = issue_unit(s, half, u)
                    if t: utok[u] = t
            for f in fill.get((n, i), []): f()
    for f in tail_ops: f()
    s.salu("s_endpgm")
    return s

def main_kernel():
    p = Stream()
    tokb = prologue(p)
    p.salu(f"s_cmp_ge_u32 s{sW}, 4", srd=[sW]); p.salu("s_cbranch_scc1 L_half1")
    h0 = body(p, 0, tokb); h1 = body(p, 1, tokb)
    txt = p.text() + "\n" + h0.text() + "\n.p2align 6\nL_half1:\n" + h1.text() + "\nL_main_end:\n    s_endpgm\n"
    return txt, (h0.nops, h1.nops, len(h0.ins), len(h1.ins))

def reduce_kernel():
    s = Stream()
    s.salu("s_cmp_ge_u32 s2, 576"); s.salu("s_cbranch_scc1 L_red_end")
    s.salu("s_load_dwordx4 s[12:15], s[0:1], 32")
    s.salu("s_load_dwordx2 s[18:19], s[0:1], 56")
    s.valu("v_lshrrev_b32 v2, 6, v0", wr=[2]); s.valu("v_and_b32 v1, 63, v0", wr=[1])
    s.valu("v_readfirstlane_b32 s40, v2", rd=[2], swr=[40])
    s.salu("s_lshl_b32 s41, s2, 2"); s.salu("s_add_u32 s41, s41, s40", srd=[40])
    s.salu("s_lshl_b32 s42, s41, 14")
    s.valu("v_lshlrev_b32 v3, 4, v1", wr=[3], rd=[1])
    s.salu(f"s_mul_hi_u32 s43, s41, {-(-(1<<32)//144)}")
    s.salu("s_mul_i32 s44, s43, 144"); s.salu("s_sub_u32 s44, s41, s44")
    s.wait_all(v=False)
    s.salu("s_mov_b32 s32, s18"); s.salu("s_mov_b32 s33, s19"); s.salu(f"s_mov_b32 s34, {16*144*16*1024}"); s.salu("s_mov_b32 s35, 0x20000")
    toks = []
    for f in range(16):
        if f % 4 == 0 and f: s.salu("s_add_u32 s42, s42, 4096")
        toks.append(s.vload("buffer_load_dwordx4", 16+4*f, 4, 3, 32, "s42", off=(f % 4)*1024))
    s.salu("s_mov_b32 s20, s12"); s.salu("s_mov_b32 s21, s13"); s.salu(f"s_mov_b32 s22, {D*2}"); s.salu("s_mov_b32 s23, 0x20000")
    s.salu("s_mov_b32 s24, s14"); s.salu("s_mov_b32 s25, s15"); s.salu(f"s_mov_b32 s26, {M*D*2}"); s.salu("s_mov_b32 s27, 0x20000")
    s.salu("s_lshr_b32 s45, s44, 4"); s.salu("s_lshl_b32 s45, s45, 6")
    s.salu("s_bfe_u32 s46, s44, 0x10003"); s.salu("s_lshl_b32 s46, s46, 5"); s.salu("s_add_u32 s45, s45, s46")
    s.salu("s_and_b32 s46, s44, 1"); s.salu("s_lshl_b32 s46, s46, 4"); s.salu("s_add_u32 s45, s45, s46")
    s.salu("s_lshl_b32 s45, s45, 1")
    s.salu("s_bfe_u32 s46, s44, 0x20001"); s.salu("s_lshl_b32 s46, s46, 5")
    s.salu("s_lshl_b32 s47, s43, 7"); s.salu("s_add_u32 s46, s46, s47"); s.salu("s_mul_i32 s46, s46, 1152")
    s.salu("s_add_u32 s46, s46, s45")
    s.valu("v_lshrrev_b32 v4, 4, v1", wr=[4], rd=[1]); s.valu("v_lshlrev_b32 v4, 3, v4", wr=[4], rd=[4])
    tb = s.vload("buffer_load_dwordx2", 6, 2, 4, 20, "s45")
    s.valu("v_and_b32 v5, 15, v1", wr=[5], rd=[1]); s.valu("v_mul_u32_u24 v5, 1152, v5", wr=[5], rd=[5]); s.valu("v_add_u32 v5, v5, v4", wr=[5], rd=[4, 5])
    s.salu("s_mov_b32 s48, 0xffff0000")
    acc = 96
    for f in range(16):
        s.wait(toks[f])
        for r in range(4):
            v = 16+4*f+r
            if f == 0:
                s.valu(f"v_lshlrev_b32 v{acc+2*r}, 16, v{v}", wr=[acc+2*r], rd=[v])
                s.valu(f"v_and_b32 v{acc+2*r+1}, s48, v{v}", wr=[acc+2*r+1], rd=[v])
            else:
                s.valu(f"v_lshlrev_b32 v8, 16, v{v}", wr=[8], rd=[v])
                s.valu(f"v_and_b32 v9, s48, v{v}", wr=[9], rd=[v])
                s.valu(f"v_add_f32 v{acc+2*r}, v{acc+2*r}, v8", wr=[acc+2*r], rd=[acc+2*r, 8])
                s.valu(f"v_add_f32 v{acc+2*r+1}, v{acc+2*r+1}, v9", wr=[acc+2*r+1], rd=[acc+2*r+1, 9])
    s.wait(tb)
    for r in range(2):
        s.valu(f"v_lshlrev_b32 v{10+2*r}, 16, v{6+r}", wr=[10+2*r], rd=[6+r])
        s.valu(f"v_and_b32 v{11+2*r}, s48, v{6+r}", wr=[11+2*r], rd=[6+r])
    for mt in range(2):
        for r in range(4):
            s.valu(f"v_add_f32 v{acc+4*mt+r}, v{acc+4*mt+r}, v{10+r}", wr=[acc+4*mt+r], rd=[acc+4*mt+r, 10+r])
    for k in range(4):
        s.valu(f"v_cvt_pk_bf16_f32 v{104+k}, v{acc+2*k}, v{acc+2*k+1}", wr=[104+k], rd=[acc+2*k, acc+2*k+1])
    s.vstore("buffer_store_dwordx2", 104, 2, 5, 24, "s46")
    s.salu(f"s_add_u32 s46, s46, {16*1152}")
    s.vstore("buffer_store_dwordx2", 106, 2, 5, 24, "s46")
    return s.text() + "\nL_red_end:\n    s_endpgm\n"

def kd(name, vg, sg):
    return f""".amdhsa_kernel {name}
  .amdhsa_next_free_vgpr {vg}
  .amdhsa_next_free_sgpr {sg}
  .amdhsa_accum_offset {(vg+3)//4*4}
  .amdhsa_group_segment_fixed_size 0
  .amdhsa_kernarg_size 64
  .amdhsa_user_sgpr_count 2
  .amdhsa_user_sgpr_kernarg_segment_ptr 1
  .amdhsa_system_sgpr_workgroup_id_x 1
  .amdhsa_float_denorm_mode_32 3
.end_amdhsa_kernel
"""

def generate():
    mk, stats = main_kernel()
    rk = reduce_kernel()
    k1 = NAME + "_kernel"; k2 = "mlp_reduce_kernel"
    out = f"""; fused MLP: gelu(x@w1+b1)@w2+b2  (generated)
; @launch kernel={k1} grid=(256,1,1) block=(512,1,1) lds=163840
; @launch kernel={k2} grid=(576,1,1) block=(256,1,1) lds=0
.amdgcn_target "amdgcn-amd-amdhsa--gfx950"
.text
.globl {k1}
.p2align 8
.type {k1},@function
{k1}:
{mk}
.globl {k2}
.p2align 8
.type {k2},@function
{k2}:
{rk}
.section .rodata,"a"
.p2align 6
{kd(k1, 256, 96)}.p2align 6
{kd(k2, 112, 64)}"""
    return out, stats

if __name__ == "__main__":
    for a in sys.argv[2:]:
        k, v = a.split("=", 1)
        setattr(cfg, k, {"True": True, "False": False}.get(v, v))
    txt, stats = generate()
    open(sys.argv[1], "w").write(txt)
    print("nops/ins:", stats, "bytes", len(txt))
    for b in sorted(ISSUE):
        if b < 12 or 34 <= b <= 44: print(b, [(u, BLK[u]) for u in ISSUE[b]])
```

```python
import sys, struct
from emit import Stream, vr, sr, rng

NAME = "standalone__dense_activation_gelu__prompt"
M, D, F = 2048, 576, 4608
def f2u(x): return struct.unpack("<I", struct.pack("<f", x))[0]
GA = -2.0*0.7978845608028654*1.4426950408889634
GB = GA*0.044715

class Cfg:
    store_flags = ""
    mapping = "8x4"
    prefetch = False
    dbg = False
    stamps = False
    wsoff = "0"
cfg = Cfg()

S_X, S_W1, S_B1, S_W2, S_B2, S_OUT, S_DBG, S_WS = 4, 6, 8, 10, 12, 14, 16, 18
R_X, R_W1, R_W2, R_WS, R_B1 = 20, 24, 28, 32, 36
sW, sRG, sMT, sFS, sD0, sS0 = 40, 41, 42, 43, 44, 45
sXo, sW1d, sW1s, sLx, sLw, sT0, sT1, sGB, sPo = 46, 47, 48, 49, 50, 51, 52, 53, 54
sW2c = 56
sW2s = 65
sPc = 70
vLane, vL16 = 1, 2
vX0, vX1, vW1d, vW1s, vW2 = 3, 4, 5, 6, 7
vW1dR = 8
vW1sR = 11
vW2R = 14
vHW, vHW8, vHR, vHR8 = 20, 21, 22, 23
vBias, vBiasS, vEXW, vEXR, vGA, vTmp, vTmp2 = 24, 25, 26, 27, 28, 29, 30
vXR = 32
vT = 48
vP = 56
vWF = 64
vS = (80, 96)
vXF = 112

NBLK = 19
HB = 10
HBASE = HB*8192
BIAS = 19*8192
EXB = 18*8192
XWIN0 = 7*8192

class St: pass
def build_stages():
    st = []
    for j in range(4):
        for s in range(9):
            a = St(); a.kind = "d"; a.j = j; a.s = s; a.nm = 4; st.append(a)
    for i in range(5):
        a = St(); a.kind = "s"; a.i = i; a.nm = 4 if i < 4 else 2; a.rowbase = 128*i if i < 4 else 448; st.append(a)
    def full(step, i):
        a = St(); a.kind = "b"; a.nm = 8; a.shared = False; a.step = step; a.i = i
        a.parts = [(step, dt, 2*i+kk, kk) for dt in range(2) for kk in range(2)]
        return a
    def shared(sa, sb, pair):
        a = St(); a.kind = "b"; a.shared = True; a.pair = pair; a.sa = sa; a.sb = sb
        a.parts = [(sa, 0, 8, 0), (sa, 1, 8, 0)] + ([(sb, 0, 8, 1), (sb, 1, 8, 1)] if sb is not None else [])
        a.nm = 2*len(a.parts)
        return a
    for i in range(4):
        st.append(full(0, i)); st.append(full(1, i))
    st.append(shared(0, 1, 0))
    for p in range(1, 4):
        a, b = 2*p, 2*p+1
        for i in range(4): st.append(full(a, i))
        st.append(shared(a, b, p))
        for i in range(4): st.append(full(b, i))
    for i in range(4): st.append(full(8, i))
    st.append(shared(8, None, 4))
    for n, a in enumerate(st): a.n = n
    return st
ST = build_stages()
NST = len(ST)
B0 = 41
HWSTAGE = {0: 9+3, 1: 18+3, 2: 27+3, 3: 36+2}

def alloc_blocks():
    res = {}
    for j in range(4):
        for k in (2*j, 2*j+1): res[HB+k] = HWSTAGE[j]
    res[HB+8] = B0
    units = []
    for n in range(NST):
        if n < 9: units.append(("x", n))
        units.append(("w", n))
    busy = {}
    issue = {}; blk = {}
    ui = 0
    def ok(b, m): return b not in busy and (b not in res or m+1 <= res[b])
    for bar in range(-2, NST):
        for b in [b for b, m in busy.items() if m+1 <= bar]: del busy[b]
        lst = []
        while ui < len(units):
            kind, m = units[ui]
            if kind == "x":
                c = [b for b in range(7, NBLK-1, 2) if ok(b, m) and ok(b+1, m)]
                if not c: break
                b = c[0]; busy[b] = m; busy[b+1] = m
            else:
                c = [b for b in list(range(0, HB)) + list(range(HB, NBLK)) if ok(b, m)]
                if m < 9:
                    c = [b for b in c if b < 7]
                elif any(k == "x" for k, _ in units[ui:]):
                    c = [b for b in c if b < 7]
                if not c: break
                b = c[0]; busy[b] = m
            blk[(kind, m)] = b; lst.append((kind, m)); ui += 1
            if bar >= 0 and len([u for u in lst if u[0] == "w"]) >= 2: break
        issue[bar] = lst
    assert ui == len(units)
    for (k, m), b in blk.items():
        ib = [bar for bar, l in issue.items() if (k, m) in l][0]
        assert ib <= m-1, (k, m, ib)
    return issue, blk
ISSUE, BLK = alloc_blocks()

def win(addr):
    return addr // 65536, addr % 65536

def prologue(p):
    p.salu("s_cmp_ge_u32 s2, 256"); p.salu("s_cbranch_scc1 L_main_end")
    if cfg.stamps:
        p.salu("s_memrealtime s[96:97]"); p.wait_all(v=False); p.salu(f"s_mov_b32 s80, s96")
    p.salu("s_load_dwordx16 s[4:19], s[0:1], 0")
    p.valu(f"v_lshrrev_b32 v{vTmp}, 6, v0", wr=[vTmp])
    p.valu(f"v_and_b32 v{vLane}, 63, v0", wr=[vLane])
    p.valu(f"v_readfirstlane_b32 s{sW}, v{vTmp}", rd=[vTmp], swr=[sW])
    p.salu(f"s_and_b32 s{sT0}, s2, 7"); p.salu(f"s_lshr_b32 s{sT1}, s2, 3")
    if cfg.mapping == "8x4":
        p.salu(f"s_and_b32 s{sMT}, s{sT0}, 1"); p.salu(f"s_lshl_b32 s{sMT}, s{sMT}, 3")
        p.salu(f"s_lshr_b32 s{sFS}, s{sT1}, 2"); p.salu(f"s_add_u32 s{sMT}, s{sMT}, s{sFS}")
        p.salu(f"s_lshr_b32 s{sFS}, s{sT0}, 1"); p.salu(f"s_lshl_b32 s{sFS}, s{sFS}, 2")
        p.salu(f"s_and_b32 s{sT1}, s{sT1}, 3"); p.salu(f"s_add_u32 s{sFS}, s{sFS}, s{sT1}")
    else:
        p.salu(f"s_lshr_b32 s{sMT}, s{sT1}, 1")
        p.salu(f"s_lshl_b32 s{sFS}, s{sT0}, 1"); p.salu(f"s_and_b32 s{sT1}, s{sT1}, 1"); p.salu(f"s_add_u32 s{sFS}, s{sFS}, s{sT1}")
    p.salu(f"s_and_b32 s{sRG}, s{sW}, 3", srd=[sW])
    p.salu(f"s_and_b32 s{sT0}, s{sFS}, 1")
    p.salu(f"s_lshl_b32 s{sD0}, s{sT0}, 5")
    p.salu(f"s_xor_b32 s{sT0}, s{sT0}, 1"); p.salu(f"s_lshl_b32 s{sS0}, s{sT0}, 8")
    p.salu(f"s_lshl_b32 s{sT0}, s{sMT}, 7"); p.salu(f"s_lshl_b32 s{sT1}, s{sRG}, 5"); p.salu(f"s_add_u32 s{sT0}, s{sT0}, s{sT1}")
    p.salu(f"s_mul_i32 s{sXo}, s{sT0}, 1152")
    p.salu(f"s_lshl_b32 s{sLx}, s{sRG}, 12"); p.salu(f"s_lshl_b32 s{sLw}, s{sRG}, 11")
    p.salu(f"s_mul_i32 s{sT0}, s{sFS}, 576")
    p.salu(f"s_mul_i32 s{sT1}, s{sRG}, {16*9216}"); p.salu(f"s_add_u32 s{sW1d}, s{sT0}, s{sT1}")
    p.salu(f"s_lshl_b32 s{sT1}, s{sD0}, 1"); p.salu(f"s_add_u32 s{sW1d}, s{sW1d}, s{sT1}")
    p.salu(f"s_mul_i32 s{sT1}, s{sRG}, {32*9216}"); p.salu(f"s_add_u32 s{sW1s}, s{sT0}, s{sT1}")
    p.salu(f"s_lshl_b32 s{sT1}, s{sS0}, 1"); p.salu(f"s_add_u32 s{sW1s}, s{sW1s}, s{sT1}")
    L = vLane; a, b = vTmp, vTmp2
    p.valu(f"v_lshrrev_b32 v{a}, 3, v{L}", wr=[a], rd=[L])
    p.valu(f"v_mul_u32_u24 v{vX0}, 1152, v{a}", wr=[vX0], rd=[a])
    p.valu(f"v_mul_u32_u24 v{vW1d}, 9216, v{a}", wr=[vW1d], rd=[a])
    p.valu(f"v_mov_b32 v{vW2}, v{vX0}", wr=[vW2], rd=[vX0])
    p.valu(f"v_lshrrev_b32 v{a}, 4, v{L}", wr=[a], rd=[L])
    p.valu(f"v_and_b32 v{b}, 7, v{L}", wr=[b], rd=[L])
    p.valu(f"v_xor_b32 v{b}, v{a}, v{b}", wr=[b], rd=[a, b])
    p.valu(f"v_lshl_add_u32 v{vX0}, v{b}, 4, v{vX0}", wr=[vX0], rd=[b, vX0])
    p.valu(f"v_xor_b32 v{vX1}, 64, v{vX0}", wr=[vX1], rd=[vX0])
    p.valu(f"v_add_u32 v{vX1}, 9216, v{vX1}", wr=[vX1], rd=[vX1])
    p.valu(f"v_and_b32 v{b}, 1, v{a}", wr=[b], rd=[a])
    p.valu(f"v_lshlrev_b32 v{b}, 2, v{b}", wr=[b], rd=[b])
    p.valu(f"v_and_b32 v{vW1s}, 7, v{L}", wr=[vW1s], rd=[L])
    p.valu(f"v_xor_b32 v{b}, v{b}, v{vW1s}", wr=[b], rd=[b, vW1s])
    p.valu(f"v_lshl_add_u32 v{vW1d}, v{b}, 4, v{vW1d}", wr=[vW1d], rd=[b, vW1d])
    p.wait_all(v=False)
    def srd(r, base, size):
        p.salu(f"s_mov_b32 s{r}, s{base}"); p.salu(f"s_mov_b32 s{r+1}, s{base+1}")
        p.salu(f"s_mov_b32 s{r+2}, {size}"); p.salu(f"s_mov_b32 s{r+3}, 0x20000")
    srd(R_X, S_X, M*D*2); srd(R_W1, S_W1, D*F*2); srd(R_B1, S_B1, F*2)
    p.salu(f"s_mul_i32 s{sT0}, s{sFS}, 576")
    p.valu(f"v_lshlrev_b32 v{vBias}, 1, v0", wr=[vBias])
    tokb = p.vload("buffer_load_ushort", vBiasS, 1, vBias, R_B1, f"s{sT0}")
    return tokb

sST = 80
STAMPS = []
def stamp(s, idx):
    if not cfg.stamps: return
    s.wait_all(v=False)
    s.salu(f"s_memrealtime s[96:97]")
    s.wait_all(v=False)
    s.salu(f"s_mov_b32 s{sST+idx}, s96")
def stamp_flush(s, n):
    if not cfg.stamps: return
    s.salu(f"s_lshl_b32 s{sT0}, s2, 3"); s.salu(f"s_add_u32 s{sT0}, s{sT0}, s{sW}"); s.salu(f"s_mul_i32 s{sT0}, s{sT0}, {4*n}")
    s.salu(f"s_add_u32 s{sT0}, s{sT0}, {128<<20}")
    s.salu(f"s_mov_b32 s{R_WS+2}, 0x10000000")
    s.valu(f"v_mov_b32 v{vTmp2}, 0", wr=[vTmp2])
    for i in range(n):
        s.valu(f"v_mov_b32 v{vTmp}, s{sST+i}", wr=[vTmp])
        s.vstore("buffer_store_dword", vTmp, 1, vTmp2, R_WS, f"s{sT0}", off=4*i)
        s.wait_all(l=False)

def issue_unit(s, half, u):
    kind, m = u
    b = BLK[u]
    tok = None
    if kind == "x":
        if half != 1: return None
        for pp in range(4):
            s.salu(f"s_add_u32 m0, s{sLx}, {b*8192 + pp*1024}", swr=["m0"])
            s.salu(f"s_add_u32 s{sT0}, s{sXo}, {16*(pp//2)*1152 + m*128}")
            tok = s.dma(vX0 if pp % 2 == 0 else vX1, R_X, f"s{sT0}")
        return tok
    if half != 0: return None
    a = ST[m]
    for pp in range(2):
        s.salu(f"s_add_u32 m0, s{sLw}, {b*8192 + pp*1024}", swr=["m0"])
        if a.kind == "d":
            s.salu(f"s_add_u32 s{sT0}, s{sW1d}, {(64*a.s + 8*pp)*9216 + a.j*128}")
            tok = s.dma(vW1d, R_W1, f"s{sT0}")
        elif a.kind == "s":
            s.salu(f"s_add_u32 s{sT0}, s{sW1s}, {(a.rowbase + 16*pp)*9216}")
            tok = s.dma(vW1s, R_W1, f"s{sT0}")
        elif not a.shared:
            s.salu(f"s_add_u32 s{sT0}, s{sW2c+a.step}, {(64*a.i + 8*pp)*1152}")
            tok = s.dma(vW2, R_W2, f"s{sT0}")
        else:
            s.salu(f"s_add_u32 s{sT0}, s{sW2s+a.pair}, {8*pp*1152}")
            tok = s.dma(vW2, R_W2, f"s{sT0}")
    return tok

def setup_rest(s, half):
    L = vLane; a, b = vTmp, vTmp2; ch = half
    s.valu(f"v_lshrrev_b32 v{a}, 2, v{L}", wr=[a], rd=[L])
    s.valu(f"v_mul_u32_u24 v{vW1s}, 9216, v{a}", wr=[vW1s], rd=[a])
    s.valu(f"v_and_b32 v{a}, 3, v{L}", wr=[a], rd=[L])
    s.valu(f"v_lshl_add_u32 v{vW1s}, v{a}, 4, v{vW1s}", wr=[vW1s], rd=[a, vW1s])
    s.valu(f"v_bfe_u32 v{a}, v{L}, 1, 2", wr=[a], rd=[L])
    s.valu(f"v_lshrrev_b32 v{b}, 4, v{L}", wr=[b], rd=[L])
    s.valu(f"v_xor_b32 v{a}, v{a}, v{b}", wr=[a], rd=[a, b])
    s.valu(f"v_lshl_add_u32 v{vW2}, v{a}, 5, v{vW2}", wr=[vW2], rd=[a, vW2])
    s.valu(f"v_and_b32 v{a}, 1, v{L}", wr=[a], rd=[L])
    s.valu(f"v_lshl_add_u32 v{vW2}, v{a}, 4, v{vW2}", wr=[vW2], rd=[a, vW2])
    s.valu(f"v_lshlrev_b32 v{vL16}, 4, v{L}", wr=[vL16], rd=[L])
    r, c8, t = vT, vT+1, vT+2
    s.valu(f"v_bfe_u32 v{r}, v{L}, 2, 2", wr=[r], rd=[L])
    s.valu(f"v_and_b32 v{c8}, 3, v{L}", wr=[c8], rd=[L])
    s.valu(f"v_lshlrev_b32 v{c8}, 3, v{c8}", wr=[c8], rd=[c8])
    s.valu(f"v_lshrrev_b32 v{a}, 5, v{L}", wr=[a], rd=[L])
    s.valu(f"v_lshl_add_u32 v{t}, v{a}, 3, v{r}", wr=[t], rd=[a, r])
    s.valu(f"v_bfe_u32 v{b}, v{L}, 4, 1", wr=[b], rd=[L])
    s.valu(f"v_lshl_add_u32 v{b}, v{b}, 5, v{c8}", wr=[b], rd=[b, c8])
    s.valu(f"v_lshl_add_u32 v{vW1sR}, v{t}, 6, v{b}", wr=[vW1sR], rd=[t, b])
    s.valu(f"v_lshl_add_u32 v{vW1dR}, v{t}, 7, v{b}", wr=[vW1dR], rd=[t, b])
    s.valu(f"v_lshrrev_b32 v{t}, 1, v{r}", wr=[t], rd=[r])
    if ch: s.valu(f"v_xor_b32 v{t}, 1, v{t}", wr=[t], rd=[t])
    s.valu(f"v_lshl_add_u32 v{vW1dR}, v{t}, 6, v{vW1dR}", wr=[vW1dR], rd=[t, vW1dR])
    for k in (1, 2):
        s.valu(f"v_add_u32 v{vW1dR+k}, {65536*k}, v{vW1dR}", wr=[vW1dR+k], rd=[vW1dR])
        s.valu(f"v_add_u32 v{vW1sR+k}, {65536*k}, v{vW1sR}", wr=[vW1sR+k], rd=[vW1sR])
    s.valu(f"v_and_b32 v{b}, 31, v{L}", wr=[b], rd=[L])
    s.valu(f"v_bfe_u32 v{t}, v{L}, 1, 3", wr=[t], rd=[L])
    s.valu(f"v_xor_b32 v{t}, v{t}, v{a}", wr=[t], rd=[t, a])
    s.valu(f"v_lshlrev_b32 v{t}, 4, v{t}", wr=[t], rd=[t])
    s.valu(f"v_lshl_add_u32 v{t}, v{b}, 7, v{t}", wr=[t], rd=[b, t])
    s.valu(f"v_add_u32 v{t}, s{sLx}, v{t}", wr=[t], rd=[t], srd=[sLx])
    for sp in range(4):
        s.valu(f"v_xor_b32 v{vXR+sp}, {32*sp}, v{t}", wr=[vXR+sp], rd=[t])
        s.valu(f"v_add_u32 v{vXR+4+sp}, {XWIN0+65536}, v{vXR+sp}", wr=[vXR+4+sp], rd=[vXR+sp])
        s.valu(f"v_add_u32 v{vXR+sp}, {XWIN0}, v{vXR+sp}", wr=[vXR+sp], rd=[vXR+sp])
    s.salu(f"s_lshl_b32 s{sT0}, s{sD0}, 2"); s.salu(f"s_add_u32 s{sT0}, s{sT0}, {BIAS + 128*ch}")
    s.salu(f"s_lshl_b32 s{sT1}, s{sS0}, 2"); s.salu(f"s_add_u32 s{sT1}, s{sT1}, {BIAS}")
    return a

def setup_late(s, half):
    L = vLane; a, b = vTmp, vTmp2; ch = half
    ops = []
    def V(text, **k): ops.append(lambda: s.valu(text, **k))
    def S(text, **k): ops.append(lambda: s.salu(text, **k))
    V(f"v_and_b32 v{a}, 15, v{L}", wr=[a], rd=[L])
    V(f"v_lshlrev_b32 v{vHW}, 4, v{a}", wr=[vHW], rd=[a])
    V(f"v_bfe_u32 v{a}, v{L}, 4, 1", wr=[a], rd=[L])
    V(f"v_lshl_add_u32 v{vHW}, v{a}, 10, v{vHW}", wr=[vHW], rd=[a, vHW])
    V(f"v_lshrrev_b32 v{a}, 5, v{L}", wr=[a], rd=[L])
    V(f"v_lshl_add_u32 v{vHW}, v{a}, 8, v{vHW}", wr=[vHW], rd=[a, vHW])
    V(f"v_add_u32 v{vHW}, s{sLw}, v{vHW}", wr=[vHW], rd=[vHW], srd=[sLw])
    V(f"v_add_u32 v{vHW8}, {HBASE + 8*8192 + ch*512}, v{vHW}", wr=[vHW8], rd=[vHW])
    V(f"v_add_u32 v{vHW}, {HBASE + ch*8192}, v{vHW}", wr=[vHW], rd=[vHW])
    V(f"v_add_u32 v{vHR}, s{sLw}, v{vL16}", wr=[vHR], rd=[vL16], srd=[sLw])
    V(f"v_add_u32 v{vEXW}, {EXB + ch*8192}, v{vHR}", wr=[vEXW], rd=[vHR])
    V(f"v_add_u32 v{vEXR}, {EXB + (1-ch)*8192}, v{vHR}", wr=[vEXR], rd=[vHR])
    V(f"v_add_u32 v{vHR8}, {HBASE + 65536}, v{vHR}", wr=[vHR8], rd=[vHR])
    V(f"v_add_u32 v{vHR}, {HBASE}, v{vHR}", wr=[vHR], rd=[vHR])
    V(f"v_bfe_u32 v{a}, v{L}, 2, 3", wr=[a], rd=[L])
    V(f"v_lshrrev_b32 v{b}, 5, v{L}", wr=[b], rd=[L])
    V(f"v_lshl_add_u32 v{b}, v{b}, 4, v{a}", wr=[b], rd=[a, b])
    V(f"v_lshlrev_b32 v{vW2R}, 7, v{b}", wr=[vW2R], rd=[b])
    V(f"v_and_b32 v{b}, 3, v{L}", wr=[b], rd=[L])
    V(f"v_lshl_add_u32 v{vW2R}, v{b}, 3, v{vW2R}", wr=[vW2R], rd=[b, vW2R])
    V(f"v_lshrrev_b32 v{a}, 1, v{a}", wr=[a], rd=[a])
    V(f"v_xor_b32 v{a}, {2*ch}, v{a}", wr=[a], rd=[a])
    V(f"v_lshl_add_u32 v{vW2R}, v{a}, 5, v{vW2R}", wr=[vW2R], rd=[a, vW2R])
    V(f"v_xor_b32 v{vW2R+3}, 32, v{vW2R}", wr=[vW2R+3], rd=[vW2R])
    for dt in range(2):
        for k in (1, 2):
            V(f"v_add_u32 v{vW2R+3*dt+k}, {65536*k}, v{vW2R+3*dt}", wr=[vW2R+3*dt+k], rd=[vW2R+3*dt])
    V(f"v_mov_b32 v{vGA}, 0x{f2u(GA):08x}", wr=[vGA])
    S(f"s_mov_b32 s{sGB}, 0x{f2u(GB):08x}")
    return ops

def setup_scalars_b(s):
    def srd(r, base, size):
        s.salu(f"s_mov_b32 s{r}, s{base}"); s.salu(f"s_mov_b32 s{r+1}, s{base+1}")
        s.salu(f"s_mov_b32 s{r+2}, {size}"); s.salu(f"s_mov_b32 s{r+3}, 0x20000")
    srd(R_W2, S_W2, F*D*2); srd(R_WS, S_WS, 16*144*16*1024)
    if int(cfg.wsoff):
        s.salu(f"s_add_u32 s{R_WS}, s{R_WS}, {int(cfg.wsoff)<<20}"); s.salu(f"s_addc_u32 s{R_WS+1}, s{R_WS+1}, 0")
    s.salu(f"s_mul_i32 s{sT0}, s{sFS}, 288"); s.salu(f"s_add_u32 s{sT1}, s{sT0}, s{sD0}")
    s.salu(f"s_lshl_b32 s{sPo}, s{sRG}, 4"); s.salu(f"s_add_u32 s{sT1}, s{sT1}, s{sPo}")
    s.salu(f"s_mul_i32 s{sT1}, s{sT1}, 1152")
    for st in range(9): s.salu(f"s_add_u32 s{sW2c+st}, s{sT1}, {st*128}")
    s.salu(f"s_add_u32 s{sT0}, s{sT0}, s{sS0}"); s.salu(f"s_and_b32 s{sT1}, s{sRG}, 1"); s.salu(f"s_lshl_b32 s{sT1}, s{sT1}, 4")
    s.salu(f"s_add_u32 s{sT0}, s{sT0}, s{sT1}"); s.salu(f"s_mul_i32 s{sT0}, s{sT0}, 1152")
    s.salu(f"s_lshr_b32 s{sT1}, s{sRG}, 1"); s.salu(f"s_lshl_b32 s{sT1}, s{sT1}, 7")
    for pr in range(5):
        s.salu(f"s_add_u32 s{sW2s+pr}, s{sT0}, {2*pr*128}")
        if pr < 4: s.salu(f"s_add_u32 s{sW2s+pr}, s{sW2s+pr}, s{sT1}")
    s.salu(f"s_mul_i32 s{sT0}, s{sMT}, 144"); s.salu(f"s_lshl_b32 s{sT1}, s{sW}, 1"); s.salu(f"s_add_u32 s{sT0}, s{sT0}, s{sT1}")
    s.salu(f"s_lshl_b32 s{sT0}, s{sT0}, 4"); s.salu(f"s_add_u32 s{sT0}, s{sT0}, s{sFS}"); s.salu(f"s_lshl_b32 s{sPo}, s{sT0}, 10")
    for st in range(9): s.salu(f"s_add_u32 s{sPc+st}, s{sPo}, {st*16*16*1024}")

def gelu_group(s, regs, tb):
    ops = []
    T = [vT + (tb + i) % 8 for i in range(len(regs))]
    def V(text, **k): ops.append(lambda: s.valu(text, **k))
    for x, t in zip(regs, T): V(f"v_mul_f32 v{t}, v{x}, v{x}", wr=[t], rd=[x])
    for x, t in zip(regs, T): V(f"v_fma_f32 v{t}, v{t}, s{sGB}, v{vGA}", wr=[t], rd=[t, vGA], srd=[sGB])
    for x, t in zip(regs, T): V(f"v_mul_f32 v{t}, v{x}, v{t}", wr=[t], rd=[x, t])
    for x, t in zip(regs, T): V(f"v_exp_f32 v{t}, v{t}", wr=[t], rd=[t], trans=True)
    for x, t in zip(regs, T): V(f"v_add_f32 v{t}, 1.0, v{t}", wr=[t], rd=[t])
    for x, t in zip(regs, T): V(f"v_rcp_f32 v{t}, v{t}", wr=[t], rd=[t], trans=True)
    for x, t in zip(regs, T): V(f"v_mul_f32 v{x}, v{x}, v{t}", wr=[x], rd=[x, t])
    return ops
def cvt(s, d, a, b):
    return lambda: s.valu(f"v_cvt_pk_bf16_f32 v{d}, v{a}, v{b}", wr=[d], rd=[a, b])

def body(p, half, tokb):
    s = Stream(p)
    ch = half
    utok = {}
    for u in ISSUE[-2]:
        t = issue_unit(s, half, u)
        if t: utok[u] = t
    setup_rest(s, half)
    hh = vTmp
    s.wait(tokb)
    s.valu(f"v_lshlrev_b32 v{vBiasS}, 16, v{vBiasS}", wr=[vBiasS], rd=[vBiasS])
    s.valu(f"v_lshlrev_b32 v{vBias}, 2, v0", wr=[vBias])
    s.valu(f"v_add_u32 v{vBias}, {BIAS}, v{vBias}", wr=[vBias], rd=[vBias])
    tb = s.ds_write("ds_write_b32", vBias, vBiasS, 1, 0)
    s.wait(tb)
    s.valu(f"v_lshl_add_u32 v{vBias}, v{hh}, 4, s{sT0}", wr=[vBias], rd=[hh], srd=[sT0])
    s.valu(f"v_lshl_add_u32 v{vBiasS}, v{hh}, 4, s{sT1}", wr=[vBiasS], rd=[hh], srd=[sT1])
    setup_scalars_b(s)
    late = setup_late(s, half)
    for o in late: o()

    xblk = lambda i: vXF + 16*i
    dead = [xblk(2*i + (1-ch)) for i in range(4)]
    used = [xblk(2*i + ch) for i in range(4)]
    Hreg = {}
    for k in range(8):
        for mt in range(2): Hreg[(k, mt)] = dead[k//2] + (k % 2)*8 + mt*4
    for mt in range(2): Hreg[(8, mt)] = xblk(8) + (1-ch)*8 + mt*4
    ACC = [used[0], used[1], used[2]]
    accof = lambda step: ACC[step % 3]
    extra_bufs = [used[3], used[3]+4]
    PK2 = used[3] + 8

    fill = {}
    cur = [-1]
    def F(n, i, f): fill.setdefault((n, i), []).append(f)
    def spread(ops, n0, i0, n1):
        gaps = []
        for n in range(n0, n1+1):
            for i in range(ST[n].nm):
                if n == n0 and i < i0: continue
                gaps.append((n, i, 1.0 if ST[n].kind != "b" else 0.5))
        tot = sum(g[2] for g in gaps); acc = 0; k = 0
        for (n, i, w) in gaps:
            acc += w
            tgt = int(round(len(ops)*acc/tot))
            while k < tgt: F(n, i, ops[k]); k += 1
    need_before_bar = {}
    def hold(): return [None]
    def before_bar(n, h): need_before_bar.setdefault(n, []).append(h)
    need_before_mfma = {}
    def before_mfma(n, i, h): need_before_mfma.setdefault((n, i), []).append(h)

    for j in range(4):
        S = vS[j % 2]
        ops = []
        for e in range(2):
            for g in (2*e, 2*e+1):
                ops += gelu_group(s, [S+4*g+i for i in range(4)], 4*g)
                ops.append(cvt(s, vP+2*g, S+4*g, S+4*g+1)); ops.append(cvt(s, vP+2*g+1, S+4*g+2, S+4*g+3))
            h = hold()
            def wr(h=h, e=e, j=j):
                assert cur[0] >= HWSTAGE[j], (j, cur[0])
                h[0] = s.ds_write("ds_write_b128", vHW, vP+4*e, 4, 2*j*8192 + e*512)
            ops.append(wr)
            before_bar(9*(j+2) if j < 3 else B0+5, h)
        if j < 3: spread(ops, 9*(j+1), 2, 9*(j+1)+7)
        else: spread(ops, 36, 2, B0+2)
    for j in range(1, 5):
        S = vS[j % 2]
        if j == 4 and ch == 1: continue
        for g in range(4):
            h = hold()
            def rd(h=h, g=g, j=j, S=S):
                h[0] = s.ds_read("ds_read_b128", S+4*g, 4, vBias if j < 4 else vBiasS, (j*256 if j < 4 else 0) + g*32)
            F(9*j-1, g, rd); before_mfma(9*j, 0, h)
    S = vS[0]
    snd = S + 8*(1-ch); own = S + 8*ch
    for e in range(2):
        h = hold()
        def wr(h=h, e=e): h[0] = s.ds_write("ds_write_b128", vEXW, snd+4*e, 4, e*1024)
        F(B0, 5+e, wr); before_bar(B0+1, h)
    hx = []
    for e in range(2):
        h = hold(); hx.append(h)
        def rd(h=h, e=e): h[0] = s.ds_read("ds_read_b128", snd+4*e, 4, vEXR, e*1024)
        F(B0+1, e, rd); before_bar(B0+2, h)
    ops = [lambda: s.wait(hx[0][0], hx[1][0])]
    for i in range(8):
        ops.append(lambda i=i: s.valu(f"v_add_f32 v{own+i}, v{own+i}, v{snd+i}", wr=[own+i], rd=[own+i, snd+i]))
    for g in range(2):
        ops += gelu_group(s, [own+4*g+i for i in range(4)], 4*g)
        ops.append(cvt(s, PK2+2*g, own+4*g, own+4*g+1)); ops.append(cvt(s, PK2+2*g+1, own+4*g+2, own+4*g+3))
    h = hold()
    def wr8(h=h): h[0] = s.ds_write("ds_write_b128", vHW8, PK2, 4, 0)
    ops.append(wr8); before_bar(B0+7, h)
    spread(ops, B0+3, 0, B0+6)
    hrd = {}
    def hread(k, n, i):
        for mt in range(2):
            h = hold(); hrd[(k, mt)] = h
            def rd(h=h, k=k, mt=mt):
                if k < 8: h[0] = s.ds_read("ds_read_b128", Hreg[(k, mt)], 4, vHR, k*8192 + mt*1024)
                else: h[0] = s.ds_read("ds_read_b128", Hreg[(k, mt)], 4, vHR8, mt*1024)
            F(n, i, rd)
    for k in range(6): hread(k, 37 + k//2, 1 + 2*(k % 2))
    hread(6, B0+5, 2); hread(7, B0+5, 5); hread(8, B0+7, 3)
    last_stage = {}
    for a in ST[B0:]:
        for (step, dt, k, kl) in a.parts: last_stage[step] = a.n
    pk_sets = [vP, PK2]
    tail_ops = []
    for step in range(9):
        A = accof(step); PK = pk_sets[step % 2] if step >= 2 else (vP if step == 0 else vT)
        ops = []
        for dt in range(2):
            for mt in range(2):
                for e in range(2):
                    ops.append(cvt(s, PK+4*dt+2*mt+e, A+8*dt+4*mt+2*e, A+8*dt+4*mt+2*e+1))
            def st_(dt=dt, step=step, PK=PK):
                s.salu(f"s_add_u32 s{sT1}, s{sPc+step}, {dt*16*1024}")
                s.vstore("buffer_store_dwordx4", PK+4*dt, 4, vL16, R_WS, f"s{sT1}", flags=cfg.store_flags)
            ops.append(st_)
        n = last_stage[step] + 1
        if step == 1: n += 1
        if n < NST: spread(ops, n, 2, n)
        else: tail_ops += ops

    freebufs = [vWF+4*i for i in range(4)]
    frag = {}
    def plan_frag(n, f):
        a = ST[n]; b = BLK[("w", n)]
        hs = [hold(), hold()]; ent = [None, hs]; frag[(n, f)] = ent
        def mk(rd):
            def go():
                if rd == 0: ent[0] = freebufs.pop(0)
                if a.kind == "d": base, off = vW1dR, b*8192 + (16*f + 4*rd)*128
                elif a.kind == "s":
                    ks = (4*ch + f) if a.i < 4 else (4 + 2*ch + f)
                    base, off = vW1sR, b*8192 + (16*ks + 4*rd)*64
                else:
                    (step, dt, k, kl) = a.parts[f]
                    base, off = vW2R + 3*dt, b*8192 + kl*4096 + rd*1024
                w_, o_ = win(off)
                hs[rd][0] = s.ds_read("ds_read_b64_tr_b16", ent[0] + 2*rd, 2, base + w_, o_)
            return go
        return [mk(0), mk(1)]
    def nfrag(n): return ST[n].nm if ST[n].kind != "b" else len(ST[n].parts)
    xtok = {}
    def xread(n, sp):
        b = BLK[("x", n)]
        off = b*8192 - XWIN0
        w_, o_ = win(off)
        def go(): xtok[(n, sp)] = s.ds_read("ds_read_b128", vXF + 16*n + 4*sp, 4, vXR + 4*w_ + sp, o_)
        return go
    pre = {}
    def P(n, i, f): pre.setdefault((n, i), []).append(f)
    for n in range(1, NST):
        prev = ST[n-1]
        rds = []
        for f in range(nfrag(n)): rds += plan_frag(n, f)
        if prev.kind != "b":
            per = -(-len(rds)//prev.nm)
            for k, r in enumerate(rds): P(n-1, min(k//per, prev.nm-1), r)
        else:
            per = -(-len(rds)//prev.nm)
            for k, r in enumerate(rds): P(n-1, min(k//per, prev.nm-1), r)
        if n < 9:
            for sp in range(4): P(n-1, sp, xread(n, sp))

    stamp(s, 1)
    s.wait(utok.get(("w", 0)), utok.get(("x", 0)))
    s.barrier()
    stamp(s, 2)
    for u in ISSUE[-1]:
        t = issue_unit(s, half, u)
        if t: utok[u] = t
    for g in range(4):
        h = hold(); h[0] = s.ds_read("ds_read_b128", vS[0]+4*g, 4, vBias, g*32); before_mfma(0, 0, h)
    for f in range(4):
        xread(0, f)()
        for r in plan_frag(0, f): r()

    started = set()
    for a in ST:
        n = a.n
        if n == B0 - 1: freebufs.extend(extra_bufs)
        if n in (9, 18, 27, 36, 41, 50, 59, 68, 77): stamp(s, 3 + (9, 18, 27, 36, 41, 50, 59, 68, 77).index(n))
        for i in range(a.nm):
            toks = [h[0] for h in need_before_mfma.get((n, i), [])]
            assert all(t is not None for t in toks), (n, i)
            cur[0] = n
            if a.kind == "d":
                reg, hs = frag[(n, i)]
                toks += [hs[0][0], hs[1][0]]
                if a.j == 0: toks.append(xtok[(n, i)])
                s.wait(*toks)
                S = vS[a.j % 2]
                s.mfma32(S, reg, vXF + 16*a.s + 4*i, S)
                freebufs.append(reg)
            elif a.kind == "s":
                reg, hs = frag[(n, i)]
                toks += [hs[0][0], hs[1][0]]
                s.wait(*toks)
                ks = (8*a.i + 4*ch + i) if a.i < 4 else (32 + 2*ch + i)
                first = (a.i == 0 and i == 0)
                s.mfma32(vS[0], reg, vXF + 4*ks, None if (first and ch == 1) else vS[0])
                freebufs.append(reg)
            else:
                if not a.shared:
                    g = i//4; mt = (i//2) % 2; f = 2*g + i % 2
                    lastuse = (mt == 1)
                else:
                    f = i//2; mt = i % 2; lastuse = (mt == 1)
                (step, dt, k, kl) = a.parts[f]
                reg, hs = frag[(n, f)]
                toks += [hs[0][0], hs[1][0], hrd[(k, mt)][0]]
                assert all(t is not None for t in toks), (n, i)
                s.wait(*toks)
                d = accof(step) + 8*dt + 4*mt
                key = (step, dt, mt)
                s.mfma16(d, reg, Hreg[(k, mt)], d if key in started else None)
                started.add(key)
                if lastuse: freebufs.append(reg)
            if i == 0 and n < NST-1:
                assert all(h[0] is not None for h in need_before_bar.get(n, [])), n
                assert (("w", n+1) in utok) == (half == 0)
                toks = [utok.get(("w", n+1)), utok.get(("x", n+1))] + [h[0] for h in need_before_bar.get(n, [])]
                s.wait(*toks)
                s.barrier()
            for f in pre.get((n, i), []): f()
            if i == (1 if a.nm > 2 else 0):
                for u in ISSUE.get(n, []):
                    t = issue_unit(s, half, u)
                    if t: utok[u] = t
            for f in fill.get((n, i), []): f()
    for f in tail_ops: f()
    stamp(s, 12)
    if cfg.stamps: s.wait_all()
    stamp(s, 13)
    stamp_flush(s, 14)
    s.salu("s_endpgm")
    return s

def main_kernel():
    p = Stream()
    tokb = prologue(p)
    p.salu(f"s_cmp_ge_u32 s{sW}, 4", srd=[sW]); p.salu("s_cbranch_scc1 L_half1")
    h0 = body(p, 0, tokb); h1 = body(p, 1, tokb)
    txt = p.text() + "\n" + h0.text() + "\n.p2align 6\nL_half1:\n" + h1.text() + "\nL_main_end:\n    s_endpgm\n"
    return txt, (h0.nops, h1.nops, len(h0.ins), len(h1.ins))

def reduce_kernel():
    s = Stream()
    s.salu("s_cmp_ge_u32 s2, 576"); s.salu("s_cbranch_scc1 L_red_end")
    if cfg.stamps:
        s.salu("s_memrealtime s[50:51]")
    s.salu("s_load_dwordx4 s[12:15], s[0:1], 32")
    s.salu("s_load_dwordx2 s[18:19], s[0:1], 56")
    s.valu("v_lshrrev_b32 v2, 6, v0", wr=[2]); s.valu("v_and_b32 v1, 63, v0", wr=[1])
    s.valu("v_readfirstlane_b32 s40, v2", rd=[2], swr=[40])
    s.salu("s_lshl_b32 s41, s2, 2"); s.salu("s_add_u32 s41, s41, s40", srd=[40])
    s.salu("s_lshl_b32 s42, s41, 14")
    s.valu("v_lshlrev_b32 v3, 4, v1", wr=[3], rd=[1])
    s.salu(f"s_mul_hi_u32 s43, s41, {-(-(1<<32)//144)}")
    s.salu("s_mul_i32 s44, s43, 144"); s.salu("s_sub_u32 s44, s41, s44")
    s.wait_all(v=False)
    s.salu("s_mov_b32 s32, s18"); s.salu("s_mov_b32 s33, s19"); s.salu(f"s_mov_b32 s34, {16*144*16*1024}"); s.salu("s_mov_b32 s35, 0x20000")
    if int(cfg.wsoff):
        s.salu(f"s_add_u32 s32, s32, {int(cfg.wsoff)<<20}"); s.salu(f"s_addc_u32 s33, s33, 0")
    toks = []
    for f in range(16):
        if f % 4 == 0 and f: s.salu("s_add_u32 s42, s42, 4096")
        toks.append(s.vload("buffer_load_dwordx4", 16+4*f, 4, 3, 32, "s42", off=(f % 4)*1024))
    s.salu("s_mov_b32 s20, s12"); s.salu("s_mov_b32 s21, s13"); s.salu(f"s_mov_b32 s22, {D*2}"); s.salu("s_mov_b32 s23, 0x20000")
    s.salu("s_mov_b32 s24, s14"); s.salu("s_mov_b32 s25, s15"); s.salu(f"s_mov_b32 s26, {M*D*2}"); s.salu("s_mov_b32 s27, 0x20000")
    s.salu("s_lshr_b32 s45, s44, 4"); s.salu("s_lshl_b32 s45, s45, 6")
    s.salu("s_bfe_u32 s46, s44, 0x10003"); s.salu("s_lshl_b32 s46, s46, 5"); s.salu("s_add_u32 s45, s45, s46")
    s.salu("s_and_b32 s46, s44, 1"); s.salu("s_lshl_b32 s46, s46, 4"); s.salu("s_add_u32 s45, s45, s46")
    s.salu("s_lshl_b32 s45, s45, 1")
    s.salu("s_bfe_u32 s46, s44, 0x20001"); s.salu("s_lshl_b32 s46, s46, 5")
    s.salu("s_lshl_b32 s47, s43, 7"); s.salu("s_add_u32 s46, s46, s47"); s.salu("s_mul_i32 s46, s46, 1152")
    s.salu("s_add_u32 s46, s46, s45")
    s.valu("v_lshrrev_b32 v4, 4, v1", wr=[4], rd=[1]); s.valu("v_lshlrev_b32 v4, 3, v4", wr=[4], rd=[4])
    tb = s.vload("buffer_load_dwordx2", 6, 2, 4, 20, "s45")
    s.valu("v_and_b32 v5, 15, v1", wr=[5], rd=[1]); s.valu("v_mul_u32_u24 v5, 1152, v5", wr=[5], rd=[5]); s.valu("v_add_u32 v5, v5, v4", wr=[5], rd=[4, 5])
    s.salu("s_mov_b32 s48, 0xffff0000")
    acc = 96
    for f in range(16):
        s.wait(toks[f])
        for r in range(4):
            v = 16+4*f+r
            if f == 0:
                s.valu(f"v_lshlrev_b32 v{acc+2*r}, 16, v{v}", wr=[acc+2*r], rd=[v])
                s.valu(f"v_and_b32 v{acc+2*r+1}, s48, v{v}", wr=[acc+2*r+1], rd=[v])
            else:
                s.valu(f"v_lshlrev_b32 v8, 16, v{v}", wr=[8], rd=[v])
                s.valu(f"v_and_b32 v9, s48, v{v}", wr=[9], rd=[v])
                s.valu(f"v_add_f32 v{acc+2*r}, v{acc+2*r}, v8", wr=[acc+2*r], rd=[acc+2*r, 8])
                s.valu(f"v_add_f32 v{acc+2*r+1}, v{acc+2*r+1}, v9", wr=[acc+2*r+1], rd=[acc+2*r+1, 9])
    s.wait(tb)
    for r in range(2):
        s.valu(f"v_lshlrev_b32 v{10+2*r}, 16, v{6+r}", wr=[10+2*r], rd=[6+r])
        s.valu(f"v_and_b32 v{11+2*r}, s48, v{6+r}", wr=[11+2*r], rd=[6+r])
    for mt in range(2):
        for r in range(4):
            s.valu(f"v_add_f32 v{acc+4*mt+r}, v{acc+4*mt+r}, v{10+r}", wr=[acc+4*mt+r], rd=[acc+4*mt+r, 10+r])
    for k in range(4):
        s.valu(f"v_cvt_pk_bf16_f32 v{104+k}, v{acc+2*k}, v{acc+2*k+1}", wr=[104+k], rd=[acc+2*k, acc+2*k+1])
    s.vstore("buffer_store_dwordx2", 104, 2, 5, 24, "s46")
    s.salu(f"s_add_u32 s46, s46, {16*1152}")
    s.vstore("buffer_store_dwordx2", 106, 2, 5, 24, "s46")
    if cfg.stamps:
        s.wait_all()
        s.salu("s_memrealtime s[52:53]"); s.wait_all()
        s.salu("s_lshl_b32 s41, s41, 3"); s.salu(f"s_add_u32 s41, s41, {(128<<20)+(1<<20)}"); s.salu("s_mov_b32 s34, 0x10000000")
        s.valu("v_mov_b32 v8, s50", wr=[8]); s.valu("v_mov_b32 v9, s52", wr=[9]); s.valu("v_mov_b32 v10, 0", wr=[10])
        s.vstore("buffer_store_dwordx2", 8, 2, 10, 32, "s41")
    return s.text() + "\nL_red_end:\n    s_endpgm\n"

def kd(name, vg, sg):
    return f""".amdhsa_kernel {name}
  .amdhsa_next_free_vgpr {vg}
  .amdhsa_next_free_sgpr {sg}
  .amdhsa_accum_offset {(vg+3)//4*4}
  .amdhsa_group_segment_fixed_size 0
  .amdhsa_kernarg_size 64
  .amdhsa_user_sgpr_count 2
  .amdhsa_user_sgpr_kernarg_segment_ptr 1
  .amdhsa_system_sgpr_workgroup_id_x 1
  .amdhsa_float_denorm_mode_32 3
.end_amdhsa_kernel
"""

def generate():
    mk, stats = main_kernel()
    rk = reduce_kernel()
    k1 = NAME + "_kernel"; k2 = "mlp_reduce_kernel"
    out = f"""; fused MLP: gelu(x@w1+b1)@w2+b2  (generated)
; @launch kernel={k1} grid=(256,1,1) block=(512,1,1) lds=163840
; @launch kernel={k2} grid=(576,1,1) block=(256,1,1) lds=0
.amdgcn_target "amdgcn-amd-amdhsa--gfx950"
.text
.globl {k1}
.p2align 8
.type {k1},@function
{k1}:
{mk}
.globl {k2}
.p2align 8
.type {k2},@function
{k2}:
{rk}
.section .rodata,"a"
.p2align 6
{kd(k1, 256, 100)}.p2align 6
{kd(k2, 112, 64)}"""
    return out, stats

if __name__ == "__main__":
    for a in sys.argv[2:]:
        k, v = a.split("=", 1)
        setattr(cfg, k, {"True": True, "False": False}.get(v, v))
    txt, stats = generate()
    open(sys.argv[1], "w").write(txt)
    print("nops/ins:", stats, "bytes", len(txt))
    for b in sorted(ISSUE):
        if b < 12 or 34 <= b <= 44: print(b, [(u, BLK[u]) for u in ISSUE[b]])
```

```python
import sys, struct
from emit import Stream, vr, sr, rng

NAME = "standalone__dense_activation_gelu__prompt"
M, D, F = 2048, 576, 4608
def f2u(x): return struct.unpack("<I", struct.pack("<f", x))[0]
GA = -2.0*0.7978845608028654*1.4426950408889634
GB = GA*0.044715

class Cfg:
    st_flags = "sc1"
    ld_flags = "sc1"
    poll_flags = "sc1"
    prefetch = True
    pf2_stage = 8
    stamps = False
    barA = 1
    barB = 1
    prio = -1
    dmapos = 1
    schedA = "60,62"
    schedB = "68,70"
    schedC = "74,76"
    publag = 4
    tailcut = 10
    nopoll = False
    nopub = False
cfg = Cfg()

PART_BYTES = 16*144*16*1024
FLG = PART_BYTES
INB = 5*128
WS_BYTES = FLG + 256*INB
OOB = 0x40000000
SPIN = 200000

S_X, S_W1, S_B1, S_W2, S_B2, S_OUT, S_DBG, S_WS = 4, 6, 8, 10, 12, 14, 16, 18
R_X, R_W1, R_W2, R_WS, R_B1 = 20, 24, 28, 32, 36
R_OUT = 20
R_DBG = 36
sW, sRG, sMT, sFS, sD0, sS0 = 40, 41, 42, 43, 44, 45
sXo, sW1d, sW1s, sLx, sLw, sT0, sT1, sGB = 46, 47, 48, 49, 50, 51, 52, 53
sPC, sE = 54, 55
sW2c = 56
sW2s = 65
sPc = 70
sCo = 79
sDt = 87
sFlgG, sFlgR, sP8, sSpin, sOutM, sOut8, sMask = 89, 90, 92, 93, 94, 95, 3
sPubW = 91
sST = None
vLane, vL16 = 1, 2
vX0, vX1, vW1d, vW1s, vW2 = 3, 4, 5, 6, 7
vW1dR = 8
vW1sR = 11
vW2R = 14
vHW, vHW8, vHR, vHR8 = 20, 21, 22, 23
vBias, vBiasS, vEXW, vEXR, vGA, vTmp, vTmp2, vDummy = 24, 25, 26, 27, 28, 29, 30, 31
vXR = 32
vT, vP, vWF = 48, 56, 64
vS = (80, 96)
vXF = 112
vStamp = 0
vOne = vX0
vPollOff = vX1
vReq = vW1dR
vPoll, vPoll8, vFv = 12, 13, vW1d
vPub16, vPubF, vReq8 = vHW8, vHR, vHR8
vP8off, vOutM, vOut8, vB2m, vB28 = vW1s, vHW, vBias, 26, vBiasS

NBLK = 20
HB = 10
HBASE = HB*8192
BIAS = 19*8192
EXB = 18*8192
XWIN0 = 7*8192

class St: pass
def build_stages():
    st = []
    for j in range(4):
        for s in range(9):
            a = St(); a.kind = "d"; a.j = j; a.s = s; a.nm = 4; a.unit = True; st.append(a)
    for i in range(5):
        a = St(); a.kind = "s"; a.i = i; a.nm = 4 if i < 4 else 2; a.rowbase = 128*i if i < 4 else 448; a.unit = True; st.append(a)
    def full(pos, i):
        a = St(); a.kind = "b"; a.shared = False; a.pos = pos; a.i = i; a.unit = True
        a.parts = [(pos, dl, 2*i+kk, None, kk) for dl in range(2) for kk in range(2)]
        a.order = [(2*(i_//4) + i_ % 2, (i_//2) % 2) for i_ in range(8)]
        return a
    def shared(pa, pb, pair):
        a = St(); a.kind = "b"; a.shared = True; a.pair = pair; a.unit = True
        a.parts = [(pa, 0, 8, None, 0), (pa, 1, 8, None, 0), (pb, 0, 8, None, 1), (pb, 1, 8, None, 1)]
        a.order = [(i_//2, i_ % 2) for i_ in range(8)]
        return a
    for i in range(4):
        st.append(full(0, i)); st.append(full(1, i))
    st.append(shared(0, 1, 0))
    for p in range(1, 4):
        a, b = 2*p, 2*p+1
        for i in range(4): st.append(full(a, i))
        st.append(shared(a, b, p))
        for i in range(4): st.append(full(b, i))
    L0 = len(st)
    fr = [(8, dl, k, L0 + k//2, k % 2) for dl in range(2) for k in range(9)]
    groups = [fr[0:4], fr[4:8], fr[8:12], fr[12:16], fr[16:18]]
    for gi, g in enumerate(groups):
        a = St(); a.kind = "b"; a.unit = True; a.last = True
        a.shared = (gi == 4); a.pos = 8; a.i = gi; a.pair = 4
        a.parts = g
        o = []
        k = 0
        while k < len(g):
            if k+1 < len(g) and g[k][1] == g[k+1][1]:
                o += [(k, 0), (k+1, 0), (k, 1), (k+1, 1)]; k += 2
            else:
                o += [(k, 0), (k, 1)]; k += 1
        a.order = o
        st.append(a)
    for n, a in enumerate(st):
        a.n = n
        if a.kind == "b":
            a.nm = len(a.order)
            a.parts = [(p, d, k, (n if u is None else u), sl) for (p, d, k, u, sl) in a.parts]
    return st, L0
ST, LAST0 = build_stages()
NST = len(ST)
B0 = 41
HWSTAGE = {0: 9+3, 1: 18+3, 2: 27+3, 3: 36+2}

def barrier_set():
    B = set()
    for n in range(NST):
        if n >= LAST0: continue
        if n < 9 or 35 <= n <= B0+9: B.add(n)
        elif n < 35:
            if (n - 9) % int(cfg.barA) == 0: B.add(n)
        else:
            if (LAST0 - 1 - n) % int(cfg.barB) == 0: B.add(n)
    return B

def plan():
    BAR = barrier_set()
    bars = sorted(BAR)
    def first_read_stage(u):
        k, m = u
        if k == "w" and m >= LAST0: return LAST0 - 1
        return m - 1
    def last_use_stage(u):
        k, m = u
        if k == "w" and m >= LAST0: return NST
        return m
    land = {}
    res = {}
    for j in range(4):
        for k in (2*j, 2*j+1): res[HB+k] = (HWSTAGE[j], B0 + 1 + 2*j)
    res[HB+8] = (B0, B0+9)
    res[19] = (-99, B0+2)
    units = []
    for n in range(NST):
        if n < 9: units.append(("x", n))
        units.append(("w", n))
    busy = {}; issue = {}; blk = {}
    ui = 0
    def freebar(u):
        c = [b for b in bars if b >= last_use_stage(u)+1]
        return c[0] if c else 10**6
    def ok(b, u, bar):
        if b in busy: return False
        if b in res:
            a0, a1 = res[b]
            lastbar_before = max([x for x in [-2, -1]+bars if x <= a0] or [-99])
            if not (freebar(u) <= lastbar_before or bar >= a1): return False
        return True
    for bar in [-2, -1] + bars:
        for b in [b for b, u in busy.items() if freebar(u) <= bar]: del busy[b]
        lst = []
        nxt = min([b for b in bars if b > bar] or [NST])
        cap = 2*(nxt - max(bar, 0)) if bar >= 0 else 99
        while ui < len(units):
            u = units[ui]; kind, m = u
            if kind == "x":
                c = [b for b in range(7, 18, 2) if ok(b, u, bar) and ok(b+1, u, bar)]
                if not c: break
                b = c[0]; busy[b] = u; busy[b+1] = u
            else:
                c = [b for b in range(NBLK) if ok(b, u, bar)]
                if any(k == "x" for k, _ in units[ui:]): c = [b for b in c if b < 7]
                if not c: break
                b = c[0]; busy[b] = u
            blk[u] = b; lst.append(u); ui += 1
            if len([x for x in lst if x[0] == "w"]) >= cap: break
        issue[bar] = lst
    assert ui == len(units)
    for u in units:
        lb = max(b for b in [-1]+bars if b <= first_read_stage(u))
        land.setdefault(lb, []).append(u)
        ib = [bar for bar, l in issue.items() if u in l][0]
        assert ib < lb or (ib == -2), (u, ib, lb)
    return BAR, issue, blk, land

def win(a): return a // 65536, a % 65536

NSTAMP = 16
def stamp(s, name):
    if not cfg.stamps: return
    names = cfg.stamps.split(",") if isinstance(cfg.stamps, str) else "setup,data,s9,s18,s27,s36,s41,s50,s59,s68,s77,tail,chkF1,done,end".split(",")
    if name not in names: return
    idx = names.index(name) + 1
    s.wait_all(v=False)
    s.salu("s_memrealtime s[100:101]")
    s.wait_all(v=False)
    s.valu(f"v_writelane_b32 v{vStamp}, s100, {idx}", wr=[vStamp])
def stamp_flush(s):
    if not cfg.stamps: return
    s.salu(f"s_lshl_b32 s{sT0}, s2, 3"); s.salu(f"s_add_u32 s{sT0}, s{sT0}, s{sW}"); s.salu(f"s_mul_i32 s{sT0}, s{sT0}, {4*NSTAMP}")
    s.salu(f"s_add_u32 s{sT0}, s{sT0}, {128<<20}")
    s.salu(f"s_mov_b32 s{R_WS+2}, 0x10000000")
    s.valu(f"v_lshlrev_b32 v{vTmp}, 2, v{vLane}", wr=[vTmp], rd=[vLane])
    s.valu(f"v_cmp_gt_u32 vcc, {NSTAMP}, v{vLane}", rd=[vLane], swr=["vcc"])
    s.valu(f"v_mov_b32 v{vTmp2}, {OOB}", wr=[vTmp2])
    s.salu("s_nop 1")
    s.valu(f"v_cndmask_b32 v{vTmp}, v{vTmp2}, v{vTmp}, vcc", wr=[vTmp], rd=[vTmp, vTmp2])
    s.vstore("buffer_store_dword", vStamp, 1, vTmp, R_WS, f"s{sT0}")

def srd(s, r, base, size):
    s.salu(f"s_mov_b32 s{r}, s{base}"); s.salu(f"s_mov_b32 s{r+1}, s{base+1}")
    s.salu(f"s_mov_b32 s{r+2}, {size}"); s.salu(f"s_mov_b32 s{r+3}, 0x20000")

def prologue(p):
    p.salu("s_cmp_ge_u32 s2, 256"); p.salu("s_cbranch_scc1 L_main_end")
    if cfg.stamps:
        p.salu("s_memrealtime s[98:99]")
    p.salu("s_load_dwordx16 s[4:19], s[0:1], 0")
    p.valu(f"v_lshrrev_b32 v{vTmp}, 6, v0", wr=[vTmp])
    p.valu(f"v_and_b32 v{vLane}, 63, v0", wr=[vLane])
    p.valu(f"v_readfirstlane_b32 s{sW}, v{vTmp}", rd=[vTmp], swr=[sW])
    p.salu(f"s_and_b32 s{sT0}, s2, 7"); p.salu(f"s_lshr_b32 s{sT1}, s2, 3")
    p.salu(f"s_and_b32 s{sMT}, s{sT0}, 1"); p.salu(f"s_lshl_b32 s{sMT}, s{sMT}, 3")
    p.salu(f"s_lshr_b32 s{sFS}, s{sT1}, 2"); p.salu(f"s_add_u32 s{sMT}, s{sMT}, s{sFS}")
    p.salu(f"s_lshr_b32 s{sFS}, s{sT0}, 1"); p.salu(f"s_lshl_b32 s{sFS}, s{sFS}, 2")
    p.salu(f"s_and_b32 s{sT1}, s{sT1}, 3"); p.salu(f"s_add_u32 s{sFS}, s{sFS}, s{sT1}")
    p.salu(f"s_and_b32 s{sRG}, s{sW}, 3", srd=[sW])
    p.salu(f"s_and_b32 s{sE}, s{sFS}, 1"); p.salu(f"s_lshr_b32 s{sPC}, s{sFS}, 1")
    p.salu(f"s_lshl_b32 s{sD0}, s{sE}, 5")
    p.salu(f"s_xor_b32 s{sT0}, s{sE}, 1"); p.salu(f"s_lshl_b32 s{sS0}, s{sT0}, 8")
    p.salu(f"s_lshl_b32 s{sT0}, s{sMT}, 7"); p.salu(f"s_lshl_b32 s{sT1}, s{sRG}, 5"); p.salu(f"s_add_u32 s{sT0}, s{sT0}, s{sT1}")
    p.salu(f"s_mul_i32 s{sXo}, s{sT0}, 1152")
    p.salu(f"s_lshl_b32 s{sLx}, s{sRG}, 12"); p.salu(f"s_lshl_b32 s{sLw}, s{sRG}, 11")
    p.salu(f"s_mul_i32 s{sT0}, s{sFS}, 576")
    p.salu(f"s_mul_i32 s{sT1}, s{sRG}, {16*9216}"); p.salu(f"s_add_u32 s{sW1d}, s{sT0}, s{sT1}")
    p.salu(f"s_lshl_b32 s{sT1}, s{sD0}, 1"); p.salu(f"s_add_u32 s{sW1d}, s{sW1d}, s{sT1}")
    p.salu(f"s_mul_i32 s{sT1}, s{sRG}, {32*9216}"); p.salu(f"s_add_u32 s{sW1s}, s{sT0}, s{sT1}")
    p.salu(f"s_lshl_b32 s{sT1}, s{sS0}, 1"); p.salu(f"s_add_u32 s{sW1s}, s{sW1s}, s{sT1}")
    L = vLane; a, b = vTmp, vTmp2
    p.valu(f"v_lshrrev_b32 v{a}, 3, v{L}", wr=[a], rd=[L])
    p.valu(f"v_mul_u32_u24 v{vX0}, 1152, v{a}", wr=[vX0], rd=[a])
    p.valu(f"v_mul_u32_u24 v{vW1d}, 9216, v{a}", wr=[vW1d], rd=[a])
    p.valu(f"v_mov_b32 v{vW2}, v{vX0}", wr=[vW2], rd=[vX0])
    p.valu(f"v_lshrrev_b32 v{a}, 4, v{L}", wr=[a], rd=[L])
    p.valu(f"v_and_b32 v{b}, 7, v{L}", wr=[b], rd=[L])
    p.valu(f"v_xor_b32 v{b}, v{a}, v{b}", wr=[b], rd=[a, b])
    p.valu(f"v_lshl_add_u32 v{vX0}, v{b}, 4, v{vX0}", wr=[vX0], rd=[b, vX0])
    p.valu(f"v_xor_b32 v{vX1}, 64, v{vX0}", wr=[vX1], rd=[vX0])
    p.valu(f"v_add_u32 v{vX1}, 9216, v{vX1}", wr=[vX1], rd=[vX1])
    p.valu(f"v_and_b32 v{b}, 1, v{a}", wr=[b], rd=[a])
    p.valu(f"v_lshlrev_b32 v{b}, 2, v{b}", wr=[b], rd=[b])
    p.valu(f"v_and_b32 v{vW1s}, 7, v{L}", wr=[vW1s], rd=[L])
    p.valu(f"v_xor_b32 v{b}, v{b}, v{vW1s}", wr=[b], rd=[b, vW1s])
    p.valu(f"v_lshl_add_u32 v{vW1d}, v{b}, 4, v{vW1d}", wr=[vW1d], rd=[b, vW1d])
    p.valu(f"v_lshlrev_b32 v{vBias}, 1, v0", wr=[vBias])
    p.salu(f"s_mul_i32 s{sT1}, s{sFS}, 576")
    p.wait_all(v=False)
    srd(p, R_X, S_X, M*D*2); srd(p, R_W1, S_W1, D*F*2); srd(p, R_B1, S_B1, F*2)
    tokb = p.vload("buffer_load_ushort", vBiasS, 1, vBias, R_B1, f"s{sT1}")
    return tokb

def issue_unit(s, half, u, BLK):
    kind, m = u
    b = BLK[u]; tok = None
    if kind == "x":
        if half != 1: return None
        for pp in range(4):
            s.salu(f"s_add_u32 m0, s{sLx}, {b*8192 + pp*1024}", swr=["m0"])
            s.salu(f"s_add_u32 s{sT0}, s{sXo}, {16*(pp//2)*1152 + m*128}")
            tok = s.dma(vX0 if pp % 2 == 0 else vX1, R_X, f"s{sT0}")
        return tok
    if half != 0: return None
    a = ST[m]
    for pp in range(2):
        s.salu(f"s_add_u32 m0, s{sLw}, {b*8192 + pp*1024}", swr=["m0"])
        if a.kind == "d":
            s.salu(f"s_add_u32 s{sT0}, s{sW1d}, {(64*a.s + 8*pp)*9216 + a.j*128}")
            tok = s.dma(vW1d, R_W1, f"s{sT0}")
        elif a.kind == "s":
            s.salu(f"s_add_u32 s{sT0}, s{sW1s}, {(a.rowbase + 16*pp)*9216}")
            tok = s.dma(vW1s, R_W1, f"s{sT0}")
        elif not a.shared:
            s.salu(f"s_add_u32 s{sT0}, s{sW2c+a.pos}, {(64*a.i + 8*pp)*1152}")
            tok = s.dma(vW2, R_W2, f"s{sT0}")
        else:
            s.salu(f"s_add_u32 s{sT0}, s{sW2s+a.pair}, {8*pp*1152}")
            tok = s.dma(vW2, R_W2, f"s{sT0}")
    return tok

def prefetch1(s):
    L = vLane; a, b = vTmp, vTmp2
    s.valu(f"v_and_b32 v{a}, 7, v{L}", wr=[a], rd=[L]); s.valu(f"v_mul_u32_u24 v{a}, 1152, v{a}", wr=[a], rd=[a])
    s.valu(f"v_lshrrev_b32 v{b}, 3, v{L}", wr=[b], rd=[L]); s.valu(f"v_lshl_add_u32 v{a}, v{b}, 7, v{a}", wr=[a], rd=[a, b])
    s.valu(f"v_cmp_gt_u32 vcc, 24, v{L}", rd=[L], swr=["vcc"]); s.valu(f"v_mov_b32 v{b}, {OOB}", wr=[b])
    s.salu(f"s_and_b32 s{sT0}, s{sFS}, 3"); s.salu(f"s_lshl_b32 s{sT0}, s{sT0}, 2"); s.salu(f"s_add_u32 s{sT0}, s{sT0}, s{sRG}")
    s.salu(f"s_lshl_b32 s{sT1}, s{sMT}, 4"); s.salu(f"s_add_u32 s{sT0}, s{sT0}, s{sT1}")
    s.salu(f"s_mul_i32 s{sT0}, s{sT0}, {8*1152}"); s.salu(f"s_add_u32 s{sT0}, s{sT0}, 768")
    s.valu(f"v_cndmask_b32 v{a}, v{b}, v{a}, vcc", wr=[a], rd=[a, b])
    s.vload("buffer_load_dword", vDummy, 1, a, R_X, f"s{sT0}")
    s.salu(f"s_and_b32 s{sT0}, s{sMT}, 7"); s.salu(f"s_lshl_b32 s{sT0}, s{sT0}, 2"); s.salu(f"s_add_u32 s{sT0}, s{sT0}, s{sRG}")
    s.salu(f"s_mul_i32 s{sT0}, s{sT0}, {18*9216}")
    s.salu(f"s_mul_i32 s{sT1}, s{sFS}, 576"); s.salu(f"s_and_b32 s{sT1}, s{sT1}, 0xffffff80"); s.salu(f"s_add_u32 s{sT0}, s{sT0}, s{sT1}")
    for h in range(2):
        s.valu(f"v_add_u32 v{a}, {45*h}, v{L}", wr=[a], rd=[L])
        s.valu(f"v_mul_u32_u24 v{b}, 52429, v{a}", wr=[b], rd=[a]); s.valu(f"v_lshrrev_b32 v{b}, 18, v{b}", wr=[b], rd=[b])
        s.valu(f"v_mul_u32_u24 v{vT}, 5, v{b}", wr=[vT], rd=[b]); s.valu(f"v_sub_u32 v{a}, v{a}, v{vT}", wr=[a], rd=[a, vT])
        s.valu(f"v_mul_u32_u24 v{b}, 9216, v{b}", wr=[b], rd=[b]); s.valu(f"v_lshl_add_u32 v{a}, v{a}, 7, v{b}", wr=[a], rd=[a, b])
        s.valu(f"v_cmp_gt_u32 vcc, 45, v{L}", rd=[L], swr=["vcc"]); s.valu(f"v_mov_b32 v{b}, {OOB}", wr=[b])
        s.salu("s_nop 0")
        s.valu(f"v_cndmask_b32 v{a}, v{b}, v{a}, vcc", wr=[a], rd=[a, b])
        s.vload("buffer_load_dword", vDummy, 1, a, R_W1, f"s{sT0}")

def prefetch2_ops(s):
    ops = []
    L = vLane; a, b = vTmp, vTmp2
    def V(text, **k): ops.append(lambda: s.valu(text, **k))
    def S(text, **k): ops.append(lambda: s.salu(text, **k))
    S(f"s_and_b32 s{sT0}, s{sMT}, 7"); S(f"s_lshl_b32 s{sT0}, s{sT0}, 2"); S(f"s_add_u32 s{sT0}, s{sT0}, s{sRG}")
    S(f"s_mul_i32 s{sT0}, s{sT0}, {81*128}"); S(f"s_mul_i32 s{sT1}, s{sFS}, {288*1152}"); S(f"s_add_u32 s{sT0}, s{sT0}, s{sT1}")
    V(f"v_lshlrev_b32 v{a}, 7, v{L}", wr=[a], rd=[L])
    V(f"v_cmp_gt_u32 vcc, 41, v{L}", rd=[L], swr=["vcc"]); V(f"v_mov_b32 v{b}, {OOB}", wr=[b])
    S("s_nop 0")
    V(f"v_cndmask_b32 v{a}, v{b}, v{a}, vcc", wr=[a], rd=[a, b])
    ops.append(lambda: s.vload("buffer_load_dword", vDummy, 1, a, R_W2, f"s{sT0}"))
    S(f"s_add_u32 s{sT0}, s{sT0}, {40*128}")
    ops.append(lambda: s.vload("buffer_load_dword", vDummy, 1, a, R_W2, f"s{sT0}"))
    return ops

def setup_rest(s, half):
    L = vLane; a, b = vTmp, vTmp2; ch = half
    r, c8, t = vT, vT+1, vT+2
    s.valu(f"v_bfe_u32 v{r}, v{L}, 2, 2", wr=[r], rd=[L])
    s.valu(f"v_and_b32 v{c8}, 3, v{L}", wr=[c8], rd=[L])
    s.valu(f"v_lshlrev_b32 v{c8}, 3, v{c8}", wr=[c8], rd=[c8])
    s.valu(f"v_lshrrev_b32 v{a}, 5, v{L}", wr=[a], rd=[L])
    s.valu(f"v_lshl_add_u32 v{t}, v{a}, 3, v{r}", wr=[t], rd=[a, r])
    s.valu(f"v_bfe_u32 v{b}, v{L}, 4, 1", wr=[b], rd=[L])
    s.valu(f"v_lshl_add_u32 v{b}, v{b}, 5, v{c8}", wr=[b], rd=[b, c8])
    s.valu(f"v_lshl_add_u32 v{vW1sR}, v{t}, 6, v{b}", wr=[vW1sR], rd=[t, b])
    s.valu(f"v_lshl_add_u32 v{vW1dR}, v{t}, 7, v{b}", wr=[vW1dR], rd=[t, b])
    s.valu(f"v_lshrrev_b32 v{t}, 1, v{r}", wr=[t], rd=[r])
    if ch: s.valu(f"v_xor_b32 v{t}, 1, v{t}", wr=[t], rd=[t])
    s.valu(f"v_lshl_add_u32 v{vW1dR}, v{t}, 6, v{vW1dR}", wr=[vW1dR], rd=[t, vW1dR])
    s.valu(f"v_and_b32 v{b}, 31, v{L}", wr=[b], rd=[L])
    s.valu(f"v_bfe_u32 v{t}, v{L}, 1, 3", wr=[t], rd=[L])
    s.valu(f"v_xor_b32 v{t}, v{t}, v{a}", wr=[t], rd=[t, a])
    s.valu(f"v_lshlrev_b32 v{t}, 4, v{t}", wr=[t], rd=[t])
    s.valu(f"v_lshl_add_u32 v{t}, v{b}, 7, v{t}", wr=[t], rd=[b, t])
    s.valu(f"v_add_u32 v{t}, s{sLx}, v{t}", wr=[t], rd=[t], srd=[sLx])
    for sp in range(4):
        s.valu(f"v_xor_b32 v{vXR+sp}, {32*sp}, v{t}", wr=[vXR+sp], rd=[t])
        s.valu(f"v_add_u32 v{vXR+4+sp}, {XWIN0+65536}, v{vXR+sp}", wr=[vXR+4+sp], rd=[vXR+sp])
        s.valu(f"v_add_u32 v{vXR+sp}, {XWIN0}, v{vXR+sp}", wr=[vXR+sp], rd=[vXR+sp])
    s.salu(f"s_lshl_b32 s{sT0}, s{sD0}, 2"); s.salu(f"s_add_u32 s{sT0}, s{sT0}, {BIAS + 128*ch}")
    s.salu(f"s_lshl_b32 s{sT1}, s{sS0}, 2"); s.salu(f"s_add_u32 s{sT1}, s{sT1}, {BIAS}")

def setup_late_ops(s, half):
    L = vLane; a, b = vTmp, vTmp2; ch = half
    ops = []
    def V(text, **k): ops.append(lambda: s.valu(text, **k))
    def S(text, **k): ops.append(lambda: s.salu(text, **k))
    for k in (1, 2):
        V(f"v_add_u32 v{vW1dR+k}, {65536*k}, v{vW1dR}", wr=[vW1dR+k], rd=[vW1dR])
        V(f"v_add_u32 v{vW1sR+k}, {65536*k}, v{vW1sR}", wr=[vW1sR+k], rd=[vW1sR])
    V(f"v_lshlrev_b32 v{vL16}, 4, v{L}", wr=[vL16], rd=[L])
    V(f"v_mov_b32 v{vGA}, 0x{f2u(GA):08x}", wr=[vGA])
    S(f"s_mov_b32 s{sGB}, 0x{f2u(GB):08x}")
    if half == 0:
        V(f"v_lshrrev_b32 v{a}, 2, v{L}", wr=[a], rd=[L])
        V(f"v_mul_u32_u24 v{vW1s}, 9216, v{a}", wr=[vW1s], rd=[a])
        V(f"v_and_b32 v{a}, 3, v{L}", wr=[a], rd=[L])
        V(f"v_lshl_add_u32 v{vW1s}, v{a}, 4, v{vW1s}", wr=[vW1s], rd=[a, vW1s])
        V(f"v_bfe_u32 v{a}, v{L}, 1, 2", wr=[a], rd=[L])
        V(f"v_lshrrev_b32 v{b}, 4, v{L}", wr=[b], rd=[L])
        V(f"v_xor_b32 v{a}, v{a}, v{b}", wr=[a], rd=[a, b])
        V(f"v_lshl_add_u32 v{vW2}, v{a}, 5, v{vW2}", wr=[vW2], rd=[a, vW2])
        V(f"v_and_b32 v{a}, 1, v{L}", wr=[a], rd=[L])
        V(f"v_lshl_add_u32 v{vW2}, v{a}, 4, v{vW2}", wr=[vW2], rd=[a, vW2])
    V(f"v_and_b32 v{a}, 15, v{L}", wr=[a], rd=[L])
    V(f"v_lshlrev_b32 v{vHW}, 4, v{a}", wr=[vHW], rd=[a])
    V(f"v_bfe_u32 v{a}, v{L}, 4, 1", wr=[a], rd=[L])
    V(f"v_lshl_add_u32 v{vHW}, v{a}, 10, v{vHW}", wr=[vHW], rd=[a, vHW])
    V(f"v_lshrrev_b32 v{a}, 5, v{L}", wr=[a], rd=[L])
    V(f"v_lshl_add_u32 v{vHW}, v{a}, 8, v{vHW}", wr=[vHW], rd=[a, vHW])
    V(f"v_add_u32 v{vHW}, s{sLw}, v{vHW}", wr=[vHW], rd=[vHW], srd=[sLw])
    V(f"v_add_u32 v{vHW8}, {HBASE + 8*8192 + ch*512}, v{vHW}", wr=[vHW8], rd=[vHW])
    V(f"v_add_u32 v{vHW}, {HBASE + ch*8192}, v{vHW}", wr=[vHW], rd=[vHW])
    V(f"v_add_u32 v{vHR}, s{sLw}, v{vL16}", wr=[vHR], rd=[vL16], srd=[sLw])
    V(f"v_add_u32 v{vEXW}, {EXB + ch*8192}, v{vHR}", wr=[vEXW], rd=[vHR])
    V(f"v_add_u32 v{vEXR}, {EXB + (1-ch)*8192}, v{vHR}", wr=[vEXR], rd=[vHR])
    V(f"v_add_u32 v{vHR8}, {HBASE + 65536}, v{vHR}", wr=[vHR8], rd=[vHR])
    V(f"v_add_u32 v{vHR}, {HBASE}, v{vHR}", wr=[vHR], rd=[vHR])
    V(f"v_bfe_u32 v{a}, v{L}, 2, 3", wr=[a], rd=[L])
    V(f"v_lshrrev_b32 v{b}, 5, v{L}", wr=[b], rd=[L])
    V(f"v_lshl_add_u32 v{b}, v{b}, 4, v{a}", wr=[b], rd=[a, b])
    V(f"v_lshlrev_b32 v{vW2R}, 7, v{b}", wr=[vW2R], rd=[b])
    V(f"v_and_b32 v{b}, 3, v{L}", wr=[b], rd=[L])
    V(f"v_lshl_add_u32 v{vW2R}, v{b}, 3, v{vW2R}", wr=[vW2R], rd=[b, vW2R])
    V(f"v_lshrrev_b32 v{a}, 1, v{a}", wr=[a], rd=[a])
    V(f"v_xor_b32 v{a}, {2*ch+1}, v{a}", wr=[a], rd=[a])
    V(f"v_xor_b32 v{a}, s{sE}, v{a}", wr=[a], rd=[a], srd=[sE])
    V(f"v_lshl_add_u32 v{vW2R}, v{a}, 5, v{vW2R}", wr=[vW2R], rd=[a, vW2R])
    V(f"v_xor_b32 v{vW2R+3}, 32, v{vW2R}", wr=[vW2R+3], rd=[vW2R])
    for dl in range(2):
        for k in (1, 2):
            V(f"v_add_u32 v{vW2R+3*dl+k}, {65536*k}, v{vW2R+3*dl}", wr=[vW2R+3*dl+k], rd=[vW2R+3*dl])
    return ops

def scalars_b_ops(s):
    ops = []
    def S(text, **k): ops.append(lambda: s.salu(text, **k))
    t0, t1, t2 = 96, 97, sSpin
    for r, base, size in ((R_W2, S_W2, F*D*2), (R_WS, S_WS, WS_BYTES)):
        S(f"s_mov_b32 s{r}, s{base}"); S(f"s_mov_b32 s{r+1}, s{base+1}"); S(f"s_mov_b32 s{r+2}, {size}"); S(f"s_mov_b32 s{r+3}, 0x20000")
    S(f"s_mov_b32 s{sPc}, 8")
    for k in range(1, 8): S(f"s_add_u32 s{sPc+k}, s{sPC}, {k}"); S(f"s_and_b32 s{sPc+k}, s{sPc+k}, 7")
    S(f"s_mov_b32 s{sPc+8}, s{sPC}")
    S(f"s_mul_i32 s{t0}, s{sFS}, 288"); S(f"s_add_u32 s{t1}, s{t0}, s{sD0}")
    S(f"s_lshl_b32 s{t2}, s{sRG}, 4"); S(f"s_add_u32 s{t1}, s{t1}, s{t2}"); S(f"s_mul_i32 s{t1}, s{t1}, 1152")
    for pos in range(9):
        S(f"s_lshl_b32 s{t2}, s{sPc+pos}, 7"); S(f"s_add_u32 s{sW2c+pos}, s{t1}, s{t2}")
    S(f"s_add_u32 s{t0}, s{t0}, s{sS0}"); S(f"s_and_b32 s{t1}, s{sRG}, 1"); S(f"s_lshl_b32 s{t1}, s{t1}, 4")
    S(f"s_add_u32 s{t0}, s{t0}, s{t1}"); S(f"s_mul_i32 s{t0}, s{t0}, 1152")
    for pr in range(5):
        if pr < 4:
            def sel(pr=pr):
                s.salu(f"s_cmp_ge_u32 s{sRG}, 2"); s.salu(f"s_cselect_b32 s{t2}, s{sPc+2*pr+1}, s{sPc+2*pr}")
            ops.append(sel)
        else: S(f"s_mov_b32 s{t2}, s{sPc+8}")
        S(f"s_lshl_b32 s{t2}, s{t2}, 7"); S(f"s_add_u32 s{sW2s+pr}, s{t0}, s{t2}")
    S(f"s_mul_i32 s{t0}, s{sMT}, 144"); S(f"s_lshl_b32 s{t1}, s{sW}, 1"); S(f"s_add_u32 s{t1}, s{t0}, s{t1}")
    S(f"s_lshl_b32 s{sDt}, s{t1}, 14"); S(f"s_lshl_b32 s{t2}, s{sFS}, 10"); S(f"s_add_u32 s{sDt}, s{sDt}, s{t2}")
    for pos in range(9):
        S(f"s_lshl_b32 s{sPc+pos}, s{sPc+pos}, 18"); S(f"s_add_u32 s{sPc+pos}, s{sPc+pos}, s{sDt}")
    S(f"s_lshl_b32 s{sDt+1}, s{sE}, 14"); S(f"s_xor_b32 s{sDt}, s{sDt+1}, 16384")
    S(f"s_lshl_b32 s{t2}, s{sPC}, 4"); S(f"s_add_u32 s{t1}, s{t1}, s{t2}"); S(f"s_add_u32 s{t1}, s{t1}, s{sE}"); S(f"s_lshl_b32 s{t1}, s{t1}, 14")
    for k in range(1, 8):
        S(f"s_sub_u32 s{t2}, s{sPC}, {k}"); S(f"s_and_b32 s{t2}, s{t2}, 7"); S(f"s_lshl_b32 s{t2}, s{t2}, 11"); S(f"s_add_u32 s{sCo+k}, s{t1}, s{t2}")
    S(f"s_xor_b32 s{t2}, s{sFS}, 1"); S(f"s_lshl_b32 s{t2}, s{t2}, 10"); S(f"s_add_u32 s{sCo}, s{t1}, s{t2}")
    S(f"s_add_u32 s{t0}, s{t0}, s{sFS}"); S(f"s_add_u32 s{t0}, s{t0}, 128"); S(f"s_lshl_b32 s{sP8}, s{t0}, 14")
    S(f"s_mul_i32 s{t0}, s{sMT}, {16*INB}"); S(f"s_add_u32 s{sFlgG}, s{t0}, {FLG}")
    S(f"s_mul_i32 s{t1}, s{sFS}, {INB}"); S(f"s_add_u32 s{sFlgR}, s{sFlgG}, s{t1}")
    S(f"s_lshl_b32 s{t2}, s{sFS}, 2"); S(f"s_add_u32 s{sPubW}, s{sFlgG}, s{t2}")
    def selw():
        s.salu(f"s_cmp_eq_u32 s{sW}, 4"); s.salu(f"s_cselect_b32 s{sPubW}, s{sPubW}, {OOB}"); s.salu(f"s_cselect_b32 s{sFlgR}, s{sFlgR}, {OOB}")
    ops.append(selw)
    S(f"s_mov_b32 s{sMask}, 0xffff0000")
    return ops

BATCH = {"A": [1], "B": [2, 3], "C": [4, 5], "F": [6, 7, 0]}
def rs_setup_ops(s, half):
    L = vLane; a, b = vTmp, vTmp2; ch = half
    ops = []
    def V(text, **k): ops.append(lambda: s.valu(text, **k))
    def S(text, **k): ops.append(lambda: s.salu(text, **k))
    t0, t1 = 96, 97
    def grp(*fs):
        def go():
            for f in fs: f()
        ops.append(go)
    def v(text, **k): return lambda: s.valu(text, **k)
    def sa(text, **k): return lambda: s.salu(text, **k)
    n_flag0 = len(ops)
    grp(v(f"v_lshlrev_b32 v{a}, 2, v{L}", wr=[a], rd=[L]), v(f"v_mov_b32 v{b}, {OOB}", wr=[b]),
        v(f"v_cmp_gt_u32 vcc, 16, v{L}", rd=[L], swr=["vcc"]), sa("s_nop 1"),
        v(f"v_cndmask_b32 v{vPollOff}, v{b}, v{a}, vcc", wr=[vPollOff], rd=[a, b]))
    grp(sa(f"s_cmp_eq_u32 s{sW}, 4"), sa(f"s_cselect_b32 s{t1}, 1, 0"))
    grp(v(f"v_mov_b32 v{a}, s{t1}", wr=[a], srd=[t1]), v(f"v_cmp_gt_u32 vcc, 16, v{L}", rd=[L], swr=["vcc"]), sa("s_nop 1"),
        v(f"v_cndmask_b32 v{vReq8}, 0, v{a}, vcc", wr=[vReq8], rd=[a]),
        v(f"v_mul_u32_u24 v{a}, {INB}, v{L}", wr=[a], rd=[L]),
        v(f"v_cndmask_b32 v{vPub16}, v{b}, v{a}, vcc", wr=[vPub16], rd=[a, b]),
        v(f"v_cmp_gt_u32 vcc, 2, v{L}", rd=[L], swr=["vcc"]), sa("s_nop 1"),
        v(f"v_cndmask_b32 v{vOne}, v{b}, v{a}, vcc", wr=[vOne], rd=[a, b]))
    grp(sa(f"s_add_u32 s{t0}, s{sPC}, 7"), sa(f"s_and_b32 s{t0}, s{t0}, 7"), sa(f"s_mul_i32 s{t0}, s{t0}, {2*INB}"), sa(f"s_add_u32 s{t0}, s{t0}, 512"),
        v(f"v_add_u32 v{vPubF}, s{t0}, v{vOne}", wr=[vPubF], rd=[vOne], srd=[t0]),
        sa(f"s_xor_b32 s{t0}, s{sFS}, 1"), sa(f"s_mul_i32 s{t0}, s{t0}, {INB}"), sa(f"s_add_u32 s{t0}, s{t0}, 512"),
        v(f"v_writelane_b32 v{vPubF}, s{t0}, 2", wr=[vPubF], srd=[t0]))
    V(f"v_lshrrev_b32 v{a}, 1, v{L}", wr=[a], rd=[L])
    V(f"v_sub_u32 v{a}, s{sPC}, v{a}", wr=[a], rd=[a], srd=[sPC])
    V(f"v_and_b32 v{a}, 7, v{a}", wr=[a], rd=[a])
    grp(v(f"v_cmp_gt_u32 vcc, 16, v{L}", rd=[L], swr=["vcc"]), sa("s_nop 1"),
        v(f"v_cndmask_b32 v{a}, 15, v{a}, vcc", wr=[a], rd=[a]),
        v(f"v_cmp_ne_u32 vcc, s{sFS}, v{L}", rd=[L], swr=["vcc"], srd=[sFS]), sa("s_nop 1"),
        v(f"v_cndmask_b32 v{a}, 15, v{a}, vcc", wr=[a], rd=[a]))
    for bi, (name, ks) in enumerate(BATCH.items()):
        r = vReq + bi
        V(f"v_mov_b32 v{r}, 0", wr=[r])
        for k in ks:
            grp(v(f"v_mov_b32 v{b}, s{t1}", wr=[b], srd=[t1]),
                v(f"v_cmp_eq_u32 vcc, {k}, v{a}", rd=[a], swr=["vcc"]), sa("s_nop 1"),
                v(f"v_cndmask_b32 v{r}, v{r}, v{b}, vcc", wr=[r], rd=[r, b]))
    if half == 0: del ops[n_flag0:]
    V(f"v_lshrrev_b32 v{a}, 3, v{L}", wr=[a], rd=[L]); V(f"v_lshlrev_b32 v{a}, 10, v{a}", wr=[a], rd=[a])
    V(f"v_and_b32 v{b}, 7, v{L}", wr=[b], rd=[L]); V(f"v_lshl_add_u32 v{a}, v{b}, 4, v{a}", wr=[a], rd=[a, b])
    S(f"s_lshl_b32 s{t0}, s{sW}, 7"); V(f"v_add_u32 v{vP8off}, s{t0}, v{a}", wr=[vP8off], rd=[a], srd=[t0])
    V(f"v_and_b32 v{a}, 15, v{L}", wr=[a], rd=[L]); V(f"v_mul_u32_u24 v{a}, 1152, v{a}", wr=[a], rd=[a])
    V(f"v_lshrrev_b32 v{b}, 4, v{L}", wr=[b], rd=[L]); V(f"v_lshlrev_b32 v{b}, 3, v{b}", wr=[b], rd=[b])
    V(f"v_add_u32 v{vOutM}, v{a}, v{b}", wr=[vOutM], rd=[a, b])
    S(f"s_lshl_b32 s{t0}, s{sPC}, 7"); S(f"s_lshl_b32 s{t1}, s{sE}, 5"); S(f"s_add_u32 s{t0}, s{t0}, s{t1}"); S(f"s_add_u32 s{t0}, s{t0}, {64*ch}")
    S(f"s_add_u32 s{sOutM}, s{sXo}, s{t0}")
    for r, base, size in ((R_B1, S_B2, D*2),):
        S(f"s_mov_b32 s{r}, s{base}"); S(f"s_mov_b32 s{r+1}, s{base+1}"); S(f"s_mov_b32 s{r+2}, {size}"); S(f"s_mov_b32 s{r+3}, 0x20000")
    hb = [None, None]
    def ldb(): hb[0] = s.vload("buffer_load_dwordx2", vB2m, 2, b, R_B1, f"s{t0}")
    ops.append(ldb)
    S(f"s_and_b32 s{t0}, s{sW}, 1"); S(f"s_lshl_b32 s{t0}, s{t0}, 3")
    V(f"v_and_b32 v{a}, 7, v{L}", wr=[a], rd=[L]); V(f"v_add_u32 v{a}, s{t0}, v{a}", wr=[a], rd=[a], srd=[t0])
    V(f"v_lshrrev_b32 v{b}, 5, v{L}", wr=[b], rd=[L]); V(f"v_lshl_add_u32 v{a}, v{b}, 4, v{a}", wr=[a], rd=[a, b])
    V(f"v_mul_u32_u24 v{a}, 1152, v{a}", wr=[a], rd=[a])
    V(f"v_bfe_u32 v{b}, v{L}, 4, 1", wr=[b], rd=[L]); V(f"v_lshlrev_b32 v{b}, 2, v{b}", wr=[b], rd=[b])
    V(f"v_add_u32 v{vOut8}, v{a}, v{b}", wr=[vOut8], rd=[a, b])
    S(f"s_lshr_b32 s{t0}, s{sPC}, 2"); S(f"s_lshl_b32 s{t0}, s{t0}, 6"); S(f"s_lshl_b32 s{t1}, s{sE}, 5"); S(f"s_add_u32 s{t0}, s{t0}, s{t1}")
    S(f"s_lshr_b32 s{t1}, s{sW}, 1"); S(f"s_lshl_b32 s{t1}, s{t1}, 3"); S(f"s_add_u32 s{t0}, s{t0}, s{t1}"); S(f"s_add_u32 s{t0}, s{t0}, 1024")
    def ldb8(): hb[1] = s.vload("buffer_load_dword", vB28, 1, b, R_B1, f"s{t0}")
    ops.append(ldb8)
    S(f"s_and_b32 s{t1}, s{sPC}, 3"); S(f"s_lshl_b32 s{t1}, s{t1}, 5"); S(f"s_lshl_b32 s{sOut8}, s{sMT}, 7"); S(f"s_add_u32 s{t1}, s{t1}, s{sOut8}")
    S(f"s_mul_i32 s{t1}, s{t1}, 1152"); S(f"s_add_u32 s{sOut8}, s{t1}, s{t0}")
    grp(v(f"v_and_b32 v{a}, 8, v{L}", wr=[a], rd=[L]), v(f"v_mov_b32 v{b}, {OOB}", wr=[b]),
        v(f"v_cmp_eq_u32 vcc, 0, v{a}", rd=[a], swr=["vcc"]), sa("s_nop 1"),
        v(f"v_cndmask_b32 v{vOut8}, v{b}, v{vOut8}, vcc", wr=[vOut8], rd=[b, vOut8]))
    for r, base, size in ((R_OUT, S_OUT, M*D*2),):
        S(f"s_mov_b32 s{r}, s{base}"); S(f"s_mov_b32 s{r+1}, s{base+1}"); S(f"s_mov_b32 s{r+2}, {size}"); S(f"s_mov_b32 s{r+3}, 0x20000")
    return ops, hb

def gelu_group(s, regs, tb):
    ops = []
    T = [vT + (tb + i) % 8 for i in range(len(regs))]
    def V(text, **k): ops.append(lambda: s.valu(text, **k))
    for x, t in zip(regs, T): V(f"v_mul_f32 v{t}, v{x}, v{x}", wr=[t], rd=[x])
    for x, t in zip(regs, T): V(f"v_fma_f32 v{t}, v{t}, s{sGB}, v{vGA}", wr=[t], rd=[t, vGA], srd=[sGB])
    for x, t in zip(regs, T): V(f"v_mul_f32 v{t}, v{x}, v{t}", wr=[t], rd=[x, t])
    for x, t in zip(regs, T): V(f"v_exp_f32 v{t}, v{t}", wr=[t], rd=[t], trans=True)
    for x, t in zip(regs, T): V(f"v_add_f32 v{t}, 1.0, v{t}", wr=[t], rd=[t])
    for x, t in zip(regs, T): V(f"v_rcp_f32 v{t}, v{t}", wr=[t], rd=[t], trans=True)
    for x, t in zip(regs, T): V(f"v_mul_f32 v{x}, v{x}, v{t}", wr=[x], rd=[x, t])
    return ops
def cvt(s, d, a, b):
    return lambda: s.valu(f"v_cvt_pk_bf16_f32 v{d}, v{a}, v{b}", wr=[d], rd=[a, b])

def body(p, half, tokb, PLAN):
    BAR, ISSUE, BLK, LAND = PLAN
    s = Stream(p)
    ool = Stream()
    ch = half
    utok = {}
    for u in ISSUE[-2]:
        t = issue_unit(s, half, u, BLK)
        if t: utok[u] = t
    if cfg.prefetch and half == 1: prefetch1(s)
    setup_rest(s, half)
    hh = vTmp
    s.wait(tokb)
    s.valu(f"v_lshlrev_b32 v{vBiasS}, 16, v{vBiasS}", wr=[vBiasS], rd=[vBiasS])
    s.valu(f"v_lshlrev_b32 v{vBias}, 2, v0", wr=[vBias])
    s.valu(f"v_add_u32 v{vBias}, {BIAS}, v{vBias}", wr=[vBias], rd=[vBias])
    tb = s.ds_write("ds_write_b32", vBias, vBiasS, 1, 0)
    s.wait(tb)
    s.valu(f"v_lshl_add_u32 v{vBias}, v{hh}, 4, s{sT0}", wr=[vBias], rd=[hh], srd=[sT0])
    s.valu(f"v_lshl_add_u32 v{vBiasS}, v{hh}, 4, s{sT1}", wr=[vBiasS], rd=[hh], srd=[sT1])
    if cfg.stamps: s.valu(f"v_writelane_b32 v{vStamp}, s98, 0", wr=[vStamp])
    for o in setup_late_ops(s, half): o()
    for o in scalars_b_ops(s): o()
    if int(cfg.prio) == half: s.salu("s_setprio 1")

    xblk = lambda i: vXF + 16*i
    dead = [xblk(2*i + (1-ch)) for i in range(4)]
    used = [xblk(2*i + ch) for i in range(4)]
    Hreg = {}
    for k in range(8):
        for mt in range(2): Hreg[(k, mt)] = dead[k//2] + (k % 2)*8 + mt*4
    for mt in range(2): Hreg[(8, mt)] = xblk(8) + (1-ch)*8 + mt*4
    SUM = xblk(8) + ch*8
    ACC = [used[0], used[1], used[2]]
    accof = lambda pos: ACC[pos % 3]
    extra_bufs = [used[3], used[3]+4]
    PK2 = used[3] + 8

    fill = {}; cur = [-1]
    def F(n, i, f): fill.setdefault((n, i), []).append(f)
    def spread(ops, n0, i0, n1, i1=None):
        gaps = []
        for n in range(n0, n1+1):
            for i in range(ST[n].nm):
                if n == n0 and i < i0: continue
                if n == n1 and i1 is not None and i > i1: continue
                gaps.append((n, i, 1.0 if ST[n].kind != "b" else 0.5))
        tot = sum(g[2] for g in gaps); acc = 0; k = 0
        for (n, i, w) in gaps:
            acc += w
            tgt = int(round(len(ops)*acc/tot))
            while k < tgt: F(n, i, ops[k]); k += 1
    need_bar = {}; need_mf = {}
    def hold(): return [None]
    def before_bar(n, h):
        n = min(b for b in BAR if b >= n)
        need_bar.setdefault(n, []).append(h)
    def before_mfma(n, i, h): need_mf.setdefault((n, i), []).append(h)

    if half == 1:
        hclr = hold()
        def clr():
            s.valu(f"v_lshrrev_b32 v{vTmp}, 2, v{vLane}", wr=[vTmp], rd=[vLane]); s.valu(f"v_lshlrev_b32 v{vTmp}, 7, v{vTmp}", wr=[vTmp], rd=[vTmp])
            s.valu(f"v_and_b32 v{vTmp2}, 3, v{vLane}", wr=[vTmp2], rd=[vLane]); s.valu(f"v_lshl_add_u32 v{vTmp}, v{vTmp2}, 4, v{vTmp}", wr=[vTmp], rd=[vTmp, vTmp2])
            s.valu(f"v_cmp_gt_u32 vcc, 20, v{vLane}", rd=[vLane], swr=["vcc"]); s.valu(f"v_mov_b32 v{vTmp2}, {OOB}", wr=[vTmp2])
            for i in range(4): s.valu(f"v_mov_b32 v{40+i}, 0", wr=[40+i])
            s.valu(f"v_cndmask_b32 v{vTmp}, v{vTmp2}, v{vTmp}, vcc", wr=[vTmp], rd=[vTmp, vTmp2])
            hclr[0] = s.vstore("buffer_store_dwordx4", 40, 4, vTmp, R_WS, f"s{sFlgR}", flags=cfg.st_flags)
            s.valu(f"v_cmp_eq_u32 vcc, 0, v{vLane}", rd=[vLane], swr=["vcc"]); s.salu("s_nop 1")
            s.valu(f"v_cndmask_b32 v{vOne}, v{vTmp2}, v{40}, vcc", wr=[vOne], rd=[vTmp2, 40])
        F(10, 1, clr)
        def arrive():
            srd(s, R_DBG, S_DBG, 256)
            s.salu(f"s_lshl_b32 s96, s{sMT}, 2")
            s.valu(f"v_mov_b32 v{vFv}, 1", wr=[vFv])
            s.salu(f"s_cmp_lg_u32 s{sW}, 4"); s.salu(f"s_cselect_b32 s96, 1024, s96")
            s.wait(hclr[0])
            s.vstore("buffer_atomic_add", vFv, 1, vOne, R_DBG, "s96")
        F(16, 2, arrive)
    if cfg.prefetch and half == 1: spread(prefetch2_ops(s), int(cfg.pf2_stage), 0, int(cfg.pf2_stage))

    for j in range(4):
        S = vS[j % 2]; ops = []
        for e in range(2):
            for g in (2*e, 2*e+1):
                ops += gelu_group(s, [S+4*g+i for i in range(4)], 4*g)
                ops.append(cvt(s, vP+2*g, S+4*g, S+4*g+1)); ops.append(cvt(s, vP+2*g+1, S+4*g+2, S+4*g+3))
            h = hold()
            def wr(h=h, e=e, j=j):
                assert cur[0] >= HWSTAGE[j], (j, cur[0])
                h[0] = s.ds_write("ds_write_b128", vHW, vP+4*e, 4, 2*j*8192 + e*512)
            ops.append(wr)
            before_bar(min(9*(j+2), 36) if j < 3 else B0+5, h)
        if j < 3: spread(ops, 9*(j+1), 2, 9*(j+1)+7)
        else: spread(ops, 36, 2, B0+2)
    for j in range(1, 5):
        S = vS[j % 2]
        if j == 4 and ch == 1: continue
        for g in range(4):
            h = hold()
            def rd(h=h, g=g, j=j, S=S):
                h[0] = s.ds_read("ds_read_b128", S+4*g, 4, vBias if j < 4 else vBiasS, (j*256 if j < 4 else 0) + g*32)
            F(9*j-1, g, rd); before_mfma(9*j, 0, h)
    S = vS[0]; snd = S + 8*(1-ch); own = S + 8*ch
    for e in range(2):
        h = hold()
        def wr(h=h, e=e): h[0] = s.ds_write("ds_write_b128", vEXW, snd+4*e, 4, e*1024)
        F(B0, 5+e, wr); before_bar(B0+1, h)
    hx = []
    for e in range(2):
        h = hold(); hx.append(h)
        def rd(h=h, e=e): h[0] = s.ds_read("ds_read_b128", snd+4*e, 4, vEXR, e*1024)
        F(B0+1, e, rd); before_bar(B0+2, h)
    ops = [lambda: s.wait(hx[0][0], hx[1][0])]
    for i in range(8):
        ops.append(lambda i=i: s.valu(f"v_add_f32 v{own+i}, v{own+i}, v{snd+i}", wr=[own+i], rd=[own+i, snd+i]))
    for g in range(2):
        ops += gelu_group(s, [own+4*g+i for i in range(4)], 4*g)
        ops.append(cvt(s, PK2+2*g, own+4*g, own+4*g+1)); ops.append(cvt(s, PK2+2*g+1, own+4*g+2, own+4*g+3))
    h = hold()
    def wr8(h=h): h[0] = s.ds_write("ds_write_b128", vHW8, PK2, 4, 0)
    ops.append(wr8); before_bar(B0+7, h)
    spread(ops, B0+3, 0, B0+6)
    hrd = {}
    def hread(k, n, i):
        for mt in range(2):
            h = hold(); hrd[(k, mt)] = h
            def rd(h=h, k=k, mt=mt):
                if k < 8: h[0] = s.ds_read("ds_read_b128", Hreg[(k, mt)], 4, vHR, k*8192 + mt*1024)
                else: h[0] = s.ds_read("ds_read_b128", Hreg[(k, mt)], 4, vHR8, mt*1024)
            F(n, i, rd)
    for k in range(6): hread(k, 37 + k//2, 1 + 2*(k % 2))
    hread(6, B0+5, 2); hread(7, B0+5, 5); hread(8, B0+7, 3)

    rs_ops, hb2 = rs_setup_ops(s, half)
    spread(rs_ops, B0+8, 0, B0+13)
    nslow = [0]
    def check(vreg, vreq_text, tok, reload):
        nslow[0] += 1; k = f"{half}_{nslow[0]}"
        s.wait(tok)
        s.valu(f"v_cmp_gt_u32 vcc, {vreq_text}, v{vreg}", rd=[vreg], swr=["vcc"])
        s.salu("s_nop 1")
        s.salu(f"s_cbranch_vccnz L_slow_{k}")
        s.raw(f"L_back_{k}:")
        ool.raw(f"L_slow_{k}:")
        ool.salu(f"s_mov_b32 s{sSpin}, {SPIN}")
        ool.raw(f"L_spin_{k}:")
        reload(ool)
        ool.wait_all(l=False)
        ool.valu(f"v_cmp_gt_u32 vcc, {vreq_text}, v{vreg}", rd=[vreg], swr=["vcc"])
        ool.salu("s_nop 1")
        ool.salu(f"s_cbranch_vccz L_back_{k}")
        ool.salu(f"s_sub_u32 s{sSpin}, s{sSpin}, 1"); ool.salu(f"s_cmp_lg_u32 s{sSpin}, 0")
        ool.salu(f"s_cbranch_scc1 L_spin_{k}")
        ool.salu(f"s_branch L_back_{k}")
    if half == 1:
        hc = hold()
        def ld_cnt(st):
            st.valu(f"v_mov_b32 v{vTmp2}, 0", wr=[vTmp2]); st.salu(f"s_lshl_b32 s97, s{sMT}, 2")
            return st.vload("buffer_load_dword", vPoll, 1, vTmp2, R_DBG, "s97", flags=cfg.poll_flags)
        def cnt_issue(): hc[0] = ld_cnt(s)
        F(B0+1, 4, cnt_issue)
        F(B0+5, 0, lambda: check(vPoll, "16", hc[0], ld_cnt))
    last_stage = {}
    for a in ST[B0:]:
        for (pos, dl, k, u, sl) in a.parts: last_stage[(pos, dl)] = a.n
    pk_of = lambda pos: vT if pos == 1 else (vP if pos % 2 == 0 else PK2)
    stok = {}
    def store_ops(pos, dls):
        A = accof(pos); PK = pk_of(pos); ops = []
        stok[pos] = hold()
        for dl in dls:
            for mt in range(2):
                for e in range(2):
                    ops.append(cvt(s, PK+4*dl+2*mt+e, A+8*dl+4*mt+2*e, A+8*dl+4*mt+2*e+1))
            def st_(dl=dl):
                s.salu(f"s_add_u32 s{sT1}, s{sPc+pos}, s{sDt+dl}")
                stok[pos][0] = s.vstore("buffer_store_dwordx4", PK+4*dl, 4, vL16, R_WS, f"s{sT1}", flags=cfg.st_flags)
            ops.append(st_)
        return ops
    BIDX = {"8": 0, "A": 1, "B": 2, "C": 3, "F": 4}
    bat_of = {k: nm for nm, ks in BATCH.items() for k in ks}
    def publish(pos):
        def go():
            if half == 0 or cfg.nopub: return
            if pos == 0:
                s.vstore("buffer_store_dword", vFv, 1, vPub16, R_WS, f"s{sPubW}", flags=cfg.st_flags)
            elif pos == 8:
                s.vstore("buffer_store_dword", vFv, 1, vPubF, R_WS, f"s{sPubW}", flags=cfg.st_flags)
            else:
                s.salu(f"s_add_u32 s96, s{sPC}, {pos}"); s.salu("s_and_b32 s96, s96, 7"); s.salu(f"s_mul_i32 s96, s96, {2*INB}")
                s.salu(f"s_add_u32 s96, s96, s{sPubW}")
                s.vstore("buffer_store_dword", vFv, 1, vOne, R_WS, "s96", off=128*BIDX[bat_of[pos]], flags=cfg.st_flags)
        return go
    for pos in range(8):
        n = max(last_stage[(pos, 0)], last_stage[(pos, 1)]) + 1
        if pos == 1: n += 1
        spread(store_ops(pos, (0, 1)), n, 2, n)
        if pos == 7: continue
        nb = n + int(cfg.publag) + (1 if pos == 0 else 0)
        nb = min(b for b in BAR if b >= min(nb, LAST0-1))
        before_bar(nb, stok[pos]); F(nb, 1, publish(pos))
    n8 = last_stage[(8, 0)]
    spread(store_ops(8, (0,)), n8, 4, n8, 7)
    def poll(st, reg, name):
        if cfg.nopoll:
            st.valu(f"v_mov_b32 v{reg}, 64", wr=[reg]); return None
        return st.vload("buffer_load_dword", reg, 1, vPollOff, R_WS, f"s{sFlgR}", off=128*BIDX[name], flags=cfg.poll_flags)
    LANDR = {"A": vS[0], "B": vS[1], "C": vXR, "F": vS[0]}
    ptk = {}
    def load_batch(name):
        toks = []; r = LANDR[name]
        for k in BATCH[name]:
            for e in range(1 if k == 0 else 2):
                toks.append((r, s.vload("buffer_load_dwordx4", r, 4, vL16, R_WS, f"s{sCo+k}", off=1024*e, flags=cfg.ld_flags))); r += 4
        ptk[name] = toks
    def add_ops(name):
        ops = []
        npieces = sum(1 if k == 0 else 2 for k in BATCH[name])
        for pi in range(npieces):
            def wt(pi=pi):
                if pi == 0: stamp(s, f"add{name}0")
                s.wait(ptk[name][pi][1])
                if pi == 0: stamp(s, f"add{name}1")
            ops.append(wt)
            for r in range(4):
                def one(pi=pi, r=r, fa=(name == "A" and pi == 0)):
                    v_ = ptk[name][pi][0] + r
                    if fa:
                        s.valu(f"v_lshlrev_b32 v{SUM+2*r}, 16, v{v_}", wr=[SUM+2*r], rd=[v_])
                        s.valu(f"v_and_b32 v{SUM+2*r+1}, s{sMask}, v{v_}", wr=[SUM+2*r+1], rd=[v_])
                    else:
                        s.valu(f"v_lshlrev_b32 v{vTmp}, 16, v{v_}", wr=[vTmp], rd=[v_])
                        s.valu(f"v_and_b32 v{v_}, s{sMask}, v{v_}", wr=[v_], rd=[v_])
                        s.valu(f"v_add_f32 v{SUM+2*r}, v{SUM+2*r}, v{vTmp}", wr=[SUM+2*r], rd=[SUM+2*r, vTmp])
                        s.valu(f"v_add_f32 v{SUM+2*r+1}, v{SUM+2*r+1}, v{v_}", wr=[SUM+2*r+1], rd=[SUM+2*r+1, v_])
                ops.append(one)
        return ops
    sched = {k: tuple(int(x) for x in getattr(cfg, "sched"+k).split(",")) for k in "ABC"}
    L8 = vS[0] + 8
    p8 = [None, None]
    prebar = {}
    for bi, name in enumerate(("A", "B", "C")):
        n0, n1 = sched[name]
        assert n1 in BAR, n1
        if half == 1:
            hp = hold(); hp8 = hold()
            def iss(hp=hp, hp8=hp8, name=name):
                hp[0] = poll(s, vPoll, name)
                if name == "A": hp8[0] = poll(s, vPoll8, "8")
            F(n0, 3, iss)
            def chk(hp=hp, hp8=hp8, name=name, bi=bi):
                stamp(s, f"chk{name}0")
                check(vPoll, f"v{vReq+bi}", hp[0], lambda st: poll(st, vPoll, name))
                if name == "A": check(vPoll8, f"v{vReq8}", hp8[0], lambda st: poll(st, vPoll8, "8"))
                stamp(s, f"chk{name}1")
            prebar.setdefault(n1, []).append(chk)
        def lds_(name=name):
            load_batch(name)
            if name == "A":
                p8[0] = s.vload("buffer_load_dwordx4", L8, 4, vP8off, R_WS, f"s{sP8}", flags=cfg.ld_flags)
                s.salu(f"s_add_u32 s{sP8}, s{sP8}, 8192")
                p8[1] = s.vload("buffer_load_dwordx4", L8+4, 4, vP8off, R_WS, f"s{sP8}", flags=cfg.ld_flags)
        F(n1, 2, lds_)
    spread(add_ops("A"), 66, 4, 67)
    def step8_ops():
        ops = []
        def V(text, **k): ops.append(lambda: s.valu(text, **k))
        R = vT
        ops.append(lambda: s.wait(p8[0], p8[1], hb2[1]))
        for r in range(4):
            a_, b_ = L8 + r, L8 + 4 + r
            V(f"v_lshlrev_b32 v{R+2*r}, 16, v{a_}", wr=[R+2*r], rd=[a_]); V(f"v_and_b32 v{R+2*r+1}, s{sMask}, v{a_}", wr=[R+2*r+1], rd=[a_])
            V(f"v_lshlrev_b32 v{a_}, 16, v{b_}", wr=[a_], rd=[b_]); V(f"v_and_b32 v{b_}, s{sMask}, v{b_}", wr=[b_], rd=[b_])
            V(f"v_add_f32 v{R+2*r}, v{R+2*r}, v{a_}", wr=[R+2*r], rd=[R+2*r, a_]); V(f"v_add_f32 v{R+2*r+1}, v{R+2*r+1}, v{b_}", wr=[R+2*r+1], rd=[R+2*r+1, b_])
        for i in range(4):
            V(f"v_permlane32_swap_b32 v{R+i}, v{R+4+i}", wr=[R+i, R+4+i], rd=[R+i, R+4+i])
        for i in range(4):
            V(f"v_add_f32 v{R+i}, v{R+i}, v{R+4+i}", wr=[R+i], rd=[R+i, R+4+i])
        for i in range(2):
            V(f"v_permlane16_swap_b32 v{R+i}, v{R+2+i}", wr=[R+i, R+2+i], rd=[R+i, R+2+i])
        for i in range(2):
            V(f"v_add_f32 v{R+i}, v{R+i}, v{R+2+i}", wr=[R+i], rd=[R+i, R+2+i])
        for i in range(2):
            V(f"v_add_f32_dpp v{R+2+i}, v{R+i}, v{R+i} row_ror:8 row_mask:0xf bank_mask:0xf", wr=[R+2+i], rd=[R+i])
        V(f"v_lshlrev_b32 v{R}, 16, v{vB28}", wr=[R], rd=[vB28]); V(f"v_and_b32 v{R+1}, s{sMask}, v{vB28}", wr=[R+1], rd=[vB28])
        for i in range(2):
            V(f"v_add_f32 v{R+i}, v{R+i}, v{R+2+i}", wr=[R+i], rd=[R+i, R+2+i])
        ops.append(cvt(s, R, R, R+1))
        ops.append(lambda: s.vstore("buffer_store_dword", R, 1, vOut8, R_OUT, f"s{sOut8}"))
        return ops
    spread(step8_ops(), 68, 0, 71)
    spread(add_ops("B"), 73, 4, 76)

    freebufs = [vWF+4*i for i in range(4)]
    frag = {}
    def plan_frag(n, f):
        a = ST[n]
        hs = [hold(), hold()]; ent = [None, hs]; frag[(n, f)] = ent
        def mk(rd):
            def go():
                if rd == 0: ent[0] = freebufs.pop(0)
                if a.kind == "d": base, off = vW1dR, BLK[("w", n)]*8192 + (16*f + 4*rd)*128
                elif a.kind == "s":
                    ks = (4*ch + f) if a.i < 4 else (4 + 2*ch + f)
                    base, off = vW1sR, BLK[("w", n)]*8192 + (16*ks + 4*rd)*64
                else:
                    (pos, dl, k, u, sl) = a.parts[f]
                    base, off = vW2R + 3*dl, BLK[("w", u)]*8192 + sl*4096 + rd*1024
                w_, o_ = win(off)
                hs[rd][0] = s.ds_read("ds_read_b64_tr_b16", ent[0] + 2*rd, 2, base + w_, o_)
            return go
        return [mk(0), mk(1)]
    def nfrag(n): return ST[n].nm if ST[n].kind != "b" else len(ST[n].parts)
    xtok = {}
    def xread(n, sp):
        w_, o_ = win(BLK[("x", n)]*8192 - XWIN0)
        def go(): xtok[(n, sp)] = s.ds_read("ds_read_b128", vXF + 16*n + 4*sp, 4, vXR + 4*w_ + sp, o_)
        return go
    pre = {}
    def P(n, i, f): pre.setdefault((n, i), []).append(f)
    for n in range(1, NST):
        prev = ST[n-1]; rds = []
        for f in range(nfrag(n)): rds += plan_frag(n, f)
        per = -(-len(rds)//prev.nm)
        for k, r in enumerate(rds): P(n-1, min(k//per, prev.nm-1), r)
        if n < 9:
            for sp in range(4): P(n-1, sp, xread(n, sp))

    stamp(s, "setup")
    s.wait(*[utok.get(u) for u in LAND[-1]])
    s.barrier()
    stamp(s, "data")
    for u in ISSUE[-1]:
        t = issue_unit(s, half, u, BLK)
        if t: utok[u] = t
    for g in range(4):
        h = hold(); h[0] = s.ds_read("ds_read_b128", vS[0]+4*g, 4, vBias, g*32); before_mfma(0, 0, h)
    for f in range(4):
        xread(0, f)()
        for r in plan_frag(0, f): r()

    started = set()
    STP = (9, 18, 27, 36, 41, 50, 59, 68, 77)
    for a in ST:
        n = a.n
        if n == B0 - 1: freebufs.extend(extra_bufs)
        stamp(s, f"s{n}")
        uses = {}
        if a.kind == "b":
            for i, (f, mt) in enumerate(a.order): uses[f] = i
        for i in range(a.nm):
            toks = [h[0] for h in need_mf.get((n, i), [])]
            assert all(t is not None for t in toks), (n, i)
            cur[0] = n
            if a.kind == "d":
                reg, hs = frag[(n, i)]
                toks += [hs[0][0], hs[1][0]]
                if a.j == 0: toks.append(xtok[(n, i)])
                s.wait(*toks)
                S = vS[a.j % 2]
                s.mfma32(S, reg, vXF + 16*a.s + 4*i, S)
                freebufs.append(reg)
            elif a.kind == "s":
                reg, hs = frag[(n, i)]
                toks += [hs[0][0], hs[1][0]]
                s.wait(*toks)
                ks = (8*a.i + 4*ch + i) if a.i < 4 else (32 + 2*ch + i)
                first = (a.i == 0 and i == 0)
                s.mfma32(vS[0], reg, vXF + 4*ks, None if (first and ch == 1) else vS[0])
                freebufs.append(reg)
            else:
                f, mt = a.order[i]
                (pos, dl, k, u, sl) = a.parts[f]
                reg, hs = frag[(n, f)]
                toks += [hs[0][0], hs[1][0], hrd[(k, mt)][0]]
                assert all(t is not None for t in toks), (n, i)
                s.wait(*toks)
                d = accof(pos) + 8*dl + 4*mt
                key = (pos, dl, mt)
                s.mfma16(d, reg, Hreg[(k, mt)], d if key in started else None)
                started.add(key)
                if uses[f] == i: freebufs.append(reg)
            if i == 0 and n in BAR:
                assert all(h[0] is not None for h in need_bar.get(n, [])), n
                for u in LAND.get(n, []): assert (u in utok) == ((u[0] == "w") == (half == 0)), (n, u)
                for f in prebar.get(n, []): f()
                s.wait(*([utok.get(u) for u in LAND.get(n, [])] + [h[0] for h in need_bar.get(n, [])]))
                s.barrier()
            for f in pre.get((n, i), []): f()
            if i == (int(cfg.dmapos) if a.nm > 2 else 0):
                for u in ISSUE.get(n, []):
                    t = issue_unit(s, half, u, BLK)
                    if t: utok[u] = t
            for f in fill.get((n, i), []): f()
    stamp(s, "tail")
    cops = add_ops("C")
    ncut = int(cfg.tailcut)
    for o in cops[:ncut]: o()
    s.wait(stok[7][0], stok[8][0])
    s.barrier()
    publish(8)()
    stamp(s, "pub8")
    hp = poll(s, vPoll, "F") if half == 1 else None
    for o in cops[ncut:]: o()
    A = accof(8) + 8
    s.wait(hb2[0])
    for r in range(2):
        s.valu(f"v_lshlrev_b32 v{vT+2*r}, 16, v{vB2m+r}", wr=[vT+2*r], rd=[vB2m+r])
        s.valu(f"v_and_b32 v{vT+2*r+1}, s{sMask}, v{vB2m+r}", wr=[vT+2*r+1], rd=[vB2m+r])
    for i in range(8):
        s.valu(f"v_add_f32 v{A+i}, v{A+i}, v{vT + i % 4}", wr=[A+i], rd=[A+i, vT + i % 4])
    for i in range(8):
        s.valu(f"v_add_f32 v{SUM+i}, v{SUM+i}, v{A+i}", wr=[SUM+i], rd=[SUM+i, A+i])
    if half == 1: check(vPoll, f"v{vReq+3}", hp, lambda st: poll(st, vPoll, "F"))
    s.barrier()
    stamp(s, "chkF1")
    load_batch("F")
    for o in add_ops("F"): o()
    for k in range(4): cvt(s, vP+k, SUM+2*k, SUM+2*k+1)()
    s.vstore("buffer_store_dwordx2", vP, 2, vOutM, R_OUT, f"s{sOutM}")
    s.salu(f"s_add_u32 s{sOutM}, s{sOutM}, {16*1152}")
    s.vstore("buffer_store_dwordx2", vP+2, 2, vOutM, R_OUT, f"s{sOutM}")
    stamp(s, "done")
    if cfg.stamps: s.wait_all()
    stamp(s, "end")
    stamp_flush(s)
    s.salu("s_endpgm")
    return s, ool

def kd(name, vg, sg):
    return f""".amdhsa_kernel {name}
  .amdhsa_next_free_vgpr {vg}
  .amdhsa_next_free_sgpr {sg}
  .amdhsa_accum_offset {(vg+3)//4*4}
  .amdhsa_group_segment_fixed_size 0
  .amdhsa_kernarg_size 64
  .amdhsa_user_sgpr_count 2
  .amdhsa_user_sgpr_kernarg_segment_ptr 1
  .amdhsa_system_sgpr_workgroup_id_x 1
  .amdhsa_float_denorm_mode_32 3
.end_amdhsa_kernel
"""

def generate(aslist=False):
    PLAN = plan()
    p = Stream()
    tokb = prologue(p)
    p.salu(f"s_cmp_ge_u32 s{sW}, 4", srd=[sW]); p.salu("s_cbranch_scc1 L_half1")
    h0, o0 = body(p, 0, tokb, PLAN); h1, o1 = body(p, 1, tokb, PLAN)
    mk = (p.text() + "\n" + h0.text() + "\n" + o0.text() + "\n.p2align 6\nL_half1:\n" + h1.text() + "\n" + o1.text()
          + "\nL_main_end:\n    s_endpgm\n")
    k1 = NAME + "_kernel"
    launch = (f"; @launch kernel={k1} grid=(256,1,1) block=(512,1,1) lds=163840" if aslist
              else "; @launch grid=(256,1,1) block=(512,1,1) lds=163840")
    out = f"""; fused MLP  out = gelu_tanh(x@w1+b1)@w2+b2   (emitted by my generator script)
{launch}
.amdgcn_target "amdgcn-amd-amdhsa--gfx950"
.text
.globl {k1}
.p2align 8
.type {k1},@function
{k1}:
{mk}
.section .rodata,"a"
.p2align 6
{kd(k1, 256, 102)}"""
    return out, (h0.nops, h1.nops, len(h0.ins), len(h1.ins)), PLAN

if __name__ == "__main__":
    aslist = False
    for a in sys.argv[2:]:
        k, v = a.split("=", 1)
        if k == "aslist": aslist = True; continue
        setattr(cfg, k, {"True": True, "False": False}.get(v, v.replace("+", " ")))
    txt, stats, PLAN = generate(aslist)
    open(sys.argv[1], "w").write(txt)
    print("nops/ins:", stats, "bytes", len(txt))
    if "-v" in sys.argv[1:] or True:
        BAR, ISSUE, BLK, LAND = PLAN
        print(" ".join(f"{b}:{','.join(k+str(m)+'@'+str(BLK[(k,m)]) for k,m in ISSUE[b])}" for b in sorted(ISSUE)))
```

```python
import sys, struct
from emit import Stream, vr, sr, rng

NAME = "standalone__dense_activation_gelu__prompt"
M, D, F = 2048, 576, 4608
def f2u(x): return struct.unpack("<I", struct.pack("<f", x))[0]
GA = -2.0*0.7978845608028654*1.4426950408889634
GB = GA*0.044715

class Cfg:
    st_flags = "sc1"
    ld_flags = "sc1"
    poll_flags = "sc1"
    prefetch = True
    pf2_stage = 8
    stamps = False
    barA = 1
    barB = 1
    prio = -1
    dmapos = 1
    sched = "1:62:62,64,66,68;2:67:69,71;3:72:73,75;4:76:77,79"
    polllead = 2
    lastbar = ""
    publag = 5
    backoff = 4
    nopoll = False
    nopub = False
    noload = False
    nostore = False
    cyc = False
    clr_stage = 5
    arr_stage = 30
cfg = Cfg()

PART_BYTES = 16*144*16*1024
FLG = PART_BYTES
WS_BYTES = FLG + 16*8*256
OOB = 0x40000000
SPIN = 30000

S_X, S_W1, S_B1, S_W2, S_B2, S_OUT, S_DBG, S_WS = 4, 6, 8, 10, 12, 14, 16, 18
R_X, R_W1, R_W2, R_WS, R_B1 = 20, 24, 28, 32, 36
R_OUT = 20
R_DBG = 36
sW, sRG, sMT, sFS, sD0, sS0 = 40, 41, 42, 43, 44, 45
sXo, sW1d, sW1s, sLx, sLw, sT0, sT1, sGB = 46, 47, 48, 49, 50, 51, 52, 53
sPC, sE = 54, 55
sW2c = 56
sW2s = 65
sPc = 70
sCo = 79
sDt = 87
sCnt, sTgt, sP8, sSpin, sOutM, sOut8, sMask = 89, 90, 92, 93, 94, 95, 3
sST = None
vLane, vL16 = 1, 2
vX0, vX1, vW1d, vW1s, vW2 = 3, 4, 5, 6, 7
vW1dR = 8
vW1sR = 11
vW2R = 14
vHW, vHW8, vHR, vHR8 = 20, 21, 22, 23
vBias, vBiasS, vEXW, vEXR, vGA, vTmp, vTmp2, vDummy = 24, 25, 26, 27, 28, 29, 30, 31
vXR = 32
vT, vP, vWF = 48, 56, 64
vS = (80, 96)
vXF = 112
vStamp = 0
vOne = vX0
vFv = vX1
vPoll = 12
vP8off, vOutM, vOut8, vB2m, vB28 = vW1s, vHW, vBias, 26, vBiasS

NBLK = 20
HB = 10
HBASE = HB*8192
BIAS = 19*8192
EXB = 18*8192
XWIN0 = 7*8192

class St: pass
def build_stages():
    st = []
    for j in range(4):
        for s in range(9):
            a = St(); a.kind = "d"; a.j = j; a.s = s; a.nm = 4; a.unit = True; st.append(a)
    for i in range(5):
        a = St(); a.kind = "s"; a.i = i; a.nm = 4 if i < 4 else 2; a.rowbase = 128*i if i < 4 else 448; a.unit = True; st.append(a)
    def full(pos, i):
        a = St(); a.kind = "b"; a.shared = False; a.pos = pos; a.i = i; a.unit = True
        a.parts = [(pos, dl, 2*i+kk, None, kk) for dl in range(2) for kk in range(2)]
        a.order = [(2*(i_//4) + i_ % 2, (i_//2) % 2) for i_ in range(8)]
        return a
    def shared(pa, pb, pair):
        a = St(); a.kind = "b"; a.shared = True; a.pair = pair; a.unit = True
        a.parts = [(pa, 0, 8, None, 0), (pa, 1, 8, None, 0), (pb, 0, 8, None, 1), (pb, 1, 8, None, 1)]
        a.order = [(i_//2, i_ % 2) for i_ in range(8)]
        return a
    for i in range(4):
        st.append(full(0, i)); st.append(full(1, i))
    st.append(shared(0, 1, 0))
    for p in range(1, 4):
        a, b = 2*p, 2*p+1
        for i in range(4): st.append(full(a, i))
        st.append(shared(a, b, p))
        for i in range(4): st.append(full(b, i))
    L0 = len(st)
    fr = [(8, dl, k, L0 + k//2, k % 2) for dl in range(2) for k in range(9)]
    groups = [fr[0:4], fr[4:8], fr[8:12], fr[12:16], fr[16:18]]
    for gi, g in enumerate(groups):
        a = St(); a.kind = "b"; a.unit = True; a.last = True
        a.shared = (gi == 4); a.pos = 8; a.i = gi; a.pair = 4
        a.parts = g
        o = []
        k = 0
        while k < len(g):
            if k+1 < len(g) and g[k][1] == g[k+1][1]:
                o += [(k, 0), (k+1, 0), (k, 1), (k+1, 1)]; k += 2
            else:
                o += [(k, 0), (k, 1)]; k += 1
        a.order = o
        st.append(a)
    for n, a in enumerate(st):
        a.n = n
        if a.kind == "b":
            a.nm = len(a.order)
            a.parts = [(p, d, k, (n if u is None else u), sl) for (p, d, k, u, sl) in a.parts]
    return st, L0
ST, LAST0 = build_stages()
NST = len(ST)
B0 = 41
HWSTAGE = {0: 9+3, 1: 18+3, 2: 27+3, 3: 36+2}

def barrier_set():
    B = set()
    for n in range(NST):
        if n >= LAST0:
            if str(n) in str(cfg.lastbar).split(","): B.add(n)
            continue
        if n < 9 or 35 <= n <= B0+9: B.add(n)
        elif n < 35:
            if (n - 9) % int(cfg.barA) == 0: B.add(n)
        else:
            if (LAST0 - 1 - n) % int(cfg.barB) == 0: B.add(n)
    return B

def plan():
    BAR = barrier_set()
    bars = sorted(BAR)
    def first_read_stage(u):
        k, m = u
        if k == "w" and m >= LAST0: return LAST0 - 1
        return m - 1
    def last_use_stage(u):
        k, m = u
        if k == "w" and m >= LAST0: return NST
        return m
    land = {}
    res = {}
    for j in range(4):
        for k in (2*j, 2*j+1): res[HB+k] = (HWSTAGE[j], B0 + 1 + 2*j)
    res[HB+8] = (B0, B0+9)
    res[19] = (-99, B0+2)
    units = []
    for n in range(NST):
        if n < 9: units.append(("x", n))
        units.append(("w", n))
    busy = {}; issue = {}; blk = {}
    ui = 0
    def freebar(u):
        c = [b for b in bars if b >= last_use_stage(u)+1]
        return c[0] if c else 10**6
    def ok(b, u, bar):
        if b in busy: return False
        if b in res:
            a0, a1 = res[b]
            lastbar_before = max([x for x in [-2, -1]+bars if x <= a0] or [-99])
            if not (freebar(u) <= lastbar_before or bar >= a1): return False
        return True
    for bar in [-2, -1] + bars:
        for b in [b for b, u in busy.items() if freebar(u) <= bar]: del busy[b]
        lst = []
        nxt = min([b for b in bars if b > bar] or [NST])
        cap = 2*(nxt - max(bar, 0)) if bar >= 0 else 99
        while ui < len(units):
            u = units[ui]; kind, m = u
            if kind == "x":
                c = [b for b in range(7, 18, 2) if ok(b, u, bar) and ok(b+1, u, bar)]
                if not c: break
                b = c[0]; busy[b] = u; busy[b+1] = u
            else:
                c = [b for b in range(NBLK) if ok(b, u, bar)]
                if any(k == "x" for k, _ in units[ui:]): c = [b for b in c if b < 7]
                if not c: break
                b = c[0]; busy[b] = u
            blk[u] = b; lst.append(u); ui += 1
            if len([x for x in lst if x[0] == "w"]) >= cap: break
        issue[bar] = lst
    assert ui == len(units)
    for u in units:
        lb = max(b for b in [-1]+bars if b <= first_read_stage(u))
        land.setdefault(lb, []).append(u)
        ib = [bar for bar, l in issue.items() if u in l][0]
        assert ib < lb or (ib == -2), (u, ib, lb)
    return BAR, issue, blk, land

def win(a): return a // 65536, a % 65536

NSTAMP = 16
def stamp(s, name):
    if not cfg.stamps: return
    names = cfg.stamps.split(",") if isinstance(cfg.stamps, str) else "setup,data,s9,s18,s27,s36,s41,s50,s59,s68,s77,tail,chkF1,done,end".split(",")
    if name not in names: return
    idx = names.index(name) + 1
    s.wait_all(v=False)
    s.salu("s_memtime s[100:101]" if cfg.cyc else "s_memrealtime s[100:101]")
    s.wait_all(v=False)
    s.valu(f"v_writelane_b32 v{vStamp}, s100, {idx}", wr=[vStamp])
def stamp_flush(s):
    if not cfg.stamps: return
    s.salu(f"s_lshl_b32 s{sT0}, s2, 3"); s.salu(f"s_add_u32 s{sT0}, s{sT0}, s{sW}"); s.salu(f"s_mul_i32 s{sT0}, s{sT0}, {4*NSTAMP}")
    s.salu(f"s_add_u32 s{sT0}, s{sT0}, {128<<20}")
    s.salu(f"s_mov_b32 s{R_WS+2}, 0x10000000")
    s.valu(f"v_lshlrev_b32 v{vTmp}, 2, v{vLane}", wr=[vTmp], rd=[vLane])
    s.valu(f"v_cmp_gt_u32 vcc, {NSTAMP}, v{vLane}", rd=[vLane], swr=["vcc"])
    s.valu(f"v_mov_b32 v{vTmp2}, {OOB}", wr=[vTmp2])
    s.salu("s_nop 1")
    s.valu(f"v_cndmask_b32 v{vTmp}, v{vTmp2}, v{vTmp}, vcc", wr=[vTmp], rd=[vTmp, vTmp2])
    s.vstore("buffer_store_dword", vStamp, 1, vTmp, R_WS, f"s{sT0}")

def srd(s, r, base, size):
    s.salu(f"s_mov_b32 s{r}, s{base}"); s.salu(f"s_mov_b32 s{r+1}, s{base+1}")
    s.salu(f"s_mov_b32 s{r+2}, {size}"); s.salu(f"s_mov_b32 s{r+3}, 0x20000")

def prologue(p):
    p.salu("s_cmp_ge_u32 s2, 256"); p.salu("s_cbranch_scc1 L_main_end")
    if cfg.stamps:
        p.salu("s_memtime s[98:99]" if cfg.cyc else "s_memrealtime s[98:99]")
    p.salu("s_load_dwordx16 s[4:19], s[0:1], 0")
    p.valu(f"v_lshrrev_b32 v{vTmp}, 6, v0", wr=[vTmp])
    p.valu(f"v_and_b32 v{vLane}, 63, v0", wr=[vLane])
    p.valu(f"v_readfirstlane_b32 s{sW}, v{vTmp}", rd=[vTmp], swr=[sW])
    p.salu(f"s_and_b32 s{sT0}, s2, 7"); p.salu(f"s_lshr_b32 s{sT1}, s2, 3")
    p.salu(f"s_and_b32 s{sMT}, s{sT0}, 1"); p.salu(f"s_lshl_b32 s{sMT}, s{sMT}, 3")
    p.salu(f"s_lshr_b32 s{sFS}, s{sT1}, 2"); p.salu(f"s_add_u32 s{sMT}, s{sMT}, s{sFS}")
    p.salu(f"s_lshr_b32 s{sFS}, s{sT0}, 1"); p.salu(f"s_lshl_b32 s{sFS}, s{sFS}, 2")
    p.salu(f"s_and_b32 s{sT1}, s{sT1}, 3"); p.salu(f"s_add_u32 s{sFS}, s{sFS}, s{sT1}")
    p.salu(f"s_and_b32 s{sRG}, s{sW}, 3", srd=[sW])
    p.salu(f"s_and_b32 s{sE}, s{sFS}, 1"); p.salu(f"s_lshr_b32 s{sPC}, s{sFS}, 1")
    p.salu(f"s_lshl_b32 s{sD0}, s{sE}, 5")
    p.salu(f"s_xor_b32 s{sT0}, s{sE}, 1"); p.salu(f"s_lshl_b32 s{sS0}, s{sT0}, 8")
    p.salu(f"s_lshl_b32 s{sT0}, s{sMT}, 7"); p.salu(f"s_lshl_b32 s{sT1}, s{sRG}, 5"); p.salu(f"s_add_u32 s{sT0}, s{sT0}, s{sT1}")
    p.salu(f"s_mul_i32 s{sXo}, s{sT0}, 1152")
    p.salu(f"s_lshl_b32 s{sLx}, s{sRG}, 12"); p.salu(f"s_lshl_b32 s{sLw}, s{sRG}, 11")
    p.salu(f"s_mul_i32 s{sT0}, s{sFS}, 576")
    p.salu(f"s_mul_i32 s{sT1}, s{sRG}, {16*9216}"); p.salu(f"s_add_u32 s{sW1d}, s{sT0}, s{sT1}")
    p.salu(f"s_lshl_b32 s{sT1}, s{sD0}, 1"); p.salu(f"s_add_u32 s{sW1d}, s{sW1d}, s{sT1}")
    p.salu(f"s_mul_i32 s{sT1}, s{sRG}, {32*9216}"); p.salu(f"s_add_u32 s{sW1s}, s{sT0}, s{sT1}")
    p.salu(f"s_lshl_b32 s{sT1}, s{sS0}, 1"); p.salu(f"s_add_u32 s{sW1s}, s{sW1s}, s{sT1}")
    L = vLane; a, b = vTmp, vTmp2
    p.valu(f"v_lshrrev_b32 v{a}, 3, v{L}", wr=[a], rd=[L])
    p.valu(f"v_mul_u32_u24 v{vX0}, 1152, v{a}", wr=[vX0], rd=[a])
    p.valu(f"v_mul_u32_u24 v{vW1d}, 9216, v{a}", wr=[vW1d], rd=[a])
    p.valu(f"v_mov_b32 v{vW2}, v{vX0}", wr=[vW2], rd=[vX0])
    p.valu(f"v_lshrrev_b32 v{a}, 4, v{L}", wr=[a], rd=[L])
    p.valu(f"v_and_b32 v{b}, 7, v{L}", wr=[b], rd=[L])
    p.valu(f"v_xor_b32 v{b}, v{a}, v{b}", wr=[b], rd=[a, b])
    p.valu(f"v_lshl_add_u32 v{vX0}, v{b}, 4, v{vX0}", wr=[vX0], rd=[b, vX0])
    p.valu(f"v_xor_b32 v{vX1}, 64, v{vX0}", wr=[vX1], rd=[vX0])
    p.valu(f"v_add_u32 v{vX1}, 9216, v{vX1}", wr=[vX1], rd=[vX1])
    p.valu(f"v_and_b32 v{b}, 1, v{a}", wr=[b], rd=[a])
    p.valu(f"v_lshlrev_b32 v{b}, 2, v{b}", wr=[b], rd=[b])
    p.valu(f"v_and_b32 v{vW1s}, 7, v{L}", wr=[vW1s], rd=[L])
    p.valu(f"v_xor_b32 v{b}, v{b}, v{vW1s}", wr=[b], rd=[b, vW1s])
    p.valu(f"v_lshl_add_u32 v{vW1d}, v{b}, 4, v{vW1d}", wr=[vW1d], rd=[b, vW1d])
    p.valu(f"v_lshlrev_b32 v{vBias}, 1, v0", wr=[vBias])
    p.salu(f"s_mul_i32 s{sT1}, s{sFS}, 576")
    p.wait_all(v=False)
    srd(p, R_X, S_X, M*D*2); srd(p, R_W1, S_W1, D*F*2); srd(p, R_B1, S_B1, F*2)
    tokb = p.vload("buffer_load_ushort", vBiasS, 1, vBias, R_B1, f"s{sT1}")
    return tokb

def issue_unit(s, half, u, BLK):
    kind, m = u
    b = BLK[u]; tok = None
    if kind == "x":
        if half != 1: return None
        for pp in range(4):
            s.salu(f"s_add_u32 m0, s{sLx}, {b*8192 + pp*1024}", swr=["m0"])
            s.salu(f"s_add_u32 s{sT0}, s{sXo}, {16*(pp//2)*1152 + m*128}")
            tok = s.dma(vX0 if pp % 2 == 0 else vX1, R_X, f"s{sT0}")
        return tok
    if half != 0: return None
    a = ST[m]
    for pp in range(2):
        s.salu(f"s_add_u32 m0, s{sLw}, {b*8192 + pp*1024}", swr=["m0"])
        if a.kind == "d":
            s.salu(f"s_add_u32 s{sT0}, s{sW1d}, {(64*a.s + 8*pp)*9216 + a.j*128}")
            tok = s.dma(vW1d, R_W1, f"s{sT0}")
        elif a.kind == "s":
            s.salu(f"s_add_u32 s{sT0}, s{sW1s}, {(a.rowbase + 16*pp)*9216}")
            tok = s.dma(vW1s, R_W1, f"s{sT0}")
        elif not a.shared:
            s.salu(f"s_add_u32 s{sT0}, s{sW2c+a.pos}, {(64*a.i + 8*pp)*1152}")
            tok = s.dma(vW2, R_W2, f"s{sT0}")
        else:
            s.salu(f"s_add_u32 s{sT0}, s{sW2s+a.pair}, {8*pp*1152}")
            tok = s.dma(vW2, R_W2, f"s{sT0}")
    return tok

def prefetch1(s):
    L = vLane; a, b = vTmp, vTmp2
    s.valu(f"v_and_b32 v{a}, 7, v{L}", wr=[a], rd=[L]); s.valu(f"v_mul_u32_u24 v{a}, 1152, v{a}", wr=[a], rd=[a])
    s.valu(f"v_lshrrev_b32 v{b}, 3, v{L}", wr=[b], rd=[L]); s.valu(f"v_lshl_add_u32 v{a}, v{b}, 7, v{a}", wr=[a], rd=[a, b])
    s.valu(f"v_cmp_gt_u32 vcc, 24, v{L}", rd=[L], swr=["vcc"]); s.valu(f"v_mov_b32 v{b}, {OOB}", wr=[b])
    s.salu(f"s_and_b32 s{sT0}, s{sFS}, 3"); s.salu(f"s_lshl_b32 s{sT0}, s{sT0}, 2"); s.salu(f"s_add_u32 s{sT0}, s{sT0}, s{sRG}")
    s.salu(f"s_lshl_b32 s{sT1}, s{sMT}, 4"); s.salu(f"s_add_u32 s{sT0}, s{sT0}, s{sT1}")
    s.salu(f"s_mul_i32 s{sT0}, s{sT0}, {8*1152}"); s.salu(f"s_add_u32 s{sT0}, s{sT0}, 768")
    s.valu(f"v_cndmask_b32 v{a}, v{b}, v{a}, vcc", wr=[a], rd=[a, b])
    s.vload("buffer_load_dword", vDummy, 1, a, R_X, f"s{sT0}")
    s.salu(f"s_and_b32 s{sT0}, s{sMT}, 7"); s.salu(f"s_lshl_b32 s{sT0}, s{sT0}, 2"); s.salu(f"s_add_u32 s{sT0}, s{sT0}, s{sRG}")
    s.salu(f"s_mul_i32 s{sT0}, s{sT0}, {18*9216}")
    s.salu(f"s_mul_i32 s{sT1}, s{sFS}, 576"); s.salu(f"s_and_b32 s{sT1}, s{sT1}, 0xffffff80"); s.salu(f"s_add_u32 s{sT0}, s{sT0}, s{sT1}")
    for h in range(2):
        s.valu(f"v_add_u32 v{a}, {45*h}, v{L}", wr=[a], rd=[L])
        s.valu(f"v_mul_u32_u24 v{b}, 52429, v{a}", wr=[b], rd=[a]); s.valu(f"v_lshrrev_b32 v{b}, 18, v{b}", wr=[b], rd=[b])
        s.valu(f"v_mul_u32_u24 v{vT}, 5, v{b}", wr=[vT], rd=[b]); s.valu(f"v_sub_u32 v{a}, v{a}, v{vT}", wr=[a], rd=[a, vT])
        s.valu(f"v_mul_u32_u24 v{b}, 9216, v{b}", wr=[b], rd=[b]); s.valu(f"v_lshl_add_u32 v{a}, v{a}, 7, v{b}", wr=[a], rd=[a, b])
        s.valu(f"v_cmp_gt_u32 vcc, 45, v{L}", rd=[L], swr=["vcc"]); s.valu(f"v_mov_b32 v{b}, {OOB}", wr=[b])
        s.salu("s_nop 0")
        s.valu(f"v_cndmask_b32 v{a}, v{b}, v{a}, vcc", wr=[a], rd=[a, b])
        s.vload("buffer_load_dword", vDummy, 1, a, R_W1, f"s{sT0}")

def prefetch2_ops(s):
    ops = []
    L = vLane; a, b = vTmp, vTmp2
    def V(text, **k): ops.append(lambda: s.valu(text, **k))
    def S(text, **k): ops.append(lambda: s.salu(text, **k))
    S(f"s_and_b32 s{sT0}, s{sMT}, 7"); S(f"s_lshl_b32 s{sT0}, s{sT0}, 2"); S(f"s_add_u32 s{sT0}, s{sT0}, s{sRG}")
    S(f"s_mul_i32 s{sT0}, s{sT0}, {81*128}"); S(f"s_mul_i32 s{sT1}, s{sFS}, {288*1152}"); S(f"s_add_u32 s{sT0}, s{sT0}, s{sT1}")
    V(f"v_lshlrev_b32 v{a}, 7, v{L}", wr=[a], rd=[L])
    V(f"v_cmp_gt_u32 vcc, 41, v{L}", rd=[L], swr=["vcc"]); V(f"v_mov_b32 v{b}, {OOB}", wr=[b])
    S("s_nop 0")
    V(f"v_cndmask_b32 v{a}, v{b}, v{a}, vcc", wr=[a], rd=[a, b])
    ops.append(lambda: s.vload("buffer_load_dword", vDummy, 1, a, R_W2, f"s{sT0}"))
    S(f"s_add_u32 s{sT0}, s{sT0}, {40*128}")
    ops.append(lambda: s.vload("buffer_load_dword", vDummy, 1, a, R_W2, f"s{sT0}"))
    return ops

def setup_rest(s, half):
    L = vLane; a, b = vTmp, vTmp2; ch = half
    r, c8, t = vT, vT+1, vT+2
    s.valu(f"v_bfe_u32 v{r}, v{L}, 2, 2", wr=[r], rd=[L])
    s.valu(f"v_and_b32 v{c8}, 3, v{L}", wr=[c8], rd=[L])
    s.valu(f"v_lshlrev_b32 v{c8}, 3, v{c8}", wr=[c8], rd=[c8])
    s.valu(f"v_lshrrev_b32 v{a}, 5, v{L}", wr=[a], rd=[L])
    s.valu(f"v_lshl_add_u32 v{t}, v{a}, 3, v{r}", wr=[t], rd=[a, r])
    s.valu(f"v_bfe_u32 v{b}, v{L}, 4, 1", wr=[b], rd=[L])
    s.valu(f"v_lshl_add_u32 v{b}, v{b}, 5, v{c8}", wr=[b], rd=[b, c8])
    s.valu(f"v_lshl_add_u32 v{vW1sR}, v{t}, 6, v{b}", wr=[vW1sR], rd=[t, b])
    s.valu(f"v_lshl_add_u32 v{vW1dR}, v{t}, 7, v{b}", wr=[vW1dR], rd=[t, b])
    s.valu(f"v_lshrrev_b32 v{t}, 1, v{r}", wr=[t], rd=[r])
    if ch: s.valu(f"v_xor_b32 v{t}, 1, v{t}", wr=[t], rd=[t])
    s.valu(f"v_lshl_add_u32 v{vW1dR}, v{t}, 6, v{vW1dR}", wr=[vW1dR], rd=[t, vW1dR])
    s.valu(f"v_and_b32 v{b}, 31, v{L}", wr=[b], rd=[L])
    s.valu(f"v_bfe_u32 v{t}, v{L}, 1, 3", wr=[t], rd=[L])
    s.valu(f"v_xor_b32 v{t}, v{t}, v{a}", wr=[t], rd=[t, a])
    s.valu(f"v_lshlrev_b32 v{t}, 4, v{t}", wr=[t], rd=[t])
    s.valu(f"v_lshl_add_u32 v{t}, v{b}, 7, v{t}", wr=[t], rd=[b, t])
    s.valu(f"v_add_u32 v{t}, s{sLx}, v{t}", wr=[t], rd=[t], srd=[sLx])
    for sp in range(4):
        s.valu(f"v_xor_b32 v{vXR+sp}, {32*sp}, v{t}", wr=[vXR+sp], rd=[t])
        s.valu(f"v_add_u32 v{vXR+4+sp}, {XWIN0+65536}, v{vXR+sp}", wr=[vXR+4+sp], rd=[vXR+sp])
        s.valu(f"v_add_u32 v{vXR+sp}, {XWIN0}, v{vXR+sp}", wr=[vXR+sp], rd=[vXR+sp])
    s.salu(f"s_lshl_b32 s{sT0}, s{sD0}, 2"); s.salu(f"s_add_u32 s{sT0}, s{sT0}, {BIAS + 128*ch}")
    s.salu(f"s_lshl_b32 s{sT1}, s{sS0}, 2"); s.salu(f"s_add_u32 s{sT1}, s{sT1}, {BIAS}")

def setup_late_ops(s, half):
    L = vLane; a, b = vTmp, vTmp2; ch = half
    ops = []
    def V(text, **k): ops.append(lambda: s.valu(text, **k))
    def S(text, **k): ops.append(lambda: s.salu(text, **k))
    for k in (1, 2):
        V(f"v_add_u32 v{vW1dR+k}, {65536*k}, v{vW1dR}", wr=[vW1dR+k], rd=[vW1dR])
        V(f"v_add_u32 v{vW1sR+k}, {65536*k}, v{vW1sR}", wr=[vW1sR+k], rd=[vW1sR])
    V(f"v_lshlrev_b32 v{vL16}, 4, v{L}", wr=[vL16], rd=[L])
    V(f"v_mov_b32 v{vGA}, 0x{f2u(GA):08x}", wr=[vGA])
    S(f"s_mov_b32 s{sGB}, 0x{f2u(GB):08x}")
    if half == 0:
        V(f"v_lshrrev_b32 v{a}, 2, v{L}", wr=[a], rd=[L])
        V(f"v_mul_u32_u24 v{vW1s}, 9216, v{a}", wr=[vW1s], rd=[a])
        V(f"v_and_b32 v{a}, 3, v{L}", wr=[a], rd=[L])
        V(f"v_lshl_add_u32 v{vW1s}, v{a}, 4, v{vW1s}", wr=[vW1s], rd=[a, vW1s])
        V(f"v_bfe_u32 v{a}, v{L}, 1, 2", wr=[a], rd=[L])
        V(f"v_lshrrev_b32 v{b}, 4, v{L}", wr=[b], rd=[L])
        V(f"v_xor_b32 v{a}, v{a}, v{b}", wr=[a], rd=[a, b])
        V(f"v_lshl_add_u32 v{vW2}, v{a}, 5, v{vW2}", wr=[vW2], rd=[a, vW2])
        V(f"v_and_b32 v{a}, 1, v{L}", wr=[a], rd=[L])
        V(f"v_lshl_add_u32 v{vW2}, v{a}, 4, v{vW2}", wr=[vW2], rd=[a, vW2])
    V(f"v_and_b32 v{a}, 15, v{L}", wr=[a], rd=[L])
    V(f"v_lshlrev_b32 v{vHW}, 4, v{a}", wr=[vHW], rd=[a])
    V(f"v_bfe_u32 v{a}, v{L}, 4, 1", wr=[a], rd=[L])
    V(f"v_lshl_add_u32 v{vHW}, v{a}, 10, v{vHW}", wr=[vHW], rd=[a, vHW])
    V(f"v_lshrrev_b32 v{a}, 5, v{L}", wr=[a], rd=[L])
    V(f"v_lshl_add_u32 v{vHW}, v{a}, 8, v{vHW}", wr=[vHW], rd=[a, vHW])
    V(f"v_add_u32 v{vHW}, s{sLw}, v{vHW}", wr=[vHW], rd=[vHW], srd=[sLw])
    V(f"v_add_u32 v{vHW8}, {HBASE + 8*8192 + ch*512}, v{vHW}", wr=[vHW8], rd=[vHW])
    V(f"v_add_u32 v{vHW}, {HBASE + ch*8192}, v{vHW}", wr=[vHW], rd=[vHW])
    V(f"v_add_u32 v{vHR}, s{sLw}, v{vL16}", wr=[vHR], rd=[vL16], srd=[sLw])
    V(f"v_add_u32 v{vEXW}, {EXB + ch*8192}, v{vHR}", wr=[vEXW], rd=[vHR])
    V(f"v_add_u32 v{vEXR}, {EXB + (1-ch)*8192}, v{vHR}", wr=[vEXR], rd=[vHR])
    V(f"v_add_u32 v{vHR8}, {HBASE + 65536}, v{vHR}", wr=[vHR8], rd=[vHR])
    V(f"v_add_u32 v{vHR}, {HBASE}, v{vHR}", wr=[vHR], rd=[vHR])
    V(f"v_bfe_u32 v{a}, v{L}, 2, 3", wr=[a], rd=[L])
    V(f"v_lshrrev_b32 v{b}, 5, v{L}", wr=[b], rd=[L])
    V(f"v_lshl_add_u32 v{b}, v{b}, 4, v{a}", wr=[b], rd=[a, b])
    V(f"v_lshlrev_b32 v{vW2R}, 7, v{b}", wr=[vW2R], rd=[b])
    V(f"v_and_b32 v{b}, 3, v{L}", wr=[b], rd=[L])
    V(f"v_lshl_add_u32 v{vW2R}, v{b}, 3, v{vW2R}", wr=[vW2R], rd=[b, vW2R])
    V(f"v_lshrrev_b32 v{a}, 1, v{a}", wr=[a], rd=[a])
    V(f"v_xor_b32 v{a}, {2*ch+1}, v{a}", wr=[a], rd=[a])
    V(f"v_xor_b32 v{a}, s{sE}, v{a}", wr=[a], rd=[a], srd=[sE])
    V(f"v_lshl_add_u32 v{vW2R}, v{a}, 5, v{vW2R}", wr=[vW2R], rd=[a, vW2R])
    V(f"v_xor_b32 v{vW2R+3}, 32, v{vW2R}", wr=[vW2R+3], rd=[vW2R])
    for dl in range(2):
        for k in (1, 2):
            V(f"v_add_u32 v{vW2R+3*dl+k}, {65536*k}, v{vW2R+3*dl}", wr=[vW2R+3*dl+k], rd=[vW2R+3*dl])
    return ops

def scalars_b_ops(s):
    ops = []
    def S(text, **k): ops.append(lambda: s.salu(text, **k))
    t0, t1, t2 = 96, 97, sSpin
    for r, base, size in ((R_W2, S_W2, F*D*2), (R_WS, S_WS, WS_BYTES)):
        S(f"s_mov_b32 s{r}, s{base}"); S(f"s_mov_b32 s{r+1}, s{base+1}"); S(f"s_mov_b32 s{r+2}, {size}"); S(f"s_mov_b32 s{r+3}, 0x20000")
    S(f"s_mov_b32 s{sPc}, 8")
    for k in range(1, 8): S(f"s_add_u32 s{sPc+k}, s{sPC}, {k}"); S(f"s_and_b32 s{sPc+k}, s{sPc+k}, 7")
    S(f"s_mov_b32 s{sPc+8}, s{sPC}")
    S(f"s_mul_i32 s{t0}, s{sFS}, 288"); S(f"s_add_u32 s{t1}, s{t0}, s{sD0}")
    S(f"s_lshl_b32 s{t2}, s{sRG}, 4"); S(f"s_add_u32 s{t1}, s{t1}, s{t2}"); S(f"s_mul_i32 s{t1}, s{t1}, 1152")
    for pos in range(9):
        S(f"s_lshl_b32 s{t2}, s{sPc+pos}, 7"); S(f"s_add_u32 s{sW2c+pos}, s{t1}, s{t2}")
    S(f"s_add_u32 s{t0}, s{t0}, s{sS0}"); S(f"s_and_b32 s{t1}, s{sRG}, 1"); S(f"s_lshl_b32 s{t1}, s{t1}, 4")
    S(f"s_add_u32 s{t0}, s{t0}, s{t1}"); S(f"s_mul_i32 s{t0}, s{t0}, 1152")
    for pr in range(5):
        if pr < 4:
            def sel(pr=pr):
                s.salu(f"s_cmp_ge_u32 s{sRG}, 2"); s.salu(f"s_cselect_b32 s{t2}, s{sPc+2*pr+1}, s{sPc+2*pr}")
            ops.append(sel)
        else: S(f"s_mov_b32 s{t2}, s{sPc+8}")
        S(f"s_lshl_b32 s{t2}, s{t2}, 7"); S(f"s_add_u32 s{sW2s+pr}, s{t0}, s{t2}")
    S(f"s_mul_i32 s{t0}, s{sMT}, 144"); S(f"s_lshl_b32 s{t1}, s{sW}, 1"); S(f"s_add_u32 s{t1}, s{t0}, s{t1}")
    S(f"s_lshl_b32 s{sDt}, s{t1}, 14"); S(f"s_lshl_b32 s{t2}, s{sFS}, 10"); S(f"s_add_u32 s{sDt}, s{sDt}, s{t2}")
    for pos in range(9):
        S(f"s_lshl_b32 s{sPc+pos}, s{sPc+pos}, 18"); S(f"s_add_u32 s{sPc+pos}, s{sPc+pos}, s{sDt}")
    S(f"s_lshl_b32 s{sDt+1}, s{sE}, 14"); S(f"s_xor_b32 s{sDt}, s{sDt+1}, 16384")
    S(f"s_lshl_b32 s{t2}, s{sPC}, 4"); S(f"s_add_u32 s{t1}, s{t1}, s{t2}"); S(f"s_add_u32 s{t1}, s{t1}, s{sE}"); S(f"s_lshl_b32 s{t1}, s{t1}, 14")
    for k in range(1, 8):
        S(f"s_sub_u32 s{t2}, s{sPC}, {k}"); S(f"s_and_b32 s{t2}, s{t2}, 7"); S(f"s_lshl_b32 s{t2}, s{t2}, 11"); S(f"s_add_u32 s{sCo+k}, s{t1}, s{t2}")
    S(f"s_xor_b32 s{t2}, s{sFS}, 1"); S(f"s_lshl_b32 s{t2}, s{t2}, 10"); S(f"s_add_u32 s{sCo}, s{t1}, s{t2}")
    S(f"s_add_u32 s{t0}, s{t0}, s{sFS}"); S(f"s_add_u32 s{t0}, s{t0}, 128"); S(f"s_lshl_b32 s{sP8}, s{t0}, 14")
    S(f"s_lshl_b32 s{t0}, s{sMT}, 11"); S(f"s_add_u32 s{t0}, s{t0}, {FLG}")
    def selw():
        s.salu(f"s_cmp_eq_u32 s{sW}, 4"); s.salu(f"s_cselect_b32 s{sCnt}, s{t0}, {OOB}"); s.salu(f"s_cselect_b32 s{sTgt}, 16, 0")
    ops.append(selw)
    if cfg.noload:
        for k in range(8): S(f"s_mov_b32 s{sCo+k}, {OOB}")
        S(f"s_mov_b32 s{sP8}, {OOB}")
    S(f"s_mov_b32 s{sMask}, 0xffff0000")
    return ops

def rs_setup_ops(s, half):
    L = vLane; a, b = vTmp, vTmp2; ch = half
    ops = []
    def V(text, **k): ops.append(lambda: s.valu(text, **k))
    def S(text, **k): ops.append(lambda: s.salu(text, **k))
    t0, t1 = 96, 97
    def grp(*fs):
        def go():
            for f in fs: f()
        ops.append(go)
    def v(text, **k): return lambda: s.valu(text, **k)
    def sa(text, **k): return lambda: s.salu(text, **k)
    V(f"v_lshrrev_b32 v{a}, 3, v{L}", wr=[a], rd=[L]); V(f"v_lshlrev_b32 v{a}, 10, v{a}", wr=[a], rd=[a])
    V(f"v_and_b32 v{b}, 7, v{L}", wr=[b], rd=[L]); V(f"v_lshl_add_u32 v{a}, v{b}, 4, v{a}", wr=[a], rd=[a, b])
    S(f"s_lshl_b32 s{t0}, s{sW}, 7"); V(f"v_add_u32 v{vP8off}, s{t0}, v{a}", wr=[vP8off], rd=[a], srd=[t0])
    V(f"v_and_b32 v{a}, 15, v{L}", wr=[a], rd=[L]); V(f"v_mul_u32_u24 v{a}, 1152, v{a}", wr=[a], rd=[a])
    V(f"v_lshrrev_b32 v{b}, 4, v{L}", wr=[b], rd=[L]); V(f"v_lshlrev_b32 v{b}, 3, v{b}", wr=[b], rd=[b])
    V(f"v_add_u32 v{vOutM}, v{a}, v{b}", wr=[vOutM], rd=[a, b])
    S(f"s_lshl_b32 s{t0}, s{sPC}, 7"); S(f"s_lshl_b32 s{t1}, s{sE}, 5"); S(f"s_add_u32 s{t0}, s{t0}, s{t1}"); S(f"s_add_u32 s{t0}, s{t0}, {64*ch}")
    S(f"s_add_u32 s{sOutM}, s{sXo}, s{t0}")
    for r, base, size in ((R_B1, S_B2, D*2),):
        S(f"s_mov_b32 s{r}, s{base}"); S(f"s_mov_b32 s{r+1}, s{base+1}"); S(f"s_mov_b32 s{r+2}, {size}"); S(f"s_mov_b32 s{r+3}, 0x20000")
    hb = [None, None]
    def ldb(): hb[0] = s.vload("buffer_load_dwordx2", vB2m, 2, b, R_B1, f"s{t0}")
    ops.append(ldb)
    S(f"s_and_b32 s{t0}, s{sW}, 1"); S(f"s_lshl_b32 s{t0}, s{t0}, 3")
    V(f"v_and_b32 v{a}, 7, v{L}", wr=[a], rd=[L]); V(f"v_add_u32 v{a}, s{t0}, v{a}", wr=[a], rd=[a], srd=[t0])
    V(f"v_lshrrev_b32 v{b}, 5, v{L}", wr=[b], rd=[L]); V(f"v_lshl_add_u32 v{a}, v{b}, 4, v{a}", wr=[a], rd=[a, b])
    V(f"v_mul_u32_u24 v{a}, 1152, v{a}", wr=[a], rd=[a])
    V(f"v_bfe_u32 v{b}, v{L}, 4, 1", wr=[b], rd=[L]); V(f"v_lshlrev_b32 v{b}, 2, v{b}", wr=[b], rd=[b])
    V(f"v_add_u32 v{vOut8}, v{a}, v{b}", wr=[vOut8], rd=[a, b])
    S(f"s_lshr_b32 s{t0}, s{sPC}, 2"); S(f"s_lshl_b32 s{t0}, s{t0}, 6"); S(f"s_lshl_b32 s{t1}, s{sE}, 5"); S(f"s_add_u32 s{t0}, s{t0}, s{t1}")
    S(f"s_lshr_b32 s{t1}, s{sW}, 1"); S(f"s_lshl_b32 s{t1}, s{t1}, 3"); S(f"s_add_u32 s{t0}, s{t0}, s{t1}"); S(f"s_add_u32 s{t0}, s{t0}, 1024")
    def ldb8(): hb[1] = s.vload("buffer_load_dword", vB28, 1, b, R_B1, f"s{t0}")
    ops.append(ldb8)
    S(f"s_and_b32 s{t1}, s{sPC}, 3"); S(f"s_lshl_b32 s{t1}, s{t1}, 5"); S(f"s_lshl_b32 s{sOut8}, s{sMT}, 7"); S(f"s_add_u32 s{t1}, s{t1}, s{sOut8}")
    S(f"s_mul_i32 s{t1}, s{t1}, 1152"); S(f"s_add_u32 s{sOut8}, s{t1}, s{t0}")
    grp(v(f"v_and_b32 v{a}, 8, v{L}", wr=[a], rd=[L]), v(f"v_mov_b32 v{b}, {OOB}", wr=[b]),
        v(f"v_cmp_eq_u32 vcc, 0, v{a}", rd=[a], swr=["vcc"]), sa("s_nop 1"),
        v(f"v_cndmask_b32 v{vOut8}, v{b}, v{vOut8}, vcc", wr=[vOut8], rd=[b, vOut8]))
    for r, base, size in ((R_OUT, S_OUT, M*D*2),):
        S(f"s_mov_b32 s{r}, s{base}"); S(f"s_mov_b32 s{r+1}, s{base+1}"); S(f"s_mov_b32 s{r+2}, {size}"); S(f"s_mov_b32 s{r+3}, 0x20000")
    return ops, hb

def gelu_group(s, regs, tb):
    ops = []
    T = [vT + (tb + i) % 8 for i in range(len(regs))]
    def V(text, **k): ops.append(lambda: s.valu(text, **k))
    for x, t in zip(regs, T): V(f"v_mul_f32 v{t}, v{x}, v{x}", wr=[t], rd=[x])
    for x, t in zip(regs, T): V(f"v_fma_f32 v{t}, v{t}, s{sGB}, v{vGA}", wr=[t], rd=[t, vGA], srd=[sGB])
    for x, t in zip(regs, T): V(f"v_mul_f32 v{t}, v{x}, v{t}", wr=[t], rd=[x, t])
    for x, t in zip(regs, T): V(f"v_exp_f32 v{t}, v{t}", wr=[t], rd=[t], trans=True)
    for x, t in zip(regs, T): V(f"v_add_f32 v{t}, 1.0, v{t}", wr=[t], rd=[t])
    for x, t in zip(regs, T): V(f"v_rcp_f32 v{t}, v{t}", wr=[t], rd=[t], trans=True)
    for x, t in zip(regs, T): V(f"v_mul_f32 v{x}, v{x}, v{t}", wr=[x], rd=[x, t])
    return ops
def cvt(s, d, a, b):
    return lambda: s.valu(f"v_cvt_pk_bf16_f32 v{d}, v{a}, v{b}", wr=[d], rd=[a, b])

def body(p, half, tokb, PLAN):
    BAR, ISSUE, BLK, LAND = PLAN
    s = Stream(p)
    ool = Stream()
    ch = half
    utok = {}
    for u in ISSUE[-2]:
        t = issue_unit(s, half, u, BLK)
        if t: utok[u] = t
    if cfg.prefetch and half == 1: prefetch1(s)
    setup_rest(s, half)
    hh = vTmp
    s.wait(tokb)
    s.valu(f"v_lshlrev_b32 v{vBiasS}, 16, v{vBiasS}", wr=[vBiasS], rd=[vBiasS])
    s.valu(f"v_lshlrev_b32 v{vBias}, 2, v0", wr=[vBias])
    s.valu(f"v_add_u32 v{vBias}, {BIAS}, v{vBias}", wr=[vBias], rd=[vBias])
    tb = s.ds_write("ds_write_b32", vBias, vBiasS, 1, 0)
    s.wait(tb)
    s.valu(f"v_lshl_add_u32 v{vBias}, v{hh}, 4, s{sT0}", wr=[vBias], rd=[hh], srd=[sT0])
    s.valu(f"v_lshl_add_u32 v{vBiasS}, v{hh}, 4, s{sT1}", wr=[vBiasS], rd=[hh], srd=[sT1])
    if cfg.stamps: s.valu(f"v_writelane_b32 v{vStamp}, s98, 0", wr=[vStamp])
    for o in setup_late_ops(s, half): o()
    for o in scalars_b_ops(s): o()
    if int(cfg.prio) == half: s.salu("s_setprio 1")

    xblk = lambda i: vXF + 16*i
    dead = [xblk(2*i + (1-ch)) for i in range(4)]
    used = [xblk(2*i + ch) for i in range(4)]
    Hreg = {}
    for k in range(8):
        for mt in range(2): Hreg[(k, mt)] = dead[k//2] + (k % 2)*8 + mt*4
    for mt in range(2): Hreg[(8, mt)] = xblk(8) + (1-ch)*8 + mt*4
    ACC = [used[0], used[1], used[2]]
    accof = lambda pos: ACC[pos % 3]
    extra_bufs = [used[3], used[3]+4]
    PK2 = used[3] + 8

    fill = {}; cur = [-1]
    def F(n, i, f): fill.setdefault((n, i), []).append(f)
    def spread(ops, n0, i0, n1, i1=None):
        gaps = []
        for n in range(n0, n1+1):
            for i in range(ST[n].nm):
                if n == n0 and i < i0: continue
                if n == n1 and i1 is not None and i > i1: continue
                gaps.append((n, i, 1.0 if ST[n].kind != "b" else 0.5))
        tot = sum(g[2] for g in gaps); acc = 0; k = 0
        for (n, i, w) in gaps:
            acc += w
            tgt = int(round(len(ops)*acc/tot))
            while k < tgt: F(n, i, ops[k]); k += 1
    need_bar = {}; need_mf = {}
    def hold(): return [None]
    def before_bar(n, h):
        n = min(b for b in BAR if b >= n)
        need_bar.setdefault(n, []).append(h)
    def before_mfma(n, i, h): need_mf.setdefault((n, i), []).append(h)

    if half == 1:
        hclr = hold()
        def clr():
            s.valu(f"v_lshlrev_b32 v{vTmp}, 8, v{vLane}", wr=[vTmp], rd=[vLane]); s.valu(f"v_mov_b32 v{vTmp2}, {OOB}", wr=[vTmp2])
            s.valu(f"v_cmp_gt_u32 vcc, 8, v{vLane}", rd=[vLane], swr=["vcc"]); s.valu(f"v_mov_b32 v40, 0", wr=[40])
            s.salu(f"s_cmp_eq_u32 s{sFS}, 0"); s.salu(f"s_cselect_b32 s96, s{sCnt}, {OOB}")
            s.valu(f"v_cndmask_b32 v{vTmp}, v{vTmp2}, v{vTmp}, vcc", wr=[vTmp], rd=[vTmp, vTmp2])
            hclr[0] = s.vstore("buffer_store_dword", 40, 1, vTmp, R_WS, "s96", flags=cfg.st_flags)
            s.valu(f"v_cmp_eq_u32 vcc, 0, v{vLane}", rd=[vLane], swr=["vcc"]); s.valu(f"v_mov_b32 v{vFv}, 1", wr=[vFv]); s.salu("s_nop 0")
            s.valu(f"v_cndmask_b32 v{vOne}, v{vTmp2}, v40, vcc", wr=[vOne], rd=[vTmp2, 40])
        F(int(cfg.clr_stage), 1, clr)
        def arrive():
            srd(s, R_DBG, S_DBG, 256)
            s.salu(f"s_lshl_b32 s96, s{sMT}, 2")
            s.salu(f"s_cmp_lg_u32 s{sW}, 4"); s.salu(f"s_cselect_b32 s96, 1024, s96")
            s.salu(f"s_cmp_lg_u32 s{sFS}, 0"); s.salu(f"s_cselect_b32 s96, 1024, s96")
            s.wait(hclr[0])
            s.vstore("buffer_atomic_add", vFv, 1, vOne, R_DBG, "s96")
        F(int(cfg.arr_stage), 2, arrive)
    if cfg.prefetch and half == 1: spread(prefetch2_ops(s), int(cfg.pf2_stage), 0, int(cfg.pf2_stage))

    for j in range(4):
        S = vS[j % 2]; ops = []
        for e in range(2):
            for g in (2*e, 2*e+1):
                ops += gelu_group(s, [S+4*g+i for i in range(4)], 4*g)
                ops.append(cvt(s, vP+2*g, S+4*g, S+4*g+1)); ops.append(cvt(s, vP+2*g+1, S+4*g+2, S+4*g+3))
            h = hold()
            def wr(h=h, e=e, j=j):
                assert cur[0] >= HWSTAGE[j], (j, cur[0])
                h[0] = s.ds_write("ds_write_b128", vHW, vP+4*e, 4, 2*j*8192 + e*512)
            ops.append(wr)
            before_bar(min(9*(j+2), 36) if j < 3 else B0+5, h)
        if j < 3: spread(ops, 9*(j+1), 2, 9*(j+1)+7)
        else: spread(ops, 36, 2, B0+2)
    for j in range(1, 5):
        S = vS[j % 2]
        if j == 4 and ch == 1: continue
        for g in range(4):
            h = hold()
            def rd(h=h, g=g, j=j, S=S):
                h[0] = s.ds_read("ds_read_b128", S+4*g, 4, vBias if j < 4 else vBiasS, (j*256 if j < 4 else 0) + g*32)
            F(9*j-1, g, rd); before_mfma(9*j, 0, h)
    S = vS[0]; snd = S + 8*(1-ch); own = S + 8*ch
    for e in range(2):
        h = hold()
        def wr(h=h, e=e): h[0] = s.ds_write("ds_write_b128", vEXW, snd+4*e, 4, e*1024)
        F(B0, 5+e, wr); before_bar(B0+1, h)
    hx = []
    for e in range(2):
        h = hold(); hx.append(h)
        def rd(h=h, e=e): h[0] = s.ds_read("ds_read_b128", snd+4*e, 4, vEXR, e*1024)
        F(B0+1, e, rd); before_bar(B0+2, h)
    ops = [lambda: s.wait(hx[0][0], hx[1][0])]
    for i in range(8):
        ops.append(lambda i=i: s.valu(f"v_add_f32 v{own+i}, v{own+i}, v{snd+i}", wr=[own+i], rd=[own+i, snd+i]))
    for g in range(2):
        ops += gelu_group(s, [own+4*g+i for i in range(4)], 4*g)
        ops.append(cvt(s, PK2+2*g, own+4*g, own+4*g+1)); ops.append(cvt(s, PK2+2*g+1, own+4*g+2, own+4*g+3))
    h = hold()
    def wr8(h=h): h[0] = s.ds_write("ds_write_b128", vHW8, PK2, 4, 0)
    ops.append(wr8); before_bar(B0+7, h)
    spread(ops, B0+3, 0, B0+6)
    hrd = {}
    def hread(k, n, i):
        for mt in range(2):
            h = hold(); hrd[(k, mt)] = h
            def rd(h=h, k=k, mt=mt):
                if k < 8: h[0] = s.ds_read("ds_read_b128", Hreg[(k, mt)], 4, vHR, k*8192 + mt*1024)
                else: h[0] = s.ds_read("ds_read_b128", Hreg[(k, mt)], 4, vHR8, mt*1024)
            F(n, i, rd)
    for k in range(6): hread(k, 37 + k//2, 1 + 2*(k % 2))
    hread(6, B0+5, 2); hread(7, B0+5, 5); hread(8, B0+7, 3)

    rs_ops, hb2 = rs_setup_ops(s, half)
    spread(rs_ops, B0+8, 0, B0+13)
    nslow = [0]
    def check(test, tok, reload):
        nslow[0] += 1; k = f"{half}_{nslow[0]}"
        s.wait(tok)
        test(s)
        s.salu(f"s_cbranch_vccnz L_slow_{k}")
        s.raw(f"L_back_{k}:")
        ool.raw(f"L_slow_{k}:")
        ool.salu(f"s_mov_b32 s{sSpin}, {SPIN}")
        ool.raw(f"L_spin_{k}:")
        if int(cfg.backoff): ool.salu(f"s_sleep {int(cfg.backoff)}")
        reload(ool)
        ool.wait_all(l=False)
        test(ool)
        ool.salu(f"s_cbranch_vccz L_back_{k}")
        ool.salu(f"s_sub_u32 s{sSpin}, s{sSpin}, 1"); ool.salu(f"s_cmp_lg_u32 s{sSpin}, 0")
        ool.salu(f"s_cbranch_scc1 L_spin_{k}")
        ool.salu(f"s_branch L_back_{k}")
    if half == 1:
        hc = hold()
        def ld_cnt(st):
            st.valu(f"v_mov_b32 v{vTmp2}, 0", wr=[vTmp2]); st.salu(f"s_lshl_b32 s97, s{sMT}, 2")
            return st.vload("buffer_load_dword", vPoll, 1, vTmp2, R_DBG, "s97", flags=cfg.poll_flags)
        def cnt_issue(): hc[0] = ld_cnt(s)
        F(B0+1, 4, cnt_issue)
        def cnt_test(st):
            st.valu(f"v_cmp_gt_u32 vcc, 1, v{vPoll}", rd=[vPoll], swr=["vcc"]); st.salu("s_nop 1")
        F(B0+5, 0, lambda: check(cnt_test, hc[0], ld_cnt))
    last_stage = {}
    for a in ST[B0:]:
        for (pos, dl, k, u, sl) in a.parts: last_stage[(pos, dl)] = a.n
    pk_of = lambda pos: vT if pos == 1 else (vP if pos % 2 == 0 else PK2)
    stok = {}
    def store_ops(pos, dls):
        A = accof(pos); PK = pk_of(pos); ops = []
        stok[pos] = hold()
        for dl in dls:
            for mt in range(2):
                for e in range(2):
                    ops.append(cvt(s, PK+4*dl+2*mt+e, A+8*dl+4*mt+2*e, A+8*dl+4*mt+2*e+1))
            def st_(dl=dl):
                s.salu(f"s_add_u32 s{sT1}, s{sPc+pos}, s{sDt+dl}")
                if cfg.nostore: s.salu(f"s_mov_b32 s{sT1}, {OOB}")
                stok[pos][0] = s.vstore("buffer_store_dwordx4", PK+4*dl, 4, vL16, R_WS, f"s{sT1}", flags=cfg.st_flags)
            ops.append(st_)
        return ops
    def publish(idx):
        def go():
            if half == 1 and not cfg.nopub:
                s.vstore("buffer_atomic_add", vFv, 1, vOne, R_WS, f"s{sCnt}", off=256*idx)
        return go
    PUBBAR = {}
    for pos in range(8):
        n = max(last_stage[(pos, 0)], last_stage[(pos, 1)]) + 1
        if pos == 1: n += 1
        spread(store_ops(pos, (0, 1)), n, 2, n)
        if 1 <= pos <= 6:
            c = [b for b in BAR if b >= n + int(cfg.publag)]
            if c:
                nb = min(c); PUBBAR[pos] = nb
                before_bar(nb, stok[pos]); F(nb, 1, publish(pos))
    n8 = last_stage[(8, 0)]
    spread(store_ops(8, (0,)), n8, 4, n8, 7)
    def poll(st, idx):
        if cfg.nopoll:
            st.valu(f"v_mov_b32 v{vPoll}, 16", wr=[vPoll]); return None
        return st.vload("buffer_load_dword", vPoll, 1, vOne, R_WS, f"s{sCnt}", off=256*idx, flags=cfg.poll_flags)
    def check_cnt(idx, tok):
        def test(st):
            st.valu(f"v_readfirstlane_b32 s97, v{vPoll}", rd=[vPoll], swr=[97]); st.salu("s_nop 3")
            st.salu(f"s_cmp_lt_u32 s97, s{sTgt}"); st.salu("s_cselect_b64 vcc, -1, 0")
        stamp(s, f"chk{idx}0")
        check(test, tok, lambda st: poll(st, idx))
        stamp(s, f"chk{idx}1")
    FREE8 = xblk(8) + ch*8
    LAND_OF = {1: vS[0], 2: vS[1], 3: vS[1]+8, 4: vXR, 5: vXR+8, 6: FREE8, 7: Hreg[(0, 0)], 0: Hreg[(1, 0)]}
    ptk = {}
    def load_k(st, k):
        t = None
        for e in range(1 if k == 0 else 2):
            t = st.vload("buffer_load_dwordx4", LAND_OF[k]+4*e, 4, vL16, R_WS, f"s{sCo+k}", off=1024*e, flags=cfg.ld_flags)
        if st is s: ptk[k] = t
        return t
    SUM = accof(8) + 8
    def add_k(k):
        s.wait(ptk[k])
        for v_ in range(LAND_OF[k], LAND_OF[k] + (4 if k == 0 else 8)):
            r = (v_ - LAND_OF[k]) % 4
            s.valu(f"v_lshlrev_b32 v{vTmp}, 16, v{v_}", wr=[vTmp], rd=[v_])
            s.valu(f"v_and_b32 v{v_}, s{sMask}, v{v_}", wr=[v_], rd=[v_])
            s.valu(f"v_add_f32 v{SUM+2*r}, v{SUM+2*r}, v{vTmp}", wr=[SUM+2*r], rd=[SUM+2*r, vTmp])
            s.valu(f"v_add_f32 v{SUM+2*r+1}, v{SUM+2*r+1}, v{v_}", wr=[SUM+2*r+1], rd=[SUM+2*r+1, v_])
    L8 = vS[0] + 8
    p8 = [None, None]
    prebar = {}
    def piece(k, e):
        def go():
            if k == 8:
                if e == 1: s.salu(f"s_add_u32 s{sP8}, s{sP8}, 8192")
                p8[e] = s.vload("buffer_load_dwordx4", L8+4*e, 4, vP8off, R_WS, f"s{sP8}", flags=cfg.ld_flags)
            else:
                ptk[k] = s.vload("buffer_load_dwordx4", LAND_OF[k]+4*e, 4, vL16, R_WS, f"s{sCo+k}", off=1024*e, flags=cfg.ld_flags)
        return go
    inloop = set()
    for item in cfg.sched.split(";"):
        pos, nb, sts = item.split(":"); pos = int(pos); nb = int(nb); sts = [int(x) for x in sts.split(",")]
        assert nb in BAR and PUBBAR[pos] < nb, (pos, nb, PUBBAR)
        inloop.add(pos)
        if half == 1:
            hp = hold()
            F(nb - int(cfg.polllead), 3, lambda hp=hp, pos=pos: hp.__setitem__(0, poll(s, pos)))
            prebar.setdefault(nb, []).append(lambda hp=hp, pos=pos: check_cnt(pos, hp[0]))
        pcs = [(pos, 0), (pos, 1)] + ([(8, 0), (8, 1)] if pos == 1 else [])
        assert len(pcs) == len(sts) and min(sts) >= nb
        for (k, e), n in zip(pcs, sts): F(n, 4 if ST[n].nm > 4 else 2, piece(k, e))
    def step8_ops():
        ops = []
        def V(text, **k): ops.append(lambda: s.valu(text, **k))
        R = vT
        ops.append(lambda: s.wait(p8[0], p8[1], hb2[1]))
        for r in range(4):
            a_, b_ = L8 + r, L8 + 4 + r
            V(f"v_lshlrev_b32 v{R+2*r}, 16, v{a_}", wr=[R+2*r], rd=[a_]); V(f"v_and_b32 v{R+2*r+1}, s{sMask}, v{a_}", wr=[R+2*r+1], rd=[a_])
            V(f"v_lshlrev_b32 v{a_}, 16, v{b_}", wr=[a_], rd=[b_]); V(f"v_and_b32 v{b_}, s{sMask}, v{b_}", wr=[b_], rd=[b_])
            V(f"v_add_f32 v{R+2*r}, v{R+2*r}, v{a_}", wr=[R+2*r], rd=[R+2*r, a_]); V(f"v_add_f32 v{R+2*r+1}, v{R+2*r+1}, v{b_}", wr=[R+2*r+1], rd=[R+2*r+1, b_])
        for i in range(4):
            V(f"v_permlane32_swap_b32 v{R+i}, v{R+4+i}", wr=[R+i, R+4+i], rd=[R+i, R+4+i])
        for i in range(4):
            V(f"v_add_f32 v{R+i}, v{R+i}, v{R+4+i}", wr=[R+i], rd=[R+i, R+4+i])
        for i in range(2):
            V(f"v_permlane16_swap_b32 v{R+i}, v{R+2+i}", wr=[R+i, R+2+i], rd=[R+i, R+2+i])
        for i in range(2):
            V(f"v_add_f32 v{R+i}, v{R+i}, v{R+2+i}", wr=[R+i], rd=[R+i, R+2+i])
        for i in range(2):
            V(f"v_add_f32_dpp v{R+2+i}, v{R+i}, v{R+i} row_ror:8 row_mask:0xf bank_mask:0xf", wr=[R+2+i], rd=[R+i])
        V(f"v_lshlrev_b32 v{R}, 16, v{vB28}", wr=[R], rd=[vB28]); V(f"v_and_b32 v{R+1}, s{sMask}, v{vB28}", wr=[R+1], rd=[vB28])
        for i in range(2):
            V(f"v_add_f32 v{R+i}, v{R+i}, v{R+2+i}", wr=[R+i], rd=[R+i, R+2+i])
        ops.append(cvt(s, R, R, R+1))
        ops.append(lambda: s.vstore("buffer_store_dword", R, 1, vOut8, R_OUT, f"s{sOut8}"))
        return ops

    freebufs = [vWF+4*i for i in range(4)]
    frag = {}
    def plan_frag(n, f):
        a = ST[n]
        hs = [hold(), hold()]; ent = [None, hs]; frag[(n, f)] = ent
        def mk(rd):
            def go():
                if rd == 0: ent[0] = freebufs.pop(0)
                if a.kind == "d": base, off = vW1dR, BLK[("w", n)]*8192 + (16*f + 4*rd)*128
                elif a.kind == "s":
                    ks = (4*ch + f) if a.i < 4 else (4 + 2*ch + f)
                    base, off = vW1sR, BLK[("w", n)]*8192 + (16*ks + 4*rd)*64
                else:
                    (pos, dl, k, u, sl) = a.parts[f]
                    base, off = vW2R + 3*dl, BLK[("w", u)]*8192 + sl*4096 + rd*1024
                w_, o_ = win(off)
                hs[rd][0] = s.ds_read("ds_read_b64_tr_b16", ent[0] + 2*rd, 2, base + w_, o_)
            return go
        return [mk(0), mk(1)]
    def nfrag(n): return ST[n].nm if ST[n].kind != "b" else len(ST[n].parts)
    xtok = {}
    def xread(n, sp):
        w_, o_ = win(BLK[("x", n)]*8192 - XWIN0)
        def go(): xtok[(n, sp)] = s.ds_read("ds_read_b128", vXF + 16*n + 4*sp, 4, vXR + 4*w_ + sp, o_)
        return go
    pre = {}
    def P(n, i, f): pre.setdefault((n, i), []).append(f)
    for n in range(1, NST):
        prev = ST[n-1]; rds = []
        for f in range(nfrag(n)): rds += plan_frag(n, f)
        per = -(-len(rds)//prev.nm)
        for k, r in enumerate(rds): P(n-1, min(k//per, prev.nm-1), r)
        if n < 9:
            for sp in range(4): P(n-1, sp, xread(n, sp))

    stamp(s, "setup")
    s.wait(*[utok.get(u) for u in LAND[-1]])
    s.barrier()
    stamp(s, "data")
    for u in ISSUE[-1]:
        t = issue_unit(s, half, u, BLK)
        if t: utok[u] = t
    for g in range(4):
        h = hold(); h[0] = s.ds_read("ds_read_b128", vS[0]+4*g, 4, vBias, g*32); before_mfma(0, 0, h)
    for f in range(4):
        xread(0, f)()
        for r in plan_frag(0, f): r()

    started = set()
    STP = (9, 18, 27, 36, 41, 50, 59, 68, 77)
    for a in ST:
        n = a.n
        if n == B0 - 1: freebufs.extend(extra_bufs)
        stamp(s, f"s{n}")
        uses = {}
        if a.kind == "b":
            for i, (f, mt) in enumerate(a.order): uses[f] = i
        for i in range(a.nm):
            toks = [h[0] for h in need_mf.get((n, i), [])]
            assert all(t is not None for t in toks), (n, i)
            cur[0] = n
            if a.kind == "d":
                reg, hs = frag[(n, i)]
                toks += [hs[0][0], hs[1][0]]
                if a.j == 0: toks.append(xtok[(n, i)])
                s.wait(*toks)
                S = vS[a.j % 2]
                s.mfma32(S, reg, vXF + 16*a.s + 4*i, S)
                freebufs.append(reg)
            elif a.kind == "s":
                reg, hs = frag[(n, i)]
                toks += [hs[0][0], hs[1][0]]
                s.wait(*toks)
                ks = (8*a.i + 4*ch + i) if a.i < 4 else (32 + 2*ch + i)
                first = (a.i == 0 and i == 0)
                s.mfma32(vS[0], reg, vXF + 4*ks, None if (first and ch == 1) else vS[0])
                freebufs.append(reg)
            else:
                f, mt = a.order[i]
                (pos, dl, k, u, sl) = a.parts[f]
                reg, hs = frag[(n, f)]
                toks += [hs[0][0], hs[1][0], hrd[(k, mt)][0]]
                assert all(t is not None for t in toks), (n, i)
                s.wait(*toks)
                d = accof(pos) + 8*dl + 4*mt
                key = (pos, dl, mt)
                s.mfma16(d, reg, Hreg[(k, mt)], d if key in started else None)
                started.add(key)
                if uses[f] == i: freebufs.append(reg)
            if i == 0 and n in BAR:
                assert all(h[0] is not None for h in need_bar.get(n, [])), n
                for u in LAND.get(n, []): assert (u in utok) == ((u[0] == "w") == (half == 0)), (n, u)
                for f in prebar.get(n, []): f()
                s.wait(*([utok.get(u) for u in LAND.get(n, [])] + [h[0] for h in need_bar.get(n, [])]))
                s.barrier()
            for f in pre.get((n, i), []): f()
            if i == (int(cfg.dmapos) if a.nm > 2 else 0):
                for u in ISSUE.get(n, []):
                    t = issue_unit(s, half, u, BLK)
                    if t: utok[u] = t
            for f in fill.get((n, i), []): f()
    stamp(s, "tail")
    early = [k for k in range(1, 7) if k in PUBBAR and k not in inloop]
    late = [k for k in range(1, 8) if k not in PUBBAR]
    hp = poll(s, max(early)) if (half == 1 and early) else None
    s.wait(hb2[0])
    for r in range(2):
        s.valu(f"v_lshlrev_b32 v{vT+2*r}, 16, v{vB2m+r}", wr=[vT+2*r], rd=[vB2m+r])
        s.valu(f"v_and_b32 v{vT+2*r+1}, s{sMask}, v{vB2m+r}", wr=[vT+2*r+1], rd=[vB2m+r])
    for i in range(8):
        s.valu(f"v_add_f32 v{SUM+i}, v{SUM+i}, v{vT + i % 4}", wr=[SUM+i], rd=[SUM+i, vT + i % 4])
    todo = sorted(inloop)
    add_k(todo.pop(0))
    if half == 1 and early: check_cnt(max(early), hp)
    s.wait(stok[7][0], stok[8][0])
    s.barrier()
    stamp(s, "T1")
    publish(7)()
    for k in early: load_k(s, k)
    hp = poll(s, 7) if half == 1 else None
    for k in todo: add_k(k)
    for o in step8_ops(): o()
    if half == 1: check_cnt(7, hp)
    s.barrier()
    stamp(s, "T2")
    for k in late + [0]: load_k(s, k)
    for k in early + late + [0]: add_k(k)
    stamp(s, "fin")
    for k in range(4): cvt(s, vP+k, SUM+2*k, SUM+2*k+1)()
    s.vstore("buffer_store_dwordx2", vP, 2, vOutM, R_OUT, f"s{sOutM}")
    s.salu(f"s_add_u32 s{sOutM}, s{sOutM}, {16*1152}")
    s.vstore("buffer_store_dwordx2", vP+2, 2, vOutM, R_OUT, f"s{sOutM}")
    stamp(s, "done")
    if cfg.stamps: s.wait_all()
    stamp(s, "end")
    stamp_flush(s)
    s.salu("s_endpgm")
    return s, ool

def kd(name, vg, sg):
    return f""".amdhsa_kernel {name}
  .amdhsa_next_free_vgpr {vg}
  .amdhsa_next_free_sgpr {sg}
  .amdhsa_accum_offset {(vg+3)//4*4}
  .amdhsa_group_segment_fixed_size 0
  .amdhsa_kernarg_size 64
  .amdhsa_user_sgpr_count 2
  .amdhsa_user_sgpr_kernarg_segment_ptr 1
  .amdhsa_system_sgpr_workgroup_id_x 1
  .amdhsa_float_denorm_mode_32 3
.end_amdhsa_kernel
"""

def generate(aslist=False):
    PLAN = plan()
    p = Stream()
    tokb = prologue(p)
    p.salu(f"s_cmp_ge_u32 s{sW}, 4", srd=[sW]); p.salu("s_cbranch_scc1 L_half1")
    h0, o0 = body(p, 0, tokb, PLAN); h1, o1 = body(p, 1, tokb, PLAN)
    mk = (p.text() + "\n" + h0.text() + "\n" + o0.text() + "\n.p2align 6\nL_half1:\n" + h1.text() + "\n" + o1.text()
          + "\nL_main_end:\n    s_endpgm\n")
    k1 = NAME + "_kernel"
    launch = (f"; @launch kernel={k1} grid=(256,1,1) block=(512,1,1) lds=163840" if aslist
              else "; @launch grid=(256,1,1) block=(512,1,1) lds=163840")
    out = f"""; fused MLP  out = gelu_tanh(x@w1+b1)@w2+b2   (emitted by my generator script)
{launch}
.amdgcn_target "amdgcn-amd-amdhsa--gfx950"
.text
.globl {k1}
.p2align 8
.type {k1},@function
{k1}:
{mk}
.section .rodata,"a"
.p2align 6
{kd(k1, 256, 102)}"""
    return out, (h0.nops, h1.nops, len(h0.ins), len(h1.ins)), PLAN

if __name__ == "__main__":
    aslist = False
    for a in sys.argv[2:]:
        k, v = a.split("=", 1)
        if k == "aslist": aslist = True; continue
        setattr(cfg, k, {"True": True, "False": False}.get(v, v.replace("+", " ")))
    txt, stats, PLAN = generate(aslist)
    open(sys.argv[1], "w").write(txt)
    print("nops/ins:", stats, "bytes", len(txt))
    if "-v" in sys.argv[1:] or True:
        BAR, ISSUE, BLK, LAND = PLAN
        print(" ".join(f"{b}:{','.join(k+str(m)+'@'+str(BLK[(k,m)]) for k,m in ISSUE[b])}" for b in sorted(ISSUE)))
```

```python
import sys, struct
from emit import Stream, vr, sr, rng

NAME = "standalone__dense_activation_gelu__prompt"
M, D, F = 2048, 576, 4608
def f2u(x): return struct.unpack("<I", struct.pack("<f", x))[0]
GA = -2.0*0.7978845608028654*1.4426950408889634
GB = GA*0.044715

class Cfg:
    st_flags = "sc1"; ld_flags = "sc1"; poll_flags = "sc1"
    stamps = False; cyc = False
    barA = 1; barB = 1; lastbar = ""
    prio = -1
    g0 = 2
    g1 = 4
    look0 = 5
    lookA = 9; lookB = 12
    dposA = "1,3"; dposB = "1,5"
    wait2 = True
    pf = "10,34,4"
    pfshare = 8
    g3end = "41,2"
    sched = "1:62:62,64,66,68;2:67:69,71;3:72:73,75"
    publag = 5; polllead = 2; backoff = 4
    clr_stage = 5; arr_stage = 30
    nopoll = False; nopub = False; noload = False; nostore = False
cfg = Cfg()
def I(x): return int(x)
def IL(x): return [int(v) for v in str(x).split(",") if v != ""]

PART_BYTES = 16*144*16*1024
FLG = PART_BYTES
WS_BYTES = FLG + 16*8*256
OOB = 0x40000000
SPIN = 30000

S_X, S_W1, S_B1, S_W2, S_B2, S_OUT, S_DBG, S_WS = 4, 6, 8, 10, 12, 14, 16, 18
R_X, R_W1, R_W2, R_WS, R_B1 = 20, 24, 28, 32, 36
R_DBG = 36
R_B2, R_OUT = 4, 8
sW, sRG, sMT, sFS, sD0, sS0 = 40, 41, 42, 43, 44, 45
sXo, sW1d, sW1s, sLx, sLw, sT0, sT1, sGB = 46, 47, 48, 49, 50, 51, 52, 53
sPC, sE = 54, 55
sW2c, sW2s, sPc, sCo, sDt = 56, 65, 70, 79, 87
sCnt, sTgt, sPF, sP8, sSpin, sOutM, sOut8, sMask = 89, 90, 91, 92, 93, 94, 95, 3
sU0, sU1 = 96, 97
vLane, vL16 = 1, 2
vX0, vX1, vW1d, vW1s, vW2 = 3, 4, 5, 6, 7
vW1dR, vW1sR, vW2R = 8, 11, 14
vHW, vHW8, vHR, vHR8 = 20, 21, 22, 23
vBias, vBiasS, vEXW, vEXR, vGA, vTmp, vTmp2, vDummy = 24, 25, 26, 27, 28, 29, 30, 31
vXR = 32
vP8off, vOutM, vB2m, vOut8, vB28 = 40, 41, 42, 44, 45
vSec, vPF = 46, 47
vT, vP, vWF = 48, 56, 64
vS = (80, 96)
vXF = 112
vStamp = 0
vOne, vFv, vPoll = vX0, vX1, 12

NBLK, HB = 20, 10
HBASE, BIAS, EXB, XWIN0 = HB*8192, 19*8192, 18*8192, 7*8192

class St: pass
def build_stages():
    st = []
    for j in range(4):
        for s in range(9):
            a = St(); a.kind = "d"; a.j = j; a.s = s; a.nm = 4; st.append(a)
    for i in range(5):
        a = St(); a.kind = "s"; a.i = i; a.nm = 4 if i < 4 else 2; a.rowbase = 128*i if i < 4 else 448; st.append(a)
    def full(pos, i):
        a = St(); a.kind = "b"; a.shared = False; a.pos = pos; a.i = i
        a.parts = [(pos, dl, 2*i+kk, None, kk) for dl in range(2) for kk in range(2)]
        a.order = [(2*(q//4) + q % 2, (q//2) % 2) for q in range(8)]
        return a
    def shared(pa, pb, pair):
        a = St(); a.kind = "b"; a.shared = True; a.pair = pair
        a.parts = [(pa, 0, 8, None, 0), (pa, 1, 8, None, 0), (pb, 0, 8, None, 1), (pb, 1, 8, None, 1)]
        a.order = [(q//2, q % 2) for q in range(8)]
        return a
    st += [full(0, 0), full(0, 1), full(0, 2), full(1, 0), full(1, 1), full(0, 3), shared(0, 1, 0), full(1, 2), full(1, 3)]
    for p in range(1, 4):
        a, b = 2*p, 2*p+1
        for i in range(4): st.append(full(a, i))
        st.append(shared(a, b, p))
        for i in range(4): st.append(full(b, i))
    L0 = len(st)
    fr = [(8, dl, k, L0 + k//2, k % 2) for dl in range(2) for k in range(9)]
    for gi, g in enumerate([fr[0:4], fr[4:8], fr[8:12], fr[12:16], fr[16:18]]):
        a = St(); a.kind = "b"; a.shared = (gi == 4); a.pos = 8; a.i = gi; a.pair = 4; a.parts = g
        o = []; k = 0
        while k < len(g):
            if k+1 < len(g) and g[k][1] == g[k+1][1]: o += [(k, 0), (k+1, 0), (k, 1), (k+1, 1)]; k += 2
            else: o += [(k, 0), (k, 1)]; k += 1
        a.order = o; st.append(a)
    for n, a in enumerate(st):
        a.n = n
        if a.kind == "b":
            a.nm = len(a.order)
            a.parts = [(p, d, k, (n if u is None else u), sl) for (p, d, k, u, sl) in a.parts]
    return st, L0
ST, LAST0 = build_stages()
NST = len(ST)
B0 = 41
HWSTAGE = {0: 9+3, 1: 18+3, 2: 27+3, 3: 36+1}
HFREE = {0: B0+1, 1: B0+1, 2: B0+2, 3: B0+2, 4: B0+3, 5: B0+3, 6: B0+6, 7: B0+6, 8: B0+7}

def plan():
    BAR = set()
    for n in range(NST):
        if n >= LAST0:
            if n in IL(cfg.lastbar): BAR.add(n)
        elif n < 9 or 35 <= n <= B0+8: BAR.add(n)
        elif n < 35:
            if (n - 9) % I(cfg.barA) == 0: BAR.add(n)
        elif (LAST0 - 1 - n) % I(cfg.barB) == 0: BAR.add(n)
    bars = sorted(BAR)
    first_read = lambda u: LAST0 - 1 if (u[0] == "w" and u[1] >= LAST0) else u[1] - 1
    last_use = lambda u: NST if (u[0] == "w" and u[1] >= LAST0) else u[1]
    res = {HB+k: (HWSTAGE[k//2], HFREE[k]) for k in range(8)}
    res[HB+8] = (B0, HFREE[8]); res[19] = (-99, B0+2)
    units = []
    for n in range(NST):
        if n < 9: units.append(("x", n))
        units.append(("w", n))
    busy = {}; issue = {}; blk = {}; land = {}
    ui = 0
    def freebar(u):
        c = [b for b in bars if b >= last_use(u)+1]
        return c[0] if c else 10**6
    def ok(b, u, bar):
        if b in busy: return False
        if b in res:
            a0, a1 = res[b]
            lb = max([x for x in [-3, -2, -1]+bars if x <= a0] or [-99])
            if not (freebar(u) <= lb or bar >= a1): return False
        return True
    for bar in [-3, -2, -1] + bars:
        for b in [b for b, u in busy.items() if freebar(u) <= bar]: del busy[b]
        lst = []
        nxt = min([b for b in bars if b > bar] or [NST])
        cap = 2*(nxt - bar) if bar >= 0 else 99
        if bar == -3: horizon = I(cfg.g0) - 1
        elif bar == -2: horizon = I(cfg.g1) - 1
        elif bar < 4: horizon = bar + I(cfg.look0)
        elif bar < B0 - 6: horizon = nxt - 1 + I(cfg.lookA)
        else: horizon = nxt - 1 + I(cfg.lookB)
        while ui < len(units):
            u = units[ui]; kind, m = u
            if min(m, LAST0) > horizon: break
            if kind == "x":
                c = [b for b in range(7, 18, 2) if ok(b, u, bar) and ok(b+1, u, bar)]
                if not c: break
                b = c[0]; busy[b] = u; busy[b+1] = u
            else:
                c = [b for b in range(NBLK) if ok(b, u, bar)]
                if any(k == "x" for k, _ in units[ui:]): c = [b for b in c if b < 7]
                if not c: break
                b = c[0]; busy[b] = u
            blk[u] = b; lst.append(u); ui += 1
            if len([x for x in lst if x[0] == "w"]) >= cap: break
        issue[bar] = lst
    assert ui == len(units)
    for u in units:
        lb = max(b for b in [-1]+bars if b <= first_read(u))
        land.setdefault(lb, []).append(u)
        ib = [bar for bar, l in issue.items() if u in l][0]
        assert ib < lb, (u, ib, lb)
    return BAR, issue, blk, land

def win(a): return a // 65536, a % 65536

NSTAMP = 16
def snames(): return cfg.stamps.split(",") if isinstance(cfg.stamps, str) else []
def stamp(s, name):
    if name not in snames(): return
    s.wait_all(v=False)
    s.salu("s_memtime s[100:101]" if cfg.cyc else "s_memrealtime s[100:101]")
    s.wait_all(v=False)
    s.valu(f"v_writelane_b32 v{vStamp}, s100, {snames().index(name)+1}", wr=[vStamp])
def stamp_flush(s):
    if not cfg.stamps: return
    s.salu(f"s_lshl_b32 s{sT0}, s2, 3"); s.salu(f"s_add_u32 s{sT0}, s{sT0}, s{sW}"); s.salu(f"s_mul_i32 s{sT0}, s{sT0}, {4*NSTAMP}")
    s.salu(f"s_add_u32 s{sT0}, s{sT0}, {128<<20}")
    s.salu(f"s_mov_b32 s{R_WS+2}, 0x10000000")
    s.valu(f"v_lshlrev_b32 v{vTmp}, 2, v{vLane}", wr=[vTmp], rd=[vLane])
    s.valu(f"v_cmp_gt_u32 vcc, {NSTAMP}, v{vLane}", rd=[vLane], swr=["vcc"])
    s.valu(f"v_mov_b32 v{vTmp2}, {OOB}", wr=[vTmp2])
    s.salu("s_nop 1")
    s.valu(f"v_cndmask_b32 v{vTmp}, v{vTmp2}, v{vTmp}, vcc", wr=[vTmp], rd=[vTmp, vTmp2])
    s.vstore("buffer_store_dword", vStamp, 1, vTmp, R_WS, f"s{sT0}")

def srd(s, r, base, size):
    if r != base:
        s.salu(f"s_mov_b32 s{r}, s{base}"); s.salu(f"s_mov_b32 s{r+1}, s{base+1}")
    s.salu(f"s_mov_b32 s{r+2}, {size}"); s.salu(f"s_mov_b32 s{r+3}, 0x20000")

class Ops:
    def __init__(self, s): self.s = s
    def V(self, text, wr=(), rd=(), **k): self.s.valu(text, wr=wr, rd=rd, **k)
    def S(self, text, **k): self.s.salu(text, **k)

def prologue(p):
    o = Ops(p); V, S = o.V, o.S
    S("s_cmp_ge_u32 s2, 256"); S("s_cbranch_scc1 L_main_end")
    if cfg.stamps: S("s_memtime s[98:99]" if cfg.cyc else "s_memrealtime s[98:99]")
    S("s_load_dwordx16 s[4:19], s[0:1], 0")
    L = vLane; a, b = vTmp, vTmp2
    V(f"v_lshrrev_b32 v{a}, 6, v0", [a]); V(f"v_and_b32 v{L}, 63, v0", [L])
    V(f"v_readfirstlane_b32 s{sW}, v{a}", rd=[a], swr=[sW])
    S(f"s_and_b32 s{sT0}, s2, 7"); S(f"s_lshr_b32 s{sT1}, s2, 3")
    S(f"s_and_b32 s{sMT}, s{sT0}, 1"); S(f"s_lshl_b32 s{sMT}, s{sMT}, 3")
    S(f"s_lshr_b32 s{sFS}, s{sT1}, 2"); S(f"s_add_u32 s{sMT}, s{sMT}, s{sFS}")
    S(f"s_lshr_b32 s{sFS}, s{sT0}, 1"); S(f"s_lshl_b32 s{sFS}, s{sFS}, 2")
    S(f"s_and_b32 s{sT1}, s{sT1}, 3"); S(f"s_add_u32 s{sFS}, s{sFS}, s{sT1}")
    S(f"s_and_b32 s{sRG}, s{sW}, 3", srd=[sW])
    S(f"s_and_b32 s{sE}, s{sFS}, 1"); S(f"s_lshl_b32 s{sD0}, s{sE}, 5")
    S(f"s_lshl_b32 s{sT0}, s{sMT}, 7"); S(f"s_lshl_b32 s{sT1}, s{sRG}, 5"); S(f"s_add_u32 s{sT0}, s{sT0}, s{sT1}")
    S(f"s_mul_i32 s{sXo}, s{sT0}, 1152")
    S(f"s_lshl_b32 s{sLx}, s{sRG}, 12"); S(f"s_lshl_b32 s{sLw}, s{sRG}, 11")
    S(f"s_mul_i32 s{sU0}, s{sFS}, 576")
    S(f"s_mul_i32 s{sT1}, s{sRG}, {16*9216}"); S(f"s_add_u32 s{sW1d}, s{sU0}, s{sT1}")
    S(f"s_lshl_b32 s{sT1}, s{sD0}, 1"); S(f"s_add_u32 s{sW1d}, s{sW1d}, s{sT1}")
    V(f"v_lshrrev_b32 v{a}, 3, v{L}", [a], [L])
    V(f"v_mul_u32_u24 v{vX0}, 1152, v{a}", [vX0], [a])
    V(f"v_mul_u32_u24 v{vW1d}, 9216, v{a}", [vW1d], [a])
    V(f"v_mov_b32 v{vW2}, v{vX0}", [vW2], [vX0])
    V(f"v_lshrrev_b32 v{a}, 4, v{L}", [a], [L])
    V(f"v_and_b32 v{b}, 7, v{L}", [b], [L])
    V(f"v_xor_b32 v{vX1}, v{a}, v{b}", [vX1], [a, b])
    V(f"v_lshl_add_u32 v{vX0}, v{vX1}, 4, v{vX0}", [vX0], [vX1, vX0])
    V(f"v_xor_b32 v{vX1}, 64, v{vX0}", [vX1], [vX0])
    V(f"v_add_u32 v{vX1}, {9216-1024}, v{vX1}", [vX1], [vX1])
    V(f"v_and_b32 v{a}, 1, v{a}", [a], [a]); V(f"v_lshlrev_b32 v{a}, 2, v{a}", [a], [a])
    V(f"v_xor_b32 v{b}, v{a}, v{b}", [b], [a, b])
    V(f"v_lshl_add_u32 v{vW1d}, v{b}, 4, v{vW1d}", [vW1d], [b, vW1d])
    V(f"v_lshlrev_b32 v{vBias}, 1, v0", [vBias])
    p.wait_all(v=False)
    srd(p, R_X, S_X, M*D*2); srd(p, R_W1, S_W1, D*F*2)

def dma2(s, voff, r, soff, second):
    t = s.dma(voff, r, soff)
    if second: s.ins[-1].text = s.ins[-1].text.replace(" offen", " offen offset:1024")
    return t

class Issuer:
    def __init__(self, s, half, BLK, utok): self.s, self.half, self.BLK, self.utok = s, half, BLK, utok; self.sec = None
    def pieces(self, u):
        s, half = self.s, self.half
        kind, m = u; b = self.BLK[u]; out = []
        if kind == "x":
            def first():
                s.salu(f"s_add_u32 m0, s{sLx}, {b*8192 + half*2048}", swr=["m0"])
                s.salu(f"s_add_u32 s{sT0}, s{sXo}, {16*half*1152 + m*128}")
                self.utok[u] = dma2(s, vX0, R_X, f"s{sT0}", False)
            def second(): self.utok[u] = dma2(s, vX1, R_X, f"s{sT0}", True)
            return [first, second]
        a = ST[m]
        if m < 9:
            def one():
                s.salu(f"s_add_u32 m0, s{sLw}, {b*8192 + half*1024}", swr=["m0"])
                s.salu(f"s_add_u32 s{sT0}, s{sW1d}, {(64*a.s + 8*half)*9216}")
                self.utok[u] = s.dma(vW1d, R_W1, f"s{sT0}")
            return [one]
        if half != 0: return []
        if a.kind == "d": v, r, base, imm, step = vW1d, R_W1, sW1d, 64*a.s*9216 + a.j*128, 8*9216
        elif a.kind == "s": v, r, base, imm, step = vW1s, R_W1, sW1s, a.rowbase*9216, 16*9216
        elif not a.shared: v, r, base, imm, step = vW2, R_W2, sW2c+a.pos, 64*a.i*1152, 8*1152
        else: v, r, base, imm, step = vW2, R_W2, sW2s+a.pair, 0, 8*1152
        def first():
            if self.sec != v:
                s.valu(f"v_add_u32 v{vSec}, {step-1024}, v{v}", wr=[vSec], rd=[v]); self.sec = v
            s.salu(f"s_add_u32 m0, s{sLw}, {b*8192}", swr=["m0"])
            if imm: s.salu(f"s_add_u32 s{sT0}, s{base}, {imm}")
            else: s.salu("s_nop 0")
            self.so = f"s{sT0}" if imm else f"s{base}"
            self.utok[u] = dma2(s, v, r, self.so, False)
        def second(): self.utok[u] = dma2(s, vSec, r, self.so, True)
        return [first, second]

def setup_main(s, half):
    o = Ops(s); V, S = o.V, o.S
    L = vLane; a, b = vTmp, vTmp2; ch = half
    r, c8, t, hh = vT, vT+1, vT+2, vT+3
    srd(s, R_B1, S_B1, F*2)
    tokb = s.vload("buffer_load_ushort", vBiasS, 1, vBias, R_B1, f"s{sU0}")
    V(f"v_bfe_u32 v{r}, v{L}, 2, 2", [r], [L]); V(f"v_and_b32 v{c8}, 3, v{L}", [c8], [L]); V(f"v_lshlrev_b32 v{c8}, 3, v{c8}", [c8], [c8])
    V(f"v_lshrrev_b32 v{hh}, 5, v{L}", [hh], [L])
    V(f"v_lshl_add_u32 v{t}, v{hh}, 3, v{r}", [t], [hh, r])
    V(f"v_bfe_u32 v{b}, v{L}, 4, 1", [b], [L]); V(f"v_lshl_add_u32 v{b}, v{b}, 5, v{c8}", [b], [b, c8])
    V(f"v_lshl_add_u32 v{vW1sR}, v{t}, 6, v{b}", [vW1sR], [t, b])
    V(f"v_lshl_add_u32 v{vW1dR}, v{t}, 7, v{b}", [vW1dR], [t, b])
    V(f"v_lshrrev_b32 v{t}, 1, v{r}", [t], [r])
    if ch: V(f"v_xor_b32 v{t}, 1, v{t}", [t], [t])
    V(f"v_lshl_add_u32 v{vW1dR}, v{t}, 6, v{vW1dR}", [vW1dR], [t, vW1dR])
    for k in (1, 2):
        V(f"v_add_u32 v{vW1dR+k}, {65536*k}, v{vW1dR}", [vW1dR+k], [vW1dR]); V(f"v_add_u32 v{vW1sR+k}, {65536*k}, v{vW1sR}", [vW1sR+k], [vW1sR])
    V(f"v_and_b32 v{b}, 31, v{L}", [b], [L]); V(f"v_bfe_u32 v{t}, v{L}, 1, 3", [t], [L])
    V(f"v_xor_b32 v{t}, v{t}, v{hh}", [t], [t, hh]); V(f"v_lshlrev_b32 v{t}, 4, v{t}", [t], [t])
    V(f"v_lshl_add_u32 v{t}, v{b}, 7, v{t}", [t], [b, t]); V(f"v_add_u32 v{t}, s{sLx}, v{t}", [t], [t])
    for sp in range(4):
        V(f"v_xor_b32 v{vXR+sp}, {32*sp}, v{t}", [vXR+sp], [t])
        V(f"v_add_u32 v{vXR+4+sp}, {XWIN0+65536}, v{vXR+sp}", [vXR+4+sp], [vXR+sp])
        V(f"v_add_u32 v{vXR+sp}, {XWIN0}, v{vXR+sp}", [vXR+sp], [vXR+sp])
    V(f"v_lshlrev_b32 v{vL16}, 4, v{L}", [vL16], [L])
    V(f"v_mov_b32 v{vGA}, 0x{f2u(GA):08x}", [vGA]); S(f"s_mov_b32 s{sGB}, 0x{f2u(GB):08x}")
    S(f"s_lshr_b32 s{sPC}, s{sFS}, 1"); S(f"s_xor_b32 s{sT1}, s{sE}, 1"); S(f"s_lshl_b32 s{sS0}, s{sT1}, 8")
    if half == 0:
        S(f"s_mul_i32 s{sT1}, s{sRG}, {32*9216}"); S(f"s_add_u32 s{sW1s}, s{sU0}, s{sT1}")
        S(f"s_lshl_b32 s{sT1}, s{sS0}, 1"); S(f"s_add_u32 s{sW1s}, s{sW1s}, s{sT1}")
        V(f"v_lshrrev_b32 v{a}, 2, v{L}", [a], [L]); V(f"v_mul_u32_u24 v{vW1s}, 9216, v{a}", [vW1s], [a])
        V(f"v_lshl_add_u32 v{vW1s}, v{c8}, 1, v{vW1s}", [vW1s], [c8, vW1s])
        V(f"v_bfe_u32 v{a}, v{L}, 1, 2", [a], [L]); V(f"v_lshrrev_b32 v{b}, 4, v{L}", [b], [L]); V(f"v_xor_b32 v{a}, v{a}, v{b}", [a], [a, b])
        V(f"v_lshl_add_u32 v{vW2}, v{a}, 5, v{vW2}", [vW2], [a, vW2])
        V(f"v_and_b32 v{a}, 1, v{L}", [a], [L]); V(f"v_lshl_add_u32 v{vW2}, v{a}, 4, v{vW2}", [vW2], [a, vW2])
    V(f"v_and_b32 v{a}, 15, v{L}", [a], [L]); V(f"v_mul_u32_u24 v{vOutM}, 1152, v{a}", [vOutM], [a])
    V(f"v_lshlrev_b32 v{vHW}, 4, v{a}", [vHW], [a])
    V(f"v_bfe_u32 v{a}, v{L}, 4, 1", [a], [L]); V(f"v_lshl_add_u32 v{vHW}, v{a}, 10, v{vHW}", [vHW], [a, vHW])
    V(f"v_lshl_add_u32 v{vHW}, v{hh}, 8, v{vHW}", [vHW], [hh, vHW]); V(f"v_add_u32 v{vHW}, s{sLw}, v{vHW}", [vHW], [vHW])
    V(f"v_add_u32 v{vHW8}, {HBASE + 8*8192 + ch*512}, v{vHW}", [vHW8], [vHW]); V(f"v_add_u32 v{vHW}, {HBASE + ch*8192}, v{vHW}", [vHW], [vHW])
    V(f"v_add_u32 v{vHR}, s{sLw}, v{vL16}", [vHR], [vL16])
    V(f"v_add_u32 v{vEXW}, {EXB + ch*8192}, v{vHR}", [vEXW], [vHR]); V(f"v_add_u32 v{vEXR}, {EXB + (1-ch)*8192}, v{vHR}", [vEXR], [vHR])
    V(f"v_add_u32 v{vHR8}, {HBASE + 65536}, v{vHR}", [vHR8], [vHR]); V(f"v_add_u32 v{vHR}, {HBASE}, v{vHR}", [vHR], [vHR])
    V(f"v_bfe_u32 v{a}, v{L}, 2, 3", [a], [L]); V(f"v_lshl_add_u32 v{b}, v{hh}, 4, v{a}", [b], [a, hh])
    V(f"v_lshl_add_u32 v{vW2R}, v{b}, 7, v{c8}", [vW2R], [b, c8])
    V(f"v_lshrrev_b32 v{a}, 1, v{a}", [a], [a]); V(f"v_xor_b32 v{a}, {2*ch+1}, v{a}", [a], [a]); V(f"v_xor_b32 v{a}, s{sE}, v{a}", [a], [a])
    V(f"v_lshl_add_u32 v{vW2R}, v{a}, 5, v{vW2R}", [vW2R], [a, vW2R]); V(f"v_xor_b32 v{vW2R+3}, 32, v{vW2R}", [vW2R+3], [vW2R])
    for dl in range(2):
        for k in (1, 2): V(f"v_add_u32 v{vW2R+3*dl+k}, {65536*k}, v{vW2R+3*dl}", [vW2R+3*dl+k], [vW2R+3*dl])
    t0, t1, t2 = sU0, sU1, sSpin
    srd(s, R_W2, S_W2, F*D*2); srd(s, R_WS, S_WS, WS_BYTES)
    srd(s, R_B2, S_B2, D*2); srd(s, R_OUT, S_OUT, M*D*2)
    S(f"s_mov_b32 s{sPc}, 8")
    for k in range(1, 8): S(f"s_add_u32 s{sPc+k}, s{sPC}, {k}"); S(f"s_and_b32 s{sPc+k}, s{sPc+k}, 7")
    S(f"s_mov_b32 s{sPc+8}, s{sPC}")
    if half == 0:
        S(f"s_mul_i32 s{t0}, s{sFS}, 288"); S(f"s_add_u32 s{t1}, s{t0}, s{sD0}")
        S(f"s_lshl_b32 s{t2}, s{sRG}, 4"); S(f"s_add_u32 s{t1}, s{t1}, s{t2}"); S(f"s_mul_i32 s{t1}, s{t1}, 1152")
        for pos in range(9): S(f"s_lshl_b32 s{t2}, s{sPc+pos}, 7"); S(f"s_add_u32 s{sW2c+pos}, s{t1}, s{t2}")
        S(f"s_add_u32 s{t0}, s{t0}, s{sS0}"); S(f"s_and_b32 s{t1}, s{sRG}, 1"); S(f"s_lshl_b32 s{t1}, s{t1}, 4")
        S(f"s_add_u32 s{t0}, s{t0}, s{t1}"); S(f"s_mul_i32 s{t0}, s{t0}, 1152")
        for pr in range(5):
            if pr < 4: S(f"s_cmp_ge_u32 s{sRG}, 2"); S(f"s_cselect_b32 s{t2}, s{sPc+2*pr+1}, s{sPc+2*pr}")
            else: S(f"s_mov_b32 s{t2}, s{sPc+8}")
            S(f"s_lshl_b32 s{t2}, s{t2}, 7"); S(f"s_add_u32 s{sW2s+pr}, s{t0}, s{t2}")
    S(f"s_mul_i32 s{t0}, s{sMT}, 144"); S(f"s_lshl_b32 s{t1}, s{sW}, 1"); S(f"s_add_u32 s{t1}, s{t0}, s{t1}")
    S(f"s_lshl_b32 s{sDt}, s{t1}, 14"); S(f"s_lshl_b32 s{t2}, s{sFS}, 10"); S(f"s_add_u32 s{sDt}, s{sDt}, s{t2}")
    for pos in range(9): S(f"s_lshl_b32 s{sPc+pos}, s{sPc+pos}, 18"); S(f"s_add_u32 s{sPc+pos}, s{sPc+pos}, s{sDt}")
    S(f"s_lshl_b32 s{sDt+1}, s{sE}, 14"); S(f"s_xor_b32 s{sDt}, s{sDt+1}, 16384")
    S(f"s_lshl_b32 s{t2}, s{sPC}, 4"); S(f"s_add_u32 s{t1}, s{t1}, s{t2}"); S(f"s_add_u32 s{t1}, s{t1}, s{sE}"); S(f"s_lshl_b32 s{t1}, s{t1}, 14")
    for k in range(1, 8):
        S(f"s_sub_u32 s{t2}, s{sPC}, {k}"); S(f"s_and_b32 s{t2}, s{t2}, 7"); S(f"s_lshl_b32 s{t2}, s{t2}, 11"); S(f"s_add_u32 s{sCo+k}, s{t1}, s{t2}")
    S(f"s_xor_b32 s{t2}, s{sFS}, 1"); S(f"s_lshl_b32 s{t2}, s{t2}, 10"); S(f"s_add_u32 s{sCo}, s{t1}, s{t2}")
    S(f"s_add_u32 s{t0}, s{t0}, s{sFS}"); S(f"s_add_u32 s{t0}, s{t0}, 128"); S(f"s_lshl_b32 s{sP8}, s{t0}, 14")
    if cfg.noload:
        for k in range(8): S(f"s_mov_b32 s{sCo+k}, {OOB}")
        S(f"s_mov_b32 s{sP8}, {OOB}")
    S(f"s_mov_b32 s{sMask}, 0xffff0000")
    if half == 1:
        S(f"s_lshl_b32 s{t0}, s{sMT}, 11"); S(f"s_add_u32 s{t0}, s{t0}, {FLG}")
        S(f"s_cmp_eq_u32 s{sW}, 4"); S(f"s_cselect_b32 s{sCnt}, s{t0}, {OOB}"); S(f"s_cselect_b32 s{sTgt}, 16, 0")
        if cfg.pf:
            nl = IL(cfg.pf)[2]; sh = I(cfg.pfshare); per = 2592//(sh*4) + (1 if 2592 % (sh*4) else 0)
            S(f"s_and_b32 s{t0}, s{sMT}, {sh-1}"); S(f"s_lshl_b32 s{t0}, s{t0}, 2"); S(f"s_add_u32 s{t0}, s{t0}, s{sRG}")
            S(f"s_mul_i32 s{t0}, s{t0}, {per*128}"); S(f"s_mul_i32 s{t1}, s{sFS}, {288*1152}"); S(f"s_add_u32 s{sPF}, s{t0}, s{t1}")
            V(f"v_lshlrev_b32 v{a}, 7, v{L}", [a], [L]); V(f"v_cmp_gt_u32 vcc, {nl}, v{L}", rd=[L], swr=["vcc"]); V(f"v_mov_b32 v{b}, {OOB}", [b]); S("s_nop 0")
            V(f"v_cndmask_b32 v{vPF}, v{b}, v{a}, vcc", [vPF], [a, b])
    V(f"v_lshrrev_b32 v{a}, 3, v{L}", [a], [L]); V(f"v_lshlrev_b32 v{a}, 10, v{a}", [a], [a])
    V(f"v_and_b32 v{t}, 7, v{L}", [t], [L]); V(f"v_lshl_add_u32 v{a}, v{t}, 4, v{a}", [a], [a, t])
    S(f"s_lshl_b32 s{t0}, s{sW}, 7"); V(f"v_add_u32 v{vP8off}, s{t0}, v{a}", [vP8off], [a])
    V(f"v_lshrrev_b32 v{b}, 4, v{L}", [b], [L]); V(f"v_lshlrev_b32 v{b}, 3, v{b}", [b], [b]); V(f"v_add_u32 v{vOutM}, v{vOutM}, v{b}", [vOutM], [vOutM, b])
    S(f"s_lshl_b32 s{t0}, s{sPC}, 7"); S(f"s_lshl_b32 s{t1}, s{sE}, 5"); S(f"s_add_u32 s{t0}, s{t0}, s{t1}"); S(f"s_add_u32 s{t0}, s{t0}, {64*ch}")
    S(f"s_add_u32 s{sOutM}, s{sXo}, s{t0}")
    hb0 = s.vload("buffer_load_dwordx2", vB2m, 2, b, R_B2, f"s{t0}")
    S(f"s_and_b32 s{t0}, s{sW}, 1"); S(f"s_lshl_b32 s{t0}, s{t0}, 3")
    V(f"v_add_u32 v{a}, s{t0}, v{t}", [a], [t]); V(f"v_lshl_add_u32 v{a}, v{hh}, 4, v{a}", [a], [a, hh]); V(f"v_mul_u32_u24 v{a}, 1152, v{a}", [a], [a])
    V(f"v_bfe_u32 v{b}, v{L}, 4, 1", [b], [L]); V(f"v_lshlrev_b32 v{b}, 2, v{b}", [b], [b]); V(f"v_add_u32 v{vOut8}, v{a}, v{b}", [vOut8], [a, b])
    S(f"s_lshr_b32 s{t0}, s{sPC}, 2"); S(f"s_lshl_b32 s{t0}, s{t0}, 6"); S(f"s_add_u32 s{t0}, s{t0}, s{t1}")
    S(f"s_lshr_b32 s{t1}, s{sW}, 1"); S(f"s_lshl_b32 s{t1}, s{t1}, 3"); S(f"s_add_u32 s{t0}, s{t0}, s{t1}"); S(f"s_add_u32 s{t0}, s{t0}, 1024")
    hb1 = s.vload("buffer_load_dword", vB28, 1, b, R_B2, f"s{t0}")
    S(f"s_and_b32 s{t1}, s{sPC}, 3"); S(f"s_lshl_b32 s{t1}, s{t1}, 5"); S(f"s_lshl_b32 s{sOut8}, s{sMT}, 7"); S(f"s_add_u32 s{t1}, s{t1}, s{sOut8}")
    S(f"s_mul_i32 s{t1}, s{t1}, 1152"); S(f"s_add_u32 s{sOut8}, s{t1}, s{t0}")
    V(f"v_and_b32 v{a}, 8, v{L}", [a], [L]); V(f"v_cmp_eq_u32 vcc, 0, v{a}", rd=[a], swr=["vcc"]); V(f"v_mov_b32 v{b}, {OOB}", [b]); S("s_nop 0")
    V(f"v_cndmask_b32 v{vOut8}, v{b}, v{vOut8}, vcc", [vOut8], [b, vOut8])
    S(f"s_lshl_b32 s{t0}, s{sD0}, 2"); S(f"s_add_u32 s{t0}, s{t0}, {BIAS + 128*ch}")
    S(f"s_lshl_b32 s{t1}, s{sS0}, 2"); S(f"s_add_u32 s{t1}, s{t1}, {BIAS}")
    V(f"v_lshlrev_b32 v{a}, 2, v0", [a]); V(f"v_add_u32 v{a}, {BIAS}, v{a}", [a], [a])
    V(f"v_lshl_add_u32 v{vBias}, v{hh}, 4, s{t0}", [vBias], [hh])
    s.wait(tokb)
    V(f"v_lshlrev_b32 v{b}, 16, v{vBiasS}", [b], [vBiasS])
    tb = s.ds_write("ds_write_b32", a, b, 1, 0)
    V(f"v_lshl_add_u32 v{vBiasS}, v{hh}, 4, s{t1}", [vBiasS], [hh])
    return tb, (hb0, hb1)

def gelu_group(s, regs, tb):
    ops = []
    T = [vT + (tb + i) % 8 for i in range(len(regs))]
    def V(text, **k): ops.append(lambda: s.valu(text, **k))
    for x, t in zip(regs, T): V(f"v_mul_f32 v{t}, v{x}, v{x}", wr=[t], rd=[x])
    for x, t in zip(regs, T): V(f"v_fma_f32 v{t}, v{t}, s{sGB}, v{vGA}", wr=[t], rd=[t, vGA])
    for x, t in zip(regs, T): V(f"v_mul_f32 v{t}, v{x}, v{t}", wr=[t], rd=[x, t])
    for x, t in zip(regs, T): V(f"v_exp_f32 v{t}, v{t}", wr=[t], rd=[t], trans=True)
    for x, t in zip(regs, T): V(f"v_add_f32 v{t}, 1.0, v{t}", wr=[t], rd=[t])
    for x, t in zip(regs, T): V(f"v_rcp_f32 v{t}, v{t}", wr=[t], rd=[t], trans=True)
    for x, t in zip(regs, T): V(f"v_mul_f32 v{x}, v{x}, v{t}", wr=[x], rd=[x, t])
    return ops
def cvt(s, d, a, b):
    return lambda: s.valu(f"v_cvt_pk_bf16_f32 v{d}, v{a}, v{b}", wr=[d], rd=[a, b])

def body(p, half, PLAN):
    BAR, ISSUE, BLK, LAND = PLAN
    s = Stream(p); ool = Stream(); ch = half
    utok = {}
    iss = Issuer(s, half, BLK, utok)
    def issue_all(bar):
        for u in ISSUE[bar]:
            for f in iss.pieces(u): f()
    issue_all(-3)
    tb, hb2 = setup_main(s, half)
    if cfg.stamps: s.valu(f"v_writelane_b32 v{vStamp}, s98, 0", wr=[vStamp])
    stamp(s, "setup")
    issue_all(-2)
    if I(cfg.prio) == half: s.salu("s_setprio 1")

    xblk = lambda i: vXF + 16*i
    dead = [xblk(2*i + (1-ch)) for i in range(4)]
    used = [xblk(2*i + ch) for i in range(4)]
    Hreg = {(k, mt): dead[k//2] + (k % 2)*8 + mt*4 for k in range(8) for mt in range(2)}
    for mt in range(2): Hreg[(8, mt)] = xblk(8) + (1-ch)*8 + mt*4
    ACC = [used[0], used[1], used[2]]
    accof = lambda pos: ACC[pos % 3]
    extra_bufs = [used[3] + 4*i for i in range(4)]
    PK2 = xblk(8) + ch*8

    fill = {}; cur = [-1]; need_bar = {}; need_mf = {}; prebar = {}
    def F(n, i, f): fill.setdefault((n, i), []).append(f)
    def spread(ops, n0, i0, n1, i1=None):
        gaps = [(n, i, 1.0 if ST[n].kind != "b" else 0.5) for n in range(n0, n1+1) for i in range(ST[n].nm)
                if not (n == n0 and i < i0) and not (n == n1 and i1 is not None and i > i1)]
        tot = sum(g[2] for g in gaps); acc = 0; k = 0
        for (n, i, w) in gaps:
            acc += w; tgt = int(round(len(ops)*acc/tot))
            while k < tgt: F(n, i, ops[k]); k += 1
    def hold(): return [None]
    def before_bar(n, h): need_bar.setdefault(min(b for b in BAR if b >= n), []).append(h)
    def before_mfma(n, i, h): need_mf.setdefault((n, i), []).append(h)

    if half == 1:
        hclr = hold()
        def clr():
            s.valu(f"v_lshlrev_b32 v{vTmp}, 8, v{vLane}", wr=[vTmp], rd=[vLane]); s.valu(f"v_mov_b32 v{vTmp2}, {OOB}", wr=[vTmp2])
            s.valu(f"v_cmp_gt_u32 vcc, 8, v{vLane}", rd=[vLane], swr=["vcc"]); s.valu(f"v_mov_b32 v{vFv}, 0", wr=[vFv])
            s.salu(f"s_cmp_eq_u32 s{sFS}, 0"); s.salu(f"s_cselect_b32 s{sU0}, s{sCnt}, {OOB}")
            s.valu(f"v_cndmask_b32 v{vTmp}, v{vTmp2}, v{vTmp}, vcc", wr=[vTmp], rd=[vTmp, vTmp2])
            hclr[0] = s.vstore("buffer_store_dword", vFv, 1, vTmp, R_WS, f"s{sU0}", flags=cfg.st_flags)
            s.valu(f"v_cmp_eq_u32 vcc, 0, v{vLane}", rd=[vLane], swr=["vcc"]); s.salu("s_nop 1")
            s.valu(f"v_cndmask_b32 v{vOne}, v{vTmp2}, v{vFv}, vcc", wr=[vOne], rd=[vTmp2, vFv])
        assert all(u[0] != "x" for b in ISSUE if b >= I(cfg.clr_stage) for u in ISSUE[b])
        F(I(cfg.clr_stage), 3, clr)
        def arrive():
            srd(s, R_DBG, S_DBG, 256)
            s.salu(f"s_lshl_b32 s{sU0}, s{sMT}, 2")
            s.salu(f"s_cmp_lg_u32 s{sW}, 4"); s.salu(f"s_cselect_b32 s{sU0}, 1024, s{sU0}")
            s.salu(f"s_cmp_lg_u32 s{sFS}, 0"); s.salu(f"s_cselect_b32 s{sU0}, 1024, s{sU0}")
            s.wait(hclr[0])
            s.valu(f"v_mov_b32 v{vFv}, 1", wr=[vFv])
            s.vstore("buffer_atomic_add", vFv, 1, vOne, R_DBG, f"s{sU0}")
        F(7 if False else I(cfg.arr_stage), 2, arrive)
        if cfg.pf:
            n0, n1, nl = IL(cfg.pf); sh = I(cfg.pfshare); per = -(-2592//(sh*4)); cnt = -(-per//nl)
            for q in range(cnt):
                def pf(q=q):
                    s.vload("buffer_load_dword", vDummy, 1, vPF, R_W2, f"s{sPF}")
                    s.salu(f"s_add_u32 s{sPF}, s{sPF}, {nl*128}")
                g = q*(n1 - n0 + 1)*4//cnt
                F(n0 + g//4, g % 4, pf)

    for j in range(4):
        S = vS[j % 2]; ops = []
        for e in range(2):
            for g in (2*e, 2*e+1):
                ops += gelu_group(s, [S+4*g+i for i in range(4)], 4*g)
                ops.append(cvt(s, vP+2*g, S+4*g, S+4*g+1)); ops.append(cvt(s, vP+2*g+1, S+4*g+2, S+4*g+3))
            h = hold()
            def wr(h=h, e=e, j=j):
                assert cur[0] >= HWSTAGE[j], (j, cur[0])
                h[0] = s.ds_write("ds_write_b128", vHW, vP+4*e, 4, 2*j*8192 + e*512)
            ops.append(wr)
            before_bar(min(9*(j+2), 36) if j < 3 else B0+4, h)
        if j < 3: spread(ops, 9*(j+1), 2, 9*(j+1)+7)
        else: spread(ops, 36, 2, *IL(cfg.g3end))
    for j in range(1, 5):
        S = vS[j % 2]
        if j == 4 and ch == 1: continue
        for g in range(4):
            h = hold()
            def rd(h=h, g=g, j=j, S=S):
                h[0] = s.ds_read("ds_read_b128", S+4*g, 4, vBias if j < 4 else vBiasS, (j*256 if j < 4 else 0) + g*32)
            F(9*j-1, g, rd); before_mfma(9*j, 0, h)
    S = vS[0]; snd = S + 8*(1-ch); own = S + 8*ch
    for e in range(2):
        h = hold()
        def wr(h=h, e=e): h[0] = s.ds_write("ds_write_b128", vEXW, snd+4*e, 4, e*1024)
        F(B0, 3+e, wr); before_bar(B0+1, h)
    hx = []
    for e in range(2):
        h = hold(); hx.append(h)
        def rd(h=h, e=e): h[0] = s.ds_read("ds_read_b128", snd+4*e, 4, vEXR, e*1024)
        F(B0+1, 0, rd); before_bar(B0+2, h)
    ops = [lambda: s.wait(hx[0][0], hx[1][0])]
    for i in range(8):
        ops.append(lambda i=i: s.valu(f"v_add_f32 v{own+i}, v{own+i}, v{snd+i}", wr=[own+i], rd=[own+i, snd+i]))
    for g in range(2):
        ops += gelu_group(s, [own+4*g+i for i in range(4)], 4*g)
        ops.append(cvt(s, PK2+2*g, own+4*g, own+4*g+1)); ops.append(cvt(s, PK2+2*g+1, own+4*g+2, own+4*g+3))
    h = hold()
    def wr8(h=h): h[0] = s.ds_write("ds_write_b128", vHW8, PK2, 4, 0)
    ops.append(wr8); before_bar(B0+5, h)
    spread(ops, B0+1, 3, B0+4, 6)
    hrd = {}
    def hread(k, n, i):
        for mt in range(2):
            h = hold(); hrd[(k, mt)] = h
            def rd(h=h, k=k, mt=mt):
                h[0] = s.ds_read("ds_read_b128", Hreg[(k, mt)], 4, vHR if k < 8 else vHR8, (k*8192 if k < 8 else 0) + mt*1024)
            F(n, i, rd)
    for k in range(6): hread(k, 37 + k//2, 1 + 2*(k % 2))
    hread(6, B0+4, 1); hread(7, B0+4, 3); hread(8, B0+5, 1)

    nslow = [0]
    def check(test, tok, reload):
        nslow[0] += 1; k = f"{half}_{nslow[0]}"
        s.wait(tok); test(s)
        s.salu(f"s_cbranch_scc1 L_slow_{k}"); s.raw(f"L_back_{k}:")
        ool.raw(f"L_slow_{k}:"); ool.salu(f"s_mov_b32 s{sSpin}, {SPIN}")
        ool.raw(f"L_spin_{k}:")
        if I(cfg.backoff): ool.salu(f"s_sleep {I(cfg.backoff)}")
        reload(ool); ool.wait_all(l=False); test(ool)
        ool.salu(f"s_cbranch_scc0 L_back_{k}")
        ool.salu(f"s_sub_u32 s{sSpin}, s{sSpin}, 1"); ool.salu(f"s_cmp_lg_u32 s{sSpin}, 0")
        ool.salu(f"s_cbranch_scc1 L_spin_{k}"); ool.salu(f"s_branch L_back_{k}")
    def below(tgt):
        def test(st):
            st.valu(f"v_readfirstlane_b32 s{sU1}, v{vPoll}", rd=[vPoll], swr=[sU1]); st.salu("s_nop 3")
            st.salu(f"s_cmp_lt_u32 s{sU1}, {tgt}")
        return test
    if half == 1:
        hc = hold()
        def ld_cnt(st):
            st.salu(f"s_lshl_b32 s{sU0}, s{sMT}, 2")
            return st.vload("buffer_load_dword", vPoll, 1, vOne, R_DBG, f"s{sU0}", flags=cfg.poll_flags)
        F(B0, 6, lambda: hc.__setitem__(0, ld_cnt(s)))
        prebar.setdefault(B0+5, []).append(lambda: check(below("1"), hc[0], ld_cnt))
    last_stage = {}
    for a in ST[B0:]:
        for (pos, dl, k, u, sl) in a.parts: last_stage[(pos, dl)] = a.n
    pk_of = lambda pos: vP if pos % 2 == 0 else vT
    stok = {}
    def store_ops(pos, dls):
        A = accof(pos); PK = pk_of(pos); ops = []; stok[pos] = hold()
        for dl in dls:
            for mt in range(2):
                for e in range(2): ops.append(cvt(s, PK+4*dl+2*mt+e, A+8*dl+4*mt+2*e, A+8*dl+4*mt+2*e+1))
            def st_(dl=dl):
                s.salu(f"s_add_u32 s{sT1}, s{sPc+pos}, s{sDt+dl}" if not cfg.nostore else f"s_mov_b32 s{sT1}, {OOB}")
                stok[pos][0] = s.vstore("buffer_store_dwordx4", PK+4*dl, 4, vL16, R_WS, f"s{sT1}", flags=cfg.st_flags)
            ops.append(st_)
        return ops
    def publish(idx):
        def go():
            if half == 1 and not cfg.nopub: s.vstore("buffer_atomic_add", vFv, 1, vOne, R_WS, f"s{sCnt}", off=256*idx)
        return go
    items = [x.split(":") for x in cfg.sched.split(";") if x]
    want_pub = {int(x[0]) for x in items} | set(IL(getattr(cfg, "pubextra", "5")))
    PUBBAR = {}
    for pos in range(8):
        n = max(last_stage[(pos, 0)], last_stage[(pos, 1)]) + 1
        spread(store_ops(pos, (0, 1)), n, 1, n, 6)
        if pos in want_pub:
            c = [b for b in BAR if b >= n + I(cfg.publag)]
            if c:
                nb = min(c); PUBBAR[pos] = nb
                before_bar(nb, stok[pos]); F(nb, 1, publish(pos))
    n8 = last_stage[(8, 0)]
    spread(store_ops(8, (0,)), n8, 4, n8, 7)
    def poll(st, idx):
        if cfg.nopoll:
            st.valu(f"v_mov_b32 v{vPoll}, 16", wr=[vPoll]); return None
        return st.vload("buffer_load_dword", vPoll, 1, vOne, R_WS, f"s{sCnt}", off=256*idx, flags=cfg.poll_flags)
    def check_cnt(idx, tok):
        stamp(s, f"chk{idx}0")
        check(below(f"s{sTgt}"), tok, lambda st: poll(st, idx))
        stamp(s, f"chk{idx}1")
    LAND_OF = {1: vS[0], 8: vS[0]+8, 2: vS[1], 3: vS[1]+8, 4: vXR, 5: 20, 6: PK2, 7: Hreg[(0, 0)], 0: Hreg[(1, 0)]}
    ptk = {}
    def piece(k, e):
        def go():
            if k == 8:
                if e == 1: s.salu(f"s_add_u32 s{sP8}, s{sP8}, 8192")
                ptk[k] = s.vload("buffer_load_dwordx4", LAND_OF[k]+4*e, 4, vP8off, R_WS, f"s{sP8}", flags=cfg.ld_flags)
            else:
                ptk[k] = s.vload("buffer_load_dwordx4", LAND_OF[k]+4*e, 4, vL16, R_WS, f"s{sCo+k}", off=1024*e, flags=cfg.ld_flags)
        return go
    def load_k(k):
        for e in range(1 if k == 0 else 2): piece(k, e)()
    SUM = accof(8) + 8
    def add_k(k):
        if k == 8: return step8()
        s.wait(ptk[k])
        for v_ in range(LAND_OF[k], LAND_OF[k] + (4 if k == 0 else 8)):
            r = (v_ - LAND_OF[k]) % 4
            s.valu(f"v_lshlrev_b32 v{vTmp}, 16, v{v_}", wr=[vTmp], rd=[v_])
            s.valu(f"v_and_b32 v{v_}, s{sMask}, v{v_}", wr=[v_], rd=[v_])
            s.valu(f"v_add_f32 v{SUM+2*r}, v{SUM+2*r}, v{vTmp}", wr=[SUM+2*r], rd=[SUM+2*r, vTmp])
            s.valu(f"v_add_f32 v{SUM+2*r+1}, v{SUM+2*r+1}, v{v_}", wr=[SUM+2*r+1], rd=[SUM+2*r+1, v_])
    def step8():
        V = lambda text, wr, rd: s.valu(text, wr=wr, rd=rd)
        R = vWF; L8 = LAND_OF[8]
        s.wait(ptk[8], hb2[1])
        for r in range(4):
            a_, b_ = L8 + r, L8 + 4 + r
            V(f"v_lshlrev_b32 v{R+2*r}, 16, v{a_}", [R+2*r], [a_]); V(f"v_and_b32 v{R+2*r+1}, s{sMask}, v{a_}", [R+2*r+1], [a_])
            V(f"v_lshlrev_b32 v{a_}, 16, v{b_}", [a_], [b_]); V(f"v_and_b32 v{b_}, s{sMask}, v{b_}", [b_], [b_])
            V(f"v_add_f32 v{R+2*r}, v{R+2*r}, v{a_}", [R+2*r], [R+2*r, a_]); V(f"v_add_f32 v{R+2*r+1}, v{R+2*r+1}, v{b_}", [R+2*r+1], [R+2*r+1, b_])
        for i in range(4): V(f"v_permlane32_swap_b32 v{R+i}, v{R+4+i}", [R+i, R+4+i], [R+i, R+4+i])
        for i in range(4): V(f"v_add_f32 v{R+i}, v{R+i}, v{R+4+i}", [R+i], [R+i, R+4+i])
        for i in range(2): V(f"v_permlane16_swap_b32 v{R+i}, v{R+2+i}", [R+i, R+2+i], [R+i, R+2+i])
        for i in range(2): V(f"v_add_f32 v{R+i}, v{R+i}, v{R+2+i}", [R+i], [R+i, R+2+i])
        for i in range(2): V(f"v_add_f32_dpp v{R+2+i}, v{R+i}, v{R+i} row_ror:8 row_mask:0xf bank_mask:0xf", [R+2+i], [R+i])
        V(f"v_lshlrev_b32 v{R}, 16, v{vB28}", [R], [vB28]); V(f"v_and_b32 v{R+1}, s{sMask}, v{vB28}", [R+1], [vB28])
        for i in range(2): V(f"v_add_f32 v{R+i}, v{R+i}, v{R+2+i}", [R+i], [R+i, R+2+i])
        cvt(s, R, R, R+1)()
        s.vstore("buffer_store_dword", R, 1, vOut8, R_OUT, f"s{sOut8}")
    inloop = []; covered = -1
    for pos, nb, sts in items:
        pos = int(pos); nb = int(nb); sts = IL(sts)
        assert nb in BAR and PUBBAR[pos] < nb, (pos, nb, PUBBAR)
        if half == 1:
            hp = hold()
            F(nb - I(cfg.polllead), 3, lambda hp=hp, pos=pos: hp.__setitem__(0, poll(s, pos)))
            prebar.setdefault(nb, []).append(lambda hp=hp, pos=pos: check_cnt(pos, hp[0]))
        ks = [(8 if q == 0 else q) for q in range(covered+1, pos+1)]; covered = pos
        pcs = [(k, e) for k in ks for e in range(2)]
        assert len(pcs) == len(sts) and min(sts) >= nb, (pcs, sts)
        inloop += ks
        for (k, e), n in zip(pcs, sts): F(n, 3 if ST[n].nm > 4 else 2, piece(k, e))

    freebufs = [vWF+4*i for i in range(4)]
    frag = {}
    def plan_frag(n, f):
        a = ST[n]; hs = [hold(), hold()]; ent = [None, hs]; frag[(n, f)] = ent
        def mk(rd):
            def go():
                if rd == 0: ent[0] = freebufs.pop(0)
                if a.kind == "d": base, off = vW1dR, BLK[("w", n)]*8192 + (16*f + 4*rd)*128
                elif a.kind == "s":
                    ks = (4*ch + f) if a.i < 4 else (4 + 2*ch + f)
                    base, off = vW1sR, BLK[("w", n)]*8192 + (16*ks + 4*rd)*64
                else:
                    (pos, dl, k, u, sl) = a.parts[f]
                    base, off = vW2R + 3*dl, BLK[("w", u)]*8192 + sl*4096 + rd*1024
                w_, o_ = win(off)
                hs[rd][0] = s.ds_read("ds_read_b64_tr_b16", ent[0] + 2*rd, 2, base + w_, o_)
            return go
        return [mk(0), mk(1)]
    nfrag = lambda n: ST[n].nm if ST[n].kind != "b" else len(ST[n].parts)
    xtok = {}
    def xread(n, sp):
        w_, o_ = win(BLK[("x", n)]*8192 - XWIN0)
        def go(): xtok[(n, sp)] = s.ds_read("ds_read_b128", vXF + 16*n + 4*sp, 4, vXR + 4*w_ + sp, o_)
        return go
    pre = {}
    def P(n, i, f): pre.setdefault((n, i), []).append(f)
    for n in range(1, NST):
        prev = ST[n-1]; rds = []
        for f in range(nfrag(n)): rds += plan_frag(n, f)
        per = -(-len(rds)//prev.nm)
        for k, r in enumerate(rds): P(n-1, min(k//per, prev.nm-1), r)
        if n < 9:
            for sp in range(4): P(n-1, sp, xread(n, sp))

    s.wait(tb, *[utok.get(u) for u in LAND[-1]])
    s.barrier()
    stamp(s, "data")
    for g in range(4):
        h = hold(); h[0] = s.ds_read("ds_read_b128", vS[0]+4*g, 4, vBias, g*32); before_mfma(0, 0, h)
    for f in range(4):
        xread(0, f)()
        for r in plan_frag(0, f): r()
    issue_all(-1)

    started = set()
    for a in ST:
        n = a.n
        if n == B0 - 1: freebufs.extend(extra_bufs)
        stamp(s, f"s{n}")
        uses = {f: i for i, (f, mt) in enumerate(a.order)} if a.kind == "b" else {}
        dq = [f for u in ISSUE.get(n, []) for f in iss.pieces(u)]
        slots = [g for g in IL(cfg.dposB if a.kind == "b" else cfg.dposA) if g < a.nm] or [a.nm-1]
        if len(dq) > len(slots): slots = list(range(a.nm)) if len(dq) <= a.nm else list(range(a.nm))
        dat = {}
        for q, f in enumerate(dq): dat.setdefault(slots[q*len(slots)//len(dq)], []).append(f)
        for i in range(a.nm):
            toks = [h[0] for h in need_mf.get((n, i), [])]
            cur[0] = n
            if a.kind in "ds":
                reg, hs = frag[(n, i)]
                toks += [hs[0][0], hs[1][0]]
                if a.kind == "d" and a.j == 0: toks.append(xtok[(n, i)])
                assert all(t is not None for t in toks), (n, i)
                s.wait(*toks)
                if a.kind == "d": s.mfma32(vS[a.j % 2], reg, vXF + 16*a.s + 4*i, vS[a.j % 2])
                else:
                    ks = (8*a.i + 4*ch + i) if a.i < 4 else (32 + 2*ch + i)
                    s.mfma32(vS[0], reg, vXF + 4*ks, None if (a.i == 0 and i == 0 and ch == 1) else vS[0])
                freebufs.append(reg)
            else:
                f, mt = a.order[i]
                (pos, dl, k, u, sl) = a.parts[f]
                reg, hs = frag[(n, f)]
                toks += [hs[0][0], hs[1][0], hrd[(k, mt)][0]]
                if cfg.wait2 and i+1 < a.nm and n > B0:
                    f2, mt2 = a.order[i+1]
                    toks += [frag[(n, f2)][1][0][0], frag[(n, f2)][1][1][0]]
                assert all(t is not None for t in toks), (n, i)
                s.wait(*toks)
                d = accof(pos) + 8*dl + 4*mt; key = (pos, dl, mt)
                s.mfma16(d, reg, Hreg[(k, mt)], d if key in started else None)
                started.add(key)
                if uses[f] == i: freebufs.append(reg)
            if i == 0 and n in BAR:
                assert all(h[0] is not None for h in need_bar.get(n, [])), n
                for f in prebar.get(n, []): f()
                s.wait(*([utok.get(u) for u in LAND.get(n, [])] + [h[0] for h in need_bar.get(n, [])]))
                s.barrier()
            for f in pre.get((n, i), []): f()
            for f in dat.get(i, []): f()
            for f in fill.get((n, i), []): f()
    stamp(s, "tail")
    pubmax = max([k for k in PUBBAR], default=-1)
    early = [(8 if q == 0 else q) for q in range(covered+1, pubmax+1)]
    late = [(8 if q == 0 else q) for q in range(max(covered, pubmax)+1, 8)] + [0]
    hp = poll(s, pubmax) if (half == 1 and early) else None
    s.wait(hb2[0])
    for r in range(2):
        s.valu(f"v_lshlrev_b32 v{vT+2*r}, 16, v{vB2m+r}", wr=[vT+2*r], rd=[vB2m+r])
        s.valu(f"v_and_b32 v{vT+2*r+1}, s{sMask}, v{vB2m+r}", wr=[vT+2*r+1], rd=[vB2m+r])
    for i in range(8):
        s.valu(f"v_add_f32 v{SUM+i}, v{SUM+i}, v{vT + i % 4}", wr=[SUM+i], rd=[SUM+i, vT + i % 4])
    todo = list(inloop)
    if todo: add_k(todo.pop(0))
    if half == 1 and early: check_cnt(pubmax, hp)
    s.wait(stok[7][0], stok[8][0])
    s.barrier()
    stamp(s, "T1")
    publish(7)()
    for k in early: load_k(k)
    hp = poll(s, 7) if half == 1 else None
    for k in todo: add_k(k)
    if half == 1: check_cnt(7, hp)
    s.barrier()
    stamp(s, "T2")
    for k in late: load_k(k)
    for k in early + late: add_k(k)
    stamp(s, "fin")
    for k in range(4): cvt(s, vP+k, SUM+2*k, SUM+2*k+1)()
    s.vstore("buffer_store_dwordx2", vP, 2, vOutM, R_OUT, f"s{sOutM}")
    s.salu(f"s_add_u32 s{sOutM}, s{sOutM}, {16*1152}")
    s.vstore("buffer_store_dwordx2", vP+2, 2, vOutM, R_OUT, f"s{sOutM}")
    if cfg.stamps: s.wait_all()
    stamp(s, "end")
    stamp_flush(s)
    s.salu("s_endpgm")
    return s, ool

def kd(name, vg, sg):
    return f""".amdhsa_kernel {name}
  .amdhsa_next_free_vgpr {vg}
  .amdhsa_next_free_sgpr {sg}
  .amdhsa_accum_offset {(vg+3)//4*4}
  .amdhsa_group_segment_fixed_size 0
  .amdhsa_kernarg_size 64
  .amdhsa_user_sgpr_count 2
  .amdhsa_user_sgpr_kernarg_segment_ptr 1
  .amdhsa_system_sgpr_workgroup_id_x 1
  .amdhsa_float_denorm_mode_32 3
.end_amdhsa_kernel
"""

def generate(aslist=False):
    PLAN = plan()
    p = Stream()
    prologue(p)
    p.salu(f"s_cmp_ge_u32 s{sW}, 4", srd=[sW]); p.salu("s_cbranch_scc1 L_half1")
    h0, o0 = body(p, 0, PLAN); h1, o1 = body(p, 1, PLAN)
    mk = (p.text() + "\n" + h0.text() + "\n" + o0.text() + "\n.p2align 6\nL_half1:\n" + h1.text() + "\n" + o1.text()
          + "\nL_main_end:\n    s_endpgm\n")
    k1 = NAME + "_kernel"
    launch = (f"; @launch kernel={k1} grid=(256,1,1) block=(512,1,1) lds=163840" if aslist
              else "; @launch grid=(256,1,1) block=(512,1,1) lds=163840")
    out = f"""; fused MLP  out = gelu_tanh(x@w1+b1)@w2+b2   (emitted by my generator script)
{launch}
.amdgcn_target "amdgcn-amd-amdhsa--gfx950"
.text
.globl {k1}
.p2align 8
.type {k1},@function
{k1}:
{mk}
.section .rodata,"a"
.p2align 6
{kd(k1, 256, 102)}"""
    nb = [sum(1 for i in h.ins if i.kind == "bar") for h in (h0, h1)]
    assert nb[0] == nb[1], nb
    return out, (h0.nops, h1.nops, len(h0.ins), len(h1.ins), nb[0]), PLAN

if __name__ == "__main__":
    aslist = False; verbose = False
    for a in sys.argv[2:]:
        if a == "-v": verbose = True; continue
        k, v = a.split("=", 1)
        if k == "aslist": aslist = True; continue
        assert hasattr(cfg, k) or k == "pubextra", k
        setattr(cfg, k, {"True": True, "False": False}.get(v, v.replace("+", " ")))
    txt, stats, PLAN = generate(aslist)
    open(sys.argv[1], "w").write(txt)
    print("nops/ins/bars:", stats, "bytes", len(txt))
    if verbose:
        BAR, ISSUE, BLK, LAND = PLAN
        print(" ".join(f"{b}:{','.join(k+str(m)+'@'+str(BLK[(k,m)]) for k,m in ISSUE[b])}" for b in sorted(ISSUE)))
```

```python
import sys, struct
from emit import Stream, vr, sr, rng

NAME = "standalone__dense_activation_gelu__prompt"
M, D, F = 2048, 576, 4608
def f2u(x): return struct.unpack("<I", struct.pack("<f", x))[0]
GA = -2.0*0.7978845608028654*1.4426950408889634
GB = GA*0.044715

class Cfg:
    st_flags = "sc1"; ld_flags = "sc1"; poll_flags = "sc1"
    stamps = False; cyc = False
    barA = 1; barB = 1; lastbar = ""
    prio = -1
    fl_x = ""; fl_w1 = ""; fl_w2 = ""; fl_pf = ""
    g0 = 3
    g1 = 5
    look0 = 5
    lookA = 9; lookB = 12
    dposA = "1,3"; dposB = "1,5"
    wait2 = True
    pf = "10,34,2"
    pf1 = ""
    pfshare = 16
    g3end = "41,2"
    sched = "1:62:62,64,66,68;2:67:69,71;3:72:73,75"
    publag = 5; polllead = 2; backoff = 4
    clr_stage = 5; arr_stage = 30
    nopoll = False; nopub = False; noload = False; nostore = False
cfg = Cfg()
def I(x): return int(x)
def IL(x): return [int(v) for v in str(x).split(",") if v != ""]

PART_BYTES = 16*144*16*1024
FLG = PART_BYTES
WS_BYTES = FLG + 16*8*256
OOB = 0x40000000
SPIN = 30000

S_X, S_W1, S_B1, S_W2, S_B2, S_OUT, S_DBG, S_WS = 4, 6, 8, 10, 12, 14, 16, 18
R_X, R_W1, R_W2, R_WS, R_B1 = 20, 24, 28, 32, 36
R_DBG = 36
R_B2, R_OUT = 4, 8
sW, sRG, sMT, sFS, sD0, sS0 = 40, 41, 42, 43, 44, 45
sXo, sW1d, sW1s, sLx, sLw, sT0, sT1, sGB = 46, 47, 48, 49, 50, 51, 52, 53
sPC, sE = 54, 55
sW2c, sW2s, sPc, sCo, sDt = 56, 65, 70, 79, 87
sCnt, sTgt, sPF, sP8, sSpin, sOutM, sOut8, sMask = 89, 90, 91, 92, 93, 94, 95, 3
sU0, sU1 = 96, 97
vLane, vL16 = 1, 2
vX0, vX1, vW1d, vW1s, vW2 = 3, 4, 5, 6, 7
vW1dR, vW1sR, vW2R = 8, 11, 14
vHW, vHW8, vHR, vHR8 = 20, 21, 22, 23
vBias, vBiasS, vEXW, vEXR, vGA, vTmp, vTmp2, vDummy = 24, 25, 26, 27, 28, 29, 30, 31
vXR = 32
vP8off, vOutM, vB2m, vOut8, vB28 = 40, 41, 42, 44, 45
vSec, vPF = 46, 47
vT, vP, vWF = 48, 56, 64
vS = (80, 96)
vXF = 112
vStamp = 0
vOne, vFv, vPoll = vX0, vX1, 12

NBLK, HB = 20, 10
HBASE, BIAS, EXB, XWIN0 = HB*8192, 19*8192, 18*8192, 7*8192

class St: pass
def build_stages():
    st = []
    for j in range(4):
        for s in range(9):
            a = St(); a.kind = "d"; a.j = j; a.s = s; a.nm = 4; st.append(a)
    for i in range(5):
        a = St(); a.kind = "s"; a.i = i; a.nm = 4 if i < 4 else 2; a.rowbase = 128*i if i < 4 else 448; st.append(a)
    def full(pos, i):
        a = St(); a.kind = "b"; a.shared = False; a.pos = pos; a.i = i
        a.parts = [(pos, dl, 2*i+kk, None, kk) for dl in range(2) for kk in range(2)]
        a.order = [(2*(q//4) + q % 2, (q//2) % 2) for q in range(8)]
        return a
    def shared(pa, pb, pair):
        a = St(); a.kind = "b"; a.shared = True; a.pair = pair
        a.parts = [(pa, 0, 8, None, 0), (pa, 1, 8, None, 0), (pb, 0, 8, None, 1), (pb, 1, 8, None, 1)]
        a.order = [(q//2, q % 2) for q in range(8)]
        return a
    st += [full(0, 0), full(0, 1), full(0, 2), full(1, 0), full(1, 1), full(0, 3), shared(0, 1, 0), full(1, 2), full(1, 3)]
    for p in range(1, 4):
        a, b = 2*p, 2*p+1
        for i in range(4): st.append(full(a, i))
        st.append(shared(a, b, p))
        for i in range(4): st.append(full(b, i))
    L0 = len(st)
    fr = [(8, dl, k, L0 + k//2, k % 2) for dl in range(2) for k in range(9)]
    for gi, g in enumerate([fr[0:4], fr[4:8], fr[8:12], fr[12:16], fr[16:18]]):
        a = St(); a.kind = "b"; a.shared = (gi == 4); a.pos = 8; a.i = gi; a.pair = 4; a.parts = g
        o = []; k = 0
        while k < len(g):
            if k+1 < len(g) and g[k][1] == g[k+1][1]: o += [(k, 0), (k+1, 0), (k, 1), (k+1, 1)]; k += 2
            else: o += [(k, 0), (k, 1)]; k += 1
        a.order = o; st.append(a)
    for n, a in enumerate(st):
        a.n = n
        if a.kind == "b":
            a.nm = len(a.order)
            a.parts = [(p, d, k, (n if u is None else u), sl) for (p, d, k, u, sl) in a.parts]
    return st, L0
ST, LAST0 = build_stages()
NST = len(ST)
B0 = 41
HWSTAGE = {0: 9+3, 1: 18+3, 2: 27+3, 3: 36+1}
HFREE = {0: B0+1, 1: B0+1, 2: B0+2, 3: B0+2, 4: B0+3, 5: B0+3, 6: B0+6, 7: B0+6, 8: B0+7}

def plan():
    BAR = set()
    for n in range(NST):
        if n >= LAST0:
            if n in IL(cfg.lastbar): BAR.add(n)
        elif n < 9 or 35 <= n <= B0+8: BAR.add(n)
        elif n < 35:
            if (n - 9) % I(cfg.barA) == 0: BAR.add(n)
        elif (LAST0 - 1 - n) % I(cfg.barB) == 0: BAR.add(n)
    bars = sorted(BAR)
    first_read = lambda u: LAST0 - 1 if (u[0] == "w" and u[1] >= LAST0) else u[1] - 1
    last_use = lambda u: NST if (u[0] == "w" and u[1] >= LAST0) else u[1]
    res = {HB+k: (HWSTAGE[k//2], HFREE[k]) for k in range(8)}
    res[HB+8] = (B0, HFREE[8]); res[19] = (-99, B0+2)
    units = []
    for n in range(NST):
        if n < 9: units.append(("x", n))
        units.append(("w", n))
    busy = {}; issue = {}; blk = {}; land = {}
    ui = 0
    def freebar(u):
        c = [b for b in bars if b >= last_use(u)+1]
        return c[0] if c else 10**6
    def ok(b, u, bar):
        if b in busy: return False
        if b in res:
            a0, a1 = res[b]
            lb = max([x for x in [-3, -2, -1]+bars if x <= a0] or [-99])
            if not (freebar(u) <= lb or bar >= a1): return False
        return True
    for bar in [-3, -2, -1] + bars:
        for b in [b for b, u in busy.items() if freebar(u) <= bar]: del busy[b]
        lst = []
        nxt = min([b for b in bars if b > bar] or [NST])
        cap = 2*(nxt - bar) if bar >= 0 else 99
        if bar == -3: horizon = I(cfg.g0) - 1
        elif bar == -2: horizon = I(cfg.g1) - 1
        elif bar < 4: horizon = bar + I(cfg.look0)
        elif bar < B0 - 6: horizon = nxt - 1 + I(cfg.lookA)
        else: horizon = nxt - 1 + I(cfg.lookB)
        while ui < len(units):
            u = units[ui]; kind, m = u
            if min(m, LAST0) > horizon: break
            if kind == "x":
                c = [b for b in range(7, 18, 2) if ok(b, u, bar) and ok(b+1, u, bar)]
                if not c: break
                b = c[0]; busy[b] = u; busy[b+1] = u
            else:
                c = [b for b in range(NBLK) if ok(b, u, bar)]
                if any(k == "x" for k, _ in units[ui:]): c = [b for b in c if b < 7]
                if not c: break
                b = c[0]; busy[b] = u
            blk[u] = b; lst.append(u); ui += 1
            if len([x for x in lst if x[0] == "w"]) >= cap: break
        issue[bar] = lst
    assert ui == len(units)
    for u in units:
        lb = max(b for b in [-1]+bars if b <= first_read(u))
        land.setdefault(lb, []).append(u)
        ib = [bar for bar, l in issue.items() if u in l][0]
        assert ib < lb, (u, ib, lb)
    return BAR, issue, blk, land

def win(a): return a // 65536, a % 65536

NSTAMP = 16
def snames(): return cfg.stamps.split(",") if isinstance(cfg.stamps, str) else []
def stamp(s, name):
    if name not in snames(): return
    s.wait_all(v=False)
    s.salu("s_memtime s[100:101]" if cfg.cyc else "s_memrealtime s[100:101]")
    s.wait_all(v=False)
    s.valu(f"v_writelane_b32 v{vStamp}, s100, {snames().index(name)+1}", wr=[vStamp])
def stamp_flush(s):
    if not cfg.stamps: return
    s.salu(f"s_lshl_b32 s{sT0}, s2, 3"); s.salu(f"s_add_u32 s{sT0}, s{sT0}, s{sW}"); s.salu(f"s_mul_i32 s{sT0}, s{sT0}, {4*NSTAMP}")
    s.salu(f"s_add_u32 s{sT0}, s{sT0}, {128<<20}")
    s.salu(f"s_mov_b32 s{R_WS+2}, 0x10000000")
    s.valu(f"v_lshlrev_b32 v{vTmp}, 2, v{vLane}", wr=[vTmp], rd=[vLane])
    s.valu(f"v_cmp_gt_u32 vcc, {NSTAMP}, v{vLane}", rd=[vLane], swr=["vcc"])
    s.valu(f"v_mov_b32 v{vTmp2}, {OOB}", wr=[vTmp2])
    s.salu("s_nop 1")
    s.valu(f"v_cndmask_b32 v{vTmp}, v{vTmp2}, v{vTmp}, vcc", wr=[vTmp], rd=[vTmp, vTmp2])
    s.vstore("buffer_store_dword", vStamp, 1, vTmp, R_WS, f"s{sT0}")

def srd(s, r, base, size):
    if r != base:
        s.salu(f"s_mov_b32 s{r}, s{base}"); s.salu(f"s_mov_b32 s{r+1}, s{base+1}")
    s.salu(f"s_mov_b32 s{r+2}, {size}"); s.salu(f"s_mov_b32 s{r+3}, 0x20000")

class Ops:
    def __init__(self, s): self.s = s
    def V(self, text, wr=(), rd=(), **k): self.s.valu(text, wr=wr, rd=rd, **k)
    def S(self, text, **k): self.s.salu(text, **k)

def prologue(p):
    o = Ops(p); V, S = o.V, o.S
    S("s_cmp_ge_u32 s2, 256"); S("s_cbranch_scc1 L_main_end")
    if cfg.stamps: S("s_memtime s[98:99]" if cfg.cyc else "s_memrealtime s[98:99]")
    S("s_load_dwordx16 s[4:19], s[0:1], 0")
    L = vLane; a, b = vTmp, vTmp2
    V(f"v_lshrrev_b32 v{a}, 6, v0", [a]); V(f"v_and_b32 v{L}, 63, v0", [L])
    V(f"v_readfirstlane_b32 s{sW}, v{a}", rd=[a], swr=[sW])
    S(f"s_and_b32 s{sT0}, s2, 7"); S(f"s_lshr_b32 s{sT1}, s2, 3")
    S(f"s_and_b32 s{sMT}, s{sT0}, 1"); S(f"s_lshl_b32 s{sMT}, s{sMT}, 3")
    S(f"s_lshr_b32 s{sFS}, s{sT1}, 2"); S(f"s_add_u32 s{sMT}, s{sMT}, s{sFS}")
    S(f"s_lshr_b32 s{sFS}, s{sT0}, 1"); S(f"s_lshl_b32 s{sFS}, s{sFS}, 2")
    S(f"s_and_b32 s{sT1}, s{sT1}, 3"); S(f"s_add_u32 s{sFS}, s{sFS}, s{sT1}")
    S(f"s_and_b32 s{sRG}, s{sW}, 3", srd=[sW])
    S(f"s_and_b32 s{sE}, s{sFS}, 1"); S(f"s_lshl_b32 s{sD0}, s{sE}, 5")
    S(f"s_lshl_b32 s{sT0}, s{sMT}, 7"); S(f"s_lshl_b32 s{sT1}, s{sRG}, 5"); S(f"s_add_u32 s{sT0}, s{sT0}, s{sT1}")
    S(f"s_mul_i32 s{sXo}, s{sT0}, 1152")
    S(f"s_lshl_b32 s{sLx}, s{sRG}, 12"); S(f"s_lshl_b32 s{sLw}, s{sRG}, 11")
    S(f"s_mul_i32 s{sU0}, s{sFS}, 576")
    S(f"s_mul_i32 s{sT1}, s{sRG}, {16*9216}"); S(f"s_add_u32 s{sW1d}, s{sU0}, s{sT1}")
    S(f"s_lshl_b32 s{sT1}, s{sD0}, 1"); S(f"s_add_u32 s{sW1d}, s{sW1d}, s{sT1}")
    V(f"v_lshrrev_b32 v{a}, 3, v{L}", [a], [L])
    V(f"v_mul_u32_u24 v{vX0}, 1152, v{a}", [vX0], [a])
    V(f"v_mul_u32_u24 v{vW1d}, 9216, v{a}", [vW1d], [a])
    V(f"v_mov_b32 v{vW2}, v{vX0}", [vW2], [vX0])
    V(f"v_lshrrev_b32 v{a}, 4, v{L}", [a], [L])
    V(f"v_and_b32 v{b}, 7, v{L}", [b], [L])
    V(f"v_xor_b32 v{vX1}, v{a}, v{b}", [vX1], [a, b])
    V(f"v_lshl_add_u32 v{vX0}, v{vX1}, 4, v{vX0}", [vX0], [vX1, vX0])
    V(f"v_xor_b32 v{vX1}, 64, v{vX0}", [vX1], [vX0])
    V(f"v_add_u32 v{vX1}, {9216-1024}, v{vX1}", [vX1], [vX1])
    V(f"v_and_b32 v{a}, 1, v{a}", [a], [a]); V(f"v_lshlrev_b32 v{a}, 2, v{a}", [a], [a])
    V(f"v_xor_b32 v{b}, v{a}, v{b}", [b], [a, b])
    V(f"v_lshl_add_u32 v{vW1d}, v{b}, 4, v{vW1d}", [vW1d], [b, vW1d])
    V(f"v_lshlrev_b32 v{vBias}, 1, v0", [vBias])
    p.wait_all(v=False)
    srd(p, R_X, S_X, M*D*2); srd(p, R_W1, S_W1, D*F*2)

def dma2(s, voff, r, soff, second):
    t = s.dma(voff, r, soff, {R_X: cfg.fl_x, R_W1: cfg.fl_w1, R_W2: cfg.fl_w2}[r])
    if second: s.ins[-1].text = s.ins[-1].text.replace(" offen", " offen offset:1024")
    return t

class Issuer:
    def __init__(self, s, half, BLK, utok): self.s, self.half, self.BLK, self.utok = s, half, BLK, utok; self.sec = None
    def pieces(self, u):
        s, half = self.s, self.half
        kind, m = u; b = self.BLK[u]; out = []
        if kind == "x":
            def first():
                s.salu(f"s_add_u32 m0, s{sLx}, {b*8192 + half*2048}", swr=["m0"])
                s.salu(f"s_add_u32 s{sT0}, s{sXo}, {16*half*1152 + m*128}")
                self.utok[u] = dma2(s, vX0, R_X, f"s{sT0}", False)
            def second(): self.utok[u] = dma2(s, vX1, R_X, f"s{sT0}", True)
            return [first, second]
        a = ST[m]
        if m < 9:
            def one():
                s.salu(f"s_add_u32 m0, s{sLw}, {b*8192 + half*1024}", swr=["m0"])
                s.salu(f"s_add_u32 s{sT0}, s{sW1d}, {(64*a.s + 8*half)*9216}")
                self.utok[u] = dma2(s, vW1d, R_W1, f"s{sT0}", False)
            return [one]
        if half != 0: return []
        if a.kind == "d": v, r, base, imm, step = vW1d, R_W1, sW1d, 64*a.s*9216 + a.j*128, 8*9216
        elif a.kind == "s": v, r, base, imm, step = vW1s, R_W1, sW1s, a.rowbase*9216, 16*9216
        elif not a.shared: v, r, base, imm, step = vW2, R_W2, sW2c+a.pos, 64*a.i*1152, 8*1152
        else: v, r, base, imm, step = vW2, R_W2, sW2s+a.pair, 0, 8*1152
        def first():
            if self.sec != v:
                s.valu(f"v_add_u32 v{vSec}, {step-1024}, v{v}", wr=[vSec], rd=[v]); self.sec = v
            s.salu(f"s_add_u32 m0, s{sLw}, {b*8192}", swr=["m0"])
            if imm: s.salu(f"s_add_u32 s{sT0}, s{base}, {imm}")
            else: s.salu("s_nop 0")
            self.so = f"s{sT0}" if imm else f"s{base}"
            self.utok[u] = dma2(s, v, r, self.so, False)
        def second(): self.utok[u] = dma2(s, vSec, r, self.so, True)
        return [first, second]

def setup_main(s, half):
    o = Ops(s); V, S = o.V, o.S
    L = vLane; a, b = vTmp, vTmp2; ch = half
    r, c8, t, hh = vT, vT+1, vT+2, vT+3
    srd(s, R_B1, S_B1, F*2)
    tokb = s.vload("buffer_load_ushort", vBiasS, 1, vBias, R_B1, f"s{sU0}")
    V(f"v_bfe_u32 v{r}, v{L}, 2, 2", [r], [L]); V(f"v_and_b32 v{c8}, 3, v{L}", [c8], [L]); V(f"v_lshlrev_b32 v{c8}, 3, v{c8}", [c8], [c8])
    V(f"v_lshrrev_b32 v{hh}, 5, v{L}", [hh], [L])
    V(f"v_lshl_add_u32 v{t}, v{hh}, 3, v{r}", [t], [hh, r])
    V(f"v_bfe_u32 v{b}, v{L}, 4, 1", [b], [L]); V(f"v_lshl_add_u32 v{b}, v{b}, 5, v{c8}", [b], [b, c8])
    V(f"v_lshl_add_u32 v{vW1sR}, v{t}, 6, v{b}", [vW1sR], [t, b])
    V(f"v_lshl_add_u32 v{vW1dR}, v{t}, 7, v{b}", [vW1dR], [t, b])
    V(f"v_lshrrev_b32 v{t}, 1, v{r}", [t], [r])
    if ch: V(f"v_xor_b32 v{t}, 1, v{t}", [t], [t])
    V(f"v_lshl_add_u32 v{vW1dR}, v{t}, 6, v{vW1dR}", [vW1dR], [t, vW1dR])
    for k in (1, 2):
        V(f"v_add_u32 v{vW1dR+k}, {65536*k}, v{vW1dR}", [vW1dR+k], [vW1dR]); V(f"v_add_u32 v{vW1sR+k}, {65536*k}, v{vW1sR}", [vW1sR+k], [vW1sR])
    V(f"v_and_b32 v{b}, 31, v{L}", [b], [L]); V(f"v_bfe_u32 v{t}, v{L}, 1, 3", [t], [L])
    V(f"v_xor_b32 v{t}, v{t}, v{hh}", [t], [t, hh]); V(f"v_lshlrev_b32 v{t}, 4, v{t}", [t], [t])
    V(f"v_lshl_add_u32 v{t}, v{b}, 7, v{t}", [t], [b, t]); V(f"v_add_u32 v{t}, s{sLx}, v{t}", [t], [t])
    for sp in range(4):
        V(f"v_xor_b32 v{vXR+sp}, {32*sp}, v{t}", [vXR+sp], [t])
        V(f"v_add_u32 v{vXR+4+sp}, {XWIN0+65536}, v{vXR+sp}", [vXR+4+sp], [vXR+sp])
        V(f"v_add_u32 v{vXR+sp}, {XWIN0}, v{vXR+sp}", [vXR+sp], [vXR+sp])
    V(f"v_lshlrev_b32 v{vL16}, 4, v{L}", [vL16], [L])
    V(f"v_mov_b32 v{vGA}, 0x{f2u(GA):08x}", [vGA]); S(f"s_mov_b32 s{sGB}, 0x{f2u(GB):08x}")
    S(f"s_lshr_b32 s{sPC}, s{sFS}, 1"); S(f"s_xor_b32 s{sT1}, s{sE}, 1"); S(f"s_lshl_b32 s{sS0}, s{sT1}, 8")
    if half == 0:
        S(f"s_mul_i32 s{sT1}, s{sRG}, {32*9216}"); S(f"s_add_u32 s{sW1s}, s{sU0}, s{sT1}")
        S(f"s_lshl_b32 s{sT1}, s{sS0}, 1"); S(f"s_add_u32 s{sW1s}, s{sW1s}, s{sT1}")
        V(f"v_lshrrev_b32 v{a}, 2, v{L}", [a], [L]); V(f"v_mul_u32_u24 v{vW1s}, 9216, v{a}", [vW1s], [a])
        V(f"v_lshl_add_u32 v{vW1s}, v{c8}, 1, v{vW1s}", [vW1s], [c8, vW1s])
        V(f"v_bfe_u32 v{a}, v{L}, 1, 2", [a], [L]); V(f"v_lshrrev_b32 v{b}, 4, v{L}", [b], [L]); V(f"v_xor_b32 v{a}, v{a}, v{b}", [a], [a, b])
        V(f"v_lshl_add_u32 v{vW2}, v{a}, 5, v{vW2}", [vW2], [a, vW2])
        V(f"v_and_b32 v{a}, 1, v{L}", [a], [L]); V(f"v_lshl_add_u32 v{vW2}, v{a}, 4, v{vW2}", [vW2], [a, vW2])
    V(f"v_and_b32 v{a}, 15, v{L}", [a], [L]); V(f"v_mul_u32_u24 v{vOutM}, 1152, v{a}", [vOutM], [a])
    V(f"v_lshlrev_b32 v{vHW}, 4, v{a}", [vHW], [a])
    V(f"v_bfe_u32 v{a}, v{L}, 4, 1", [a], [L]); V(f"v_lshl_add_u32 v{vHW}, v{a}, 10, v{vHW}", [vHW], [a, vHW])
    V(f"v_lshl_add_u32 v{vHW}, v{hh}, 8, v{vHW}", [vHW], [hh, vHW]); V(f"v_add_u32 v{vHW}, s{sLw}, v{vHW}", [vHW], [vHW])
    V(f"v_add_u32 v{vHW8}, {HBASE + 8*8192 + ch*512}, v{vHW}", [vHW8], [vHW]); V(f"v_add_u32 v{vHW}, {HBASE + ch*8192}, v{vHW}", [vHW], [vHW])
    V(f"v_add_u32 v{vHR}, s{sLw}, v{vL16}", [vHR], [vL16])
    V(f"v_add_u32 v{vEXW}, {EXB + ch*8192}, v{vHR}", [vEXW], [vHR]); V(f"v_add_u32 v{vEXR}, {EXB + (1-ch)*8192}, v{vHR}", [vEXR], [vHR])
    V(f"v_add_u32 v{vHR8}, {HBASE + 65536}, v{vHR}", [vHR8], [vHR]); V(f"v_add_u32 v{vHR}, {HBASE}, v{vHR}", [vHR], [vHR])
    V(f"v_bfe_u32 v{a}, v{L}, 2, 3", [a], [L]); V(f"v_lshl_add_u32 v{b}, v{hh}, 4, v{a}", [b], [a, hh])
    V(f"v_lshl_add_u32 v{vW2R}, v{b}, 7, v{c8}", [vW2R], [b, c8])
    V(f"v_lshrrev_b32 v{a}, 1, v{a}", [a], [a]); V(f"v_xor_b32 v{a}, {2*ch+1}, v{a}", [a], [a]); V(f"v_xor_b32 v{a}, s{sE}, v{a}", [a], [a])
    V(f"v_lshl_add_u32 v{vW2R}, v{a}, 5, v{vW2R}", [vW2R], [a, vW2R]); V(f"v_xor_b32 v{vW2R+3}, 32, v{vW2R}", [vW2R+3], [vW2R])
    for dl in range(2):
        for k in (1, 2): V(f"v_add_u32 v{vW2R+3*dl+k}, {65536*k}, v{vW2R+3*dl}", [vW2R+3*dl+k], [vW2R+3*dl])
    t0, t1, t2 = sU0, sU1, sSpin
    srd(s, R_W2, S_W2, F*D*2); srd(s, R_WS, S_WS, WS_BYTES)
    srd(s, R_B2, S_B2, D*2); srd(s, R_OUT, S_OUT, M*D*2)
    S(f"s_mov_b32 s{sPc}, 8")
    for k in range(1, 8): S(f"s_add_u32 s{sPc+k}, s{sPC}, {k}"); S(f"s_and_b32 s{sPc+k}, s{sPc+k}, 7")
    S(f"s_mov_b32 s{sPc+8}, s{sPC}")
    if half == 0:
        S(f"s_mul_i32 s{t0}, s{sFS}, 288"); S(f"s_add_u32 s{t1}, s{t0}, s{sD0}")
        S(f"s_lshl_b32 s{t2}, s{sRG}, 4"); S(f"s_add_u32 s{t1}, s{t1}, s{t2}"); S(f"s_mul_i32 s{t1}, s{t1}, 1152")
        for pos in range(9): S(f"s_lshl_b32 s{t2}, s{sPc+pos}, 7"); S(f"s_add_u32 s{sW2c+pos}, s{t1}, s{t2}")
        S(f"s_add_u32 s{t0}, s{t0}, s{sS0}"); S(f"s_and_b32 s{t1}, s{sRG}, 1"); S(f"s_lshl_b32 s{t1}, s{t1}, 4")
        S(f"s_add_u32 s{t0}, s{t0}, s{t1}"); S(f"s_mul_i32 s{t0}, s{t0}, 1152")
        for pr in range(5):
            if pr < 4: S(f"s_cmp_ge_u32 s{sRG}, 2"); S(f"s_cselect_b32 s{t2}, s{sPc+2*pr+1}, s{sPc+2*pr}")
            else: S(f"s_mov_b32 s{t2}, s{sPc+8}")
            S(f"s_lshl_b32 s{t2}, s{t2}, 7"); S(f"s_add_u32 s{sW2s+pr}, s{t0}, s{t2}")
    S(f"s_mul_i32 s{t0}, s{sMT}, 144"); S(f"s_lshl_b32 s{t1}, s{sW}, 1"); S(f"s_add_u32 s{t1}, s{t0}, s{t1}")
    S(f"s_lshl_b32 s{sDt}, s{t1}, 14"); S(f"s_lshl_b32 s{t2}, s{sFS}, 10"); S(f"s_add_u32 s{sDt}, s{sDt}, s{t2}")
    for pos in range(9): S(f"s_lshl_b32 s{sPc+pos}, s{sPc+pos}, 18"); S(f"s_add_u32 s{sPc+pos}, s{sPc+pos}, s{sDt}")
    S(f"s_lshl_b32 s{sDt+1}, s{sE}, 14"); S(f"s_xor_b32 s{sDt}, s{sDt+1}, 16384")
    S(f"s_lshl_b32 s{t2}, s{sPC}, 4"); S(f"s_add_u32 s{t1}, s{t1}, s{t2}"); S(f"s_add_u32 s{t1}, s{t1}, s{sE}"); S(f"s_lshl_b32 s{t1}, s{t1}, 14")
    for k in range(1, 8):
        S(f"s_sub_u32 s{t2}, s{sPC}, {k}"); S(f"s_and_b32 s{t2}, s{t2}, 7"); S(f"s_lshl_b32 s{t2}, s{t2}, 11"); S(f"s_add_u32 s{sCo+k}, s{t1}, s{t2}")
    S(f"s_xor_b32 s{t2}, s{sFS}, 1"); S(f"s_lshl_b32 s{t2}, s{t2}, 10"); S(f"s_add_u32 s{sCo}, s{t1}, s{t2}")
    S(f"s_add_u32 s{t0}, s{t0}, s{sFS}"); S(f"s_add_u32 s{t0}, s{t0}, 128"); S(f"s_lshl_b32 s{sP8}, s{t0}, 14")
    if cfg.noload:
        for k in range(8): S(f"s_mov_b32 s{sCo+k}, {OOB}")
        S(f"s_mov_b32 s{sP8}, {OOB}")
    S(f"s_mov_b32 s{sMask}, 0xffff0000")
    if half == 1:
        S(f"s_lshl_b32 s{t0}, s{sMT}, 11"); S(f"s_add_u32 s{t0}, s{t0}, {FLG}")
        S(f"s_cmp_eq_u32 s{sW}, 4"); S(f"s_cselect_b32 s{sCnt}, s{t0}, {OOB}"); S(f"s_cselect_b32 s{sTgt}, 16, 0")
        if cfg.pf:
            nl = IL(cfg.pf)[2]; sh = I(cfg.pfshare); per = 2592//(sh*4) + (1 if 2592 % (sh*4) else 0)
            S(f"s_and_b32 s{t0}, s{sMT}, {sh-1}"); S(f"s_lshl_b32 s{t0}, s{t0}, 2"); S(f"s_add_u32 s{t0}, s{t0}, s{sRG}")
            S(f"s_mul_i32 s{t0}, s{t0}, {per*128}"); S(f"s_mul_i32 s{t1}, s{sFS}, {288*1152}"); S(f"s_add_u32 s{sPF}, s{t0}, s{t1}")
            if cfg.pf1:
                assert nl == 5
                S(f"s_lshl_b32 s{t0}, s{sMT}, 2"); S(f"s_add_u32 s{t0}, s{t0}, s{sRG}"); S(f"s_mul_i32 s{t0}, s{t0}, {9*9216}")
                S(f"s_mul_i32 s{t1}, s{sFS}, 576"); S(f"s_and_b32 s{t1}, s{t1}, 0xffffff80"); S(f"s_add_u32 s{sW1s}, s{t0}, s{t1}")
            V(f"v_lshlrev_b32 v{a}, 7, v{L}", [a], [L]); V(f"v_cmp_gt_u32 vcc, {nl}, v{L}", rd=[L], swr=["vcc"]); V(f"v_mov_b32 v{b}, {OOB}", [b]); S("s_nop 0")
            V(f"v_cndmask_b32 v{vPF}, v{b}, v{a}, vcc", [vPF], [a, b])
    V(f"v_lshrrev_b32 v{a}, 3, v{L}", [a], [L]); V(f"v_lshlrev_b32 v{a}, 10, v{a}", [a], [a])
    V(f"v_and_b32 v{t}, 7, v{L}", [t], [L]); V(f"v_lshl_add_u32 v{a}, v{t}, 4, v{a}", [a], [a, t])
    S(f"s_lshl_b32 s{t0}, s{sW}, 7"); V(f"v_add_u32 v{vP8off}, s{t0}, v{a}", [vP8off], [a])
    V(f"v_lshrrev_b32 v{b}, 4, v{L}", [b], [L]); V(f"v_lshlrev_b32 v{b}, 3, v{b}", [b], [b]); V(f"v_add_u32 v{vOutM}, v{vOutM}, v{b}", [vOutM], [vOutM, b])
    S(f"s_lshl_b32 s{t0}, s{sPC}, 7"); S(f"s_lshl_b32 s{t1}, s{sE}, 5"); S(f"s_add_u32 s{t0}, s{t0}, s{t1}"); S(f"s_add_u32 s{t0}, s{t0}, {64*ch}")
    S(f"s_add_u32 s{sOutM}, s{sXo}, s{t0}")
    hb0 = s.vload("buffer_load_dwordx2", vB2m, 2, b, R_B2, f"s{t0}")
    S(f"s_and_b32 s{t0}, s{sW}, 1"); S(f"s_lshl_b32 s{t0}, s{t0}, 3")
    V(f"v_add_u32 v{a}, s{t0}, v{t}", [a], [t]); V(f"v_lshl_add_u32 v{a}, v{hh}, 4, v{a}", [a], [a, hh]); V(f"v_mul_u32_u24 v{a}, 1152, v{a}", [a], [a])
    V(f"v_bfe_u32 v{b}, v{L}, 4, 1", [b], [L]); V(f"v_lshlrev_b32 v{b}, 2, v{b}", [b], [b]); V(f"v_add_u32 v{vOut8}, v{a}, v{b}", [vOut8], [a, b])
    S(f"s_lshr_b32 s{t0}, s{sPC}, 2"); S(f"s_lshl_b32 s{t0}, s{t0}, 6"); S(f"s_add_u32 s{t0}, s{t0}, s{t1}")
    S(f"s_lshr_b32 s{t1}, s{sW}, 1"); S(f"s_lshl_b32 s{t1}, s{t1}, 3"); S(f"s_add_u32 s{t0}, s{t0}, s{t1}"); S(f"s_add_u32 s{t0}, s{t0}, 1024")
    hb1 = s.vload("buffer_load_dword", vB28, 1, b, R_B2, f"s{t0}")
    S(f"s_and_b32 s{t1}, s{sPC}, 3"); S(f"s_lshl_b32 s{t1}, s{t1}, 5"); S(f"s_lshl_b32 s{sOut8}, s{sMT}, 7"); S(f"s_add_u32 s{t1}, s{t1}, s{sOut8}")
    S(f"s_mul_i32 s{t1}, s{t1}, 1152"); S(f"s_add_u32 s{sOut8}, s{t1}, s{t0}")
    V(f"v_and_b32 v{a}, 8, v{L}", [a], [L]); V(f"v_cmp_eq_u32 vcc, 0, v{a}", rd=[a], swr=["vcc"]); V(f"v_mov_b32 v{b}, {OOB}", [b]); S("s_nop 0")
    V(f"v_cndmask_b32 v{vOut8}, v{b}, v{vOut8}, vcc", [vOut8], [b, vOut8])
    S(f"s_lshl_b32 s{t0}, s{sD0}, 2"); S(f"s_add_u32 s{t0}, s{t0}, {BIAS + 128*ch}")
    S(f"s_lshl_b32 s{t1}, s{sS0}, 2"); S(f"s_add_u32 s{t1}, s{t1}, {BIAS}")
    V(f"v_lshlrev_b32 v{a}, 2, v0", [a]); V(f"v_add_u32 v{a}, {BIAS}, v{a}", [a], [a])
    V(f"v_lshl_add_u32 v{vBias}, v{hh}, 4, s{t0}", [vBias], [hh])
    s.wait(tokb)
    V(f"v_lshlrev_b32 v{b}, 16, v{vBiasS}", [b], [vBiasS])
    tb = s.ds_write("ds_write_b32", a, b, 1, 0)
    V(f"v_lshl_add_u32 v{vBiasS}, v{hh}, 4, s{t1}", [vBiasS], [hh])
    return tb, (hb0, hb1)

def gelu_group(s, regs, tb):
    ops = []
    T = [vT + (tb + i) % 8 for i in range(len(regs))]
    def V(text, **k): ops.append(lambda: s.valu(text, **k))
    for x, t in zip(regs, T): V(f"v_mul_f32 v{t}, v{x}, v{x}", wr=[t], rd=[x])
    for x, t in zip(regs, T): V(f"v_fma_f32 v{t}, v{t}, s{sGB}, v{vGA}", wr=[t], rd=[t, vGA])
    for x, t in zip(regs, T): V(f"v_mul_f32 v{t}, v{x}, v{t}", wr=[t], rd=[x, t])
    for x, t in zip(regs, T): V(f"v_exp_f32 v{t}, v{t}", wr=[t], rd=[t], trans=True)
    for x, t in zip(regs, T): V(f"v_add_f32 v{t}, 1.0, v{t}", wr=[t], rd=[t])
    for x, t in zip(regs, T): V(f"v_rcp_f32 v{t}, v{t}", wr=[t], rd=[t], trans=True)
    for x, t in zip(regs, T): V(f"v_mul_f32 v{x}, v{x}, v{t}", wr=[x], rd=[x, t])
    return ops
def cvt(s, d, a, b):
    return lambda: s.valu(f"v_cvt_pk_bf16_f32 v{d}, v{a}, v{b}", wr=[d], rd=[a, b])

def body(p, half, PLAN):
    BAR, ISSUE, BLK, LAND = PLAN
    s = Stream(p); ool = Stream(); ch = half
    utok = {}
    iss = Issuer(s, half, BLK, utok)
    def issue_all(bar):
        for u in ISSUE[bar]:
            for f in iss.pieces(u): f()
    issue_all(-3)
    tb, hb2 = setup_main(s, half)
    if cfg.stamps: s.valu(f"v_writelane_b32 v{vStamp}, s98, 0", wr=[vStamp])
    stamp(s, "setup")
    issue_all(-2)
    if I(cfg.prio) == half: s.salu("s_setprio 1")

    xblk = lambda i: vXF + 16*i
    dead = [xblk(2*i + (1-ch)) for i in range(4)]
    used = [xblk(2*i + ch) for i in range(4)]
    Hreg = {(k, mt): dead[k//2] + (k % 2)*8 + mt*4 for k in range(8) for mt in range(2)}
    for mt in range(2): Hreg[(8, mt)] = xblk(8) + (1-ch)*8 + mt*4
    ACC = [used[0], used[1], used[2]]
    accof = lambda pos: ACC[pos % 3]
    extra_bufs = [used[3] + 4*i for i in range(4)]
    PK2 = xblk(8) + ch*8

    fill = {}; cur = [-1]; need_bar = {}; need_mf = {}; prebar = {}
    def F(n, i, f): fill.setdefault((n, i), []).append(f)
    def spread(ops, n0, i0, n1, i1=None):
        gaps = [(n, i, 1.0 if ST[n].kind != "b" else 0.5) for n in range(n0, n1+1) for i in range(ST[n].nm)
                if not (n == n0 and i < i0) and not (n == n1 and i1 is not None and i > i1)]
        tot = sum(g[2] for g in gaps); acc = 0; k = 0
        for (n, i, w) in gaps:
            acc += w; tgt = int(round(len(ops)*acc/tot))
            while k < tgt: F(n, i, ops[k]); k += 1
    def hold(): return [None]
    def before_bar(n, h): need_bar.setdefault(min(b for b in BAR if b >= n), []).append(h)
    def before_mfma(n, i, h): need_mf.setdefault((n, i), []).append(h)

    if half == 1:
        hclr = hold()
        def clr():
            s.valu(f"v_lshlrev_b32 v{vTmp}, 8, v{vLane}", wr=[vTmp], rd=[vLane]); s.valu(f"v_mov_b32 v{vTmp2}, {OOB}", wr=[vTmp2])
            s.valu(f"v_cmp_gt_u32 vcc, 8, v{vLane}", rd=[vLane], swr=["vcc"]); s.valu(f"v_mov_b32 v{vFv}, 0", wr=[vFv])
            s.salu(f"s_cmp_eq_u32 s{sFS}, 0"); s.salu(f"s_cselect_b32 s{sU0}, s{sCnt}, {OOB}")
            s.valu(f"v_cndmask_b32 v{vTmp}, v{vTmp2}, v{vTmp}, vcc", wr=[vTmp], rd=[vTmp, vTmp2])
            hclr[0] = s.vstore("buffer_store_dword", vFv, 1, vTmp, R_WS, f"s{sU0}", flags=cfg.st_flags)
            s.valu(f"v_cmp_eq_u32 vcc, 0, v{vLane}", rd=[vLane], swr=["vcc"]); s.salu("s_nop 1")
            s.valu(f"v_cndmask_b32 v{vOne}, v{vTmp2}, v{vFv}, vcc", wr=[vOne], rd=[vTmp2, vFv])
        assert all(u[0] != "x" for b in ISSUE if b >= I(cfg.clr_stage) for u in ISSUE[b])
        F(I(cfg.clr_stage), 3, clr)
        def arrive():
            srd(s, R_DBG, S_DBG, 256)
            s.salu(f"s_lshl_b32 s{sU0}, s{sMT}, 2")
            s.salu(f"s_cmp_lg_u32 s{sW}, 4"); s.salu(f"s_cselect_b32 s{sU0}, 1024, s{sU0}")
            s.salu(f"s_cmp_lg_u32 s{sFS}, 0"); s.salu(f"s_cselect_b32 s{sU0}, 1024, s{sU0}")
            s.wait(hclr[0])
            s.valu(f"v_mov_b32 v{vFv}, 1", wr=[vFv])
            s.vstore("buffer_atomic_add", vFv, 1, vOne, R_DBG, f"s{sU0}")
        F(7 if False else I(cfg.arr_stage), 2, arrive)
        if cfg.pf:
            n0, n1, nl = IL(cfg.pf); sh = I(cfg.pfshare); per = -(-2592//(sh*4)); cnt = -(-per//nl)
            for q in range(cnt):
                def pf(q=q):
                    s.vload("buffer_load_dword", vDummy, 1, vPF, R_W2, f"s{sPF}", flags=cfg.fl_pf)
                    s.salu(f"s_add_u32 s{sPF}, s{sPF}, {nl*128}")
                g = q*(n1 - n0 + 1)*4//cnt
                F(n0 + g//4, g % 4, pf)
        if cfg.pf1:
            n0, n1 = IL(cfg.pf1)
            for q in range(9):
                def pf1():
                    s.vload("buffer_load_dword", vDummy, 1, vPF, R_W1, f"s{sW1s}", flags=cfg.fl_pf)
                    s.salu(f"s_add_u32 s{sW1s}, s{sW1s}, 9216")
                g = q*(n1 - n0 + 1)*4//9
                F(n0 + g//4, g % 4, pf1)

    for j in range(4):
        S = vS[j % 2]; ops = []
        for e in range(2):
            for g in (2*e, 2*e+1):
                ops += gelu_group(s, [S+4*g+i for i in range(4)], 4*g)
                ops.append(cvt(s, vP+2*g, S+4*g, S+4*g+1)); ops.append(cvt(s, vP+2*g+1, S+4*g+2, S+4*g+3))
            h = hold()
            def wr(h=h, e=e, j=j):
                assert cur[0] >= HWSTAGE[j], (j, cur[0])
                h[0] = s.ds_write("ds_write_b128", vHW, vP+4*e, 4, 2*j*8192 + e*512)
            ops.append(wr)
            before_bar(min(9*(j+2), 36) if j < 3 else B0+4, h)
        if j < 3: spread(ops, 9*(j+1), 2, 9*(j+1)+7)
        else: spread(ops, 36, 2, *IL(cfg.g3end))
    for j in range(1, 5):
        S = vS[j % 2]
        if j == 4 and ch == 1: continue
        for g in range(4):
            h = hold()
            def rd(h=h, g=g, j=j, S=S):
                h[0] = s.ds_read("ds_read_b128", S+4*g, 4, vBias if j < 4 else vBiasS, (j*256 if j < 4 else 0) + g*32)
            F(9*j-1, g, rd); before_mfma(9*j, 0, h)
    S = vS[0]; snd = S + 8*(1-ch); own = S + 8*ch
    for e in range(2):
        h = hold()
        def wr(h=h, e=e): h[0] = s.ds_write("ds_write_b128", vEXW, snd+4*e, 4, e*1024)
        F(B0, 3+e, wr); before_bar(B0+1, h)
    hx = []
    for e in range(2):
        h = hold(); hx.append(h)
        def rd(h=h, e=e): h[0] = s.ds_read("ds_read_b128", snd+4*e, 4, vEXR, e*1024)
        F(B0+1, 0, rd); before_bar(B0+2, h)
    ops = [lambda: s.wait(hx[0][0], hx[1][0])]
    for i in range(8):
        ops.append(lambda i=i: s.valu(f"v_add_f32 v{own+i}, v{own+i}, v{snd+i}", wr=[own+i], rd=[own+i, snd+i]))
    for g in range(2):
        ops += gelu_group(s, [own+4*g+i for i in range(4)], 4*g)
        ops.append(cvt(s, PK2+2*g, own+4*g, own+4*g+1)); ops.append(cvt(s, PK2+2*g+1, own+4*g+2, own+4*g+3))
    h = hold()
    def wr8(h=h): h[0] = s.ds_write("ds_write_b128", vHW8, PK2, 4, 0)
    ops.append(wr8); before_bar(B0+5, h)
    spread(ops, B0+1, 3, B0+4, 6)
    hrd = {}
    def hread(k, n, i):
        for mt in range(2):
            h = hold(); hrd[(k, mt)] = h
            def rd(h=h, k=k, mt=mt):
                h[0] = s.ds_read("ds_read_b128", Hreg[(k, mt)], 4, vHR if k < 8 else vHR8, (k*8192 if k < 8 else 0) + mt*1024)
            F(n, i, rd)
    for k in range(6): hread(k, 37 + k//2, 1 + 2*(k % 2))
    hread(6, B0+4, 1); hread(7, B0+4, 3); hread(8, B0+5, 1)

    nslow = [0]
    def check(test, tok, reload):
        nslow[0] += 1; k = f"{half}_{nslow[0]}"
        s.wait(tok); test(s)
        s.salu(f"s_cbranch_scc1 L_slow_{k}"); s.raw(f"L_back_{k}:")
        ool.raw(f"L_slow_{k}:"); ool.salu(f"s_mov_b32 s{sSpin}, {SPIN}")
        ool.raw(f"L_spin_{k}:")
        if I(cfg.backoff): ool.salu(f"s_sleep {I(cfg.backoff)}")
        reload(ool); ool.wait_all(l=False); test(ool)
        ool.salu(f"s_cbranch_scc0 L_back_{k}")
        ool.salu(f"s_sub_u32 s{sSpin}, s{sSpin}, 1"); ool.salu(f"s_cmp_lg_u32 s{sSpin}, 0")
        ool.salu(f"s_cbranch_scc1 L_spin_{k}"); ool.salu(f"s_branch L_back_{k}")
    def below(tgt):
        def test(st):
            st.valu(f"v_readfirstlane_b32 s{sU1}, v{vPoll}", rd=[vPoll], swr=[sU1]); st.salu("s_nop 3")
            st.salu(f"s_cmp_lt_u32 s{sU1}, {tgt}")
        return test
    if half == 1:
        hc = hold()
        def ld_cnt(st):
            st.salu(f"s_lshl_b32 s{sU0}, s{sMT}, 2")
            return st.vload("buffer_load_dword", vPoll, 1, vOne, R_DBG, f"s{sU0}", flags=cfg.poll_flags)
        F(B0, 6, lambda: hc.__setitem__(0, ld_cnt(s)))
        prebar.setdefault(B0+5, []).append(lambda: check(below("1"), hc[0], ld_cnt))
    last_stage = {}
    for a in ST[B0:]:
        for (pos, dl, k, u, sl) in a.parts: last_stage[(pos, dl)] = a.n
    pk_of = lambda pos: vP if pos % 2 == 0 else vT
    stok = {}
    def store_ops(pos, dls):
        A = accof(pos); PK = pk_of(pos); ops = []; stok[pos] = hold()
        for dl in dls:
            for mt in range(2):
                for e in range(2): ops.append(cvt(s, PK+4*dl+2*mt+e, A+8*dl+4*mt+2*e, A+8*dl+4*mt+2*e+1))
            def st_(dl=dl):
                s.salu(f"s_add_u32 s{sT1}, s{sPc+pos}, s{sDt+dl}" if not cfg.nostore else f"s_mov_b32 s{sT1}, {OOB}")
                stok[pos][0] = s.vstore("buffer_store_dwordx4", PK+4*dl, 4, vL16, R_WS, f"s{sT1}", flags=cfg.st_flags)
            ops.append(st_)
        return ops
    def publish(idx):
        def go():
            if half == 1 and not cfg.nopub: s.vstore("buffer_atomic_add", vFv, 1, vOne, R_WS, f"s{sCnt}", off=256*idx)
        return go
    items = [x.split(":") for x in cfg.sched.split(";") if x]
    want_pub = {int(x[0]) for x in items} | set(IL(getattr(cfg, "pubextra", "5")))
    PUBBAR = {}
    for pos in range(8):
        n = max(last_stage[(pos, 0)], last_stage[(pos, 1)]) + 1
        spread(store_ops(pos, (0, 1)), n, 1, n, 6)
        if pos in want_pub:
            c = [b for b in BAR if b >= n + I(cfg.publag)]
            if c:
                nb = min(c); PUBBAR[pos] = nb
                before_bar(nb, stok[pos]); F(nb, 1, publish(pos))
    n8 = last_stage[(8, 0)]
    spread(store_ops(8, (0,)), n8, 4, n8, 7)
    def poll(st, idx):
        if cfg.nopoll:
            st.valu(f"v_mov_b32 v{vPoll}, 16", wr=[vPoll]); return None
        return st.vload("buffer_load_dword", vPoll, 1, vOne, R_WS, f"s{sCnt}", off=256*idx, flags=cfg.poll_flags)
    def check_cnt(idx, tok):
        stamp(s, f"chk{idx}0")
        check(below(f"s{sTgt}"), tok, lambda st: poll(st, idx))
        stamp(s, f"chk{idx}1")
    LAND_OF = {1: vS[0], 8: vS[0]+8, 2: vS[1], 3: vS[1]+8, 4: vXR, 5: 20, 6: PK2, 7: Hreg[(0, 0)], 0: Hreg[(1, 0)]}
    ptk = {}
    def piece(k, e):
        def go():
            if k == 8:
                if e == 1: s.salu(f"s_add_u32 s{sP8}, s{sP8}, 8192")
                ptk[k] = s.vload("buffer_load_dwordx4", LAND_OF[k]+4*e, 4, vP8off, R_WS, f"s{sP8}", flags=cfg.ld_flags)
            else:
                ptk[k] = s.vload("buffer_load_dwordx4", LAND_OF[k]+4*e, 4, vL16, R_WS, f"s{sCo+k}", off=1024*e, flags=cfg.ld_flags)
        return go
    def load_k(k):
        for e in range(1 if k == 0 else 2): piece(k, e)()
    SUM = accof(8) + 8
    def add_k(k):
        if k == 8: return step8()
        s.wait(ptk[k])
        for v_ in range(LAND_OF[k], LAND_OF[k] + (4 if k == 0 else 8)):
            r = (v_ - LAND_OF[k]) % 4
            s.valu(f"v_lshlrev_b32 v{vTmp}, 16, v{v_}", wr=[vTmp], rd=[v_])
            s.valu(f"v_and_b32 v{v_}, s{sMask}, v{v_}", wr=[v_], rd=[v_])
            s.valu(f"v_add_f32 v{SUM+2*r}, v{SUM+2*r}, v{vTmp}", wr=[SUM+2*r], rd=[SUM+2*r, vTmp])
            s.valu(f"v_add_f32 v{SUM+2*r+1}, v{SUM+2*r+1}, v{v_}", wr=[SUM+2*r+1], rd=[SUM+2*r+1, v_])
    def step8():
        V = lambda text, wr, rd: s.valu(text, wr=wr, rd=rd)
        R = vWF; L8 = LAND_OF[8]
        s.wait(ptk[8], hb2[1])
        for r in range(4):
            a_, b_ = L8 + r, L8 + 4 + r
            V(f"v_lshlrev_b32 v{R+2*r}, 16, v{a_}", [R+2*r], [a_]); V(f"v_and_b32 v{R+2*r+1}, s{sMask}, v{a_}", [R+2*r+1], [a_])
            V(f"v_lshlrev_b32 v{a_}, 16, v{b_}", [a_], [b_]); V(f"v_and_b32 v{b_}, s{sMask}, v{b_}", [b_], [b_])
            V(f"v_add_f32 v{R+2*r}, v{R+2*r}, v{a_}", [R+2*r], [R+2*r, a_]); V(f"v_add_f32 v{R+2*r+1}, v{R+2*r+1}, v{b_}", [R+2*r+1], [R+2*r+1, b_])
        for i in range(4): V(f"v_permlane32_swap_b32 v{R+i}, v{R+4+i}", [R+i, R+4+i], [R+i, R+4+i])
        for i in range(4): V(f"v_add_f32 v{R+i}, v{R+i}, v{R+4+i}", [R+i], [R+i, R+4+i])
        for i in range(2): V(f"v_permlane16_swap_b32 v{R+i}, v{R+2+i}", [R+i, R+2+i], [R+i, R+2+i])
        for i in range(2): V(f"v_add_f32 v{R+i}, v{R+i}, v{R+2+i}", [R+i], [R+i, R+2+i])
        for i in range(2): V(f"v_add_f32_dpp v{R+2+i}, v{R+i}, v{R+i} row_ror:8 row_mask:0xf bank_mask:0xf", [R+2+i], [R+i])
        V(f"v_lshlrev_b32 v{R}, 16, v{vB28}", [R], [vB28]); V(f"v_and_b32 v{R+1}, s{sMask}, v{vB28}", [R+1], [vB28])
        for i in range(2): V(f"v_add_f32 v{R+i}, v{R+i}, v{R+2+i}", [R+i], [R+i, R+2+i])
        cvt(s, R, R, R+1)()
        s.vstore("buffer_store_dword", R, 1, vOut8, R_OUT, f"s{sOut8}")
    inloop = []; covered = -1
    for pos, nb, sts in items:
        pos = int(pos); nb = int(nb); sts = IL(sts)
        assert nb in BAR and PUBBAR[pos] < nb, (pos, nb, PUBBAR)
        if half == 1:
            hp = hold()
            F(nb - I(cfg.polllead), 3, lambda hp=hp, pos=pos: hp.__setitem__(0, poll(s, pos)))
            prebar.setdefault(nb, []).append(lambda hp=hp, pos=pos: check_cnt(pos, hp[0]))
        ks = [(8 if q == 0 else q) for q in range(covered+1, pos+1)]; covered = pos
        pcs = [(k, e) for k in ks for e in range(2)]
        assert len(pcs) == len(sts) and min(sts) >= nb, (pcs, sts)
        inloop += ks
        for (k, e), n in zip(pcs, sts): F(n, 3 if ST[n].nm > 4 else 2, piece(k, e))

    freebufs = [vWF+4*i for i in range(4)]
    frag = {}
    def plan_frag(n, f):
        a = ST[n]; hs = [hold(), hold()]; ent = [None, hs]; frag[(n, f)] = ent
        def mk(rd):
            def go():
                if rd == 0: ent[0] = freebufs.pop(0)
                if a.kind == "d": base, off = vW1dR, BLK[("w", n)]*8192 + (16*f + 4*rd)*128
                elif a.kind == "s":
                    ks = (4*ch + f) if a.i < 4 else (4 + 2*ch + f)
                    base, off = vW1sR, BLK[("w", n)]*8192 + (16*ks + 4*rd)*64
                else:
                    (pos, dl, k, u, sl) = a.parts[f]
                    base, off = vW2R + 3*dl, BLK[("w", u)]*8192 + sl*4096 + rd*1024
                w_, o_ = win(off)
                hs[rd][0] = s.ds_read("ds_read_b64_tr_b16", ent[0] + 2*rd, 2, base + w_, o_)
            return go
        return [mk(0), mk(1)]
    nfrag = lambda n: ST[n].nm if ST[n].kind != "b" else len(ST[n].parts)
    xtok = {}
    def xread(n, sp):
        w_, o_ = win(BLK[("x", n)]*8192 - XWIN0)
        def go(): xtok[(n, sp)] = s.ds_read("ds_read_b128", vXF + 16*n + 4*sp, 4, vXR + 4*w_ + sp, o_)
        return go
    pre = {}
    def P(n, i, f): pre.setdefault((n, i), []).append(f)
    for n in range(1, NST):
        prev = ST[n-1]; rds = []
        for f in range(nfrag(n)): rds += plan_frag(n, f)
        per = -(-len(rds)//prev.nm)
        for k, r in enumerate(rds): P(n-1, min(k//per, prev.nm-1), r)
        if n < 9:
            for sp in range(4): P(n-1, sp, xread(n, sp))

    s.wait(tb, *[utok.get(u) for u in LAND[-1]])
    s.barrier()
    stamp(s, "data")
    for g in range(4):
        h = hold(); h[0] = s.ds_read("ds_read_b128", vS[0]+4*g, 4, vBias, g*32); before_mfma(0, 0, h)
    for f in range(4):
        xread(0, f)()
        for r in plan_frag(0, f): r()
    issue_all(-1)

    started = set()
    for a in ST:
        n = a.n
        if n == B0 - 1: freebufs.extend(extra_bufs)
        stamp(s, f"s{n}")
        uses = {f: i for i, (f, mt) in enumerate(a.order)} if a.kind == "b" else {}
        dq = [f for u in ISSUE.get(n, []) for f in iss.pieces(u)]
        slots = [g for g in IL(cfg.dposB if a.kind == "b" else cfg.dposA) if g < a.nm] or [a.nm-1]
        if len(dq) > len(slots): slots = list(range(a.nm)) if len(dq) <= a.nm else list(range(a.nm))
        dat = {}
        for q, f in enumerate(dq): dat.setdefault(slots[q*len(slots)//len(dq)], []).append(f)
        for i in range(a.nm):
            toks = [h[0] for h in need_mf.get((n, i), [])]
            cur[0] = n
            if a.kind in "ds":
                reg, hs = frag[(n, i)]
                toks += [hs[0][0], hs[1][0]]
                if a.kind == "d" and a.j == 0: toks.append(xtok[(n, i)])
                assert all(t is not None for t in toks), (n, i)
                s.wait(*toks)
                if a.kind == "d": s.mfma32(vS[a.j % 2], reg, vXF + 16*a.s + 4*i, vS[a.j % 2])
                else:
                    ks = (8*a.i + 4*ch + i) if a.i < 4 else (32 + 2*ch + i)
                    s.mfma32(vS[0], reg, vXF + 4*ks, None if (a.i == 0 and i == 0 and ch == 1) else vS[0])
                freebufs.append(reg)
            else:
                f, mt = a.order[i]
                (pos, dl, k, u, sl) = a.parts[f]
                reg, hs = frag[(n, f)]
                toks += [hs[0][0], hs[1][0], hrd[(k, mt)][0]]
                if cfg.wait2 and i+1 < a.nm and n > B0:
                    f2, mt2 = a.order[i+1]
                    toks += [frag[(n, f2)][1][0][0], frag[(n, f2)][1][1][0]]
                assert all(t is not None for t in toks), (n, i)
                s.wait(*toks)
                d = accof(pos) + 8*dl + 4*mt; key = (pos, dl, mt)
                s.mfma16(d, reg, Hreg[(k, mt)], d if key in started else None)
                started.add(key)
                if uses[f] == i: freebufs.append(reg)
            if i == 0 and n in BAR:
                assert all(h[0] is not None for h in need_bar.get(n, [])), n
                for f in prebar.get(n, []): f()
                s.wait(*([utok.get(u) for u in LAND.get(n, [])] + [h[0] for h in need_bar.get(n, [])]))
                s.barrier()
            for f in pre.get((n, i), []): f()
            for f in dat.get(i, []): f()
            for f in fill.get((n, i), []): f()
    stamp(s, "tail")
    pubmax = max([k for k in PUBBAR], default=-1)
    early = [(8 if q == 0 else q) for q in range(covered+1, pubmax+1)]
    late = [(8 if q == 0 else q) for q in range(max(covered, pubmax)+1, 8)] + [0]
    hp = poll(s, pubmax) if (half == 1 and early) else None
    s.wait(hb2[0])
    for r in range(2):
        s.valu(f"v_lshlrev_b32 v{vT+2*r}, 16, v{vB2m+r}", wr=[vT+2*r], rd=[vB2m+r])
        s.valu(f"v_and_b32 v{vT+2*r+1}, s{sMask}, v{vB2m+r}", wr=[vT+2*r+1], rd=[vB2m+r])
    for i in range(8):
        s.valu(f"v_add_f32 v{SUM+i}, v{SUM+i}, v{vT + i % 4}", wr=[SUM+i], rd=[SUM+i, vT + i % 4])
    todo = list(inloop)
    if todo: add_k(todo.pop(0))
    if half == 1 and early: check_cnt(pubmax, hp)
    s.wait(stok[7][0], stok[8][0])
    s.barrier()
    stamp(s, "T1")
    publish(7)()
    for k in early: load_k(k)
    hp = poll(s, 7) if half == 1 else None
    for k in todo: add_k(k)
    if half == 1: check_cnt(7, hp)
    s.barrier()
    stamp(s, "T2")
    for k in late: load_k(k)
    for k in early + late: add_k(k)
    stamp(s, "fin")
    for k in range(4): cvt(s, vP+k, SUM+2*k, SUM+2*k+1)()
    s.vstore("buffer_store_dwordx2", vP, 2, vOutM, R_OUT, f"s{sOutM}")
    s.salu(f"s_add_u32 s{sOutM}, s{sOutM}, {16*1152}")
    s.vstore("buffer_store_dwordx2", vP+2, 2, vOutM, R_OUT, f"s{sOutM}")
    if cfg.stamps: s.wait_all()
    stamp(s, "end")
    stamp_flush(s)
    s.salu("s_endpgm")
    return s, ool

def kd(name, vg, sg):
    return f""".amdhsa_kernel {name}
  .amdhsa_next_free_vgpr {vg}
  .amdhsa_next_free_sgpr {sg}
  .amdhsa_accum_offset {(vg+3)//4*4}
  .amdhsa_group_segment_fixed_size 0
  .amdhsa_kernarg_size 64
  .amdhsa_user_sgpr_count 2
  .amdhsa_user_sgpr_kernarg_segment_ptr 1
  .amdhsa_system_sgpr_workgroup_id_x 1
  .amdhsa_float_denorm_mode_32 3
.end_amdhsa_kernel
"""

def generate(aslist=False):
    PLAN = plan()
    p = Stream()
    prologue(p)
    p.salu(f"s_cmp_ge_u32 s{sW}, 4", srd=[sW]); p.salu("s_cbranch_scc1 L_half1")
    h0, o0 = body(p, 0, PLAN); h1, o1 = body(p, 1, PLAN)
    mk = (p.text() + "\n" + h0.text() + "\n" + o0.text() + "\n.p2align 6\nL_half1:\n" + h1.text() + "\n" + o1.text()
          + "\nL_main_end:\n    s_endpgm\n")
    k1 = NAME + "_kernel"
    launch = (f"; @launch kernel={k1} grid=(256,1,1) block=(512,1,1) lds=163840" if aslist
              else "; @launch grid=(256,1,1) block=(512,1,1) lds=163840")
    out = f"""; fused MLP  out = gelu_tanh(x@w1+b1)@w2+b2   (emitted by my generator script)
{launch}
.amdgcn_target "amdgcn-amd-amdhsa--gfx950"
.text
.globl {k1}
.p2align 8
.type {k1},@function
{k1}:
{mk}
.section .rodata,"a"
.p2align 6
{kd(k1, 256, 102)}"""
    nb = [sum(1 for i in h.ins if i.kind == "bar") for h in (h0, h1)]
    assert nb[0] == nb[1], nb
    return out, (h0.nops, h1.nops, len(h0.ins), len(h1.ins), nb[0]), PLAN

if __name__ == "__main__":
    aslist = False; verbose = False
    for a in sys.argv[2:]:
        if a == "-v": verbose = True; continue
        k, v = a.split("=", 1)
        if k == "aslist": aslist = True; continue
        assert hasattr(cfg, k) or k == "pubextra", k
        setattr(cfg, k, {"True": True, "False": False}.get(v, v.replace("+", " ")))
    txt, stats, PLAN = generate(aslist)
    open(sys.argv[1], "w").write(txt)
    print("nops/ins/bars:", stats, "bytes", len(txt))
    if verbose:
        BAR, ISSUE, BLK, LAND = PLAN
        print(" ".join(f"{b}:{','.join(k+str(m)+'@'+str(BLK[(k,m)]) for k,m in ISSUE[b])}" for b in sorted(ISSUE)))
```

```python
import sys, struct
from emit import Stream, vr, sr, rng

NAME = "standalone__dense_activation_gelu__prompt"
M, D, F = 2048, 576, 4608
def f2u(x): return struct.unpack("<I", struct.pack("<f", x))[0]
GA = -2.0*0.7978845608028654*1.4426950408889634
GB = GA*0.044715

class Cfg:
    st_flags = "sc1"; ld_flags = "sc1"; poll_flags = "sc1"
    stamps = False; cyc = False
    barA = 1; barB = 1; lastbar = "81"
    prio = -1
    fl_x = ""; fl_w1 = ""; fl_w2 = ""; fl_pf = ""
    g0 = 3
    g1 = 5
    look0 = 5
    lookA = 9; lookB = 12
    dposA = "1,3"; dposB = "1,5"
    wait2 = True
    pf = "8,8,41"
    pfpro = "1"
    pf1c = "3,3"
    pf1b = ""
    pf1 = ""
    pfshare = 16
    g3end = "40,1"
    hpub = "38,45,50"
    hchk = "43,51,55"
    hiss = "43,44,46,47,49,50,52,53,55"
    hdelay = ""
    pubA = 69; chkA = 81; pubF = 81; tailpoll = 1
    ldst = "81,81,81,81,81"
    publag = 5; polllead = 3; backoff = 4
    clr_stage = 5; arr_stage = 12; cchk = 37
    nohst = False; h_flags = "sc1"; hl_flags = "sc1"; nohld = False; hrate = 2; nopoll = False; nopub = False; noload = False; nostore = False
cfg = Cfg()
def I(x): return int(x)
def IL(x): return [int(v) for v in str(x).split(",") if v != ""]

PART_BYTES = 32*72*8*1024
HX = PART_BYTES
FLG = HX + 256*9*8192
WS_BYTES = FLG + 16*64*256
OOB = 0x40000000
SPIN = 30000

S_X, S_W1, S_B1, S_W2, S_B2, S_OUT, S_DBG, S_WS = 4, 6, 8, 10, 12, 14, 16, 18
R_X, R_W1, R_W2, R_WS, R_B1 = 20, 24, 28, 32, 36
R_DBG = 36
R_B2, R_OUT = 4, 8
sW, sRG, sMT, sFS, sD0, sS0 = 40, 41, 42, 43, 44, 45
sXo, sW1d, sW1s, sLx, sLw, sT0, sT1, sGB = 46, 47, 48, 49, 50, 51, 52, 53
sPC, sE = 54, 55
sW2, sC3, sPc, sCo, sDt = 56, 68, 71, 76, 80
sHXw, sHXr, sCnt, sHfW, sHfR, sTgt8, sTgt1, sClr = 82, 83, 84, 85, 86, 87, 88, 89
sE2, sPF, sP8, sSpin, sOutM, sOut8, sMask = 90, 91, 92, 93, 94, 95, 3
sU0, sU1 = 96, 97
vLane, vL16 = 1, 2
vX0, vX1, vW1d, vW1s, vW2 = 3, 4, 5, 6, 7
vW1dR, vW1sR, vW2R = 8, 11, 14
vHW, vHW8 = 20, 21
vHB = (22, 23, 25)
vBias, vBiasS, vEXW, vEXR, vGA, vTmp, vTmp2, vDummy = 24, 25, 26, 27, 28, 29, 30, 31
vXR = 32
vP8off, vOutM, vB2m, vOut8, vB28 = 40, 41, 42, 44, 45
vW2c, vW2cR = 47, 8
vSec, vPF = 46, 47
vT, vP, vWF = 48, 56, 64
vS = (80, 96)
vXF = 112
vStamp = 0
vOne, vFv, vPoll = vX0, vX1, 12

NBLK, HB = 20, 10
HBASE, BIAS, EXB, XWIN0 = HB*8192, 19*8192, 18*8192, 7*8192

class St: pass
def build_stages():
    st = []
    for j in range(4):
        for s in range(9):
            a = St(); a.kind = "d"; a.j = j; a.s = s; a.nm = 4; st.append(a)
    for i in range(5):
        a = St(); a.kind = "s"; a.i = i; a.nm = 4 if i < 4 else 2; a.rowbase = 128*i if i < 4 else 448; st.append(a)
    KB = {"o": 0, "r": 9}
    def dbl(pos, t, i=0):
        a = St(); a.kind = "b"; a.sub = "d"; a.pos = pos; a.t = t; a.i = i
        ks = (8, 17) if t == "m" else (KB[t]+2*i, KB[t]+2*i+1)
        a.parts = [(pos, dl, ks[kk], None, kk) for dl in range(2) for kk in range(2)]
        a.order = [(2*(q//4) + q % 2, (q//2) % 2) for q in range(8)]
        return a
    def sgl(t, i=0):
        a = St(); a.kind = "b"; a.sub = "c"; a.pos = 0; a.t = t; a.i = i
        ks = (8, 17) if t == "m" else [KB[t]+4*i+q for q in range(4)]
        a.parts = [(0, 0, k, None, q) for q, k in enumerate(ks)]
        a.order = [(2*(q//4) + q % 2, (q//2) % 2) for q in range(2*len(ks))]
        return a
    st += [dbl(1, "o", i) for i in range(4)] + [sgl("o", 0), sgl("o", 1)] + [dbl(2, "o", i) for i in range(4)]
    st += [dbl(1, "r", 0), dbl(2, "r", 0), dbl(1, "r", 1), dbl(2, "r", 1), sgl("r", 0), dbl(1, "r", 2), dbl(2, "r", 2)]
    st += [dbl(1, "r", 3), dbl(2, "r", 3), sgl("r", 1), dbl(1, "m"), dbl(2, "m"), sgl("m")]
    blocks = [("o", i) for i in range(4)] + [("r", i) for i in range(4)] + [("m", 0)]
    st += [dbl(3, t, i) for t, i in blocks]
    L0 = len(st)
    fr = []
    for dl in range(2):
        for bi, (t, i) in enumerate(blocks):
            ks = (8, 17) if t == "m" else (KB[t]+2*i, KB[t]+2*i+1)
            fr += [(4, dl, ks[0], L0+bi, 0), (4, dl, ks[1], L0+bi, 1)]
    for gi in range(9):
        a = St(); a.kind = "b"; a.sub = "d"; a.pos = 4; a.t, a.i = blocks[gi]; a.parts = fr[4*gi:4*gi+4]
        a.order = [(2*(q//4) + q % 2, (q//2) % 2) for q in range(8)]
        st.append(a)
    for n, a in enumerate(st):
        a.n = n
        if a.kind == "b":
            a.nm = len(a.order)
            a.parts = [(p, d, k, (n if u is None else u), sl) for (p, d, k, u, sl) in a.parts]
    return st, L0
ST, LAST0 = build_stages()
NST = len(ST)
B0 = 41
HWSTAGE = {0: 9+3, 1: 18+3, 2: 27+3, 3: 36+1}
FIRSTUSE = {}
for a_ in ST[B0:]:
    for (p_, d_, k_, u_, s_) in a_.parts: FIRSTUSE.setdefault(k_, a_.n)
HREAD = {0: 37, 1: 37, 2: 38, 3: 38, 4: 39, 5: 39, 6: B0+1, 7: B0+1, 8: B0+6}
for k_ in range(9, 18): HREAD[k_] = FIRSTUSE[k_] - 2
HFREE_OWN = {k: HREAD[k] + 2 for k in range(9)}

def plan():
    BAR = set()
    for n in range(NST):
        if n >= LAST0:
            if n in IL(cfg.lastbar): BAR.add(n)
        elif n < 9 or 35 <= n <= 64: BAR.add(n)
        elif n < 35:
            if (n - 9) % I(cfg.barA) == 0: BAR.add(n)
        elif (LAST0 - 1 - n) % I(cfg.barB) == 0: BAR.add(n)
    bars = sorted(BAR)
    def first_read(u):
        if u[0] == "h": return HREAD[u[1]]
        return LAST0 - 1 if (u[0] == "w" and u[1] >= LAST0) else u[1] - 1
    def last_use(u):
        if u[0] == "h": return HREAD[u[1]] + 1
        return NST if (u[0] == "w" and u[1] >= LAST0) else u[1]
    res = {HB+k: (HWSTAGE[k//2], HFREE_OWN[k]) for k in range(8)}
    res[HB+8] = (B0, HFREE_OWN[8]); res[19] = (-99, B0+2)
    units = []
    for n in range(NST):
        if n < 9: units.append(("x", n))
        units.append(("w", n))
    hc = IL(cfg.hchk)
    hq = [(("h", k), IL(cfg.hiss)[k-9]) for k in range(9, 18)]
    for (u, b) in hq: assert b >= (hc[0] if u[1] < 15 else (hc[1] if u[1] < 17 else hc[2]))
    allunits = units + [u for u, _ in hq]
    busy = {}; issue = {}; blk = {}; land = {}
    ui = 0
    def freebar(u):
        c = [b for b in bars if b >= last_use(u)+1]
        return c[0] if c else 10**6
    def ok(b, u, bar):
        if b in busy: return False
        if b in res:
            a0, a1 = res[b]
            lb = max([x for x in [-3, -2, -1]+bars if x <= a0] or [-99])
            if not (freebar(u) <= lb or bar >= a1): return False
        return True
    for bar in [-3, -2, -1] + bars:
        for b in [b for b, u in busy.items() if freebar(u) <= bar]: del busy[b]
        lst = []
        nxt = min([b for b in bars if b > bar] or [NST])
        cap = 2*(nxt - bar) if bar >= 0 else 99
        if bar == -3: horizon = I(cfg.g0) - 1
        elif bar == -2: horizon = I(cfg.g1) - 1
        elif bar < 4: horizon = bar + I(cfg.look0)
        elif bar < B0 - 6: horizon = nxt - 1 + I(cfg.lookA)
        else: horizon = nxt - 1 + I(cfg.lookB)
        nh = 0
        while hq and hq[0][1] <= bar and nh < I(cfg.hrate):
            u = hq[0][0]; c = [b for b in range(NBLK) if ok(b, u, bar)]
            if not c: break
            busy[c[0]] = u; blk[u] = c[0]; lst.append(u); hq.pop(0); nh += 1
        while ui < len(units):
            u = units[ui]; kind, m = u
            if min(m, LAST0) > horizon: break
            if hq and hq[0][1] <= bar + 1 and m > bar + 5: break
            if kind == "x":
                c = [b for b in range(7, 18, 2) if ok(b, u, bar) and ok(b+1, u, bar)]
                if not c: break
                b = c[0]; busy[b] = u; busy[b+1] = u
            else:
                c = [b for b in range(NBLK) if ok(b, u, bar)]
                if any(k == "x" for k, _ in units[ui:]): c = [b for b in c if b < 7]
                if not c: break
                b = c[0]; busy[b] = u
            blk[u] = b; lst.append(u); ui += 1
            if len([x for x in lst if x[0] == "w"]) >= cap: break
        issue[bar] = lst
    assert ui == len(units) and not hq
    for u in allunits:
        lb = max(b for b in [-1]+bars if b <= first_read(u))
        land.setdefault(lb, []).append(u)
        ib = [bar for bar, l in issue.items() if u in l][0]
        assert ib < lb, (u, ib, lb)
    return BAR, issue, blk, land

def win(a): return a // 65536, a % 65536

NSTAMP = 16
def snames(): return cfg.stamps.split(",") if isinstance(cfg.stamps, str) else []
def stamp(s, name):
    if name not in snames(): return
    s.wait_all(v=False)
    s.salu("s_memtime s[100:101]" if cfg.cyc else "s_memrealtime s[100:101]")
    s.wait_all(v=False)
    s.valu(f"v_writelane_b32 v{vStamp}, s100, {snames().index(name)+1}", wr=[vStamp])
def stamp_flush(s):
    if not cfg.stamps: return
    s.salu(f"s_lshl_b32 s{sT0}, s2, 3"); s.salu(f"s_add_u32 s{sT0}, s{sT0}, s{sW}"); s.salu(f"s_mul_i32 s{sT0}, s{sT0}, {4*NSTAMP}")
    s.salu(f"s_add_u32 s{sT0}, s{sT0}, {128<<20}")
    s.salu(f"s_mov_b32 s{R_WS+2}, 0x10000000")
    s.valu(f"v_lshlrev_b32 v{vTmp}, 2, v{vLane}", wr=[vTmp], rd=[vLane])
    s.valu(f"v_cmp_gt_u32 vcc, {NSTAMP}, v{vLane}", rd=[vLane], swr=["vcc"])
    s.valu(f"v_mov_b32 v{vTmp2}, {OOB}", wr=[vTmp2])
    s.salu("s_nop 1")
    s.valu(f"v_cndmask_b32 v{vTmp}, v{vTmp2}, v{vTmp}, vcc", wr=[vTmp], rd=[vTmp, vTmp2])
    s.vstore("buffer_store_dword", vStamp, 1, vTmp, R_WS, f"s{sT0}")

def srd(s, r, base, size):
    if r != base:
        s.salu(f"s_mov_b32 s{r}, s{base}"); s.salu(f"s_mov_b32 s{r+1}, s{base+1}")
    s.salu(f"s_mov_b32 s{r+2}, {size}"); s.salu(f"s_mov_b32 s{r+3}, 0x20000")

class Ops:
    def __init__(self, s): self.s = s
    def V(self, text, wr=(), rd=(), **k): self.s.valu(text, wr=wr, rd=rd, **k)
    def S(self, text, **k): self.s.salu(text, **k)

def prologue(p):
    o = Ops(p); V, S = o.V, o.S
    S("s_cmp_ge_u32 s2, 256"); S("s_cbranch_scc1 L_main_end")
    if cfg.stamps: S("s_memtime s[98:99]" if cfg.cyc else "s_memrealtime s[98:99]")
    S("s_load_dwordx16 s[4:19], s[0:1], 0")
    L = vLane; a, b = vTmp, vTmp2
    V(f"v_lshrrev_b32 v{a}, 6, v0", [a]); V(f"v_and_b32 v{L}, 63, v0", [L])
    V(f"v_readfirstlane_b32 s{sW}, v{a}", rd=[a], swr=[sW])
    S(f"s_and_b32 s{sT0}, s2, 7"); S(f"s_lshr_b32 s{sT1}, s2, 3")
    S(f"s_and_b32 s{sMT}, s{sT0}, 1"); S(f"s_lshl_b32 s{sMT}, s{sMT}, 3")
    S(f"s_lshr_b32 s{sFS}, s{sT1}, 2"); S(f"s_add_u32 s{sMT}, s{sMT}, s{sFS}")
    S(f"s_lshr_b32 s{sFS}, s{sT0}, 1"); S(f"s_lshl_b32 s{sFS}, s{sFS}, 2")
    S(f"s_and_b32 s{sT1}, s{sT1}, 3"); S(f"s_add_u32 s{sFS}, s{sFS}, s{sT1}")
    S(f"s_and_b32 s{sRG}, s{sW}, 3", srd=[sW])
    S(f"s_and_b32 s{sE}, s{sFS}, 1"); S(f"s_lshl_b32 s{sD0}, s{sE}, 5")
    S(f"s_lshl_b32 s{sT0}, s{sMT}, 7"); S(f"s_lshl_b32 s{sT1}, s{sRG}, 5"); S(f"s_add_u32 s{sT0}, s{sT0}, s{sT1}")
    S(f"s_mul_i32 s{sXo}, s{sT0}, 1152")
    S(f"s_lshl_b32 s{sLx}, s{sRG}, 12"); S(f"s_lshl_b32 s{sLw}, s{sRG}, 11")
    S(f"s_mul_i32 s{sU0}, s{sFS}, 576")
    S(f"s_mul_i32 s{sT1}, s{sRG}, {16*9216}"); S(f"s_add_u32 s{sW1d}, s{sU0}, s{sT1}")
    S(f"s_lshl_b32 s{sT1}, s{sD0}, 1"); S(f"s_add_u32 s{sW1d}, s{sW1d}, s{sT1}")
    V(f"v_lshrrev_b32 v{a}, 3, v{L}", [a], [L])
    V(f"v_mul_u32_u24 v{vX0}, 1152, v{a}", [vX0], [a])
    V(f"v_mul_u32_u24 v{vW1d}, 9216, v{a}", [vW1d], [a])
    V(f"v_mov_b32 v{vW2}, v{vX0}", [vW2], [vX0])
    V(f"v_lshrrev_b32 v{a}, 4, v{L}", [a], [L])
    V(f"v_and_b32 v{b}, 7, v{L}", [b], [L])
    V(f"v_xor_b32 v{vX1}, v{a}, v{b}", [vX1], [a, b])
    V(f"v_lshl_add_u32 v{vX0}, v{vX1}, 4, v{vX0}", [vX0], [vX1, vX0])
    V(f"v_xor_b32 v{vX1}, 64, v{vX0}", [vX1], [vX0])
    V(f"v_add_u32 v{vX1}, {9216-1024}, v{vX1}", [vX1], [vX1])
    V(f"v_and_b32 v{a}, 1, v{a}", [a], [a]); V(f"v_lshlrev_b32 v{a}, 2, v{a}", [a], [a])
    V(f"v_xor_b32 v{b}, v{a}, v{b}", [b], [a, b])
    V(f"v_lshl_add_u32 v{vW1d}, v{b}, 4, v{vW1d}", [vW1d], [b, vW1d])
    V(f"v_lshlrev_b32 v{vBias}, 1, v0", [vBias])
    p.wait_all(v=False)
    srd(p, R_X, S_X, M*D*2); srd(p, R_W1, S_W1, D*F*2)

def dma2(s, voff, r, soff, second):
    t = s.dma(voff, r, soff, {R_X: cfg.fl_x, R_W1: cfg.fl_w1, R_W2: cfg.fl_w2, R_WS: cfg.hl_flags}[r])
    if second: s.ins[-1].text = s.ins[-1].text.replace(" offen", " offen offset:1024")
    return t

class Issuer:
    def __init__(self, s, half, BLK, utok): self.s, self.half, self.BLK, self.utok = s, half, BLK, utok; self.sec = None
    def pieces(self, u):
        s, half = self.s, self.half
        kind, m = u; b = self.BLK[u]; out = []
        if kind == "x":
            def first():
                s.salu(f"s_add_u32 m0, s{sLx}, {b*8192 + half*2048}", swr=["m0"])
                s.salu(f"s_add_u32 s{sT0}, s{sXo}, {16*half*1152 + m*128}")
                self.utok[u] = dma2(s, vX0, R_X, f"s{sT0}", False)
            def second(): self.utok[u] = dma2(s, vX1, R_X, f"s{sT0}", True)
            return [first, second]
        if kind == "h":
            if half != 1: return []
            def first():
                s.salu(f"s_add_u32 m0, s{sLw}, {b*8192}", swr=["m0"])
                s.salu(f"s_add_u32 s{sT0}, s{sHXr}, {(m-9)*8192}" if not cfg.nohld else f"s_mov_b32 s{sT0}, {OOB}")
                self.utok[u] = dma2(s, vL16, R_WS, f"s{sT0}", False)
            def second(): self.utok[u] = dma2(s, vL16, R_WS, f"s{sT0}", True)
            return [first, second]
        a = ST[m]
        if m < 9:
            def one():
                s.salu(f"s_add_u32 m0, s{sLw}, {b*8192 + half*1024}", swr=["m0"])
                s.salu(f"s_add_u32 s{sT0}, s{sW1d}, {(64*a.s + 8*half)*9216}")
                self.utok[u] = dma2(s, vW1d, R_W1, f"s{sT0}", False)
            return [one]
        if half != 0: return []
        if a.kind == "d": v, r, base, imm, step = vW1d, R_W1, sW1d, 64*a.s*9216 + a.j*128, 8*9216
        elif a.kind == "s": v, r, base, imm, step = vW1s, R_W1, sW1s, a.rowbase*9216, 16*9216
        elif a.sub == "d": v, r, base, imm, step = vW2, R_W2, sW2 + 4*"orm".index(a.t) + a.pos-1, 64*a.i*1152, 8*1152
        else: v, r, base, imm, step = vW2c, R_W2, sC3 + "orm".index(a.t), 128*a.i*1152, 16*1152
        def first():
            if self.sec != v:
                s.valu(f"v_add_u32 v{vSec}, {step-1024}, v{v}", wr=[vSec], rd=[v]); self.sec = v
            s.salu(f"s_add_u32 m0, s{sLw}, {b*8192}", swr=["m0"])
            if imm: s.salu(f"s_add_u32 s{sT0}, s{base}, {imm}")
            else: s.salu("s_nop 0")
            self.so = f"s{sT0}" if imm else f"s{base}"
            self.utok[u] = dma2(s, v, r, self.so, False)
        def second(): self.utok[u] = dma2(s, vSec, r, self.so, True)
        return [first, second]

def setup_main(s, half):
    o = Ops(s); V, S = o.V, o.S
    L = vLane; a, b = vTmp, vTmp2; ch = half
    r, c8, t, hh = vT, vT+1, vT+2, vT+3
    srd(s, R_B1, S_B1, F*2)
    tokb = s.vload("buffer_load_ushort", vBiasS, 1, vBias, R_B1, f"s{sU0}")
    V(f"v_bfe_u32 v{r}, v{L}, 2, 2", [r], [L]); V(f"v_and_b32 v{c8}, 3, v{L}", [c8], [L]); V(f"v_lshlrev_b32 v{c8}, 3, v{c8}", [c8], [c8])
    V(f"v_lshrrev_b32 v{hh}, 5, v{L}", [hh], [L])
    V(f"v_lshl_add_u32 v{t}, v{hh}, 3, v{r}", [t], [hh, r])
    V(f"v_bfe_u32 v{b}, v{L}, 4, 1", [b], [L]); V(f"v_lshl_add_u32 v{b}, v{b}, 5, v{c8}", [b], [b, c8])
    V(f"v_lshl_add_u32 v{vW1sR}, v{t}, 6, v{b}", [vW1sR], [t, b])
    V(f"v_lshl_add_u32 v{vW1dR}, v{t}, 7, v{b}", [vW1dR], [t, b])
    V(f"v_lshrrev_b32 v{t}, 1, v{r}", [t], [r])
    if ch: V(f"v_xor_b32 v{t}, 1, v{t}", [t], [t])
    V(f"v_lshl_add_u32 v{vW1dR}, v{t}, 6, v{vW1dR}", [vW1dR], [t, vW1dR])
    for k in (1, 2):
        V(f"v_add_u32 v{vW1dR+k}, {65536*k}, v{vW1dR}", [vW1dR+k], [vW1dR]); V(f"v_add_u32 v{vW1sR+k}, {65536*k}, v{vW1sR}", [vW1sR+k], [vW1sR])
    V(f"v_and_b32 v{b}, 31, v{L}", [b], [L]); V(f"v_bfe_u32 v{t}, v{L}, 1, 3", [t], [L])
    V(f"v_xor_b32 v{t}, v{t}, v{hh}", [t], [t, hh]); V(f"v_lshlrev_b32 v{t}, 4, v{t}", [t], [t])
    V(f"v_lshl_add_u32 v{t}, v{b}, 7, v{t}", [t], [b, t]); V(f"v_add_u32 v{t}, s{sLx}, v{t}", [t], [t])
    for sp in range(4):
        V(f"v_xor_b32 v{vXR+sp}, {32*sp}, v{t}", [vXR+sp], [t])
        V(f"v_add_u32 v{vXR+4+sp}, {XWIN0+65536}, v{vXR+sp}", [vXR+4+sp], [vXR+sp])
        V(f"v_add_u32 v{vXR+sp}, {XWIN0}, v{vXR+sp}", [vXR+sp], [vXR+sp])
    V(f"v_lshlrev_b32 v{vL16}, 4, v{L}", [vL16], [L])
    V(f"v_mov_b32 v{vGA}, 0x{f2u(GA):08x}", [vGA]); S(f"s_mov_b32 s{sGB}, 0x{f2u(GB):08x}")
    S(f"s_lshr_b32 s{sPC}, s{sFS}, 2"); S(f"s_bfe_u32 s{sE2}, s{sFS}, 0x10001"); S(f"s_xor_b32 s{sT1}, s{sE}, 1"); S(f"s_lshl_b32 s{sS0}, s{sT1}, 8")
    if half == 0:
        S(f"s_mul_i32 s{sT1}, s{sRG}, {32*9216}"); S(f"s_add_u32 s{sW1s}, s{sU0}, s{sT1}")
        S(f"s_lshl_b32 s{sT1}, s{sS0}, 1"); S(f"s_add_u32 s{sW1s}, s{sW1s}, s{sT1}")
        V(f"v_lshrrev_b32 v{a}, 2, v{L}", [a], [L]); V(f"v_mul_u32_u24 v{vW1s}, 9216, v{a}", [vW1s], [a])
        V(f"v_lshl_add_u32 v{vW1s}, v{c8}, 1, v{vW1s}", [vW1s], [c8, vW1s])
        V(f"v_bfe_u32 v{a}, v{L}, 1, 2", [a], [L]); V(f"v_lshrrev_b32 v{b}, 4, v{L}", [b], [L]); V(f"v_xor_b32 v{a}, v{a}, v{b}", [a], [a, b])
        V(f"v_lshl_add_u32 v{vW2}, v{a}, 5, v{vW2}", [vW2], [a, vW2])
        V(f"v_and_b32 v{a}, 1, v{L}", [a], [L]); V(f"v_lshl_add_u32 v{vW2}, v{a}, 4, v{vW2}", [vW2], [a, vW2])
        V(f"v_lshrrev_b32 v{t}, 2, v{L}", [t], [L]); V(f"v_mul_u32_u24 v{vW2c}, 1152, v{t}", [vW2c], [t])
        V(f"v_lshl_add_u32 v{vW2c}, v{a}, 4, v{vW2c}", [vW2c], [a, vW2c])
        V(f"v_lshrrev_b32 v{a}, 1, v{L}", [a], [L]); V(f"v_xor_b32 v{a}, v{a}, v{b}", [a], [a, b]); V(f"v_and_b32 v{a}, 1, v{a}", [a], [a])
        V(f"v_lshl_add_u32 v{vW2c}, v{a}, 5, v{vW2c}", [vW2c], [a, vW2c])
    V(f"v_and_b32 v{a}, 15, v{L}", [a], [L]); V(f"v_mul_u32_u24 v{vOutM}, 1152, v{a}", [vOutM], [a])
    V(f"v_lshlrev_b32 v{vHW}, 4, v{a}", [vHW], [a])
    V(f"v_bfe_u32 v{a}, v{L}, 4, 1", [a], [L]); V(f"v_lshl_add_u32 v{vHW}, v{a}, 10, v{vHW}", [vHW], [a, vHW])
    V(f"v_lshl_add_u32 v{vHW}, v{hh}, 8, v{vHW}", [vHW], [hh, vHW]); V(f"v_add_u32 v{vHW}, s{sLw}, v{vHW}", [vHW], [vHW])
    V(f"v_add_u32 v{vHW8}, {HBASE + 8*8192 + ch*512}, v{vHW}", [vHW8], [vHW]); V(f"v_add_u32 v{vHW}, {HBASE + ch*8192}, v{vHW}", [vHW], [vHW])
    V(f"v_add_u32 v{vHB[0]}, s{sLw}, v{vL16}", [vHB[0]], [vL16])
    V(f"v_add_u32 v{vEXW}, {EXB + ch*8192}, v{vHB[0]}", [vEXW], [vHB[0]]); V(f"v_add_u32 v{vEXR}, {EXB + (1-ch)*8192}, v{vHB[0]}", [vEXR], [vHB[0]])
    V(f"v_add_u32 v{vHB[1]}, 65536, v{vHB[0]}", [vHB[1]], [vHB[0]])
    V(f"v_bfe_u32 v{a}, v{L}, 2, 3", [a], [L]); V(f"v_lshl_add_u32 v{b}, v{hh}, 4, v{a}", [b], [a, hh])
    V(f"v_lshl_add_u32 v{vW2R}, v{b}, 7, v{c8}", [vW2R], [b, c8])
    V(f"v_lshrrev_b32 v{a}, 1, v{a}", [a], [a]); V(f"v_xor_b32 v{a}, {2*ch+1}, v{a}", [a], [a]); V(f"v_xor_b32 v{a}, s{sE2}, v{a}", [a], [a])
    V(f"v_lshl_add_u32 v{vW2R}, v{a}, 5, v{vW2R}", [vW2R], [a, vW2R]); V(f"v_xor_b32 v{vW2R+3}, 32, v{vW2R}", [vW2R+3], [vW2R])
    for dl in range(2):
        for k in (1, 2): V(f"v_add_u32 v{vW2R+3*dl+k}, {65536*k}, v{vW2R+3*dl}", [vW2R+3*dl+k], [vW2R+3*dl])
    t0, t1, t2 = sU0, sU1, sSpin
    srd(s, R_W2, S_W2, F*D*2); srd(s, R_WS, S_WS, WS_BYTES)
    srd(s, R_B2, S_B2, D*2); srd(s, R_OUT, S_OUT, M*D*2)
    t3 = sP8
    for k in range(1, 4): S(f"s_add_u32 s{sPc+k}, s{sPC}, {k}"); S(f"s_and_b32 s{sPc+k}, s{sPc+k}, 3")
    S(f"s_mov_b32 s{sPc+4}, s{sPC}")
    S(f"s_lshr_b32 s{sClr}, s{sFS}, 1")
    if half == 0:
        S(f"s_mul_i32 s{t0}, s{sClr}, 576")
        S(f"s_mul_i32 s{t3}, s{sE}, 640")
        for ti in range(3):
            if ti == 0: S(f"s_mul_i32 s{t1}, s{sE}, 320")
            elif ti == 1: S(f"s_xor_b32 s{t1}, s{sE}, 1"); S(f"s_mul_i32 s{t1}, s{t1}, 320")
            if ti < 2:
                S(f"s_add_u32 s{t1}, s{t1}, s{t0}")
                S(f"s_lshl_b32 s{t2}, s{sRG}, 5"); S(f"s_add_u32 s{t2}, s{t2}, s{t1}"); S(f"s_mul_i32 s{sC3+ti}, s{t2}, 1152")
                S(f"s_lshl_b32 s{t2}, s{sRG}, 4"); S(f"s_add_u32 s{t1}, s{t1}, s{t2}")
            else:
                S(f"s_and_b32 s{t1}, s{sRG}, 1"); S(f"s_xor_b32 s{t2}, s{t1}, s{sE}"); S(f"s_lshl_b32 s{t2}, s{t2}, 5")
                S(f"s_add_u32 s{t2}, s{t2}, s{t0}"); S(f"s_add_u32 s{t2}, s{t2}, 256"); S(f"s_mul_i32 s{sC3+ti}, s{t2}, 1152")
                S(f"s_lshl_b32 s{t1}, s{t1}, 4"); S(f"s_lshr_b32 s{t2}, s{sRG}, 1"); S(f"s_xor_b32 s{t2}, s{t2}, s{sE}"); S(f"s_lshl_b32 s{t2}, s{t2}, 5")
                S(f"s_add_u32 s{t1}, s{t1}, s{t2}"); S(f"s_add_u32 s{t1}, s{t1}, s{t0}"); S(f"s_add_u32 s{t1}, s{t1}, 256")
            S(f"s_mul_i32 s{t1}, s{t1}, 1152"); S(f"s_add_u32 s{t1}, s{t1}, s{t3}")
            for pos in range(1, 5): S(f"s_lshl_b32 s{t2}, s{sPc+pos}, 7"); S(f"s_add_u32 s{sW2+4*ti+pos-1}, s{t1}, s{t2}")
        S(f"s_lshl_b32 s{t2}, s{sE}, 6"); S(f"s_add_u32 s{t2}, s{t2}, 512")
        for ti in range(3): S(f"s_add_u32 s{sC3+ti}, s{sC3+ti}, s{t2}")
    S(f"s_lshl_b32 s{t0}, s{sMT}, 1"); S(f"s_add_u32 s{t0}, s{t0}, s{sE}"); S(f"s_mul_i32 s{t0}, s{t0}, 72")
    S(f"s_lshl_b32 s{t3}, s{sClr}, 10")
    S(f"s_add_u32 s{t1}, s{t0}, s{sW}"); S(f"s_add_u32 s{t2}, s{t1}, 64"); S(f"s_lshl_b32 s{t2}, s{t2}, 13"); S(f"s_add_u32 s{sPc}, s{t2}, s{t3}")
    S(f"s_add_u32 s{t1}, s{t1}, s{sW}")
    S(f"s_lshl_b32 s{t2}, s{t1}, 13"); S(f"s_add_u32 s{t2}, s{t2}, s{t3}")
    for pos in range(1, 5): S(f"s_lshl_b32 s{sPc+pos}, s{sPc+pos}, 17"); S(f"s_add_u32 s{sPc+pos}, s{sPc+pos}, s{t2}")
    S(f"s_lshl_b32 s{sDt+1}, s{sE2}, 13"); S(f"s_xor_b32 s{sDt}, s{sDt+1}, 8192")
    S(f"s_lshl_b32 s{t2}, s{sPC}, 4"); S(f"s_add_u32 s{t1}, s{t1}, s{t2}"); S(f"s_add_u32 s{t1}, s{t1}, s{sE2}"); S(f"s_lshl_b32 s{t1}, s{t1}, 13")
    for k in range(1, 4):
        S(f"s_sub_u32 s{t2}, s{sPC}, {k}"); S(f"s_and_b32 s{t2}, s{t2}, 3"); S(f"s_lshl_b32 s{t2}, s{t2}, 11"); S(f"s_add_u32 s{sCo+k}, s{t1}, s{t2}")
    S(f"s_xor_b32 s{t2}, s{t3}, 1024"); S(f"s_add_u32 s{sCo}, s{t1}, s{t2}")
    S(f"s_add_u32 s{t0}, s{t0}, s{sClr}"); S(f"s_add_u32 s{t0}, s{t0}, 64"); S(f"s_lshl_b32 s{sP8}, s{t0}, 13")
    S(f"s_lshl_b32 s{t0}, s{sMT}, 4"); S(f"s_add_u32 s{t0}, s{t0}, s{sFS}"); S(f"s_xor_b32 s{t1}, s{t0}, 1")
    S(f"s_mul_i32 s{t0}, s{t0}, {9*8192}"); S(f"s_add_u32 s{sHXw}, s{t0}, {HX - HBASE}")
    S(f"s_mul_i32 s{t1}, s{t1}, {9*8192}"); S(f"s_add_u32 s{t1}, s{t1}, {HX}"); S(f"s_add_u32 s{sHXr}, s{t1}, s{sLw}")
    if cfg.noload:
        for k in range(4): S(f"s_mov_b32 s{sCo+k}, {OOB}")
        S(f"s_mov_b32 s{sP8}, {OOB}")
    S(f"s_mov_b32 s{sMask}, 0xffff0000")
    if half == 1:
        S(f"s_lshl_b32 s{t0}, s{sMT}, 14"); S(f"s_add_u32 s{t0}, s{t0}, {FLG}")
        S(f"s_cmp_eq_u32 s{sW}, 4"); S(f"s_cselect_b32 s{t0}, s{t0}, {OOB}"); S(f"s_cselect_b32 s{sTgt8}, 8, 0"); S(f"s_cselect_b32 s{sTgt1}, 1, 0")
        S(f"s_lshl_b32 s{t1}, s{sE}, 10"); S(f"s_add_u32 s{sCnt}, s{t0}, s{t1}")
        S(f"s_mul_i32 s{t1}, s{sFS}, 768"); S(f"s_add_u32 s{t1}, s{t1}, 4096"); S(f"s_add_u32 s{sHfR}, s{t0}, s{t1}")
        S(f"s_xor_b32 s{t1}, s{sFS}, 1"); S(f"s_mul_i32 s{t1}, s{t1}, 768"); S(f"s_add_u32 s{t1}, s{t1}, 4096"); S(f"s_add_u32 s{sHfW}, s{t0}, s{t1}")
        S(f"s_cmp_eq_u32 s{sFS}, 0"); S(f"s_cselect_b32 s{sT1}, s{t0}, {OOB}")
        if cfg.pf:
            nl = IL(cfg.pf)[2]; sh = I(cfg.pfshare); per = 2592//(sh*4) + (1 if 2592 % (sh*4) else 0)
            S(f"s_and_b32 s{t0}, s{sMT}, {sh-1}"); S(f"s_lshl_b32 s{t0}, s{t0}, 2"); S(f"s_add_u32 s{t0}, s{t0}, s{sRG}")
            S(f"s_mul_i32 s{t0}, s{t0}, {per*128}"); S(f"s_mul_i32 s{t1}, s{sFS}, {288*1152}"); S(f"s_add_u32 s{sPF}, s{t0}, s{t1}")
            if cfg.pf1b:
                nlr = IL(cfg.pf1b)[2]
                V(f"v_mul_u32_u24 v{a}, {-(-65536//nlr)}, v{L}", [a], [L]); V(f"v_lshrrev_b32 v{a}, 16, v{a}", [a], [a])
                V(f"v_mul_u32_u24 v{b}, {nlr}, v{a}", [b], [a]); V(f"v_sub_u32 v{b}, v{L}, v{b}", [b], [L, b])
                V(f"v_add_u32 v{b}, {5-nlr}, v{b}", [b], [b]); V(f"v_add_u32 v{b}, s{sE}, v{b}", [b], [b])
                V(f"v_cmp_eq_u32 vcc, 5, v{b}", rd=[b], swr=["vcc"]); V(f"v_mul_u32_u24 v{a}, 9216, v{a}", [a], [a]); S("s_nop 0")
                V(f"v_cndmask_b32 v{b}, v{b}, 0, vcc", [b], [b])
                V(f"v_lshl_add_u32 v{a}, v{b}, 7, v{a}", [a], [a, b])
                V(f"v_cmp_gt_u32 vcc, {3*nlr}, v{L}", rd=[L], swr=["vcc"]); V(f"v_mov_b32 v{b}, {OOB}", [b]); S("s_nop 0")
                V(f"v_cndmask_b32 v{vW1s}, v{b}, v{a}, vcc", [vW1s], [a, b])
            if cfg.pf1c:
                S(f"s_lshl_b32 s{t0}, s2, 2"); S(f"s_add_u32 s{t0}, s{t0}, s{sRG}"); S(f"s_mul_i32 s{sW1s}, s{t0}, {81*64}")
                S(f"s_and_b32 s{sW1s}, s{sW1s}, 0xffffff80")
            if cfg.pf1 or cfg.pf1b:
                S(f"s_lshl_b32 s{t0}, s{sMT}, 2"); S(f"s_add_u32 s{t0}, s{t0}, s{sRG}"); S(f"s_mul_i32 s{t0}, s{t0}, {9*9216}")
                S(f"s_mul_i32 s{t1}, s{sFS}, 576"); S(f"s_and_b32 s{t1}, s{t1}, 0xffffff80"); S(f"s_add_u32 s{sW1s}, s{t0}, s{t1}")
            V(f"v_lshlrev_b32 v{a}, 7, v{L}", [a], [L]); V(f"v_cmp_gt_u32 vcc, {nl}, v{L}", rd=[L], swr=["vcc"]); V(f"v_mov_b32 v{b}, {OOB}", [b]); S("s_nop 0")
            V(f"v_cndmask_b32 v{vPF}, v{b}, v{a}, vcc", [vPF], [a, b])
    V(f"v_lshrrev_b32 v{a}, 3, v{L}", [a], [L]); V(f"v_lshlrev_b32 v{a}, 10, v{a}", [a], [a])
    V(f"v_and_b32 v{t}, 7, v{L}", [t], [L]); V(f"v_lshl_add_u32 v{a}, v{t}, 4, v{a}", [a], [a, t])
    S(f"s_lshl_b32 s{t0}, s{sW}, 7"); V(f"v_add_u32 v{vP8off}, s{t0}, v{a}", [vP8off], [a])
    V(f"v_lshrrev_b32 v{b}, 4, v{L}", [b], [L]); V(f"v_lshlrev_b32 v{b}, 3, v{b}", [b], [b]); V(f"v_add_u32 v{vOutM}, v{vOutM}, v{b}", [vOutM], [vOutM, b])
    S(f"s_lshl_b32 s{t0}, s{sPC}, 7"); S(f"s_lshl_b32 s{t1}, s{sE2}, 5"); S(f"s_add_u32 s{t0}, s{t0}, s{t1}"); S(f"s_add_u32 s{t0}, s{t0}, {64*ch}")
    S(f"s_mul_i32 s{t1}, s{sE}, 640"); S(f"s_add_u32 s{t0}, s{t0}, s{t1}")
    S(f"s_add_u32 s{sOutM}, s{sXo}, s{t0}")
    hb0 = s.vload("buffer_load_dwordx2", vB2m, 2, b, R_B2, f"s{t0}")
    S(f"s_and_b32 s{t0}, s{sW}, 1"); S(f"s_lshl_b32 s{t0}, s{t0}, 3")
    V(f"v_add_u32 v{a}, s{t0}, v{t}", [a], [t]); V(f"v_lshl_add_u32 v{a}, v{hh}, 4, v{a}", [a], [a, hh]); V(f"v_mul_u32_u24 v{a}, 1152, v{a}", [a], [a])
    V(f"v_bfe_u32 v{b}, v{L}, 4, 1", [b], [L]); V(f"v_lshlrev_b32 v{b}, 2, v{b}", [b], [b]); V(f"v_add_u32 v{vOut8}, v{a}, v{b}", [vOut8], [a, b])
    S(f"s_lshr_b32 s{t0}, s{sClr}, 2"); S(f"s_lshl_b32 s{t0}, s{t0}, 5"); S(f"s_lshl_b32 s{t1}, s{sE}, 6"); S(f"s_add_u32 s{t0}, s{t0}, s{t1}")
    S(f"s_lshr_b32 s{t1}, s{sW}, 1"); S(f"s_lshl_b32 s{t1}, s{t1}, 3"); S(f"s_add_u32 s{t0}, s{t0}, s{t1}"); S(f"s_add_u32 s{t0}, s{t0}, 512")
    hb1 = s.vload("buffer_load_dword", vB28, 1, b, R_B2, f"s{t0}")
    S(f"s_and_b32 s{t1}, s{sClr}, 3"); S(f"s_lshl_b32 s{t1}, s{t1}, 5"); S(f"s_lshl_b32 s{sOut8}, s{sMT}, 7"); S(f"s_add_u32 s{t1}, s{t1}, s{sOut8}")
    S(f"s_mul_i32 s{t1}, s{t1}, 1152"); S(f"s_add_u32 s{sOut8}, s{t1}, s{t0}")
    V(f"v_and_b32 v{a}, 8, v{L}", [a], [L]); V(f"v_cmp_eq_u32 vcc, 0, v{a}", rd=[a], swr=["vcc"]); V(f"v_mov_b32 v{b}, {OOB}", [b]); S("s_nop 0")
    V(f"v_cndmask_b32 v{vOut8}, v{b}, v{vOut8}, vcc", [vOut8], [b, vOut8])
    if half == 1: S(f"s_mov_b32 s{sClr}, s{sT1}")
    S(f"s_lshl_b32 s{t0}, s{sD0}, 2"); S(f"s_add_u32 s{t0}, s{t0}, {BIAS + 128*ch}")
    S(f"s_lshl_b32 s{t1}, s{sS0}, 2"); S(f"s_add_u32 s{t1}, s{t1}, {BIAS}")
    V(f"v_lshlrev_b32 v{a}, 2, v0", [a]); V(f"v_add_u32 v{a}, {BIAS}, v{a}", [a], [a])
    V(f"v_lshl_add_u32 v{vBias}, v{hh}, 4, s{t0}", [vBias], [hh])
    s.wait(tokb)
    V(f"v_lshlrev_b32 v{b}, 16, v{vBiasS}", [b], [vBiasS])
    tb = s.ds_write("ds_write_b32", a, b, 1, 0)
    V(f"v_lshl_add_u32 v{vBiasS}, v{hh}, 4, s{t1}", [vBiasS], [hh])
    return tb, (hb0, hb1)

def gelu_group(s, regs, tb):
    ops = []
    T = [vT + (tb + i) % 8 for i in range(len(regs))]
    def V(text, **k): ops.append(lambda: s.valu(text, **k))
    for x, t in zip(regs, T): V(f"v_mul_f32 v{t}, v{x}, v{x}", wr=[t], rd=[x])
    for x, t in zip(regs, T): V(f"v_fma_f32 v{t}, v{t}, s{sGB}, v{vGA}", wr=[t], rd=[t, vGA])
    for x, t in zip(regs, T): V(f"v_mul_f32 v{t}, v{x}, v{t}", wr=[t], rd=[x, t])
    for x, t in zip(regs, T): V(f"v_exp_f32 v{t}, v{t}", wr=[t], rd=[t], trans=True)
    for x, t in zip(regs, T): V(f"v_add_f32 v{t}, 1.0, v{t}", wr=[t], rd=[t])
    for x, t in zip(regs, T): V(f"v_rcp_f32 v{t}, v{t}", wr=[t], rd=[t], trans=True)
    for x, t in zip(regs, T): V(f"v_mul_f32 v{x}, v{x}, v{t}", wr=[x], rd=[x, t])
    return ops
def cvt(s, d, a, b):
    return lambda: s.valu(f"v_cvt_pk_bf16_f32 v{d}, v{a}, v{b}", wr=[d], rd=[a, b])

def body(p, half, PLAN):
    BAR, ISSUE, BLK, LAND = PLAN
    s = Stream(p); ool = Stream(); ch = half
    utok = {}
    iss = Issuer(s, half, BLK, utok)
    def issue_all(bar):
        for u in ISSUE[bar]:
            for f in iss.pieces(u): f()
    issue_all(-3)
    tb, hb2 = setup_main(s, half)
    if cfg.stamps: s.valu(f"v_writelane_b32 v{vStamp}, s98, 0", wr=[vStamp])
    stamp(s, "setup")
    issue_all(-2)
    if half == 1:
        if "1" in cfg.pfpro: s.vload("buffer_load_dword", vDummy, 1, vPF, R_W1, f"s{sW1s}", flags=cfg.fl_pf)
        if "2" in cfg.pfpro: s.vload("buffer_load_dword", vDummy, 1, vPF, R_W2, f"s{sPF}", flags=cfg.fl_pf)
    if I(cfg.prio) == half: s.salu("s_setprio 1")

    xblk = lambda i: vXF + 16*i
    dead = [xblk(2*i + (1-ch)) for i in range(4)]
    used = [xblk(2*i + ch) for i in range(4)]
    Hreg = {(k, mt): dead[k//2] + (k % 2)*8 + mt*4 for k in range(8) for mt in range(2)}
    for mt in range(2): Hreg[(8, mt)] = xblk(8) + (1-ch)*8 + mt*4
    for k in range(8):
        for mt in range(2): Hreg[(9+k, mt)] = used[k//2] + (k % 2)*8 + mt*4
    for mt in range(2): Hreg[(17, mt)] = xblk(8) + ch*8 + mt*4
    accof = lambda pos: {0: vXR, 1: vS[1], 2: vS[0], 3: vS[1], 4: vS[0]}[pos]
    PK2 = vP

    fill = {}; cur = [-1]; need_bar = {}; need_mf = {}; prebar = {}
    def F(n, i, f): fill.setdefault((n, i), []).append(f)
    def spread(ops, n0, i0, n1, i1=None):
        gaps = [(n, i, 1.0 if ST[n].kind != "b" else 0.5) for n in range(n0, n1+1) for i in range(ST[n].nm)
                if not (n == n0 and i < i0) and not (n == n1 and i1 is not None and i > i1)]
        tot = sum(g[2] for g in gaps); acc = 0; k = 0
        for (n, i, w) in gaps:
            acc += w; tgt = int(round(len(ops)*acc/tot))
            while k < tgt: F(n, i, ops[k]); k += 1
    def hold(): return [None]
    def before_bar(n, h): need_bar.setdefault(min(b for b in BAR if b >= n), []).append(h)
    def before_mfma(n, i, h): need_mf.setdefault((n, i), []).append(h)

    if half == 1:
        hclr = hold()
        def clr():
            s.valu(f"v_lshlrev_b32 v{vTmp}, 8, v{vLane}", wr=[vTmp], rd=[vLane]); s.valu(f"v_mov_b32 v{vTmp2}, {OOB}", wr=[vTmp2])
            s.valu(f"v_mov_b32 v{vFv}, 0", wr=[vFv])
            hclr[0] = s.vstore("buffer_store_dword", vFv, 1, vTmp, R_WS, f"s{sClr}", flags=cfg.st_flags)
            s.valu(f"v_cmp_eq_u32 vcc, 0, v{vLane}", rd=[vLane], swr=["vcc"]); s.salu("s_nop 1")
            s.valu(f"v_cndmask_b32 v{vOne}, v{vTmp2}, v{vFv}, vcc", wr=[vOne], rd=[vTmp2, vFv])
        assert all(u[0] != "x" for b in ISSUE if b >= I(cfg.clr_stage) for u in ISSUE[b])
        F(I(cfg.clr_stage), 3, clr)
        def arrive():
            srd(s, R_DBG, S_DBG, 256)
            s.salu(f"s_lshl_b32 s{sU0}, s{sMT}, 2")
            s.salu(f"s_cmp_lg_u32 s{sW}, 4"); s.salu(f"s_cselect_b32 s{sU0}, 1024, s{sU0}")
            s.salu(f"s_cmp_lg_u32 s{sFS}, 0"); s.salu(f"s_cselect_b32 s{sU0}, 1024, s{sU0}")
            s.wait(hclr[0])
            s.valu(f"v_mov_b32 v{vFv}, 1", wr=[vFv])
            s.vstore("buffer_atomic_add", vFv, 1, vOne, R_DBG, f"s{sU0}")
        F(7 if False else I(cfg.arr_stage), 2, arrive)
        if cfg.pf and "2" not in cfg.pfpro:
            n0, n1, nl = IL(cfg.pf); sh = I(cfg.pfshare); per = -(-2592//(sh*4)); cnt = -(-per//nl)
            for q in range(cnt):
                def pf(q=q):
                    s.vload("buffer_load_dword", vDummy, 1, vPF, R_W2, f"s{sPF}", flags=cfg.fl_pf)
                    s.salu(f"s_add_u32 s{sPF}, s{sPF}, {nl*128}")
                g = q*(n1 - n0 + 1)*4//cnt
                F(n0 + g//4, g % 4, pf)
        if cfg.pf1c and "1" not in cfg.pfpro:
            n0, n1 = IL(cfg.pf1c); nl = IL(cfg.pf)[2]; cnt = -(-41//nl)
            for q in range(cnt):
                def pf1c():
                    s.vload("buffer_load_dword", vDummy, 1, vPF, R_W1, f"s{sW1s}", flags=cfg.fl_pf)
                    s.salu(f"s_add_u32 s{sW1s}, s{sW1s}, {nl*128}")
                g = q*(n1 - n0 + 1)*4//cnt
                F(n0 + g//4, g % 4, pf1c)
        if cfg.pf1b:
            n0, n1, _ = IL(cfg.pf1b)
            for q in range(3):
                def pf1b():
                    s.vload("buffer_load_dword", vDummy, 1, vW1s, R_W1, f"s{sW1s}", flags=cfg.fl_pf)
                    s.salu(f"s_add_u32 s{sW1s}, s{sW1s}, {3*9216}")
                g = q*(n1 - n0 + 1)*4//3
                F(n0 + g//4, g % 4, pf1b)
        if cfg.pf1:
            n0, n1 = IL(cfg.pf1)
            for q in range(9):
                def pf1():
                    s.vload("buffer_load_dword", vDummy, 1, vPF, R_W1, f"s{sW1s}", flags=cfg.fl_pf)
                    s.salu(f"s_add_u32 s{sW1s}, s{sW1s}, 9216")
                g = q*(n1 - n0 + 1)*4//9
                F(n0 + g//4, g % 4, pf1)

    hst = [hold(), hold(), hold()]; hst0b = hold()
    late = []
    def LV(text, wr, rd): late.append(lambda: s.valu(text, wr=wr, rd=rd))
    a_, b_ = vTmp, vTmp2
    LV(f"v_bfe_u32 v{a_}, v{vLane}, 2, 3", [a_], [vLane]); LV(f"v_lshrrev_b32 v{b_}, 5, v{vLane}", [b_], [vLane])
    LV(f"v_lshl_add_u32 v{a_}, v{b_}, 4, v{a_}", [a_], [a_, b_]); LV(f"v_and_b32 v{b_}, 3, v{vLane}", [b_], [vLane])
    LV(f"v_lshlrev_b32 v{b_}, 3, v{b_}", [b_], [b_]); LV(f"v_lshl_add_u32 v{a_}, v{a_}, 6, v{b_}", [a_], [a_, b_])
    LV(f"v_bfe_u32 v{b_}, v{vLane}, 4, 1", [b_], [vLane])
    if ch: LV(f"v_xor_b32 v{b_}, 1, v{b_}", [b_], [b_])
    LV(f"v_lshl_add_u32 v{vW2cR}, v{b_}, 5, v{a_}", [vW2cR], [a_, b_])
    for k in (1, 2): LV(f"v_add_u32 v{vW2cR+k}, {65536*k}, v{vW2cR}", [vW2cR+k], [vW2cR])
    LV(f"v_add_u32 v{vHB[2]}, 131072, v{vHB[0]}", [vHB[2]], [vHB[0]])
    for f in late: F(36, 1, f)
    for j in range(4):
        S = vS[j % 2]; ops = []
        for e in range(2):
            for g in (2*e, 2*e+1):
                ops += gelu_group(s, [S+4*g+i for i in range(4)], 4*g)
                ops.append(cvt(s, vP+2*g, S+4*g, S+4*g+1)); ops.append(cvt(s, vP+2*g+1, S+4*g+2, S+4*g+3))
            h = hold()
            def wr(h=h, e=e, j=j):
                assert cur[0] >= HWSTAGE[j], (j, cur[0])
                h[0] = s.ds_write("ds_write_b128", vHW, vP+4*e, 4, 2*j*8192 + e*512)
            ops.append(wr)
            def gw(e=e, j=j):
                s.salu(f"s_add_u32 s{sT1}, s{sHXw}, {2*j*8192 + e*512}" if not cfg.nohst else f"s_mov_b32 s{sT1}, {OOB}")
                hst[0 if j < 3 else 1][0] = s.vstore("buffer_store_dwordx4", vP+4*e, 4, vHW, R_WS, f"s{sT1}", flags=cfg.h_flags)
            if not (cfg.hdelay and j < 2): ops.append(gw)
            before_bar(min(9*(j+2), 36) if j < 3 else B0+1, h)
        if j < 3: spread(ops, 9*(j+1), 2, 9*(j+1)+7)
        else: spread(ops, 36, 2, *IL(cfg.g3end))
    if cfg.hdelay:
        n0, n1 = IL(cfg.hdelay); gaps = [(n, i) for n in range(n0, n1+1) for i in range(4)]
        for k in range(4):
            h = hold(); g = k*(len(gaps)-3)//4; R = vXR + 4*(k % 2)
            def rd(h=h, k=k, R=R):
                w_, o_ = win((HB+k)*8192 + ch*1024)
                h[0] = s.ds_read("ds_read_b128", R, 4, vHB[w_], o_)
            def st_(h=h, k=k, R=R):
                s.wait(h[0])
                s.salu(f"s_add_u32 s{sT1}, s{sHXw}, {k*8192 + HBASE + ch*1024}" if not cfg.nohst else f"s_mov_b32 s{sT1}, {OOB}")
                t = s.vstore("buffer_store_dwordx4", R, 4, vHB[0], R_WS, f"s{sT1}", flags=cfg.h_flags)
                hst0b[0] = t
            F(*gaps[g], rd); F(*gaps[g+3], st_)
        before_bar(IL(cfg.hpub)[0], hst0b)
    for j in range(1, 5):
        S = vS[j % 2]
        if j == 4 and ch == 1: continue
        for g in range(4):
            h = hold()
            def rd(h=h, g=g, j=j, S=S):
                h[0] = s.ds_read("ds_read_b128", S+4*g, 4, vBias if j < 4 else vBiasS, (j*256 if j < 4 else 0) + g*32)
            F(9*j-1, g, rd); before_mfma(9*j, 0, h)
    S = vS[0]; snd = S + 8*(1-ch); own = S + 8*ch
    for e in range(2):
        h = hold()
        def wr(h=h, e=e): h[0] = s.ds_write("ds_write_b128", vEXW, snd+4*e, 4, e*1024)
        F(B0, 3+e, wr); before_bar(B0+1, h)
    hx = []
    for e in range(2):
        h = hold(); hx.append(h)
        def rd(h=h, e=e): h[0] = s.ds_read("ds_read_b128", snd+4*e, 4, vEXR, e*1024)
        F(B0+1, 0, rd); before_bar(B0+2, h)
    ops = [lambda: s.wait(hx[0][0], hx[1][0])]
    for i in range(8):
        ops.append(lambda i=i: s.valu(f"v_add_f32 v{own+i}, v{own+i}, v{snd+i}", wr=[own+i], rd=[own+i, snd+i]))
    for g in range(2):
        ops += gelu_group(s, [own+4*g+i for i in range(4)], 4*g)
        ops.append(cvt(s, PK2+2*g, own+4*g, own+4*g+1)); ops.append(cvt(s, PK2+2*g+1, own+4*g+2, own+4*g+3))
    h = hold()
    def wr8(h=h): h[0] = s.ds_write("ds_write_b128", vHW8, PK2, 4, 0)
    def gw8(): hst[2][0] = s.vstore("buffer_store_dwordx4", PK2, 4, vHW8, R_WS, f"s{sHXw}", flags=cfg.st_flags)
    ops.append(wr8); ops.append(gw8); before_bar(B0+5, h)
    spread(ops, B0+1, 3, B0+4, 6)
    hrd = {}
    def hread(k, n, i):
        blk = HB + k if k < 9 else BLK[("h", k)]
        for mt in range(2):
            h = hold(); hrd[(k, mt)] = h
            def rd(h=h, k=k, mt=mt):
                w_, o_ = win(blk*8192 + mt*1024)
                h[0] = s.ds_read("ds_read_b128", Hreg[(k, mt)], 4, vHB[w_], o_)
            F(n, i, rd); before_bar(n+2, h)
    for k in range(18): hread(k, HREAD[k], 1 + 2*(k % 2) if ST[HREAD[k]].nm == 4 else 1 + 2*(k % 4))

    nslow = [0]
    vPollR = vSec
    def check(test, tok, reload):
        nslow[0] += 1; k = f"{half}_{nslow[0]}"
        s.wait(tok); test(s)
        s.salu(f"s_cbranch_scc1 L_slow_{k}"); s.raw(f"L_back_{k}:")
        ool.raw(f"L_slow_{k}:"); ool.salu(f"s_mov_b32 s{sSpin}, {SPIN}")
        ool.raw(f"L_spin_{k}:")
        if I(cfg.backoff): ool.salu(f"s_sleep {I(cfg.backoff)}")
        reload(ool); ool.wait_all(l=False); test(ool)
        ool.salu(f"s_cbranch_scc0 L_back_{k}")
        ool.salu(f"s_sub_u32 s{sSpin}, s{sSpin}, 1"); ool.salu(f"s_cmp_lg_u32 s{sSpin}, 0")
        ool.salu(f"s_cbranch_scc1 L_spin_{k}"); ool.salu(f"s_branch L_back_{k}")
    def below(tgt):
        def test(st):
            st.valu(f"v_readfirstlane_b32 s{sU1}, v{vPollR}", rd=[vPollR], swr=[sU1]); st.salu("s_nop 3")
            st.salu(f"s_cmp_lt_u32 s{sU1}, {tgt}")
        return test
    def poll(st, base, idx):
        if cfg.nopoll:
            st.valu(f"v_mov_b32 v{vPollR}, 16", wr=[vPollR]); return None
        return st.vload("buffer_load_dword", vPollR, 1, vOne, R_WS, f"s{base}", off=256*idx, flags=cfg.poll_flags)
    def gate(base, idx, tgt, nb, name):
        if half != 1: return
        hp = hold()
        F(nb - I(cfg.polllead), 2, lambda: hp.__setitem__(0, poll(s, base, idx)))
        def chk():
            stamp(s, f"{name}0"); check(below(f"s{tgt}"), hp[0], lambda st: poll(st, base, idx)); stamp(s, f"{name}1")
        prebar.setdefault(nb, []).append(chk)
    def publish(base, idx):
        def go():
            if half == 1 and not cfg.nopub: s.vstore("buffer_atomic_add", vFv, 1, vOne, R_WS, f"s{base}", off=256*idx)
        return go
    if half == 1:
        hc = hold()
        def ld_cnt(st):
            st.salu(f"s_lshl_b32 s{sU0}, s{sMT}, 2")
            return st.vload("buffer_load_dword", vPollR, 1, vOne, R_DBG, f"s{sU0}", flags=cfg.poll_flags)
        F(I(cfg.cchk) - 4, 2, lambda: hc.__setitem__(0, ld_cnt(s)))
        assert I(cfg.cchk) in BAR
        prebar.setdefault(I(cfg.cchk), []).append(lambda: check(below("1"), hc[0], ld_cnt))
    for lv, (pb, cb) in enumerate(zip(IL(cfg.hpub), IL(cfg.hchk))):
        assert pb in BAR and cb in BAR and pb < cb
        before_bar(pb, hst[lv]); F(pb, 1, publish(sHfW, lv))
        gate(sHfR, lv, sTgt1, cb, f"h{lv}")
    last_stage = {}
    for a in ST[B0:]:
        for (pos, dl, k, u, sl) in a.parts: last_stage[(pos, dl)] = a.n
    pk_of = lambda pos: vP
    stok = {}
    def store_ops(pos, dls):
        A = accof(pos); PK = pk_of(pos); ops = []; stok[pos] = hold()
        for dl in dls:
            for mt in range(2):
                for e in range(2): ops.append(cvt(s, PK+4*dl+2*mt+e, A+8*dl+4*mt+2*e, A+8*dl+4*mt+2*e+1))
            def st_(dl=dl):
                if cfg.nostore: s.salu(f"s_mov_b32 s{sT1}, {OOB}")
                elif pos == 0: s.salu(f"s_mov_b32 s{sT1}, s{sPc}")
                else: s.salu(f"s_add_u32 s{sT1}, s{sPc+pos}, s{sDt+dl}")
                stok[pos][0] = s.vstore("buffer_store_dwordx4", PK+4*dl, 4, vL16, R_WS, f"s{sT1}", flags=cfg.st_flags)
            ops.append(st_)
        return ops
    for pos in (1, 2, 0, 3):
        n = last_stage[(pos, 0)] + 1
        if ST[n].nm == 8: spread(store_ops(pos, (0, 1) if pos else (0,)), n, 1, n, 6 if pos else 4)
        else: spread(store_ops(pos, (0, 1)), n, 1, n+1, 0)
    n8 = last_stage[(4, 0)]
    spread(store_ops(4, (0,)), n8, 6, n8+1, 2)
    pA, cA, pF = I(cfg.pubA), I(cfg.chkA), I(cfg.pubF)
    assert pA in BAR and cA in BAR
    before_bar(pA, stok[0]); F(pA, 1, publish(sCnt, 0)); gate(sCnt, 0, sTgt8, cA, "cA")
    if pF in BAR: before_bar(pF, stok[4]); F(pF, 0, publish(sCnt, 2))
    LAND_OF = {8: vXR, 1: Hreg[(0, 0)], 2: Hreg[(1, 0)], 3: Hreg[(2, 0)], 0: vXR+4}
    ptk = {}
    def piece(k, e):
        def go():
            if k == 8:
                ptk[k] = s.vload("buffer_load_dwordx4", LAND_OF[k]+4*e, 4, vP8off, R_WS, f"s{sP8}", flags=cfg.ld_flags)
            else:
                ptk[k] = s.vload("buffer_load_dwordx4", LAND_OF[k]+4*e, 4, vL16, R_WS, f"s{sCo+k}", off=1024*e, flags=cfg.ld_flags)
        return go
    def load_k(k):
        for e in range(1 if k in (0, 8) else 2): piece(k, e)()
    SUM = accof(4) + 8
    def add_k(k):
        if k == 8: return step8()
        s.wait(ptk[k])
        for v_ in range(LAND_OF[k], LAND_OF[k] + (4 if k == 0 else 8)):
            r = (v_ - LAND_OF[k]) % 4
            s.valu(f"v_lshlrev_b32 v{vTmp}, 16, v{v_}", wr=[vTmp], rd=[v_])
            s.valu(f"v_and_b32 v{v_}, s{sMask}, v{v_}", wr=[v_], rd=[v_])
            s.valu(f"v_add_f32 v{SUM+2*r}, v{SUM+2*r}, v{vTmp}", wr=[SUM+2*r], rd=[SUM+2*r, vTmp])
            s.valu(f"v_add_f32 v{SUM+2*r+1}, v{SUM+2*r+1}, v{v_}", wr=[SUM+2*r+1], rd=[SUM+2*r+1, v_])
    def step8():
        V = lambda text, wr, rd: s.valu(text, wr=wr, rd=rd)
        R = vWF; L8 = LAND_OF[8]
        s.wait(ptk[8], hb2[1])
        for r in range(4):
            V(f"v_lshlrev_b32 v{R+2*r}, 16, v{L8+r}", [R+2*r], [L8+r]); V(f"v_and_b32 v{R+2*r+1}, s{sMask}, v{L8+r}", [R+2*r+1], [L8+r])
        for i in range(4): V(f"v_permlane32_swap_b32 v{R+i}, v{R+4+i}", [R+i, R+4+i], [R+i, R+4+i])
        for i in range(4): V(f"v_add_f32 v{R+i}, v{R+i}, v{R+4+i}", [R+i], [R+i, R+4+i])
        for i in range(2): V(f"v_permlane16_swap_b32 v{R+i}, v{R+2+i}", [R+i, R+2+i], [R+i, R+2+i])
        for i in range(2): V(f"v_add_f32 v{R+i}, v{R+i}, v{R+2+i}", [R+i], [R+i, R+2+i])
        for i in range(2): V(f"v_add_f32_dpp v{R+2+i}, v{R+i}, v{R+i} row_ror:8 row_mask:0xf bank_mask:0xf", [R+2+i], [R+i])
        V(f"v_lshlrev_b32 v{R}, 16, v{vB28}", [R], [vB28]); V(f"v_and_b32 v{R+1}, s{sMask}, v{vB28}", [R+1], [vB28])
        for i in range(2): V(f"v_add_f32 v{R+i}, v{R+i}, v{R+2+i}", [R+i], [R+i, R+2+i])
        cvt(s, R, R, R+1)()
        s.vstore("buffer_store_dword", R, 1, vOut8, R_OUT, f"s{sOut8}")
    lastread = {}
    for a in ST[B0:]:
        for i, (f, mt) in enumerate(a.order): lastread[(a.parts[f][2], mt)] = (a.n, i)
    for q, ((k, e), n) in enumerate(zip([(8, 0), (1, 0), (1, 1), (2, 0), (2, 1)], IL(cfg.ldst))):
        g = 1 + q
        assert n >= cA
        if k != 8: assert (n, g) >= lastread[(k-1, e)], (k, e, n, lastread[(k-1, e)])
        F(n, g, piece(k, e))

    freebufs = [vWF+4*i for i in range(4)]
    frag = {}
    def plan_frag(n, f):
        a = ST[n]; hs = [hold(), hold()]; ent = [None, hs]; frag[(n, f)] = ent
        def mk(rd):
            def go():
                if rd == 0: ent[0] = freebufs.pop(0)
                if a.kind == "d": base, off = vW1dR, BLK[("w", n)]*8192 + (16*f + 4*rd)*128
                elif a.kind == "s":
                    ks = (4*ch + f) if a.i < 4 else (4 + 2*ch + f)
                    base, off = vW1sR, BLK[("w", n)]*8192 + (16*ks + 4*rd)*64
                else:
                    (pos, dl, k, u, sl) = a.parts[f]
                    if a.sub == "d": base, off = vW2R + 3*dl, BLK[("w", u)]*8192 + sl*4096 + rd*1024
                    else: base, off = vW2cR, BLK[("w", u)]*8192 + sl*2048 + rd*512
                w_, o_ = win(off)
                hs[rd][0] = s.ds_read("ds_read_b64_tr_b16", ent[0] + 2*rd, 2, base + w_, o_)
            return go
        return [mk(0), mk(1)]
    nfrag = lambda n: ST[n].nm if ST[n].kind != "b" else len(ST[n].parts)
    xtok = {}
    def xread(n, sp):
        w_, o_ = win(BLK[("x", n)]*8192 - XWIN0)
        def go(): xtok[(n, sp)] = s.ds_read("ds_read_b128", vXF + 16*n + 4*sp, 4, vXR + 4*w_ + sp, o_)
        return go
    pre = {}; pend = {}
    def P(n, i, f): pre.setdefault((n, i), []).append(f)
    for n in range(1, NST):
        prev = ST[n-1]; rds = []
        for f in range(nfrag(n)): rds += plan_frag(n, f)
        pend[n-1] = rds
        if n < 9:
            for sp in range(4): P(n-1, sp, xread(n, sp))

    s.wait(tb, *[utok.get(u) for u in LAND[-1]])
    s.barrier()
    stamp(s, "data")
    for g in range(4):
        h = hold(); h[0] = s.ds_read("ds_read_b128", vS[0]+4*g, 4, vBias, g*32); before_mfma(0, 0, h)
    for f in range(4):
        xread(0, f)()
        for r in plan_frag(0, f): r()
    issue_all(-1)

    started = set()
    for a in ST:
        n = a.n
        if n == B0 + 5: freebufs.extend([vT, vT+4])
        stamp(s, f"s{n}")
        uses = {f: i for i, (f, mt) in enumerate(a.order)} if a.kind == "b" else {}
        dq = [f for u in ISSUE.get(n, []) for f in iss.pieces(u)]
        slots = [g for g in IL(cfg.dposB if a.kind == "b" else cfg.dposA) if g < a.nm] or [a.nm-1]
        if len(dq) > len(slots): slots = list(range(a.nm)) if len(dq) <= a.nm else list(range(a.nm))
        dat = {}; ndone = 0
        for q, f in enumerate(dq): dat.setdefault(slots[q*len(slots)//len(dq)], []).append(f)
        for i in range(a.nm):
            toks = [h[0] for h in need_mf.get((n, i), [])]
            cur[0] = n
            if a.kind in "ds":
                reg, hs = frag[(n, i)]
                toks += [hs[0][0], hs[1][0]]
                if a.kind == "d" and a.j == 0: toks.append(xtok[(n, i)])
                assert all(t is not None for t in toks), (n, i)
                s.wait(*toks)
                if a.kind == "d": s.mfma32(vS[a.j % 2], reg, vXF + 16*a.s + 4*i, vS[a.j % 2])
                else:
                    ks = (8*a.i + 4*ch + i) if a.i < 4 else (32 + 2*ch + i)
                    s.mfma32(vS[0], reg, vXF + 4*ks, None if (a.i == 0 and i == 0 and ch == 1) else vS[0])
                freebufs.append(reg)
            else:
                f, mt = a.order[i]
                (pos, dl, k, u, sl) = a.parts[f]
                reg, hs = frag[(n, f)]
                toks += [hs[0][0], hs[1][0], hrd[(k, mt)][0]]
                if cfg.wait2 and i+1 < a.nm and n > B0:
                    f2, mt2 = a.order[i+1]
                    toks += [frag[(n, f2)][1][0][0], frag[(n, f2)][1][1][0]]
                assert all(t is not None for t in toks), (n, i)
                s.wait(*toks)
                d = accof(pos) + 8*dl + 4*mt; key = (pos, dl, mt)
                s.mfma16(d, reg, Hreg[(k, mt)], d if key in started else None)
                started.add(key)
                if uses[f] == i: freebufs.append(reg)
            if i == 0 and n in BAR:
                assert all(h[0] is not None for h in need_bar.get(n, [])), n
                for f in prebar.get(n, []): f()
                s.wait(*([utok.get(u) for u in LAND.get(n, [])] + [h[0] for h in need_bar.get(n, [])]))
                s.barrier()
            rds = pend.get(n, []); per = -(-len(rds)//a.nm)
            while ndone < min(len(rds), per*(i+1) if i < a.nm-1 else 99) and (ndone % 2 == 1 or freebufs or i == a.nm-1):
                rds[ndone](); ndone += 1
            for f in pre.get((n, i), []): f()
            for f in dat.get(i, []): f()
            for f in fill.get((n, i), []): f()
    stamp(s, "tail")
    if pF not in BAR:
        s.wait(stok[4][0]); s.barrier(); publish(sCnt, 2)()
    stamp(s, "T1")
    s.wait(hb2[0])
    for r in range(2):
        s.valu(f"v_lshlrev_b32 v{vP+4+2*r}, 16, v{vB2m+r}", wr=[vP+4+2*r], rd=[vB2m+r])
        s.valu(f"v_and_b32 v{vP+4+2*r+1}, s{sMask}, v{vB2m+r}", wr=[vP+4+2*r+1], rd=[vB2m+r])
    for i in range(8):
        s.valu(f"v_add_f32 v{SUM+i}, v{SUM+i}, v{vP+4 + i % 4}", wr=[SUM+i], rd=[SUM+i, vP+4 + i % 4])
    pre_ = [8, 1, 2][:I(cfg.tailpoll)]
    for k in pre_: add_k(k)
    if half == 1:
        hp = poll(s, sCnt, 2)
        check(below(f"s{sTgt8}"), hp, lambda st: poll(st, sCnt, 2))
    s.barrier()
    stamp(s, "T2")
    load_k(3); load_k(0)
    for k in [8, 1, 2][I(cfg.tailpoll):] + [3, 0]: add_k(k)
    stamp(s, "fin")
    for k in range(4): cvt(s, vP+k, SUM+2*k, SUM+2*k+1)()
    s.vstore("buffer_store_dwordx2", vP, 2, vOutM, R_OUT, f"s{sOutM}")
    s.salu(f"s_add_u32 s{sOutM}, s{sOutM}, {16*1152}")
    s.vstore("buffer_store_dwordx2", vP+2, 2, vOutM, R_OUT, f"s{sOutM}")
    if cfg.stamps: s.wait_all()
    stamp(s, "end")
    stamp_flush(s)
    s.salu("s_endpgm")
    return s, ool

def kd(name, vg, sg):
    return f""".amdhsa_kernel {name}
  .amdhsa_next_free_vgpr {vg}
  .amdhsa_next_free_sgpr {sg}
  .amdhsa_accum_offset {(vg+3)//4*4}
  .amdhsa_group_segment_fixed_size 0
  .amdhsa_kernarg_size 64
  .amdhsa_user_sgpr_count 2
  .amdhsa_user_sgpr_kernarg_segment_ptr 1
  .amdhsa_system_sgpr_workgroup_id_x 1
  .amdhsa_float_denorm_mode_32 3
.end_amdhsa_kernel
"""

def generate(aslist=False):
    PLAN = plan()
    p = Stream()
    prologue(p)
    p.salu(f"s_cmp_ge_u32 s{sW}, 4", srd=[sW]); p.salu("s_cbranch_scc1 L_half1")
    h0, o0 = body(p, 0, PLAN); h1, o1 = body(p, 1, PLAN)
    mk = (p.text() + "\n" + h0.text() + "\n" + o0.text() + "\n.p2align 6\nL_half1:\n" + h1.text() + "\n" + o1.text()
          + "\nL_main_end:\n    s_endpgm\n")
    k1 = NAME + "_kernel"
    launch = (f"; @launch kernel={k1} grid=(256,1,1) block=(512,1,1) lds=163840" if aslist
              else "; @launch grid=(256,1,1) block=(512,1,1) lds=163840")
    out = f"""; fused MLP  out = gelu_tanh(x@w1+b1)@w2+b2   (emitted by my generator script)
{launch}
.amdgcn_target "amdgcn-amd-amdhsa--gfx950"
.text
.globl {k1}
.p2align 8
.type {k1},@function
{k1}:
{mk}
.section .rodata,"a"
.p2align 6
{kd(k1, 256, 102)}"""
    nb = [sum(1 for i in h.ins if i.kind == "bar") for h in (h0, h1)]
    assert nb[0] == nb[1], nb
    return out, (h0.nops, h1.nops, len(h0.ins), len(h1.ins), nb[0]), PLAN

if __name__ == "__main__":
    aslist = False; verbose = False
    for a in sys.argv[2:]:
        if a == "-v": verbose = True; continue
        k, v = a.split("=", 1)
        if k == "aslist": aslist = True; continue
        assert hasattr(cfg, k) or k == "pubextra", k
        setattr(cfg, k, {"True": True, "False": False}.get(v, v.replace("+", " ")))
    txt, stats, PLAN = generate(aslist)
    open(sys.argv[1], "w").write(txt)
    print("nops/ins/bars:", stats, "bytes", len(txt))
    if verbose:
        BAR, ISSUE, BLK, LAND = PLAN
        print(" ".join(f"{b}:{','.join(k+str(m)+'@'+str(BLK[(k,m)]) for k,m in ISSUE[b])}" for b in sorted(ISSUE)))
```

```python
import sys, struct
from emit import Stream, vr, sr, rng

NAME = "standalone__dense_activation_gelu__prompt"
M, D, F = 2048, 576, 4608
def f2u(x): return struct.unpack("<I", struct.pack("<f", x))[0]
GA = -2.0*0.7978845608028654*1.4426950408889634
GB = GA*0.044715

class Cfg:
    st_flags = "sc1"; ld_flags = "sc1"; poll_flags = "sc1"
    stamps = False; cyc = False
    barA = 1; barB = 1; lastbar = "81"
    prio = -1
    fl_x = ""; fl_w1 = ""; fl_w2 = ""; fl_pf = ""
    g0 = 3
    g1 = 5
    look0 = 5
    lookA = 9; lookA2 = 9; lookB = 12
    dposA = "1,3"; dposB = "1,5"
    wait2 = True
    gg = "4,4"
    pf = "8,8,41"
    pfx = 0
    out_flags = ""
    pfpro = "1"
    pf1c = "3,3"
    pf1b = ""
    pf1 = ""
    pfshare = 16
    g3end = "40,1"
    hpub = "37,38,45,50"
    hchk = "43,43,51,55"
    hiss = "43,44,46,47,49,50,52,53,55"
    stst = "62,63,65,66,68,73,74"
    hdelay = ""
    pubA = 72; chkA = 81; pubF = 81; tailpoll = 1
    ldst = "81,81,81,81,81"
    publag = 5; polllead = 3; backoff = 4
    clr_stage = 5; arr_stage = 12; cchk = 36
    nohst = False; h_flags = "sc1"; hl_flags = "sc1"; nohld = False; hrate = 2; nopoll = False; nopub = False; noload = False; nostore = False
cfg = Cfg()
def I(x): return int(x)
def IL(x): return [int(v) for v in str(x).split(",") if v != ""]

PART_BYTES = 32*72*8*1024
HX = PART_BYTES
FLG = HX + 256*9*8192
WS_BYTES = FLG + 16*128*256
OOB = 0x40000000
SPIN = 1000000

S_X, S_W1, S_B1, S_W2, S_B2, S_OUT, S_DBG, S_WS = 4, 6, 8, 10, 12, 14, 16, 18
R_X, R_W1, R_W2, R_WS, R_B1 = 20, 24, 28, 32, 36
R_DBG = 36
R_B2, R_OUT = 4, 8
sW, sRG, sMT, sFS, sD0, sS0 = 40, 41, 42, 43, 44, 45
sXo, sW1d, sW1s, sLx, sLw, sT0, sT1, sGB = 46, 47, 48, 49, 50, 51, 52, 53
sPC, sE = 54, 55
sW2, sC3, sPc, sCo, sDt = 56, 68, 71, 76, 80
sHXw, sHXr, sCnt, sHfW, sHfR, sTgt8, sTgt1, sClr = 82, 83, 84, 85, 86, 87, 88, 89
sE2, sPF, sP8, sSpin, sOutM, sOut8, sMask = 90, 91, 92, 93, 94, 95, 3
sU0, sU1 = 96, 97
vLane, vL16 = 1, 2
vX0, vX1, vW1d, vW1s, vW2 = 3, 4, 5, 6, 7
vW1dR, vW1sR, vW2R = 8, 11, 14
vHW, vHW8 = 20, 21
vHB = (22, 23, 25)
vBias, vBiasS, vEXW, vEXR, vGA, vTmp, vTmp2, vDummy = 24, 25, 26, 27, 28, 29, 30, 31
vXR = 32
vP8off, vOutM, vB2m, vOut8, vB28 = 40, 41, 42, 44, 45
vW2c, vW2cR = 47, 8
vSec, vPF = 46, 47
vT, vP, vWF = 48, 56, 64
vS = (80, 96)
vXF = 112
vStamp = 0
vOne, vFv, vPoll = vX0, vX1, 12

NBLK, HB = 20, 10
HBASE, BIAS, EXB, XWIN0 = HB*8192, 19*8192, 18*8192, 7*8192

class St: pass
def build_stages():
    st = []
    for j in range(4):
        for s in range(9):
            a = St(); a.kind = "d"; a.j = j; a.s = s; a.nm = 4; st.append(a)
    for i in range(5):
        a = St(); a.kind = "s"; a.i = i; a.nm = 4 if i < 4 else 2; a.rowbase = 128*i if i < 4 else 448; st.append(a)
    KB = {"o": 0, "r": 9}
    def dbl(pos, t, i=0):
        a = St(); a.kind = "b"; a.sub = "d"; a.pos = pos; a.t = t; a.i = i
        ks = (8, 17) if t == "m" else (KB[t]+2*i, KB[t]+2*i+1)
        a.parts = [(pos, dl, ks[kk], None, kk) for dl in range(2) for kk in range(2)]
        a.order = [(2*(q//4) + q % 2, (q//2) % 2) for q in range(8)]
        return a
    def sgl(t, i=0):
        a = St(); a.kind = "b"; a.sub = "c"; a.pos = 0; a.t = t; a.i = i
        ks = (8, 17) if t == "m" else [KB[t]+4*i+q for q in range(4)]
        a.parts = [(0, 0, k, None, q) for q, k in enumerate(ks)]
        a.order = [(2*(q//4) + q % 2, (q//2) % 2) for q in range(2*len(ks))]
        return a
    st += [dbl(1, "o", i) for i in range(4)] + [sgl("o", 0), sgl("o", 1)] + [dbl(2, "o", i) for i in range(4)]
    st += [dbl(1, "r", 0), dbl(2, "r", 0), dbl(1, "r", 1), dbl(2, "r", 1), sgl("r", 0), dbl(1, "r", 2), dbl(2, "r", 2)]
    st += [dbl(1, "r", 3), dbl(2, "r", 3), sgl("r", 1), dbl(1, "m"), dbl(2, "m"), sgl("m")]
    blocks = [("o", i) for i in range(4)] + [("r", i) for i in range(4)] + [("m", 0)]
    st += [dbl(3, t, i) for t, i in blocks]
    L0 = len(st)
    fr = []
    for dl in range(2):
        for bi, (t, i) in enumerate(blocks):
            ks = (8, 17) if t == "m" else (KB[t]+2*i, KB[t]+2*i+1)
            fr += [(4, dl, ks[0], L0+bi, 0), (4, dl, ks[1], L0+bi, 1)]
    for gi in range(9):
        a = St(); a.kind = "b"; a.sub = "d"; a.pos = 4; a.t, a.i = blocks[gi]; a.parts = fr[4*gi:4*gi+4]
        a.order = [(2*(q//4) + q % 2, (q//2) % 2) for q in range(8)]
        st.append(a)
    for n, a in enumerate(st):
        a.n = n
        if a.kind == "b":
            a.nm = len(a.order)
            a.parts = [(p, d, k, (n if u is None else u), sl) for (p, d, k, u, sl) in a.parts]
    return st, L0
ST, LAST0 = build_stages()
NST = len(ST)
B0 = 41
HWSTAGE = {0: 9+3, 1: 18+3, 2: 27+3, 3: 36+1}
FIRSTUSE = {}
for a_ in ST[B0:]:
    for (p_, d_, k_, u_, s_) in a_.parts: FIRSTUSE.setdefault(k_, a_.n)
HREAD = {0: 37, 1: 37, 2: 38, 3: 38, 4: 39, 5: 39, 6: B0+1, 7: B0+1, 8: B0+6}
for k_ in range(9, 18): HREAD[k_] = FIRSTUSE[k_] - 2
HFREE_OWN = {k: HREAD[k] + 2 for k in range(9)}

def plan():
    BAR = set()
    for n in range(NST):
        if n >= LAST0:
            if n in IL(cfg.lastbar): BAR.add(n)
        elif n < 9 or 35 <= n <= 64 or n in IL(cfg.hpub) + IL(cfg.hchk) + [I(cfg.cchk)]: BAR.add(n)
        elif n < 35:
            if (n - 9) % I(cfg.barA) == 0: BAR.add(n)
        elif (LAST0 - 1 - n) % I(cfg.barB) == 0: BAR.add(n)
    bars = sorted(BAR)
    def first_read(u):
        if u[0] == "h": return HREAD[u[1]]
        return LAST0 - 1 if (u[0] == "w" and u[1] >= LAST0) else u[1] - 1
    def last_use(u):
        if u[0] == "h": return HREAD[u[1]] + 1
        return NST if (u[0] == "w" and u[1] >= LAST0) else u[1]
    res = {HB+k: (HWSTAGE[k//2], HFREE_OWN[k]) for k in range(8)}
    res[HB+8] = (B0, HFREE_OWN[8]); res[19] = (-99, B0+2)
    units = []
    for n in range(NST):
        if n < 9: units.append(("x", n))
        units.append(("w", n))
    hc = IL(cfg.hchk)
    hq = [(("h", k), IL(cfg.hiss)[k-9]) for k in range(9, 18)]
    for (u, b) in hq: assert b >= hc[[0, 0, 0, 0, 1, 1, 2, 2, 3][u[1]-9]]
    allunits = units + [u for u, _ in hq]
    busy = {}; issue = {}; blk = {}; land = {}
    ui = 0
    def freebar(u):
        c = [b for b in bars if b >= last_use(u)+1]
        return c[0] if c else 10**6
    def ok(b, u, bar):
        if b in busy: return False
        if b in res:
            a0, a1 = res[b]
            lb = max([x for x in [-3, -2, -1]+bars if x <= a0] or [-99])
            if not (freebar(u) <= lb or bar >= a1): return False
        return True
    for bar in [-3, -2, -1] + bars:
        for b in [b for b, u in busy.items() if freebar(u) <= bar]: del busy[b]
        lst = []
        nxt = min([b for b in bars if b > bar] or [NST])
        cap = 2*(nxt - bar) if bar >= 0 else 99
        if bar == -3: horizon = I(cfg.g0) - 1
        elif bar == -2: horizon = I(cfg.g1) - 1
        elif bar < 4: horizon = bar + I(cfg.look0)
        elif bar < IL(cfg.hiss)[0] - 4: horizon = nxt - 1 + I(cfg.lookA)
        elif bar < B0 - 2: horizon = nxt - 1 + I(cfg.lookA2)
        else: horizon = nxt - 1 + I(cfg.lookB)
        nh = 0
        while hq and hq[0][1] <= bar and nh < I(cfg.hrate):
            u = hq[0][0]; c = [b for b in range(NBLK) if ok(b, u, bar)]
            if not c: break
            busy[c[0]] = u; blk[u] = c[0]; lst.append(u); hq.pop(0); nh += 1
        while ui < len(units):
            u = units[ui]; kind, m = u
            if min(m, LAST0) > horizon: break
            if hq and hq[0][1] <= bar + 1 and m > bar + 5: break
            if kind == "x":
                c = [b for b in range(7, 18, 2) if ok(b, u, bar) and ok(b+1, u, bar)]
                if not c: break
                b = c[0]; busy[b] = u; busy[b+1] = u
            else:
                c = [b for b in range(NBLK) if ok(b, u, bar)]
                if any(k == "x" for k, _ in units[ui:]): c = [b for b in c if b < 7]
                if not c: break
                b = c[0]; busy[b] = u
            blk[u] = b; lst.append(u); ui += 1
            if len([x for x in lst if x[0] == "w"]) >= cap: break
        issue[bar] = lst
    assert ui == len(units) and not hq
    for u in allunits:
        lb = max(b for b in [-1]+bars if b <= first_read(u))
        land.setdefault(lb, []).append(u)
        ib = [bar for bar, l in issue.items() if u in l][0]
        assert ib < lb, (u, ib, lb)
    return BAR, issue, blk, land

def win(a): return a // 65536, a % 65536

NSTAMP = 16
def snames(): return cfg.stamps.split(",") if isinstance(cfg.stamps, str) else []
def stamp(s, name):
    if name not in snames(): return
    s.wait_all(v=False)
    s.salu("s_memtime s[100:101]" if cfg.cyc else "s_memrealtime s[100:101]")
    s.wait_all(v=False)
    s.valu(f"v_writelane_b32 v{vStamp}, s100, {snames().index(name)+1}", wr=[vStamp])
def stamp_flush(s):
    if not cfg.stamps: return
    s.salu(f"s_lshl_b32 s{sT0}, s2, 3"); s.salu(f"s_add_u32 s{sT0}, s{sT0}, s{sW}"); s.salu(f"s_mul_i32 s{sT0}, s{sT0}, {4*NSTAMP}")
    s.salu(f"s_add_u32 s{sT0}, s{sT0}, {128<<20}")
    s.salu(f"s_mov_b32 s{R_WS+2}, 0x10000000")
    s.valu(f"v_lshlrev_b32 v{vTmp}, 2, v{vLane}", wr=[vTmp], rd=[vLane])
    s.valu(f"v_cmp_gt_u32 vcc, {NSTAMP}, v{vLane}", rd=[vLane], swr=["vcc"])
    s.valu(f"v_mov_b32 v{vTmp2}, {OOB}", wr=[vTmp2])
    s.salu("s_nop 1")
    s.valu(f"v_cndmask_b32 v{vTmp}, v{vTmp2}, v{vTmp}, vcc", wr=[vTmp], rd=[vTmp, vTmp2])
    s.vstore("buffer_store_dword", vStamp, 1, vTmp, R_WS, f"s{sT0}")

def srd(s, r, base, size):
    if r != base:
        s.salu(f"s_mov_b32 s{r}, s{base}"); s.salu(f"s_mov_b32 s{r+1}, s{base+1}")
    s.salu(f"s_mov_b32 s{r+2}, {size}"); s.salu(f"s_mov_b32 s{r+3}, 0x20000")

class Ops:
    def __init__(self, s): self.s = s
    def V(self, text, wr=(), rd=(), **k): self.s.valu(text, wr=wr, rd=rd, **k)
    def S(self, text, **k): self.s.salu(text, **k)

def prologue(p):
    o = Ops(p); V, S = o.V, o.S
    S("s_cmp_ge_u32 s2, 256"); S("s_cbranch_scc1 L_main_end")
    if cfg.stamps: S("s_memtime s[98:99]" if cfg.cyc else "s_memrealtime s[98:99]")
    S("s_load_dwordx16 s[4:19], s[0:1], 0")
    L = vLane; a, b = vTmp, vTmp2
    V(f"v_lshrrev_b32 v{a}, 6, v0", [a]); V(f"v_and_b32 v{L}, 63, v0", [L])
    V(f"v_readfirstlane_b32 s{sW}, v{a}", rd=[a], swr=[sW])
    S(f"s_and_b32 s{sT0}, s2, 7"); S(f"s_lshr_b32 s{sT1}, s2, 3")
    S(f"s_and_b32 s{sMT}, s{sT0}, 1"); S(f"s_lshl_b32 s{sMT}, s{sMT}, 3")
    S(f"s_lshr_b32 s{sFS}, s{sT1}, 2"); S(f"s_add_u32 s{sMT}, s{sMT}, s{sFS}")
    S(f"s_lshr_b32 s{sFS}, s{sT0}, 1"); S(f"s_lshl_b32 s{sFS}, s{sFS}, 2")
    S(f"s_and_b32 s{sT1}, s{sT1}, 3"); S(f"s_add_u32 s{sFS}, s{sFS}, s{sT1}")
    S(f"s_and_b32 s{sRG}, s{sW}, 3", srd=[sW])
    S(f"s_and_b32 s{sE}, s{sFS}, 1"); S(f"s_lshl_b32 s{sD0}, s{sE}, 5")
    S(f"s_lshl_b32 s{sT0}, s{sMT}, 7"); S(f"s_lshl_b32 s{sT1}, s{sRG}, 5"); S(f"s_add_u32 s{sT0}, s{sT0}, s{sT1}")
    S(f"s_mul_i32 s{sXo}, s{sT0}, 1152")
    S(f"s_lshl_b32 s{sLx}, s{sRG}, 12"); S(f"s_lshl_b32 s{sLw}, s{sRG}, 11")
    S(f"s_mul_i32 s{sU0}, s{sFS}, 576")
    S(f"s_mul_i32 s{sT1}, s{sRG}, {16*9216}"); S(f"s_add_u32 s{sW1d}, s{sU0}, s{sT1}")
    S(f"s_lshl_b32 s{sT1}, s{sD0}, 1"); S(f"s_add_u32 s{sW1d}, s{sW1d}, s{sT1}")
    V(f"v_lshrrev_b32 v{a}, 3, v{L}", [a], [L])
    V(f"v_mul_u32_u24 v{vX0}, 1152, v{a}", [vX0], [a])
    V(f"v_mul_u32_u24 v{vW1d}, 9216, v{a}", [vW1d], [a])
    V(f"v_mov_b32 v{vW2}, v{vX0}", [vW2], [vX0])
    V(f"v_lshrrev_b32 v{a}, 4, v{L}", [a], [L])
    V(f"v_and_b32 v{b}, 7, v{L}", [b], [L])
    V(f"v_xor_b32 v{vX1}, v{a}, v{b}", [vX1], [a, b])
    V(f"v_lshl_add_u32 v{vX0}, v{vX1}, 4, v{vX0}", [vX0], [vX1, vX0])
    V(f"v_xor_b32 v{vX1}, 64, v{vX0}", [vX1], [vX0])
    V(f"v_add_u32 v{vX1}, {9216-1024}, v{vX1}", [vX1], [vX1])
    V(f"v_and_b32 v{a}, 1, v{a}", [a], [a]); V(f"v_lshlrev_b32 v{a}, 2, v{a}", [a], [a])
    V(f"v_xor_b32 v{b}, v{a}, v{b}", [b], [a, b])
    V(f"v_lshl_add_u32 v{vW1d}, v{b}, 4, v{vW1d}", [vW1d], [b, vW1d])
    V(f"v_lshlrev_b32 v{vBias}, 1, v0", [vBias])
    p.wait_all(v=False)
    srd(p, R_X, S_X, M*D*2); srd(p, R_W1, S_W1, D*F*2)

def dma2(s, voff, r, soff, second):
    t = s.dma(voff, r, soff, {R_X: cfg.fl_x, R_W1: cfg.fl_w1, R_W2: cfg.fl_w2, R_WS: cfg.hl_flags}[r])
    if second: s.ins[-1].text = s.ins[-1].text.replace(" offen", " offen offset:1024")
    return t

class Issuer:
    def __init__(self, s, half, BLK, utok): self.s, self.half, self.BLK, self.utok = s, half, BLK, utok; self.sec = None
    def pieces(self, u):
        s, half = self.s, self.half
        kind, m = u; b = self.BLK[u]; out = []
        if kind == "x":
            def first():
                s.salu(f"s_add_u32 m0, s{sLx}, {b*8192 + half*2048}", swr=["m0"])
                s.salu(f"s_add_u32 s{sT0}, s{sXo}, {16*half*1152 + m*128}")
                self.utok[u] = dma2(s, vX0, R_X, f"s{sT0}", False)
            def second(): self.utok[u] = dma2(s, vX1, R_X, f"s{sT0}", True)
            return [first, second]
        if kind == "h":
            if half != 1: return []
            def first():
                s.salu(f"s_add_u32 m0, s{sLw}, {b*8192}", swr=["m0"])
                s.salu(f"s_add_u32 s{sT0}, s{sHXr}, {(m-9)*8192}" if not cfg.nohld else f"s_mov_b32 s{sT0}, {OOB}")
                self.utok[u] = dma2(s, vL16, R_WS, f"s{sT0}", False)
            def second(): self.utok[u] = dma2(s, vL16, R_WS, f"s{sT0}", True)
            return [first, second]
        a = ST[m]
        if m < 9:
            def one():
                s.salu(f"s_add_u32 m0, s{sLw}, {b*8192 + half*1024}", swr=["m0"])
                s.salu(f"s_add_u32 s{sT0}, s{sW1d}, {(64*a.s + 8*half)*9216}")
                self.utok[u] = dma2(s, vW1d, R_W1, f"s{sT0}", False)
            return [one]
        if half != 0: return []
        if a.kind == "d": v, r, base, imm, step = vW1d, R_W1, sW1d, 64*a.s*9216 + a.j*128, 8*9216
        elif a.kind == "s": v, r, base, imm, step = vW1s, R_W1, sW1s, a.rowbase*9216, 16*9216
        elif a.sub == "d": v, r, base, imm, step = vW2, R_W2, sW2 + 4*"orm".index(a.t) + a.pos-1, 64*a.i*1152, 8*1152
        else: v, r, base, imm, step = vW2c, R_W2, sC3 + "orm".index(a.t), 128*a.i*1152, 16*1152
        def first():
            if self.sec != v:
                s.valu(f"v_add_u32 v{vSec}, {step-1024}, v{v}", wr=[vSec], rd=[v]); self.sec = v
            s.salu(f"s_add_u32 m0, s{sLw}, {b*8192}", swr=["m0"])
            if imm: s.salu(f"s_add_u32 s{sT0}, s{base}, {imm}")
            else: s.salu("s_nop 0")
            self.so = f"s{sT0}" if imm else f"s{base}"
            self.utok[u] = dma2(s, v, r, self.so, False)
        def second(): self.utok[u] = dma2(s, vSec, r, self.so, True)
        return [first, second]

def setup_main(s, half):
    o = Ops(s); V, S = o.V, o.S
    L = vLane; a, b = vTmp, vTmp2; ch = half
    r, c8, t, hh = vT, vT+1, vT+2, vT+3
    srd(s, R_B1, S_B1, F*2)
    tokb = s.vload("buffer_load_ushort", vBiasS, 1, vBias, R_B1, f"s{sU0}")
    V(f"v_bfe_u32 v{r}, v{L}, 2, 2", [r], [L]); V(f"v_and_b32 v{c8}, 3, v{L}", [c8], [L]); V(f"v_lshlrev_b32 v{c8}, 3, v{c8}", [c8], [c8])
    V(f"v_lshrrev_b32 v{hh}, 5, v{L}", [hh], [L])
    V(f"v_lshl_add_u32 v{t}, v{hh}, 3, v{r}", [t], [hh, r])
    V(f"v_bfe_u32 v{b}, v{L}, 4, 1", [b], [L]); V(f"v_lshl_add_u32 v{b}, v{b}, 5, v{c8}", [b], [b, c8])
    V(f"v_lshl_add_u32 v{vW1sR}, v{t}, 6, v{b}", [vW1sR], [t, b])
    V(f"v_lshl_add_u32 v{vW1dR}, v{t}, 7, v{b}", [vW1dR], [t, b])
    V(f"v_lshrrev_b32 v{t}, 1, v{r}", [t], [r])
    if ch: V(f"v_xor_b32 v{t}, 1, v{t}", [t], [t])
    V(f"v_lshl_add_u32 v{vW1dR}, v{t}, 6, v{vW1dR}", [vW1dR], [t, vW1dR])
    for k in (1, 2):
        V(f"v_add_u32 v{vW1dR+k}, {65536*k}, v{vW1dR}", [vW1dR+k], [vW1dR]); V(f"v_add_u32 v{vW1sR+k}, {65536*k}, v{vW1sR}", [vW1sR+k], [vW1sR])
    V(f"v_and_b32 v{b}, 31, v{L}", [b], [L]); V(f"v_bfe_u32 v{t}, v{L}, 1, 3", [t], [L])
    V(f"v_xor_b32 v{t}, v{t}, v{hh}", [t], [t, hh]); V(f"v_lshlrev_b32 v{t}, 4, v{t}", [t], [t])
    V(f"v_lshl_add_u32 v{t}, v{b}, 7, v{t}", [t], [b, t]); V(f"v_add_u32 v{t}, s{sLx}, v{t}", [t], [t])
    for sp in range(4):
        V(f"v_xor_b32 v{vXR+sp}, {32*sp}, v{t}", [vXR+sp], [t])
        V(f"v_add_u32 v{vXR+4+sp}, {XWIN0+65536}, v{vXR+sp}", [vXR+4+sp], [vXR+sp])
        V(f"v_add_u32 v{vXR+sp}, {XWIN0}, v{vXR+sp}", [vXR+sp], [vXR+sp])
    V(f"v_lshlrev_b32 v{vL16}, 4, v{L}", [vL16], [L])
    V(f"v_mov_b32 v{vGA}, 0x{f2u(GA):08x}", [vGA]); S(f"s_mov_b32 s{sGB}, 0x{f2u(GB):08x}")
    S(f"s_lshr_b32 s{sPC}, s{sFS}, 2"); S(f"s_bfe_u32 s{sE2}, s{sFS}, 0x10001"); S(f"s_xor_b32 s{sT1}, s{sE}, 1"); S(f"s_lshl_b32 s{sS0}, s{sT1}, 8")
    if half == 0:
        S(f"s_mul_i32 s{sT1}, s{sRG}, {32*9216}"); S(f"s_add_u32 s{sW1s}, s{sU0}, s{sT1}")
        S(f"s_lshl_b32 s{sT1}, s{sS0}, 1"); S(f"s_add_u32 s{sW1s}, s{sW1s}, s{sT1}")
        V(f"v_lshrrev_b32 v{a}, 2, v{L}", [a], [L]); V(f"v_mul_u32_u24 v{vW1s}, 9216, v{a}", [vW1s], [a])
        V(f"v_lshl_add_u32 v{vW1s}, v{c8}, 1, v{vW1s}", [vW1s], [c8, vW1s])
        V(f"v_bfe_u32 v{a}, v{L}, 1, 2", [a], [L]); V(f"v_lshrrev_b32 v{b}, 4, v{L}", [b], [L]); V(f"v_xor_b32 v{a}, v{a}, v{b}", [a], [a, b])
        V(f"v_lshl_add_u32 v{vW2}, v{a}, 5, v{vW2}", [vW2], [a, vW2])
        V(f"v_and_b32 v{a}, 1, v{L}", [a], [L]); V(f"v_lshl_add_u32 v{vW2}, v{a}, 4, v{vW2}", [vW2], [a, vW2])
        V(f"v_lshrrev_b32 v{t}, 2, v{L}", [t], [L]); V(f"v_mul_u32_u24 v{vW2c}, 1152, v{t}", [vW2c], [t])
        V(f"v_lshl_add_u32 v{vW2c}, v{a}, 4, v{vW2c}", [vW2c], [a, vW2c])
        V(f"v_lshrrev_b32 v{a}, 1, v{L}", [a], [L]); V(f"v_xor_b32 v{a}, v{a}, v{b}", [a], [a, b]); V(f"v_and_b32 v{a}, 1, v{a}", [a], [a])
        V(f"v_lshl_add_u32 v{vW2c}, v{a}, 5, v{vW2c}", [vW2c], [a, vW2c])
    V(f"v_and_b32 v{a}, 15, v{L}", [a], [L]); V(f"v_mul_u32_u24 v{vOutM}, 1152, v{a}", [vOutM], [a])
    V(f"v_lshlrev_b32 v{vHW}, 4, v{a}", [vHW], [a])
    V(f"v_bfe_u32 v{a}, v{L}, 4, 1", [a], [L]); V(f"v_lshl_add_u32 v{vHW}, v{a}, 10, v{vHW}", [vHW], [a, vHW])
    V(f"v_lshl_add_u32 v{vHW}, v{hh}, 8, v{vHW}", [vHW], [hh, vHW]); V(f"v_add_u32 v{vHW}, s{sLw}, v{vHW}", [vHW], [vHW])
    V(f"v_add_u32 v{vHW8}, {HBASE + 8*8192 + ch*512}, v{vHW}", [vHW8], [vHW]); V(f"v_add_u32 v{vHW}, {HBASE + ch*8192}, v{vHW}", [vHW], [vHW])
    V(f"v_add_u32 v{vHB[0]}, s{sLw}, v{vL16}", [vHB[0]], [vL16])
    V(f"v_add_u32 v{vEXW}, {EXB + ch*8192}, v{vHB[0]}", [vEXW], [vHB[0]]); V(f"v_add_u32 v{vEXR}, {EXB + (1-ch)*8192}, v{vHB[0]}", [vEXR], [vHB[0]])
    V(f"v_add_u32 v{vHB[1]}, 65536, v{vHB[0]}", [vHB[1]], [vHB[0]])
    V(f"v_bfe_u32 v{a}, v{L}, 2, 3", [a], [L]); V(f"v_lshl_add_u32 v{b}, v{hh}, 4, v{a}", [b], [a, hh])
    V(f"v_lshl_add_u32 v{vW2R}, v{b}, 7, v{c8}", [vW2R], [b, c8])
    V(f"v_lshrrev_b32 v{a}, 1, v{a}", [a], [a]); V(f"v_xor_b32 v{a}, {2*ch+1}, v{a}", [a], [a]); V(f"v_xor_b32 v{a}, s{sE2}, v{a}", [a], [a])
    V(f"v_lshl_add_u32 v{vW2R}, v{a}, 5, v{vW2R}", [vW2R], [a, vW2R]); V(f"v_xor_b32 v{vW2R+3}, 32, v{vW2R}", [vW2R+3], [vW2R])
    for dl in range(2):
        for k in (1, 2): V(f"v_add_u32 v{vW2R+3*dl+k}, {65536*k}, v{vW2R+3*dl}", [vW2R+3*dl+k], [vW2R+3*dl])
    t0, t1, t2 = sU0, sU1, sSpin
    srd(s, R_W2, S_W2, F*D*2); srd(s, R_WS, S_WS, WS_BYTES)
    srd(s, R_B2, S_B2, D*2); srd(s, R_OUT, S_OUT, M*D*2)
    t3 = sP8
    for k in range(1, 4): S(f"s_add_u32 s{sPc+k}, s{sPC}, {k}"); S(f"s_and_b32 s{sPc+k}, s{sPc+k}, 3")
    S(f"s_mov_b32 s{sPc+4}, s{sPC}")
    S(f"s_lshr_b32 s{sClr}, s{sFS}, 1")
    if half == 0:
        S(f"s_mul_i32 s{t0}, s{sClr}, 576")
        S(f"s_mul_i32 s{t3}, s{sE}, 640")
        for ti in range(3):
            if ti == 0: S(f"s_mul_i32 s{t1}, s{sE}, 320")
            elif ti == 1: S(f"s_xor_b32 s{t1}, s{sE}, 1"); S(f"s_mul_i32 s{t1}, s{t1}, 320")
            if ti < 2:
                S(f"s_add_u32 s{t1}, s{t1}, s{t0}")
                S(f"s_lshl_b32 s{t2}, s{sRG}, 5"); S(f"s_add_u32 s{t2}, s{t2}, s{t1}"); S(f"s_mul_i32 s{sC3+ti}, s{t2}, 1152")
                S(f"s_lshl_b32 s{t2}, s{sRG}, 4"); S(f"s_add_u32 s{t1}, s{t1}, s{t2}")
            else:
                S(f"s_and_b32 s{t1}, s{sRG}, 1"); S(f"s_xor_b32 s{t2}, s{t1}, s{sE}"); S(f"s_lshl_b32 s{t2}, s{t2}, 5")
                S(f"s_add_u32 s{t2}, s{t2}, s{t0}"); S(f"s_add_u32 s{t2}, s{t2}, 256"); S(f"s_mul_i32 s{sC3+ti}, s{t2}, 1152")
                S(f"s_lshl_b32 s{t1}, s{t1}, 4"); S(f"s_lshr_b32 s{t2}, s{sRG}, 1"); S(f"s_xor_b32 s{t2}, s{t2}, s{sE}"); S(f"s_lshl_b32 s{t2}, s{t2}, 5")
                S(f"s_add_u32 s{t1}, s{t1}, s{t2}"); S(f"s_add_u32 s{t1}, s{t1}, s{t0}"); S(f"s_add_u32 s{t1}, s{t1}, 256")
            S(f"s_mul_i32 s{t1}, s{t1}, 1152"); S(f"s_add_u32 s{t1}, s{t1}, s{t3}")
            for pos in range(1, 5): S(f"s_lshl_b32 s{t2}, s{sPc+pos}, 7"); S(f"s_add_u32 s{sW2+4*ti+pos-1}, s{t1}, s{t2}")
        S(f"s_lshl_b32 s{t2}, s{sE}, 6"); S(f"s_add_u32 s{t2}, s{t2}, 512")
        for ti in range(3): S(f"s_add_u32 s{sC3+ti}, s{sC3+ti}, s{t2}")
    S(f"s_lshl_b32 s{t0}, s{sMT}, 1"); S(f"s_add_u32 s{t0}, s{t0}, s{sE}"); S(f"s_mul_i32 s{t0}, s{t0}, 72")
    S(f"s_lshl_b32 s{t3}, s{sClr}, 10")
    S(f"s_add_u32 s{t1}, s{t0}, s{sW}"); S(f"s_add_u32 s{t2}, s{t1}, 64"); S(f"s_lshl_b32 s{t2}, s{t2}, 13"); S(f"s_add_u32 s{sPc}, s{t2}, s{t3}")
    S(f"s_add_u32 s{t1}, s{t1}, s{sW}")
    S(f"s_lshl_b32 s{t2}, s{t1}, 13"); S(f"s_add_u32 s{t2}, s{t2}, s{t3}")
    for pos in range(1, 5): S(f"s_lshl_b32 s{sPc+pos}, s{sPc+pos}, 17"); S(f"s_add_u32 s{sPc+pos}, s{sPc+pos}, s{t2}")
    S(f"s_lshl_b32 s{sDt+1}, s{sE2}, 13"); S(f"s_xor_b32 s{sDt}, s{sDt+1}, 8192")
    S(f"s_lshl_b32 s{t2}, s{sPC}, 4"); S(f"s_add_u32 s{t1}, s{t1}, s{t2}"); S(f"s_add_u32 s{t1}, s{t1}, s{sE2}"); S(f"s_lshl_b32 s{t1}, s{t1}, 13")
    for k in range(1, 4):
        S(f"s_sub_u32 s{t2}, s{sPC}, {k}"); S(f"s_and_b32 s{t2}, s{t2}, 3"); S(f"s_lshl_b32 s{t2}, s{t2}, 11"); S(f"s_add_u32 s{sCo+k}, s{t1}, s{t2}")
    S(f"s_xor_b32 s{t2}, s{t3}, 1024"); S(f"s_add_u32 s{sCo}, s{t1}, s{t2}")
    S(f"s_add_u32 s{t0}, s{t0}, s{sClr}"); S(f"s_add_u32 s{t0}, s{t0}, 64"); S(f"s_lshl_b32 s{sP8}, s{t0}, 13")
    S(f"s_lshl_b32 s{t0}, s{sMT}, 4"); S(f"s_add_u32 s{t0}, s{t0}, s{sFS}"); S(f"s_xor_b32 s{t1}, s{t0}, 1")
    S(f"s_mul_i32 s{t0}, s{t0}, {9*8192}"); S(f"s_add_u32 s{sHXw}, s{t0}, {HX - HBASE}")
    S(f"s_mul_i32 s{t1}, s{t1}, {9*8192}"); S(f"s_add_u32 s{t1}, s{t1}, {HX}"); S(f"s_add_u32 s{sHXr}, s{t1}, s{sLw}")
    if cfg.noload:
        for k in range(4): S(f"s_mov_b32 s{sCo+k}, {OOB}")
        S(f"s_mov_b32 s{sP8}, {OOB}")
    S(f"s_mov_b32 s{sMask}, 0xffff0000")
    if half == 1:
        S(f"s_lshl_b32 s{t0}, s{sMT}, 15"); S(f"s_add_u32 s{t0}, s{t0}, {FLG}")
        S(f"s_cmp_eq_u32 s{sW}, 4"); S(f"s_cselect_b32 s{t0}, s{t0}, {OOB}"); S(f"s_cselect_b32 s{sTgt8}, 8, 0"); S(f"s_cselect_b32 s{sTgt1}, 1, 0")
        S(f"s_lshl_b32 s{t1}, s{sE}, 10"); S(f"s_add_u32 s{sCnt}, s{t0}, s{t1}")
        S(f"s_mul_i32 s{t1}, s{sFS}, 1024"); S(f"s_add_u32 s{t1}, s{t1}, 4096"); S(f"s_add_u32 s{sHfR}, s{t0}, s{t1}")
        S(f"s_xor_b32 s{t1}, s{sFS}, 1"); S(f"s_mul_i32 s{t1}, s{t1}, 1024"); S(f"s_add_u32 s{t1}, s{t1}, 4096"); S(f"s_add_u32 s{sHfW}, s{t0}, s{t1}")
        S(f"s_cmp_eq_u32 s{sFS}, 0"); S(f"s_cselect_b32 s{sT1}, s{t0}, {OOB}")
        if cfg.pf:
            nl = IL(cfg.pf)[2]; sh = I(cfg.pfshare); per = 2592//(sh*4) + (1 if 2592 % (sh*4) else 0)
            S(f"s_and_b32 s{t0}, s{sMT}, {sh-1}"); S(f"s_lshl_b32 s{t0}, s{t0}, 2"); S(f"s_add_u32 s{t0}, s{t0}, s{sRG}")
            S(f"s_mul_i32 s{t0}, s{t0}, {per*128}"); S(f"s_mul_i32 s{t1}, s{sFS}, {288*1152}"); S(f"s_add_u32 s{sPF}, s{t0}, s{t1}")
            if cfg.pf1b:
                nlr = IL(cfg.pf1b)[2]
                V(f"v_mul_u32_u24 v{a}, {-(-65536//nlr)}, v{L}", [a], [L]); V(f"v_lshrrev_b32 v{a}, 16, v{a}", [a], [a])
                V(f"v_mul_u32_u24 v{b}, {nlr}, v{a}", [b], [a]); V(f"v_sub_u32 v{b}, v{L}, v{b}", [b], [L, b])
                V(f"v_add_u32 v{b}, {5-nlr}, v{b}", [b], [b]); V(f"v_add_u32 v{b}, s{sE}, v{b}", [b], [b])
                V(f"v_cmp_eq_u32 vcc, 5, v{b}", rd=[b], swr=["vcc"]); V(f"v_mul_u32_u24 v{a}, 9216, v{a}", [a], [a]); S("s_nop 0")
                V(f"v_cndmask_b32 v{b}, v{b}, 0, vcc", [b], [b])
                V(f"v_lshl_add_u32 v{a}, v{b}, 7, v{a}", [a], [a, b])
                V(f"v_cmp_gt_u32 vcc, {3*nlr}, v{L}", rd=[L], swr=["vcc"]); V(f"v_mov_b32 v{b}, {OOB}", [b]); S("s_nop 0")
                V(f"v_cndmask_b32 v{vW1s}, v{b}, v{a}, vcc", [vW1s], [a, b])
            if cfg.pf1c:
                S(f"s_lshl_b32 s{t0}, s2, 2"); S(f"s_add_u32 s{t0}, s{t0}, s{sRG}"); S(f"s_mul_i32 s{sW1s}, s{t0}, {81*64}")
                S(f"s_and_b32 s{sW1s}, s{sW1s}, 0xffffff80")
            if cfg.pf1 or cfg.pf1b:
                S(f"s_lshl_b32 s{t0}, s{sMT}, 2"); S(f"s_add_u32 s{t0}, s{t0}, s{sRG}"); S(f"s_mul_i32 s{t0}, s{t0}, {9*9216}")
                S(f"s_mul_i32 s{t1}, s{sFS}, 576"); S(f"s_and_b32 s{t1}, s{t1}, 0xffffff80"); S(f"s_add_u32 s{sW1s}, s{t0}, s{t1}")
            V(f"v_lshlrev_b32 v{a}, 7, v{L}", [a], [L]); V(f"v_cmp_gt_u32 vcc, {nl}, v{L}", rd=[L], swr=["vcc"]); V(f"v_mov_b32 v{b}, {OOB}", [b]); S("s_nop 0")
            V(f"v_cndmask_b32 v{vPF}, v{b}, v{a}, vcc", [vPF], [a, b])
    V(f"v_lshrrev_b32 v{a}, 3, v{L}", [a], [L]); V(f"v_lshlrev_b32 v{a}, 10, v{a}", [a], [a])
    V(f"v_and_b32 v{t}, 7, v{L}", [t], [L]); V(f"v_lshl_add_u32 v{a}, v{t}, 4, v{a}", [a], [a, t])
    S(f"s_lshl_b32 s{t0}, s{sW}, 7"); V(f"v_add_u32 v{vP8off}, s{t0}, v{a}", [vP8off], [a])
    V(f"v_lshrrev_b32 v{b}, 4, v{L}", [b], [L]); V(f"v_lshlrev_b32 v{b}, 3, v{b}", [b], [b]); V(f"v_add_u32 v{vOutM}, v{vOutM}, v{b}", [vOutM], [vOutM, b])
    S(f"s_lshl_b32 s{t0}, s{sPC}, 7"); S(f"s_lshl_b32 s{t1}, s{sE2}, 5"); S(f"s_add_u32 s{t0}, s{t0}, s{t1}"); S(f"s_add_u32 s{t0}, s{t0}, {64*ch}")
    S(f"s_mul_i32 s{t1}, s{sE}, 640"); S(f"s_add_u32 s{t0}, s{t0}, s{t1}")
    S(f"s_add_u32 s{sOutM}, s{sXo}, s{t0}")
    hb0 = s.vload("buffer_load_dwordx2", vB2m, 2, b, R_B2, f"s{t0}")
    S(f"s_and_b32 s{t0}, s{sW}, 1"); S(f"s_lshl_b32 s{t0}, s{t0}, 3")
    V(f"v_add_u32 v{a}, s{t0}, v{t}", [a], [t]); V(f"v_lshl_add_u32 v{a}, v{hh}, 4, v{a}", [a], [a, hh]); V(f"v_mul_u32_u24 v{a}, 1152, v{a}", [a], [a])
    V(f"v_bfe_u32 v{b}, v{L}, 4, 1", [b], [L]); V(f"v_lshlrev_b32 v{b}, 2, v{b}", [b], [b]); V(f"v_add_u32 v{vOut8}, v{a}, v{b}", [vOut8], [a, b])
    S(f"s_lshr_b32 s{t0}, s{sClr}, 2"); S(f"s_lshl_b32 s{t0}, s{t0}, 5"); S(f"s_lshl_b32 s{t1}, s{sE}, 6"); S(f"s_add_u32 s{t0}, s{t0}, s{t1}")
    S(f"s_lshr_b32 s{t1}, s{sW}, 1"); S(f"s_lshl_b32 s{t1}, s{t1}, 3"); S(f"s_add_u32 s{t0}, s{t0}, s{t1}"); S(f"s_add_u32 s{t0}, s{t0}, 512")
    hb1 = s.vload("buffer_load_dword", vB28, 1, b, R_B2, f"s{t0}")
    S(f"s_and_b32 s{t1}, s{sClr}, 3"); S(f"s_lshl_b32 s{t1}, s{t1}, 5"); S(f"s_lshl_b32 s{sOut8}, s{sMT}, 7"); S(f"s_add_u32 s{t1}, s{t1}, s{sOut8}")
    S(f"s_mul_i32 s{t1}, s{t1}, 1152"); S(f"s_add_u32 s{sOut8}, s{t1}, s{t0}")
    V(f"v_and_b32 v{a}, 8, v{L}", [a], [L]); V(f"v_cmp_eq_u32 vcc, 0, v{a}", rd=[a], swr=["vcc"]); V(f"v_mov_b32 v{b}, {OOB}", [b]); S("s_nop 0")
    V(f"v_cndmask_b32 v{vOut8}, v{b}, v{vOut8}, vcc", [vOut8], [b, vOut8])
    if half == 1: S(f"s_mov_b32 s{sClr}, s{sT1}")
    S(f"s_lshl_b32 s{t0}, s{sD0}, 2"); S(f"s_add_u32 s{t0}, s{t0}, {BIAS + 128*ch}")
    S(f"s_lshl_b32 s{t1}, s{sS0}, 2"); S(f"s_add_u32 s{t1}, s{t1}, {BIAS}")
    V(f"v_lshlrev_b32 v{a}, 2, v0", [a]); V(f"v_add_u32 v{a}, {BIAS}, v{a}", [a], [a])
    V(f"v_lshl_add_u32 v{vBias}, v{hh}, 4, s{t0}", [vBias], [hh])
    s.wait(tokb)
    V(f"v_lshlrev_b32 v{b}, 16, v{vBiasS}", [b], [vBiasS])
    tb = s.ds_write("ds_write_b32", a, b, 1, 0)
    V(f"v_lshl_add_u32 v{vBiasS}, v{hh}, 4, s{t1}", [vBiasS], [hh])
    return tb, (hb0, hb1)

def gelu_group(s, regs, tb):
    ops = []
    T = [vT + (tb + i) % 8 for i in range(len(regs))]
    def V(text, **k): ops.append(lambda: s.valu(text, **k))
    for x, t in zip(regs, T): V(f"v_mul_f32 v{t}, v{x}, v{x}", wr=[t], rd=[x])
    for x, t in zip(regs, T): V(f"v_fma_f32 v{t}, v{t}, s{sGB}, v{vGA}", wr=[t], rd=[t, vGA])
    for x, t in zip(regs, T): V(f"v_mul_f32 v{t}, v{x}, v{t}", wr=[t], rd=[x, t])
    for x, t in zip(regs, T): V(f"v_exp_f32 v{t}, v{t}", wr=[t], rd=[t], trans=True)
    for x, t in zip(regs, T): V(f"v_add_f32 v{t}, 1.0, v{t}", wr=[t], rd=[t])
    for x, t in zip(regs, T): V(f"v_rcp_f32 v{t}, v{t}", wr=[t], rd=[t], trans=True)
    for x, t in zip(regs, T): V(f"v_mul_f32 v{x}, v{x}, v{t}", wr=[x], rd=[x, t])
    return ops
def cvt(s, d, a, b):
    return lambda: s.valu(f"v_cvt_pk_bf16_f32 v{d}, v{a}, v{b}", wr=[d], rd=[a, b])

def body(p, half, PLAN):
    BAR, ISSUE, BLK, LAND = PLAN
    s = Stream(p); ool = Stream(); ch = half
    utok = {}
    iss = Issuer(s, half, BLK, utok)
    def issue_all(bar):
        for u in ISSUE[bar]:
            for f in iss.pieces(u): f()
    issue_all(-3)
    if I(cfg.pfx):
        s0 = I(cfg.pfx); nl = 9 - s0; a_, b_ = vT+4, vT+5
        s.valu(f"v_mul_u32_u24 v{a_}, {-(-65536//nl)}, v{vLane}", wr=[a_], rd=[vLane]); s.valu(f"v_lshrrev_b32 v{a_}, 16, v{a_}", wr=[a_], rd=[a_])
        s.valu(f"v_mul_u32_u24 v{b_}, {nl}, v{a_}", wr=[b_], rd=[a_]); s.valu(f"v_sub_u32 v{b_}, v{vLane}, v{b_}", wr=[b_], rd=[vLane, b_])
        s.valu(f"v_mul_u32_u24 v{a_}, 1152, v{a_}", wr=[a_], rd=[a_]); s.valu(f"v_lshl_add_u32 v{a_}, v{b_}, 7, v{a_}", wr=[a_], rd=[a_, b_])
        s.valu(f"v_cmp_gt_u32 vcc, {4*nl}, v{vLane}", rd=[vLane], swr=["vcc"]); s.valu(f"v_mov_b32 v{b_}, {OOB}", wr=[b_])
        s.salu(f"s_and_b32 s{sT1}, s{sFS}, 3"); s.salu(f"s_lshl_b32 s{sT1}, s{sT1}, 3"); s.salu(f"s_add_u32 s{sT1}, s{sT1}, s{sW}")
        s.salu(f"s_lshl_b32 s{sU1}, s{sMT}, 5"); s.salu(f"s_add_u32 s{sT1}, s{sT1}, s{sU1}"); s.salu(f"s_mul_i32 s{sT1}, s{sT1}, {4*1152}"); s.salu(f"s_add_u32 s{sT1}, s{sT1}, {128*s0}")
        s.valu(f"v_cndmask_b32 v{a_}, v{b_}, v{a_}, vcc", wr=[a_], rd=[a_, b_])
        s.vload("buffer_load_dword", vDummy, 1, a_, R_X, f"s{sT1}")
        s.valu(f"v_mul_u32_u24 v{a_}, 9216, v{vLane}", wr=[a_], rd=[vLane]); s.valu(f"v_cmp_gt_u32 vcc, {nl}, v{vLane}", rd=[vLane], swr=["vcc"])
        s.salu(f"s_and_b32 s{sT1}, s{sMT}, 7"); s.salu(f"s_lshl_b32 s{sT1}, s{sT1}, 3"); s.salu(f"s_add_u32 s{sT1}, s{sT1}, s{sW}")
        s.salu(f"s_mul_i32 s{sT1}, s{sT1}, {nl*9216}"); s.salu(f"s_add_u32 s{sT1}, s{sT1}, {64*s0*9216}")
        s.salu(f"s_lshl_b32 s{sU1}, s{sD0}, 1"); s.salu(f"s_add_u32 s{sT1}, s{sT1}, s{sU1}"); s.salu(f"s_add_u32 s{sT1}, s{sT1}, s{sU0}")
        s.valu(f"v_cndmask_b32 v{a_}, v{b_}, v{a_}, vcc", wr=[a_], rd=[a_, b_])
        s.vload("buffer_load_dword", vDummy, 1, a_, R_W1, f"s{sT1}")
    tb, hb2 = setup_main(s, half)
    if cfg.stamps: s.valu(f"v_writelane_b32 v{vStamp}, s98, 0", wr=[vStamp])
    stamp(s, "setup")
    issue_all(-2)
    if half == 1:
        if "1" in cfg.pfpro: s.vload("buffer_load_dword", vDummy, 1, vPF, R_W1, f"s{sW1s}", flags=cfg.fl_pf)
        if "2" in cfg.pfpro: s.vload("buffer_load_dword", vDummy, 1, vPF, R_W2, f"s{sPF}", flags=cfg.fl_pf)
    if I(cfg.prio) == half: s.salu("s_setprio 1")

    xblk = lambda i: vXF + 16*i
    dead = [xblk(2*i + (1-ch)) for i in range(4)]
    used = [xblk(2*i + ch) for i in range(4)]
    Hreg = {(k, mt): dead[k//2] + (k % 2)*8 + mt*4 for k in range(8) for mt in range(2)}
    for mt in range(2): Hreg[(8, mt)] = xblk(8) + (1-ch)*8 + mt*4
    for k in range(8):
        for mt in range(2): Hreg[(9+k, mt)] = used[k//2] + (k % 2)*8 + mt*4
    for mt in range(2): Hreg[(17, mt)] = xblk(8) + ch*8 + mt*4
    accof = lambda pos: {0: vXR, 1: vS[1], 2: vS[0], 3: vS[1], 4: vS[0]}[pos]
    PK2 = vP

    fill = {}; cur = [-1]; need_bar = {}; need_mf = {}; prebar = {}
    def F(n, i, f):
        assert 0 <= n < NST and 0 <= i < ST[n].nm, (n, i)
        fill.setdefault((n, i), []).append(f)
    def spread(ops, n0, i0, n1, i1=None):
        gaps = [(n, i, 1.0 if ST[n].kind != "b" else 0.5) for n in range(n0, n1+1) for i in range(ST[n].nm)
                if not (n == n0 and i < i0) and not (n == n1 and i1 is not None and i > i1)]
        tot = sum(g[2] for g in gaps); acc = 0; k = 0
        for (n, i, w) in gaps:
            acc += w; tgt = int(round(len(ops)*acc/tot))
            while k < tgt: F(n, i, ops[k]); k += 1
    def hold(): return [None]
    def before_bar(n, h): need_bar.setdefault(min(b for b in BAR if b >= n), []).append(h)
    def before_mfma(n, i, h): need_mf.setdefault((n, i), []).append(h)

    if half == 1:
        hclr = hold()
        def clr():
            s.valu(f"v_lshlrev_b32 v{vTmp}, 8, v{vLane}", wr=[vTmp], rd=[vLane]); s.valu(f"v_mov_b32 v{vTmp2}, {OOB}", wr=[vTmp2])
            s.valu(f"v_mov_b32 v{vFv}, 0", wr=[vFv])
            s.vstore("buffer_store_dword", vFv, 1, vTmp, R_WS, f"s{sClr}", flags=cfg.st_flags)
            s.salu(f"s_add_u32 s{sClr}, s{sClr}, 16384")
            hclr[0] = s.vstore("buffer_store_dword", vFv, 1, vTmp, R_WS, f"s{sClr}", flags=cfg.st_flags)
            s.valu(f"v_cmp_eq_u32 vcc, 0, v{vLane}", rd=[vLane], swr=["vcc"]); s.salu("s_nop 1")
            s.valu(f"v_cndmask_b32 v{vOne}, v{vTmp2}, v{vFv}, vcc", wr=[vOne], rd=[vTmp2, vFv])
        assert all(u[0] != "x" for b in ISSUE if b >= I(cfg.clr_stage) for u in ISSUE[b])
        F(I(cfg.clr_stage), 3, clr)
        def arrive():
            srd(s, R_DBG, S_DBG, 256)
            s.salu(f"s_lshl_b32 s{sU0}, s{sMT}, 2")
            s.salu(f"s_cmp_lg_u32 s{sW}, 4"); s.salu(f"s_cselect_b32 s{sU0}, 1024, s{sU0}")
            s.salu(f"s_cmp_lg_u32 s{sFS}, 0"); s.salu(f"s_cselect_b32 s{sU0}, 1024, s{sU0}")
            s.wait(hclr[0])
            s.valu(f"v_mov_b32 v{vFv}, 1", wr=[vFv])
            s.vstore("buffer_atomic_add", vFv, 1, vOne, R_DBG, f"s{sU0}")
        F(7 if False else I(cfg.arr_stage), 2, arrive)
        if cfg.pf and "2" not in cfg.pfpro:
            n0, n1, nl = IL(cfg.pf); sh = I(cfg.pfshare); per = -(-2592//(sh*4)); cnt = -(-per//nl)
            for q in range(cnt):
                def pf(q=q):
                    s.vload("buffer_load_dword", vDummy, 1, vPF, R_W2, f"s{sPF}", flags=cfg.fl_pf)
                    s.salu(f"s_add_u32 s{sPF}, s{sPF}, {nl*128}")
                g = q*(n1 - n0 + 1)*4//cnt
                F(n0 + g//4, g % 4, pf)
        if cfg.pf1c and "1" not in cfg.pfpro:
            n0, n1 = IL(cfg.pf1c); nl = IL(cfg.pf)[2]; cnt = -(-41//nl)
            for q in range(cnt):
                def pf1c():
                    s.vload("buffer_load_dword", vDummy, 1, vPF, R_W1, f"s{sW1s}", flags=cfg.fl_pf)
                    s.salu(f"s_add_u32 s{sW1s}, s{sW1s}, {nl*128}")
                g = q*(n1 - n0 + 1)*4//cnt
                F(n0 + g//4, g % 4, pf1c)
        if cfg.pf1b:
            n0, n1, _ = IL(cfg.pf1b)
            for q in range(3):
                def pf1b():
                    s.vload("buffer_load_dword", vDummy, 1, vW1s, R_W1, f"s{sW1s}", flags=cfg.fl_pf)
                    s.salu(f"s_add_u32 s{sW1s}, s{sW1s}, {3*9216}")
                g = q*(n1 - n0 + 1)*4//3
                F(n0 + g//4, g % 4, pf1b)
        if cfg.pf1:
            n0, n1 = IL(cfg.pf1)
            for q in range(9):
                def pf1():
                    s.vload("buffer_load_dword", vDummy, 1, vPF, R_W1, f"s{sW1s}", flags=cfg.fl_pf)
                    s.salu(f"s_add_u32 s{sW1s}, s{sW1s}, 9216")
                g = q*(n1 - n0 + 1)*4//9
                F(n0 + g//4, g % 4, pf1)

    hst = [hold(), hold(), hold(), hold()]; hst0b = hold()
    late = []
    def LV(text, wr, rd): late.append(lambda: s.valu(text, wr=wr, rd=rd))
    a_, b_ = vTmp, vTmp2
    LV(f"v_bfe_u32 v{a_}, v{vLane}, 2, 3", [a_], [vLane]); LV(f"v_lshrrev_b32 v{b_}, 5, v{vLane}", [b_], [vLane])
    LV(f"v_lshl_add_u32 v{a_}, v{b_}, 4, v{a_}", [a_], [a_, b_]); LV(f"v_and_b32 v{b_}, 3, v{vLane}", [b_], [vLane])
    LV(f"v_lshlrev_b32 v{b_}, 3, v{b_}", [b_], [b_]); LV(f"v_lshl_add_u32 v{a_}, v{a_}, 6, v{b_}", [a_], [a_, b_])
    LV(f"v_bfe_u32 v{b_}, v{vLane}, 4, 1", [b_], [vLane])
    if ch: LV(f"v_xor_b32 v{b_}, 1, v{b_}", [b_], [b_])
    LV(f"v_lshl_add_u32 v{vW2cR}, v{b_}, 5, v{a_}", [vW2cR], [a_, b_])
    for k in (1, 2): LV(f"v_add_u32 v{vW2cR+k}, {65536*k}, v{vW2cR}", [vW2cR+k], [vW2cR])
    LV(f"v_add_u32 v{vHB[2]}, 131072, v{vHB[0]}", [vHB[2]], [vHB[0]])
    for f in late: F(36, 1, f)
    for j in range(4):
        S = vS[j % 2]; ops = []
        for e in range(2):
            if IL(cfg.gg)[0 if j < 3 else 1] == 8:
                ops += gelu_group(s, [S+8*e+i for i in range(8)], 0)
                for q in range(4): ops.append(cvt(s, vP+4*e+q, S+8*e+2*q, S+8*e+2*q+1))
            else:
                for g in (2*e, 2*e+1):
                    ops += gelu_group(s, [S+4*g+i for i in range(4)], 4*g)
                    ops.append(cvt(s, vP+2*g, S+4*g, S+4*g+1)); ops.append(cvt(s, vP+2*g+1, S+4*g+2, S+4*g+3))
            h = hold()
            def wr(h=h, e=e, j=j):
                assert cur[0] >= HWSTAGE[j], (j, cur[0])
                h[0] = s.ds_write("ds_write_b128", vHW, vP+4*e, 4, 2*j*8192 + e*512)
            ops.append(wr)
            def gw(e=e, j=j):
                s.salu(f"s_add_u32 s{sT1}, s{sHXw}, {2*j*8192 + e*512}" if not cfg.nohst else f"s_mov_b32 s{sT1}, {OOB}")
                hst[max(j-1, 0)][0] = s.vstore("buffer_store_dwordx4", vP+4*e, 4, vHW, R_WS, f"s{sT1}", flags=cfg.h_flags)
            if not (cfg.hdelay and j < 2): ops.append(gw)
            before_bar(min(9*(j+2), 36) if j < 3 else B0+1, h)
        if j < 3: spread(ops, 9*(j+1), 2, 9*(j+1)+7)
        else: spread(ops, 36, 2, *IL(cfg.g3end))
    if cfg.hdelay:
        n0, n1 = IL(cfg.hdelay); gaps = [(n, i) for n in range(n0, n1+1) for i in range(4)]
        for k in range(4):
            h = hold(); g = k*(len(gaps)-3)//4; R = vXR + 4*(k % 2)
            def rd(h=h, k=k, R=R):
                w_, o_ = win((HB+k)*8192 + ch*1024)
                h[0] = s.ds_read("ds_read_b128", R, 4, vHB[w_], o_)
            def st_(h=h, k=k, R=R):
                s.wait(h[0])
                s.salu(f"s_add_u32 s{sT1}, s{sHXw}, {k*8192 + HBASE + ch*1024}" if not cfg.nohst else f"s_mov_b32 s{sT1}, {OOB}")
                t = s.vstore("buffer_store_dwordx4", R, 4, vHB[0], R_WS, f"s{sT1}", flags=cfg.h_flags)
                hst0b[0] = t
            F(*gaps[g], rd); F(*gaps[g+3], st_)
        before_bar(IL(cfg.hpub)[0], hst0b)
    for j in range(1, 5):
        S = vS[j % 2]
        if j == 4 and ch == 1: continue
        for g in range(4):
            h = hold()
            def rd(h=h, g=g, j=j, S=S):
                h[0] = s.ds_read("ds_read_b128", S+4*g, 4, vBias if j < 4 else vBiasS, (j*256 if j < 4 else 0) + g*32)
            F(9*j-1, g, rd); before_mfma(9*j, 0, h)
    S = vS[0]; snd = S + 8*(1-ch); own = S + 8*ch
    for e in range(2):
        h = hold()
        def wr(h=h, e=e): h[0] = s.ds_write("ds_write_b128", vEXW, snd+4*e, 4, e*1024)
        F(B0, 3+e, wr); before_bar(B0+1, h)
    hx = []
    for e in range(2):
        h = hold(); hx.append(h)
        def rd(h=h, e=e): h[0] = s.ds_read("ds_read_b128", snd+4*e, 4, vEXR, e*1024)
        F(B0+1, 0, rd); before_bar(B0+2, h)
    ops = [lambda: s.wait(hx[0][0], hx[1][0])]
    for i in range(8):
        ops.append(lambda i=i: s.valu(f"v_add_f32 v{own+i}, v{own+i}, v{snd+i}", wr=[own+i], rd=[own+i, snd+i]))
    if IL(cfg.gg)[1] == 8:
        ops += gelu_group(s, [own+i for i in range(8)], 0)
        for q in range(4): ops.append(cvt(s, PK2+q, own+2*q, own+2*q+1))
    else:
        for g in range(2):
            ops += gelu_group(s, [own+4*g+i for i in range(4)], 4*g)
            ops.append(cvt(s, PK2+2*g, own+4*g, own+4*g+1)); ops.append(cvt(s, PK2+2*g+1, own+4*g+2, own+4*g+3))
    h = hold()
    def wr8(h=h): h[0] = s.ds_write("ds_write_b128", vHW8, PK2, 4, 0)
    def gw8(): hst[3][0] = s.vstore("buffer_store_dwordx4", PK2, 4, vHW8, R_WS, f"s{sHXw}", flags=cfg.st_flags)
    ops.append(wr8); ops.append(gw8); before_bar(B0+5, h)
    spread(ops, B0+1, 3, B0+4, 6)
    hrd = {}
    def hread(k, n, i):
        blk = HB + k if k < 9 else BLK[("h", k)]
        for mt in range(2):
            h = hold(); hrd[(k, mt)] = h
            def rd(h=h, k=k, mt=mt):
                w_, o_ = win(blk*8192 + mt*1024)
                h[0] = s.ds_read("ds_read_b128", Hreg[(k, mt)], 4, vHB[w_], o_)
            F(n, i, rd); before_bar(n+2, h)
    for k in range(18): hread(k, HREAD[k], 1 + 2*(k % 2) if ST[HREAD[k]].nm == 4 else 1 + 2*(k % 4))

    nslow = [0]
    vPollR = vSec
    def check(test, tok, reload):
        nslow[0] += 1; k = f"{half}_{nslow[0]}"
        assert tok is not None or cfg.nopoll
        s.wait(tok); test(s)
        s.salu(f"s_cbranch_scc1 L_slow_{k}"); s.raw(f"L_back_{k}:")
        ool.raw(f"L_slow_{k}:"); ool.salu(f"s_mov_b32 s{sSpin}, {SPIN}")
        ool.raw(f"L_spin_{k}:")
        if I(cfg.backoff): ool.salu(f"s_sleep {I(cfg.backoff)}")
        reload(ool); ool.wait_all(l=False); test(ool)
        ool.salu(f"s_cbranch_scc0 L_back_{k}")
        ool.salu(f"s_sub_u32 s{sSpin}, s{sSpin}, 1"); ool.salu(f"s_cmp_lg_u32 s{sSpin}, 0")
        ool.salu(f"s_cbranch_scc1 L_spin_{k}"); ool.salu(f"s_branch L_back_{k}")
    def below(tgt, mul=1):
        def test(st):
            st.valu(f"v_readfirstlane_b32 s{sU1}, v{vPollR}", rd=[vPollR], swr=[sU1])
            if mul > 1:
                st.salu(f"s_mul_i32 s{sU0}, {tgt}, {mul}"); st.salu("s_nop 2"); st.salu(f"s_cmp_lt_u32 s{sU1}, s{sU0}")
            else:
                st.salu("s_nop 3"); st.salu(f"s_cmp_lt_u32 s{sU1}, {tgt}")
        return test
    def poll(st, base, idx):
        if cfg.nopoll:
            st.valu(f"v_mov_b32 v{vPollR}, 16", wr=[vPollR]); return None
        return st.vload("buffer_load_dword", vPollR, 1, vOne, R_WS, f"s{base}", off=256*idx, flags=cfg.poll_flags)
    def gate(base, idx, tgt, nb, name, mul=1):
        if half != 1: return
        hp = hold()
        F(nb - I(cfg.polllead), min(2, ST[nb - I(cfg.polllead)].nm-1), lambda: hp.__setitem__(0, poll(s, base, idx)))
        def chk():
            stamp(s, f"{name}0"); check(below(f"s{tgt}", mul), hp[0], lambda st: poll(st, base, idx)); stamp(s, f"{name}1")
        prebar.setdefault(nb, []).append(chk)
    def publish(base, idx):
        def go():
            if half == 1 and not cfg.nopub: s.vstore("buffer_atomic_add", vFv, 1, vOne, R_WS, f"s{base}", off=256*idx)
        return go
    if half == 1:
        hc = hold()
        def ld_cnt(st):
            st.salu(f"s_lshl_b32 s{sU0}, s{sMT}, 2")
            return st.vload("buffer_load_dword", vPollR, 1, vOne, R_DBG, f"s{sU0}", flags=cfg.poll_flags)
        F(I(cfg.cchk) - 4, 2, lambda: hc.__setitem__(0, ld_cnt(s)))
        assert I(cfg.cchk) in BAR
        prebar.setdefault(I(cfg.cchk), []).append(lambda: check(below("1"), hc[0], ld_cnt))
    for lv, (pb, cb) in enumerate(zip(IL(cfg.hpub), IL(cfg.hchk))):
        assert pb in BAR and cb in BAR and pb < cb
        assert pb > I(cfg.cchk)
        before_bar(pb, hst[lv])
        if cb in IL(cfg.hchk)[lv+1:]: continue
        F(pb, 1, publish(sHfW, lv)); gate(sHfR, lv, sTgt1, cb, f"h{lv}")
    last_stage = {}
    for a in ST[B0:]:
        for (pos, dl, k, u, sl) in a.parts: last_stage[(pos, dl)] = a.n
    pk_of = lambda pos: vP
    stok = {}
    def store_ops(pos, dls):
        A = accof(pos); PK = pk_of(pos); ops = []; stok.setdefault(pos, hold())
        for dl in dls:
            for mt in range(2):
                for e in range(2): ops.append(cvt(s, PK+4*dl+2*mt+e, A+8*dl+4*mt+2*e, A+8*dl+4*mt+2*e+1))
            def st_(dl=dl):
                if cfg.nostore: s.salu(f"s_mov_b32 s{sT1}, {OOB}")
                elif pos == 0: s.salu(f"s_mov_b32 s{sT1}, s{sPc}")
                else: s.salu(f"s_add_u32 s{sT1}, s{sPc+pos}, s{sDt+dl}")
                stok[pos][0] = s.vstore("buffer_store_dwordx4", PK+4*dl, 4, vL16, R_WS, f"s{sT1}", flags=cfg.st_flags)
            ops.append(st_)
        return ops
    sts = IL(cfg.stst)
    for (pos, dl), n in zip([(1, 0), (1, 1), (2, 0), (2, 1), (0, 0), (3, 0), (3, 1)], sts):
        assert n > last_stage[(pos, dl)]
        spread(store_ops(pos, (dl,)), n, 1, n, min(5, ST[n].nm-1))
    assert sts[1] < 64 and sts[3] < LAST0
    n8 = last_stage[(4, 0)]
    spread(store_ops(4, (0,)), n8, 6, n8+1, 2)
    pA, cA, pF = I(cfg.pubA), I(cfg.chkA), I(cfg.pubF)
    assert pA in BAR and cA in BAR
    before_bar(pA, stok[0]); F(pA, 1, publish(sCnt, 0)); gate(sCnt, 0, sTgt8, cA, "cA")
    if pF in BAR: before_bar(pF, stok[4]); F(pF, 0, publish(sCnt, 2))
    LAND_OF = {8: vXR, 1: Hreg[(0, 0)], 2: Hreg[(1, 0)], 3: Hreg[(2, 0)], 0: vXR+4}
    ptk = {}
    def piece(k, e):
        def go():
            if k == 8:
                ptk[k] = s.vload("buffer_load_dwordx4", LAND_OF[k]+4*e, 4, vP8off, R_WS, f"s{sP8}", flags=cfg.ld_flags)
            else:
                ptk[k] = s.vload("buffer_load_dwordx4", LAND_OF[k]+4*e, 4, vL16, R_WS, f"s{sCo+k}", off=1024*e, flags=cfg.ld_flags)
        return go
    def load_k(k):
        for e in range(1 if k in (0, 8) else 2): piece(k, e)()
    SUM = accof(4) + 8
    def add_k(k):
        if k == 8: return step8()
        s.wait(ptk[k])
        for v_ in range(LAND_OF[k], LAND_OF[k] + (4 if k == 0 else 8)):
            r = (v_ - LAND_OF[k]) % 4
            s.valu(f"v_lshlrev_b32 v{vTmp}, 16, v{v_}", wr=[vTmp], rd=[v_])
            s.valu(f"v_and_b32 v{v_}, s{sMask}, v{v_}", wr=[v_], rd=[v_])
            s.valu(f"v_add_f32 v{SUM+2*r}, v{SUM+2*r}, v{vTmp}", wr=[SUM+2*r], rd=[SUM+2*r, vTmp])
            s.valu(f"v_add_f32 v{SUM+2*r+1}, v{SUM+2*r+1}, v{v_}", wr=[SUM+2*r+1], rd=[SUM+2*r+1, v_])
    def step8():
        V = lambda text, wr, rd: s.valu(text, wr=wr, rd=rd)
        R = vWF; L8 = LAND_OF[8]
        s.wait(ptk[8], hb2[1])
        for r in range(4):
            V(f"v_lshlrev_b32 v{R+2*r}, 16, v{L8+r}", [R+2*r], [L8+r]); V(f"v_and_b32 v{R+2*r+1}, s{sMask}, v{L8+r}", [R+2*r+1], [L8+r])
        for i in range(4): V(f"v_permlane32_swap_b32 v{R+i}, v{R+4+i}", [R+i, R+4+i], [R+i, R+4+i])
        for i in range(4): V(f"v_add_f32 v{R+i}, v{R+i}, v{R+4+i}", [R+i], [R+i, R+4+i])
        for i in range(2): V(f"v_permlane16_swap_b32 v{R+i}, v{R+2+i}", [R+i, R+2+i], [R+i, R+2+i])
        for i in range(2): V(f"v_add_f32 v{R+i}, v{R+i}, v{R+2+i}", [R+i], [R+i, R+2+i])
        for i in range(2): V(f"v_add_f32_dpp v{R+2+i}, v{R+i}, v{R+i} row_ror:8 row_mask:0xf bank_mask:0xf", [R+2+i], [R+i])
        V(f"v_lshlrev_b32 v{R}, 16, v{vB28}", [R], [vB28]); V(f"v_and_b32 v{R+1}, s{sMask}, v{vB28}", [R+1], [vB28])
        for i in range(2): V(f"v_add_f32 v{R+i}, v{R+i}, v{R+2+i}", [R+i], [R+i, R+2+i])
        cvt(s, R, R, R+1)()
        s.vstore("buffer_store_dword", R, 1, vOut8, R_OUT, f"s{sOut8}", flags=cfg.out_flags)
    lastread = {}
    for a in ST[B0:]:
        for i, (f, mt) in enumerate(a.order): lastread[(a.parts[f][2], mt)] = (a.n, i)
    for q, ((k, e), n) in enumerate(zip([(8, 0), (1, 0), (1, 1), (2, 0), (2, 1)], IL(cfg.ldst))):
        g = 1 + q
        assert n >= cA
        if k != 8: assert (n, g) >= lastread[(k-1, e)], (k, e, n, lastread[(k-1, e)])
        F(n, g, piece(k, e))

    freebufs = [vWF+4*i for i in range(4)]
    frag = {}
    def plan_frag(n, f):
        a = ST[n]; hs = [hold(), hold()]; ent = [None, hs]; frag[(n, f)] = ent
        def mk(rd):
            def go():
                if rd == 0: ent[0] = freebufs.pop(0)
                if a.kind == "d": base, off = vW1dR, BLK[("w", n)]*8192 + (16*f + 4*rd)*128
                elif a.kind == "s":
                    ks = (4*ch + f) if a.i < 4 else (4 + 2*ch + f)
                    base, off = vW1sR, BLK[("w", n)]*8192 + (16*ks + 4*rd)*64
                else:
                    (pos, dl, k, u, sl) = a.parts[f]
                    if a.sub == "d": base, off = vW2R + 3*dl, BLK[("w", u)]*8192 + sl*4096 + rd*1024
                    else: base, off = vW2cR, BLK[("w", u)]*8192 + sl*2048 + rd*512
                w_, o_ = win(off)
                hs[rd][0] = s.ds_read("ds_read_b64_tr_b16", ent[0] + 2*rd, 2, base + w_, o_)
            return go
        return [mk(0), mk(1)]
    nfrag = lambda n: ST[n].nm if ST[n].kind != "b" else len(ST[n].parts)
    xtok = {}
    def xread(n, sp):
        w_, o_ = win(BLK[("x", n)]*8192 - XWIN0)
        def go(): xtok[(n, sp)] = s.ds_read("ds_read_b128", vXF + 16*n + 4*sp, 4, vXR + 4*w_ + sp, o_)
        return go
    pre = {}; pend = {}
    def P(n, i, f): pre.setdefault((n, i), []).append(f)
    for n in range(1, NST):
        prev = ST[n-1]; rds = []
        for f in range(nfrag(n)): rds += plan_frag(n, f)
        pend[n-1] = rds
        if n < 9:
            for sp in range(4): P(n-1, sp, xread(n, sp))

    s.wait(tb, *[utok.get(u) for u in LAND[-1]])
    s.barrier()
    stamp(s, "data")
    for g in range(4):
        h = hold(); h[0] = s.ds_read("ds_read_b128", vS[0]+4*g, 4, vBias, g*32); before_mfma(0, 0, h)
    for f in range(4):
        xread(0, f)()
        for r in plan_frag(0, f): r()
    issue_all(-1)

    started = set()
    for a in ST:
        n = a.n
        if n == B0 + 5: freebufs.extend([vT, vT+4])
        stamp(s, f"s{n}")
        uses = {f: i for i, (f, mt) in enumerate(a.order)} if a.kind == "b" else {}
        dq = [f for u in ISSUE.get(n, []) for f in iss.pieces(u)]
        slots = [g for g in IL(cfg.dposB if a.kind == "b" else cfg.dposA) if g < a.nm] or [a.nm-1]
        if len(dq) > len(slots): slots = list(range(a.nm)) if len(dq) <= a.nm else list(range(a.nm))
        dat = {}; ndone = 0
        for q, f in enumerate(dq): dat.setdefault(slots[q*len(slots)//len(dq)], []).append(f)
        for i in range(a.nm):
            toks = [h[0] for h in need_mf.get((n, i), [])]
            cur[0] = n
            if a.kind in "ds":
                reg, hs = frag[(n, i)]
                toks += [hs[0][0], hs[1][0]]
                if a.kind == "d" and a.j == 0: toks.append(xtok[(n, i)])
                assert all(t is not None for t in toks), (n, i)
                s.wait(*toks)
                if a.kind == "d": s.mfma32(vS[a.j % 2], reg, vXF + 16*a.s + 4*i, vS[a.j % 2])
                else:
                    ks = (8*a.i + 4*ch + i) if a.i < 4 else (32 + 2*ch + i)
                    s.mfma32(vS[0], reg, vXF + 4*ks, None if (a.i == 0 and i == 0 and ch == 1) else vS[0])
                freebufs.append(reg)
            else:
                f, mt = a.order[i]
                (pos, dl, k, u, sl) = a.parts[f]
                reg, hs = frag[(n, f)]
                toks += [hs[0][0], hs[1][0], hrd[(k, mt)][0]]
                if cfg.wait2 and i+1 < a.nm and n > B0:
                    f2, mt2 = a.order[i+1]
                    toks += [frag[(n, f2)][1][0][0], frag[(n, f2)][1][1][0]]
                assert all(t is not None for t in toks), (n, i)
                s.wait(*toks)
                d = accof(pos) + 8*dl + 4*mt; key = (pos, dl, mt)
                s.mfma16(d, reg, Hreg[(k, mt)], d if key in started else None)
                started.add(key)
                if uses[f] == i: freebufs.append(reg)
            if i == 0 and n in BAR:
                assert all(h[0] is not None for h in need_bar.get(n, [])), n
                for f in prebar.get(n, []): f()
                s.wait(*([utok.get(u) for u in LAND.get(n, [])] + [h[0] for h in need_bar.get(n, [])]))
                s.barrier()
            rds = pend.get(n, []); per = -(-len(rds)//a.nm)
            while ndone < min(len(rds), per*(i+1) if i < a.nm-1 else 99) and (ndone % 2 == 1 or freebufs or i == a.nm-1):
                rds[ndone](); ndone += 1
            for f in pre.get((n, i), []): f()
            for f in dat.get(i, []): f()
            for f in fill.get((n, i), []): f()
    stamp(s, "tail")
    if pF not in BAR:
        s.wait(stok[4][0]); s.barrier(); publish(sCnt, 2)()
    stamp(s, "T1")
    s.wait(hb2[0])
    for r in range(2):
        s.valu(f"v_lshlrev_b32 v{vP+4+2*r}, 16, v{vB2m+r}", wr=[vP+4+2*r], rd=[vB2m+r])
        s.valu(f"v_and_b32 v{vP+4+2*r+1}, s{sMask}, v{vB2m+r}", wr=[vP+4+2*r+1], rd=[vB2m+r])
    for i in range(8):
        s.valu(f"v_add_f32 v{SUM+i}, v{SUM+i}, v{vP+4 + i % 4}", wr=[SUM+i], rd=[SUM+i, vP+4 + i % 4])
    pre_ = [8, 1, 2][:I(cfg.tailpoll)]
    for k in pre_: add_k(k)
    if half == 1:
        hp = poll(s, sCnt, 2)
        check(below(f"s{sTgt8}"), hp, lambda st: poll(st, sCnt, 2))
    s.barrier()
    stamp(s, "T2")
    load_k(3); load_k(0)
    for k in [8, 1, 2][I(cfg.tailpoll):] + [3, 0]: add_k(k)
    stamp(s, "fin")
    for k in range(4): cvt(s, vP+k, SUM+2*k, SUM+2*k+1)()
    s.vstore("buffer_store_dwordx2", vP, 2, vOutM, R_OUT, f"s{sOutM}", flags=cfg.out_flags)
    s.salu(f"s_add_u32 s{sOutM}, s{sOutM}, {16*1152}")
    s.vstore("buffer_store_dwordx2", vP+2, 2, vOutM, R_OUT, f"s{sOutM}", flags=cfg.out_flags)
    if cfg.stamps: s.wait_all()
    stamp(s, "end")
    stamp_flush(s)
    s.salu("s_endpgm")
    return s, ool

def kd(name, vg, sg):
    return f""".amdhsa_kernel {name}
  .amdhsa_next_free_vgpr {vg}
  .amdhsa_next_free_sgpr {sg}
  .amdhsa_accum_offset {(vg+3)//4*4}
  .amdhsa_group_segment_fixed_size 0
  .amdhsa_kernarg_size 64
  .amdhsa_user_sgpr_count 2
  .amdhsa_user_sgpr_kernarg_segment_ptr 1
  .amdhsa_system_sgpr_workgroup_id_x 1
  .amdhsa_float_denorm_mode_32 3
.end_amdhsa_kernel
"""

def generate(aslist=False):
    PLAN = plan()
    p = Stream()
    prologue(p)
    p.salu(f"s_cmp_ge_u32 s{sW}, 4", srd=[sW]); p.salu("s_cbranch_scc1 L_half1")
    h0, o0 = body(p, 0, PLAN); h1, o1 = body(p, 1, PLAN)
    mk = (p.text() + "\n" + h0.text() + "\n" + o0.text() + "\n.p2align 6\nL_half1:\n" + h1.text() + "\n" + o1.text()
          + "\nL_main_end:\n    s_endpgm\n")
    k1 = NAME + "_kernel"
    launch = (f"; @launch kernel={k1} grid=(256,1,1) block=(512,1,1) lds=163840" if aslist
              else "; @launch grid=(256,1,1) block=(512,1,1) lds=163840")
    out = f"""; fused MLP  out = gelu_tanh(x@w1+b1)@w2+b2   (emitted by my generator script)
{launch}
.amdgcn_target "amdgcn-amd-amdhsa--gfx950"
.text
.globl {k1}
.p2align 8
.type {k1},@function
{k1}:
{mk}
.section .rodata,"a"
.p2align 6
{kd(k1, 256, 102)}"""
    nb = [sum(1 for i in h.ins if i.kind == "bar") for h in (h0, h1)]
    assert nb[0] == nb[1], nb
    return out, (h0.nops, h1.nops, len(h0.ins), len(h1.ins), nb[0]), PLAN

if __name__ == "__main__":
    aslist = False; verbose = False
    for a in sys.argv[2:]:
        if a == "-v": verbose = True; continue
        k, v = a.split("=", 1)
        if k == "aslist": aslist = True; continue
        assert hasattr(cfg, k) or k == "pubextra", k
        setattr(cfg, k, {"True": True, "False": False}.get(v, v.replace("+", " ")))
    txt, stats, PLAN = generate(aslist)
    open(sys.argv[1], "w").write(txt)
    print("nops/ins/bars:", stats, "bytes", len(txt))
    if verbose:
        BAR, ISSUE, BLK, LAND = PLAN
        print(" ".join(f"{b}:{','.join(k+str(m)+'@'+str(BLK[(k,m)]) for k,m in ISSUE[b])}" for b in sorted(ISSUE)))
```

```python
import sys, struct
from emit import Stream, vr, sr, rng

NAME = "standalone__dense_activation_gelu__prompt"
M, D, F = 2048, 576, 4608
def f2u(x): return struct.unpack("<I", struct.pack("<f", x))[0]
GA = -2.0*0.7978845608028654*1.4426950408889634
GB = GA*0.044715

class Cfg:
    st_flags = "sc1"; ld_flags = "sc1"; poll_flags = "sc1"
    stamps = False; cyc = False
    barA = 2; barB = 1; lastbar = "81"
    prio = -1
    fl_x = ""; fl_w1 = ""; fl_w2 = ""; fl_pf = ""
    g0 = 3
    g1 = 5
    look0 = 5
    lookA = 9; lookA2 = 9; lookB = 12
    dposA = "1,3"; dposB = "1,5"
    wait2 = True
    pfcode = 1
    inl = True
    gg = "4,4"
    pf = "8,8,41"
    pfx = 0
    out_flags = ""
    pfpro = "1"
    pf1c = "3,3"
    pf1b = ""
    pf1 = ""
    pfshare = 16
    g3end = "40,1"
    hpub = "37,38,45,50"
    hchk = "43,43,51,55"
    hiss = "43,44,46,47,49,50,52,53,55"
    stst = "62,63,65,66,68,73,74"
    hdelay = ""
    pubA = 72; chkA = 81; pubF = 81; tailpoll = 1
    ldst = "81,81,81,81,81"
    publag = 5; polllead = 3; backoff = 4
    clr_stage = 5; arr_stage = 12; cchk = 36
    nohst = False; h_flags = "sc1"; hl_flags = "sc1"; nohld = False; hrate = 2; nopoll = False; nopub = False; noload = False; nostore = False
cfg = Cfg()
def I(x): return int(x)
def IL(x): return [int(v) for v in str(x).split(",") if v != ""]

PART_BYTES = 32*72*8*1024
HX = PART_BYTES
FLG = HX + 256*9*8192
WS_BYTES = FLG + 16*128*256
OOB = 0x40000000
SPIN = 1000000

S_X, S_W1, S_B1, S_W2, S_B2, S_OUT, S_DBG, S_WS = 4, 6, 8, 10, 12, 14, 16, 18
R_X, R_W1, R_W2, R_WS, R_B1 = 20, 24, 28, 32, 36
R_DBG = 36
R_B2, R_OUT = 4, 8
sW, sRG, sMT, sFS, sD0, sS0 = 40, 41, 42, 43, 44, 45
sXo, sW1d, sW1s, sLx, sLw, sT0, sT1, sGB = 46, 47, 48, 49, 50, 51, 52, 53
sPC, sE = 54, 55
sW2, sC3, sPc, sCo, sDt = 56, 68, 71, 76, 80
sHXw, sHXr, sCnt, sHfW, sHfR, sTgt8, sTgt1, sClr = 82, 83, 84, 85, 86, 87, 88, 89
sE2, sPF, sP8, sSpin, sOutM, sOut8, sMask = 90, 91, 92, 93, 94, 95, 3
sU0, sU1 = 96, 97
vLane, vL16 = 1, 2
vX0, vX1, vW1d, vW1s, vW2 = 3, 4, 5, 6, 7
vW1dR, vW1sR, vW2R = 8, 11, 14
vHW, vHW8 = 20, 21
vHB = (22, 23, 25)
vBias, vBiasS, vEXW, vEXR, vGA, vTmp, vTmp2, vDummy = 24, 25, 26, 27, 28, 29, 30, 31
vXR = 32
vP8off, vOutM, vB2m, vOut8, vB28 = 40, 41, 42, 44, 45
vW2c, vW2cR = 47, 8
vSec, vPF = 46, 47
vT, vP, vWF = 48, 56, 64
vS = (80, 96)
vXF = 112
vStamp = 0
vOne, vFv, vPoll = vX0, vX1, 12

NBLK, HB = 20, 10
HBASE, BIAS, EXB, XWIN0 = HB*8192, 19*8192, 18*8192, 7*8192

class St: pass
def build_stages():
    st = []
    for j in range(4):
        for s in range(9):
            a = St(); a.kind = "d"; a.j = j; a.s = s; a.nm = 4; st.append(a)
    for i in range(5):
        a = St(); a.kind = "s"; a.i = i; a.nm = 4 if i < 4 else 2; a.rowbase = 128*i if i < 4 else 448; st.append(a)
    KB = {"o": 0, "r": 9}
    def dbl(pos, t, i=0):
        a = St(); a.kind = "b"; a.sub = "d"; a.pos = pos; a.t = t; a.i = i
        ks = (8, 17) if t == "m" else (KB[t]+2*i, KB[t]+2*i+1)
        a.parts = [(pos, dl, ks[kk], None, kk) for dl in range(2) for kk in range(2)]
        a.order = [(2*(q//4) + q % 2, (q//2) % 2) for q in range(8)]
        return a
    def sgl(t, i=0):
        a = St(); a.kind = "b"; a.sub = "c"; a.pos = 0; a.t = t; a.i = i
        ks = (8, 17) if t == "m" else [KB[t]+4*i+q for q in range(4)]
        a.parts = [(0, 0, k, None, q) for q, k in enumerate(ks)]
        a.order = [(2*(q//4) + q % 2, (q//2) % 2) for q in range(2*len(ks))]
        return a
    st += [dbl(1, "o", i) for i in range(4)] + [sgl("o", 0), sgl("o", 1)] + [dbl(2, "o", i) for i in range(4)]
    st += [dbl(1, "r", 0), dbl(2, "r", 0), dbl(1, "r", 1), dbl(2, "r", 1), sgl("r", 0), dbl(1, "r", 2), dbl(2, "r", 2)]
    st += [dbl(1, "r", 3), dbl(2, "r", 3), sgl("r", 1), dbl(1, "m"), dbl(2, "m"), sgl("m")]
    blocks = [("o", i) for i in range(4)] + [("r", i) for i in range(4)] + [("m", 0)]
    st += [dbl(3, t, i) for t, i in blocks]
    L0 = len(st)
    fr = []
    for dl in range(2):
        for bi, (t, i) in enumerate(blocks):
            ks = (8, 17) if t == "m" else (KB[t]+2*i, KB[t]+2*i+1)
            fr += [(4, dl, ks[0], L0+bi, 0), (4, dl, ks[1], L0+bi, 1)]
    for gi in range(9):
        a = St(); a.kind = "b"; a.sub = "d"; a.pos = 4; a.t, a.i = blocks[gi]; a.parts = fr[4*gi:4*gi+4]
        a.order = [(2*(q//4) + q % 2, (q//2) % 2) for q in range(8)]
        st.append(a)
    for n, a in enumerate(st):
        a.n = n
        if a.kind == "b":
            a.nm = len(a.order)
            a.parts = [(p, d, k, (n if u is None else u), sl) for (p, d, k, u, sl) in a.parts]
    return st, L0
ST, LAST0 = build_stages()
NST = len(ST)
B0 = 41
HWSTAGE = {0: 9+3, 1: 18+3, 2: 27+3, 3: 36+1}
FIRSTUSE = {}
for a_ in ST[B0:]:
    for (p_, d_, k_, u_, s_) in a_.parts: FIRSTUSE.setdefault(k_, a_.n)
HREAD = {0: 37, 1: 37, 2: 38, 3: 38, 4: 39, 5: 39, 6: B0+1, 7: B0+1, 8: B0+6}
for k_ in range(9, 18): HREAD[k_] = FIRSTUSE[k_] - 2
HFREE_OWN = {k: HREAD[k] + 2 for k in range(9)}

def plan():
    BAR = set()
    for n in range(NST):
        if n >= LAST0:
            if n in IL(cfg.lastbar): BAR.add(n)
        elif n < 9 or 35 <= n <= 64 or n in IL(cfg.hpub) + IL(cfg.hchk) + [I(cfg.cchk)]: BAR.add(n)
        elif n < 35:
            if (n - 9) % I(cfg.barA) == 0: BAR.add(n)
        elif (LAST0 - 1 - n) % I(cfg.barB) == 0: BAR.add(n)
    bars = sorted(BAR)
    def first_read(u):
        if u[0] == "h": return HREAD[u[1]]
        return LAST0 - 1 if (u[0] == "w" and u[1] >= LAST0) else u[1] - 1
    def last_use(u):
        if u[0] == "h": return HREAD[u[1]] + 1
        return NST if (u[0] == "w" and u[1] >= LAST0) else u[1]
    res = {HB+k: (HWSTAGE[k//2], HFREE_OWN[k]) for k in range(8)}
    res[HB+8] = (B0, HFREE_OWN[8]); res[19] = (-99, B0+2)
    units = []
    for n in range(NST):
        if n < 9: units.append(("x", n))
        units.append(("w", n))
    hc = IL(cfg.hchk)
    hq = [(("h", k), IL(cfg.hiss)[k-9]) for k in range(9, 18)]
    for (u, b) in hq: assert b >= hc[[0, 0, 0, 0, 1, 1, 2, 2, 3][u[1]-9]]
    allunits = units + [u for u, _ in hq]
    busy = {}; issue = {}; blk = {}; land = {}
    ui = 0
    def freebar(u):
        c = [b for b in bars if b >= last_use(u)+1]
        return c[0] if c else 10**6
    def ok(b, u, bar):
        if b in busy: return False
        if b in res:
            a0, a1 = res[b]
            lb = max([x for x in [-3, -2, -1]+bars if x <= a0] or [-99])
            if not (freebar(u) <= lb or bar >= a1): return False
        return True
    for bar in [-3, -2, -1] + bars:
        for b in [b for b, u in busy.items() if freebar(u) <= bar]: del busy[b]
        lst = []
        nxt = min([b for b in bars if b > bar] or [NST])
        cap = 2*(nxt - bar) if bar >= 0 else 99
        if bar == -3: horizon = I(cfg.g0) - 1
        elif bar == -2: horizon = I(cfg.g1) - 1
        elif bar < 4: horizon = bar + I(cfg.look0)
        elif bar < IL(cfg.hiss)[0] - 4: horizon = nxt - 1 + I(cfg.lookA)
        elif bar < B0 - 2: horizon = nxt - 1 + I(cfg.lookA2)
        else: horizon = nxt - 1 + I(cfg.lookB)
        nh = 0
        while hq and hq[0][1] <= bar and nh < I(cfg.hrate):
            u = hq[0][0]; c = [b for b in range(NBLK) if ok(b, u, bar)]
            if not c: break
            busy[c[0]] = u; blk[u] = c[0]; lst.append(u); hq.pop(0); nh += 1
        while ui < len(units):
            u = units[ui]; kind, m = u
            if min(m, LAST0) > horizon: break
            if hq and hq[0][1] <= bar + 1 and m > bar + 5: break
            if kind == "x":
                c = [b for b in range(7, 18, 2) if ok(b, u, bar) and ok(b+1, u, bar)]
                if not c: break
                b = c[0]; busy[b] = u; busy[b+1] = u
            else:
                c = [b for b in range(NBLK) if ok(b, u, bar)]
                if any(k == "x" for k, _ in units[ui:]): c = [b for b in c if b < 7]
                if not c: break
                b = c[0]; busy[b] = u
            blk[u] = b; lst.append(u); ui += 1
            if len([x for x in lst if x[0] == "w"]) >= cap: break
        issue[bar] = lst
    assert ui == len(units) and not hq
    for u in allunits:
        lb = max(b for b in [-1]+bars if b <= first_read(u))
        land.setdefault(lb, []).append(u)
        ib = [bar for bar, l in issue.items() if u in l][0]
        assert ib < lb, (u, ib, lb)
    return BAR, issue, blk, land

def win(a): return a // 65536, a % 65536

NSTAMP = 16
def snames(): return cfg.stamps.split(",") if isinstance(cfg.stamps, str) else []
def stamp(s, name):
    if name not in snames(): return
    s.wait_all(v=False)
    s.salu("s_memtime s[100:101]" if cfg.cyc else "s_memrealtime s[100:101]")
    s.wait_all(v=False)
    s.valu(f"v_writelane_b32 v{vStamp}, s100, {snames().index(name)+1}", wr=[vStamp])
def stamp_flush(s):
    if not cfg.stamps: return
    s.salu(f"s_lshl_b32 s{sT0}, s2, 3"); s.salu(f"s_add_u32 s{sT0}, s{sT0}, s{sW}"); s.salu(f"s_mul_i32 s{sT0}, s{sT0}, {4*NSTAMP}")
    s.salu(f"s_add_u32 s{sT0}, s{sT0}, {128<<20}")
    s.salu(f"s_mov_b32 s{R_WS+2}, 0x10000000")
    s.valu(f"v_lshlrev_b32 v{vTmp}, 2, v{vLane}", wr=[vTmp], rd=[vLane])
    s.valu(f"v_cmp_gt_u32 vcc, {NSTAMP}, v{vLane}", rd=[vLane], swr=["vcc"])
    s.valu(f"v_mov_b32 v{vTmp2}, {OOB}", wr=[vTmp2])
    s.salu("s_nop 1")
    s.valu(f"v_cndmask_b32 v{vTmp}, v{vTmp2}, v{vTmp}, vcc", wr=[vTmp], rd=[vTmp, vTmp2])
    s.vstore("buffer_store_dword", vStamp, 1, vTmp, R_WS, f"s{sT0}")

def srd(s, r, base, size):
    if r != base:
        s.salu(f"s_mov_b32 s{r}, s{base}"); s.salu(f"s_mov_b32 s{r+1}, s{base+1}")
    s.salu(f"s_mov_b32 s{r+2}, {size}"); s.salu(f"s_mov_b32 s{r+3}, 0x20000")

class Ops:
    def __init__(self, s): self.s = s
    def V(self, text, wr=(), rd=(), **k): self.s.valu(text, wr=wr, rd=rd, **k)
    def S(self, text, **k): self.s.salu(text, **k)

def prologue(p):
    o = Ops(p); V, S = o.V, o.S
    S("s_cmp_ge_u32 s2, 256"); S("s_cbranch_scc1 L_main_end")
    if cfg.stamps: S("s_memtime s[98:99]" if cfg.cyc else "s_memrealtime s[98:99]")
    S("s_load_dwordx16 s[4:19], s[0:1], 0")
    L = vLane; a, b = vTmp, vTmp2
    V(f"v_lshrrev_b32 v{a}, 6, v0", [a]); V(f"v_and_b32 v{L}, 63, v0", [L])
    V(f"v_readfirstlane_b32 s{sW}, v{a}", rd=[a], swr=[sW])
    S(f"s_and_b32 s{sT0}, s2, 7"); S(f"s_lshr_b32 s{sT1}, s2, 3")
    S(f"s_and_b32 s{sMT}, s{sT0}, 1"); S(f"s_lshl_b32 s{sMT}, s{sMT}, 3")
    S(f"s_lshr_b32 s{sFS}, s{sT1}, 2"); S(f"s_add_u32 s{sMT}, s{sMT}, s{sFS}")
    S(f"s_lshr_b32 s{sFS}, s{sT0}, 1"); S(f"s_lshl_b32 s{sFS}, s{sFS}, 2")
    S(f"s_and_b32 s{sT1}, s{sT1}, 3"); S(f"s_add_u32 s{sFS}, s{sFS}, s{sT1}")
    S(f"s_and_b32 s{sRG}, s{sW}, 3", srd=[sW])
    S(f"s_and_b32 s{sE}, s{sFS}, 1"); S(f"s_lshl_b32 s{sD0}, s{sE}, 5")
    S(f"s_lshl_b32 s{sT0}, s{sMT}, 7"); S(f"s_lshl_b32 s{sT1}, s{sRG}, 5"); S(f"s_add_u32 s{sT0}, s{sT0}, s{sT1}")
    S(f"s_mul_i32 s{sXo}, s{sT0}, 1152")
    S(f"s_lshl_b32 s{sLx}, s{sRG}, 12"); S(f"s_lshl_b32 s{sLw}, s{sRG}, 11")
    S(f"s_mul_i32 s{sU0}, s{sFS}, 576")
    S(f"s_mul_i32 s{sT1}, s{sRG}, {16*9216}"); S(f"s_add_u32 s{sW1d}, s{sU0}, s{sT1}")
    S(f"s_lshl_b32 s{sT1}, s{sD0}, 1"); S(f"s_add_u32 s{sW1d}, s{sW1d}, s{sT1}")
    V(f"v_lshrrev_b32 v{a}, 3, v{L}", [a], [L])
    V(f"v_mul_u32_u24 v{vX0}, 1152, v{a}", [vX0], [a])
    V(f"v_mul_u32_u24 v{vW1d}, 9216, v{a}", [vW1d], [a])
    V(f"v_mov_b32 v{vW2}, v{vX0}", [vW2], [vX0])
    V(f"v_lshrrev_b32 v{a}, 4, v{L}", [a], [L])
    V(f"v_and_b32 v{b}, 7, v{L}", [b], [L])
    V(f"v_xor_b32 v{vX1}, v{a}, v{b}", [vX1], [a, b])
    V(f"v_lshl_add_u32 v{vX0}, v{vX1}, 4, v{vX0}", [vX0], [vX1, vX0])
    V(f"v_xor_b32 v{vX1}, 64, v{vX0}", [vX1], [vX0])
    V(f"v_add_u32 v{vX1}, {9216-1024}, v{vX1}", [vX1], [vX1])
    V(f"v_and_b32 v{a}, 1, v{a}", [a], [a]); V(f"v_lshlrev_b32 v{a}, 2, v{a}", [a], [a])
    V(f"v_xor_b32 v{b}, v{a}, v{b}", [b], [a, b])
    V(f"v_lshl_add_u32 v{vW1d}, v{b}, 4, v{vW1d}", [vW1d], [b, vW1d])
    V(f"v_lshlrev_b32 v{vBias}, 1, v0", [vBias])
    if I(cfg.pfcode) == 1: code_prefetch(p, "p")
    p.wait_all(v=False)
    srd(p, R_X, S_X, M*D*2); srd(p, R_W1, S_W1, D*F*2)

def code_prefetch(s, tag):
    a = vT+6
    s.salu(f"s_getpc_b64 s[{sPc}:{sPc+1}]" if sPc % 2 == 0 else f"s_getpc_b64 s[{sPc+1}:{sPc+2}]")
    b = sPc if sPc % 2 == 0 else sPc + 1
    s.raw(f"L_pc_{tag}:")
    s.salu(f"s_sub_u32 s{b}, s{b}, L_pc_{tag}-{NAME}_kernel"); s.salu(f"s_subb_u32 s{b+1}, s{b+1}, 0")
    s.salu(f"s_lshr_b32 s{sU1}, s2, 3"); s.salu(f"s_lshl_b32 s{sU1}, s{sU1}, 3"); s.salu(f"s_add_u32 s{sU1}, s{sU1}, s{sW}", srd=[sW]); s.salu(f"s_lshl_b32 s{sU1}, s{sU1}, 8")
    s.valu(f"v_and_b32 v{a}, 1, v{vLane}", wr=[a], rd=[vLane]); s.valu(f"v_lshl_add_u32 v{a}, v{a}, 7, s{sU1}", wr=[a], rd=[a])
    s.valu(f"v_min_u32 v{a}, L_main_end-{NAME}_kernel, v{a}", wr=[a], rd=[a])
    from emit import Ins
    s.add(Ins(f"global_load_dword v{vDummy}, v{a}, s[{b}:{b+1}]", "vld", rd=[a], wr=[vDummy])); s._tok("v")

def dma2(s, voff, r, soff, second):
    t = s.dma(voff, r, soff, {R_X: cfg.fl_x, R_W1: cfg.fl_w1, R_W2: cfg.fl_w2, R_WS: cfg.hl_flags}[r])
    if second: s.ins[-1].text = s.ins[-1].text.replace(" offen", " offen offset:1024")
    return t

class Issuer:
    def __init__(self, s, half, BLK, utok): self.s, self.half, self.BLK, self.utok = s, half, BLK, utok; self.sec = None
    def pieces(self, u):
        s, half = self.s, self.half
        kind, m = u; b = self.BLK[u]; out = []
        if kind == "x":
            def first():
                s.salu(f"s_add_u32 m0, s{sLx}, {b*8192 + half*2048}", swr=["m0"])
                s.salu(f"s_add_u32 s{sT0}, s{sXo}, {16*half*1152 + m*128}")
                self.utok[u] = dma2(s, vX0, R_X, f"s{sT0}", False)
            def second(): self.utok[u] = dma2(s, vX1, R_X, f"s{sT0}", True)
            return [first, second]
        if kind == "h":
            if half != 1: return []
            def first():
                s.salu(f"s_add_u32 m0, s{sLw}, {b*8192}", swr=["m0"])
                s.salu(f"s_add_u32 s{sT0}, s{sHXr}, {(m-9)*8192}" if not cfg.nohld else f"s_mov_b32 s{sT0}, {OOB}")
                self.utok[u] = dma2(s, vL16, R_WS, f"s{sT0}", False)
            def second(): self.utok[u] = dma2(s, vL16, R_WS, f"s{sT0}", True)
            return [first, second]
        a = ST[m]
        if m < 9:
            def one():
                s.salu(f"s_add_u32 m0, s{sLw}, {b*8192 + half*1024}", swr=["m0"])
                s.salu(f"s_add_u32 s{sT0}, s{sW1d}, {(64*a.s + 8*half)*9216}")
                self.utok[u] = dma2(s, vW1d, R_W1, f"s{sT0}", False)
            return [one]
        if half != 0: return []
        if a.kind == "d": v, r, base, imm, step = vW1d, R_W1, sW1d, 64*a.s*9216 + a.j*128, 8*9216
        elif a.kind == "s": v, r, base, imm, step = vW1s, R_W1, sW1s, a.rowbase*9216, 16*9216
        elif a.sub == "d": v, r, base, imm, step = vW2, R_W2, sW2 + 4*"orm".index(a.t) + a.pos-1, 64*a.i*1152, 8*1152
        else: v, r, base, imm, step = vW2c, R_W2, sC3 + "orm".index(a.t), 128*a.i*1152, 16*1152
        def first():
            if self.sec != v:
                s.valu(f"v_add_u32 v{vSec}, {step-1024}, v{v}", wr=[vSec], rd=[v]); self.sec = v
            s.salu(f"s_add_u32 m0, s{sLw}, {b*8192}", swr=["m0"])
            if imm: s.salu(f"s_add_u32 s{sT0}, s{base}, {imm}")
            else: s.salu("s_nop 0")
            self.so = f"s{sT0}" if imm else f"s{base}"
            self.utok[u] = dma2(s, v, r, self.so, False)
        def second(): self.utok[u] = dma2(s, vSec, r, self.so, True)
        return [first, second]

def setup_main(s, half):
    o = Ops(s); V, S = o.V, o.S
    L = vLane; a, b = vTmp, vTmp2; ch = half
    r, c8, t, hh = vT, vT+1, vT+2, vT+3
    srd(s, R_B1, S_B1, F*2)
    tokb = s.vload("buffer_load_ushort", vBiasS, 1, vBias, R_B1, f"s{sU0}")
    V(f"v_bfe_u32 v{r}, v{L}, 2, 2", [r], [L]); V(f"v_and_b32 v{c8}, 3, v{L}", [c8], [L]); V(f"v_lshlrev_b32 v{c8}, 3, v{c8}", [c8], [c8])
    V(f"v_lshrrev_b32 v{hh}, 5, v{L}", [hh], [L])
    V(f"v_lshl_add_u32 v{t}, v{hh}, 3, v{r}", [t], [hh, r])
    V(f"v_bfe_u32 v{b}, v{L}, 4, 1", [b], [L]); V(f"v_lshl_add_u32 v{b}, v{b}, 5, v{c8}", [b], [b, c8])
    V(f"v_lshl_add_u32 v{vW1sR}, v{t}, 6, v{b}", [vW1sR], [t, b])
    V(f"v_lshl_add_u32 v{vW1dR}, v{t}, 7, v{b}", [vW1dR], [t, b])
    V(f"v_lshrrev_b32 v{t}, 1, v{r}", [t], [r])
    if ch: V(f"v_xor_b32 v{t}, 1, v{t}", [t], [t])
    V(f"v_lshl_add_u32 v{vW1dR}, v{t}, 6, v{vW1dR}", [vW1dR], [t, vW1dR])
    for k in (1, 2):
        V(f"v_add_u32 v{vW1dR+k}, {65536*k}, v{vW1dR}", [vW1dR+k], [vW1dR]); V(f"v_add_u32 v{vW1sR+k}, {65536*k}, v{vW1sR}", [vW1sR+k], [vW1sR])
    V(f"v_and_b32 v{b}, 31, v{L}", [b], [L]); V(f"v_bfe_u32 v{t}, v{L}, 1, 3", [t], [L])
    V(f"v_xor_b32 v{t}, v{t}, v{hh}", [t], [t, hh]); V(f"v_lshlrev_b32 v{t}, 4, v{t}", [t], [t])
    V(f"v_lshl_add_u32 v{t}, v{b}, 7, v{t}", [t], [b, t]); V(f"v_add_u32 v{t}, s{sLx}, v{t}", [t], [t])
    for sp in range(4):
        V(f"v_xor_b32 v{vXR+sp}, {32*sp}, v{t}", [vXR+sp], [t])
        V(f"v_add_u32 v{vXR+4+sp}, {XWIN0+65536}, v{vXR+sp}", [vXR+4+sp], [vXR+sp])
        V(f"v_add_u32 v{vXR+sp}, {XWIN0}, v{vXR+sp}", [vXR+sp], [vXR+sp])
    V(f"v_lshlrev_b32 v{vL16}, 4, v{L}", [vL16], [L])
    V(f"v_mov_b32 v{vGA}, 0x{f2u(GA):08x}", [vGA]); S(f"s_mov_b32 s{sGB}, 0x{f2u(GB):08x}")
    S(f"s_lshr_b32 s{sPC}, s{sFS}, 2"); S(f"s_bfe_u32 s{sE2}, s{sFS}, 0x10001"); S(f"s_xor_b32 s{sT1}, s{sE}, 1"); S(f"s_lshl_b32 s{sS0}, s{sT1}, 8")
    if half == 0:
        S(f"s_mul_i32 s{sT1}, s{sRG}, {32*9216}"); S(f"s_add_u32 s{sW1s}, s{sU0}, s{sT1}")
        S(f"s_lshl_b32 s{sT1}, s{sS0}, 1"); S(f"s_add_u32 s{sW1s}, s{sW1s}, s{sT1}")
        V(f"v_lshrrev_b32 v{a}, 2, v{L}", [a], [L]); V(f"v_mul_u32_u24 v{vW1s}, 9216, v{a}", [vW1s], [a])
        V(f"v_lshl_add_u32 v{vW1s}, v{c8}, 1, v{vW1s}", [vW1s], [c8, vW1s])
        V(f"v_bfe_u32 v{a}, v{L}, 1, 2", [a], [L]); V(f"v_lshrrev_b32 v{b}, 4, v{L}", [b], [L]); V(f"v_xor_b32 v{a}, v{a}, v{b}", [a], [a, b])
        V(f"v_lshl_add_u32 v{vW2}, v{a}, 5, v{vW2}", [vW2], [a, vW2])
        V(f"v_and_b32 v{a}, 1, v{L}", [a], [L]); V(f"v_lshl_add_u32 v{vW2}, v{a}, 4, v{vW2}", [vW2], [a, vW2])
        V(f"v_lshrrev_b32 v{t}, 2, v{L}", [t], [L]); V(f"v_mul_u32_u24 v{vW2c}, 1152, v{t}", [vW2c], [t])
        V(f"v_lshl_add_u32 v{vW2c}, v{a}, 4, v{vW2c}", [vW2c], [a, vW2c])
        V(f"v_lshrrev_b32 v{a}, 1, v{L}", [a], [L]); V(f"v_xor_b32 v{a}, v{a}, v{b}", [a], [a, b]); V(f"v_and_b32 v{a}, 1, v{a}", [a], [a])
        V(f"v_lshl_add_u32 v{vW2c}, v{a}, 5, v{vW2c}", [vW2c], [a, vW2c])
    V(f"v_and_b32 v{a}, 15, v{L}", [a], [L]); V(f"v_mul_u32_u24 v{vOutM}, 1152, v{a}", [vOutM], [a])
    V(f"v_lshlrev_b32 v{vHW}, 4, v{a}", [vHW], [a])
    V(f"v_bfe_u32 v{a}, v{L}, 4, 1", [a], [L]); V(f"v_lshl_add_u32 v{vHW}, v{a}, 10, v{vHW}", [vHW], [a, vHW])
    V(f"v_lshl_add_u32 v{vHW}, v{hh}, 8, v{vHW}", [vHW], [hh, vHW]); V(f"v_add_u32 v{vHW}, s{sLw}, v{vHW}", [vHW], [vHW])
    V(f"v_add_u32 v{vHW8}, {HBASE + 8*8192 + ch*512}, v{vHW}", [vHW8], [vHW]); V(f"v_add_u32 v{vHW}, {HBASE + ch*8192}, v{vHW}", [vHW], [vHW])
    V(f"v_add_u32 v{vHB[0]}, s{sLw}, v{vL16}", [vHB[0]], [vL16])
    V(f"v_add_u32 v{vEXW}, {EXB + ch*8192}, v{vHB[0]}", [vEXW], [vHB[0]]); V(f"v_add_u32 v{vEXR}, {EXB + (1-ch)*8192}, v{vHB[0]}", [vEXR], [vHB[0]])
    V(f"v_add_u32 v{vHB[1]}, 65536, v{vHB[0]}", [vHB[1]], [vHB[0]])
    V(f"v_bfe_u32 v{a}, v{L}, 2, 3", [a], [L]); V(f"v_lshl_add_u32 v{b}, v{hh}, 4, v{a}", [b], [a, hh])
    V(f"v_lshl_add_u32 v{vW2R}, v{b}, 7, v{c8}", [vW2R], [b, c8])
    V(f"v_lshrrev_b32 v{a}, 1, v{a}", [a], [a]); V(f"v_xor_b32 v{a}, {2*ch+1}, v{a}", [a], [a]); V(f"v_xor_b32 v{a}, s{sE2}, v{a}", [a], [a])
    V(f"v_lshl_add_u32 v{vW2R}, v{a}, 5, v{vW2R}", [vW2R], [a, vW2R]); V(f"v_xor_b32 v{vW2R+3}, 32, v{vW2R}", [vW2R+3], [vW2R])
    for dl in range(2):
        for k in (1, 2): V(f"v_add_u32 v{vW2R+3*dl+k}, {65536*k}, v{vW2R+3*dl}", [vW2R+3*dl+k], [vW2R+3*dl])
    t0, t1, t2 = sU0, sU1, sSpin
    srd(s, R_W2, S_W2, F*D*2); srd(s, R_WS, S_WS, WS_BYTES)
    srd(s, R_B2, S_B2, D*2); srd(s, R_OUT, S_OUT, M*D*2)
    t3 = sP8
    for k in range(1, 4): S(f"s_add_u32 s{sPc+k}, s{sPC}, {k}"); S(f"s_and_b32 s{sPc+k}, s{sPc+k}, 3")
    S(f"s_mov_b32 s{sPc+4}, s{sPC}")
    S(f"s_lshr_b32 s{sClr}, s{sFS}, 1")
    if half == 0:
        S(f"s_mul_i32 s{t0}, s{sClr}, 576")
        S(f"s_mul_i32 s{t3}, s{sE}, 640")
        for ti in range(3):
            if ti == 0: S(f"s_mul_i32 s{t1}, s{sE}, 320")
            elif ti == 1: S(f"s_xor_b32 s{t1}, s{sE}, 1"); S(f"s_mul_i32 s{t1}, s{t1}, 320")
            if ti < 2:
                S(f"s_add_u32 s{t1}, s{t1}, s{t0}")
                S(f"s_lshl_b32 s{t2}, s{sRG}, 5"); S(f"s_add_u32 s{t2}, s{t2}, s{t1}"); S(f"s_mul_i32 s{sC3+ti}, s{t2}, 1152")
                S(f"s_lshl_b32 s{t2}, s{sRG}, 4"); S(f"s_add_u32 s{t1}, s{t1}, s{t2}")
            else:
                S(f"s_and_b32 s{t1}, s{sRG}, 1"); S(f"s_xor_b32 s{t2}, s{t1}, s{sE}"); S(f"s_lshl_b32 s{t2}, s{t2}, 5")
                S(f"s_add_u32 s{t2}, s{t2}, s{t0}"); S(f"s_add_u32 s{t2}, s{t2}, 256"); S(f"s_mul_i32 s{sC3+ti}, s{t2}, 1152")
                S(f"s_lshl_b32 s{t1}, s{t1}, 4"); S(f"s_lshr_b32 s{t2}, s{sRG}, 1"); S(f"s_xor_b32 s{t2}, s{t2}, s{sE}"); S(f"s_lshl_b32 s{t2}, s{t2}, 5")
                S(f"s_add_u32 s{t1}, s{t1}, s{t2}"); S(f"s_add_u32 s{t1}, s{t1}, s{t0}"); S(f"s_add_u32 s{t1}, s{t1}, 256")
            S(f"s_mul_i32 s{t1}, s{t1}, 1152"); S(f"s_add_u32 s{t1}, s{t1}, s{t3}")
            for pos in range(1, 5): S(f"s_lshl_b32 s{t2}, s{sPc+pos}, 7"); S(f"s_add_u32 s{sW2+4*ti+pos-1}, s{t1}, s{t2}")
        S(f"s_lshl_b32 s{t2}, s{sE}, 6"); S(f"s_add_u32 s{t2}, s{t2}, 512")
        for ti in range(3): S(f"s_add_u32 s{sC3+ti}, s{sC3+ti}, s{t2}")
    S(f"s_lshl_b32 s{t0}, s{sMT}, 1"); S(f"s_add_u32 s{t0}, s{t0}, s{sE}"); S(f"s_mul_i32 s{t0}, s{t0}, 72")
    S(f"s_lshl_b32 s{t3}, s{sClr}, 10")
    S(f"s_add_u32 s{t1}, s{t0}, s{sW}"); S(f"s_add_u32 s{t2}, s{t1}, 64"); S(f"s_lshl_b32 s{t2}, s{t2}, 13"); S(f"s_add_u32 s{sPc}, s{t2}, s{t3}")
    S(f"s_add_u32 s{t1}, s{t1}, s{sW}")
    S(f"s_lshl_b32 s{t2}, s{t1}, 13"); S(f"s_add_u32 s{t2}, s{t2}, s{t3}")
    for pos in range(1, 5): S(f"s_lshl_b32 s{sPc+pos}, s{sPc+pos}, 17"); S(f"s_add_u32 s{sPc+pos}, s{sPc+pos}, s{t2}")
    S(f"s_lshl_b32 s{sDt+1}, s{sE2}, 13"); S(f"s_xor_b32 s{sDt}, s{sDt+1}, 8192")
    S(f"s_lshl_b32 s{t2}, s{sPC}, 4"); S(f"s_add_u32 s{t1}, s{t1}, s{t2}"); S(f"s_add_u32 s{t1}, s{t1}, s{sE2}"); S(f"s_lshl_b32 s{t1}, s{t1}, 13")
    for k in range(1, 4):
        S(f"s_sub_u32 s{t2}, s{sPC}, {k}"); S(f"s_and_b32 s{t2}, s{t2}, 3"); S(f"s_lshl_b32 s{t2}, s{t2}, 11"); S(f"s_add_u32 s{sCo+k}, s{t1}, s{t2}")
    S(f"s_xor_b32 s{t2}, s{t3}, 1024"); S(f"s_add_u32 s{sCo}, s{t1}, s{t2}")
    S(f"s_add_u32 s{t0}, s{t0}, s{sClr}"); S(f"s_add_u32 s{t0}, s{t0}, 64"); S(f"s_lshl_b32 s{sP8}, s{t0}, 13")
    S(f"s_lshl_b32 s{t0}, s{sMT}, 4"); S(f"s_add_u32 s{t0}, s{t0}, s{sFS}"); S(f"s_xor_b32 s{t1}, s{t0}, 1")
    S(f"s_mul_i32 s{t0}, s{t0}, {9*8192}"); S(f"s_add_u32 s{sHXw}, s{t0}, {HX - HBASE}")
    S(f"s_mul_i32 s{t1}, s{t1}, {9*8192}"); S(f"s_add_u32 s{t1}, s{t1}, {HX}"); S(f"s_add_u32 s{sHXr}, s{t1}, s{sLw}")
    if cfg.noload:
        for k in range(4): S(f"s_mov_b32 s{sCo+k}, {OOB}")
        S(f"s_mov_b32 s{sP8}, {OOB}")
    S(f"s_mov_b32 s{sMask}, 0xffff0000")
    if half == 1:
        S(f"s_lshl_b32 s{t0}, s{sMT}, 15"); S(f"s_add_u32 s{t0}, s{t0}, {FLG}")
        S(f"s_cmp_eq_u32 s{sW}, 4"); S(f"s_cselect_b32 s{t0}, s{t0}, {OOB}"); S(f"s_cselect_b32 s{sTgt8}, 8, 0"); S(f"s_cselect_b32 s{sTgt1}, 1, 0")
        S(f"s_lshl_b32 s{t1}, s{sE}, 10"); S(f"s_add_u32 s{sCnt}, s{t0}, s{t1}")
        S(f"s_mul_i32 s{t1}, s{sFS}, 1024"); S(f"s_add_u32 s{t1}, s{t1}, 4096"); S(f"s_add_u32 s{sHfR}, s{t0}, s{t1}")
        S(f"s_xor_b32 s{t1}, s{sFS}, 1"); S(f"s_mul_i32 s{t1}, s{t1}, 1024"); S(f"s_add_u32 s{t1}, s{t1}, 4096"); S(f"s_add_u32 s{sHfW}, s{t0}, s{t1}")
        S(f"s_cmp_eq_u32 s{sFS}, 0"); S(f"s_cselect_b32 s{sT1}, s{t0}, {OOB}")
        if cfg.pf:
            nl = IL(cfg.pf)[2]; sh = I(cfg.pfshare); per = 2592//(sh*4) + (1 if 2592 % (sh*4) else 0)
            S(f"s_and_b32 s{t0}, s{sMT}, {sh-1}"); S(f"s_lshl_b32 s{t0}, s{t0}, 2"); S(f"s_add_u32 s{t0}, s{t0}, s{sRG}")
            S(f"s_mul_i32 s{t0}, s{t0}, {per*128}"); S(f"s_mul_i32 s{t1}, s{sFS}, {288*1152}"); S(f"s_add_u32 s{sPF}, s{t0}, s{t1}")
            if cfg.pf1b:
                nlr = IL(cfg.pf1b)[2]
                V(f"v_mul_u32_u24 v{a}, {-(-65536//nlr)}, v{L}", [a], [L]); V(f"v_lshrrev_b32 v{a}, 16, v{a}", [a], [a])
                V(f"v_mul_u32_u24 v{b}, {nlr}, v{a}", [b], [a]); V(f"v_sub_u32 v{b}, v{L}, v{b}", [b], [L, b])
                V(f"v_add_u32 v{b}, {5-nlr}, v{b}", [b], [b]); V(f"v_add_u32 v{b}, s{sE}, v{b}", [b], [b])
                V(f"v_cmp_eq_u32 vcc, 5, v{b}", rd=[b], swr=["vcc"]); V(f"v_mul_u32_u24 v{a}, 9216, v{a}", [a], [a]); S("s_nop 0")
                V(f"v_cndmask_b32 v{b}, v{b}, 0, vcc", [b], [b])
                V(f"v_lshl_add_u32 v{a}, v{b}, 7, v{a}", [a], [a, b])
                V(f"v_cmp_gt_u32 vcc, {3*nlr}, v{L}", rd=[L], swr=["vcc"]); V(f"v_mov_b32 v{b}, {OOB}", [b]); S("s_nop 0")
                V(f"v_cndmask_b32 v{vW1s}, v{b}, v{a}, vcc", [vW1s], [a, b])
            if cfg.pf1c:
                S(f"s_lshl_b32 s{t0}, s2, 2"); S(f"s_add_u32 s{t0}, s{t0}, s{sRG}"); S(f"s_mul_i32 s{sW1s}, s{t0}, {81*64}")
                S(f"s_and_b32 s{sW1s}, s{sW1s}, 0xffffff80")
            if cfg.pf1 or cfg.pf1b:
                S(f"s_lshl_b32 s{t0}, s{sMT}, 2"); S(f"s_add_u32 s{t0}, s{t0}, s{sRG}"); S(f"s_mul_i32 s{t0}, s{t0}, {9*9216}")
                S(f"s_mul_i32 s{t1}, s{sFS}, 576"); S(f"s_and_b32 s{t1}, s{t1}, 0xffffff80"); S(f"s_add_u32 s{sW1s}, s{t0}, s{t1}")
            V(f"v_lshlrev_b32 v{a}, 7, v{L}", [a], [L]); V(f"v_cmp_gt_u32 vcc, {nl}, v{L}", rd=[L], swr=["vcc"]); V(f"v_mov_b32 v{b}, {OOB}", [b]); S("s_nop 0")
            V(f"v_cndmask_b32 v{vPF}, v{b}, v{a}, vcc", [vPF], [a, b])
    V(f"v_lshrrev_b32 v{a}, 3, v{L}", [a], [L]); V(f"v_lshlrev_b32 v{a}, 10, v{a}", [a], [a])
    V(f"v_and_b32 v{t}, 7, v{L}", [t], [L]); V(f"v_lshl_add_u32 v{a}, v{t}, 4, v{a}", [a], [a, t])
    S(f"s_lshl_b32 s{t0}, s{sW}, 7"); V(f"v_add_u32 v{vP8off}, s{t0}, v{a}", [vP8off], [a])
    V(f"v_lshrrev_b32 v{b}, 4, v{L}", [b], [L]); V(f"v_lshlrev_b32 v{b}, 3, v{b}", [b], [b]); V(f"v_add_u32 v{vOutM}, v{vOutM}, v{b}", [vOutM], [vOutM, b])
    S(f"s_lshl_b32 s{t0}, s{sPC}, 7"); S(f"s_lshl_b32 s{t1}, s{sE2}, 5"); S(f"s_add_u32 s{t0}, s{t0}, s{t1}"); S(f"s_add_u32 s{t0}, s{t0}, {64*ch}")
    S(f"s_mul_i32 s{t1}, s{sE}, 640"); S(f"s_add_u32 s{t0}, s{t0}, s{t1}")
    S(f"s_add_u32 s{sOutM}, s{sXo}, s{t0}")
    hb0 = s.vload("buffer_load_dwordx2", vB2m, 2, b, R_B2, f"s{t0}")
    S(f"s_and_b32 s{t0}, s{sW}, 1"); S(f"s_lshl_b32 s{t0}, s{t0}, 3")
    V(f"v_add_u32 v{a}, s{t0}, v{t}", [a], [t]); V(f"v_lshl_add_u32 v{a}, v{hh}, 4, v{a}", [a], [a, hh]); V(f"v_mul_u32_u24 v{a}, 1152, v{a}", [a], [a])
    V(f"v_bfe_u32 v{b}, v{L}, 4, 1", [b], [L]); V(f"v_lshlrev_b32 v{b}, 2, v{b}", [b], [b]); V(f"v_add_u32 v{vOut8}, v{a}, v{b}", [vOut8], [a, b])
    S(f"s_lshr_b32 s{t0}, s{sClr}, 2"); S(f"s_lshl_b32 s{t0}, s{t0}, 5"); S(f"s_lshl_b32 s{t1}, s{sE}, 6"); S(f"s_add_u32 s{t0}, s{t0}, s{t1}")
    S(f"s_lshr_b32 s{t1}, s{sW}, 1"); S(f"s_lshl_b32 s{t1}, s{t1}, 3"); S(f"s_add_u32 s{t0}, s{t0}, s{t1}"); S(f"s_add_u32 s{t0}, s{t0}, 512")
    hb1 = s.vload("buffer_load_dword", vB28, 1, b, R_B2, f"s{t0}")
    S(f"s_and_b32 s{t1}, s{sClr}, 3"); S(f"s_lshl_b32 s{t1}, s{t1}, 5"); S(f"s_lshl_b32 s{sOut8}, s{sMT}, 7"); S(f"s_add_u32 s{t1}, s{t1}, s{sOut8}")
    S(f"s_mul_i32 s{t1}, s{t1}, 1152"); S(f"s_add_u32 s{sOut8}, s{t1}, s{t0}")
    V(f"v_and_b32 v{a}, 8, v{L}", [a], [L]); V(f"v_cmp_eq_u32 vcc, 0, v{a}", rd=[a], swr=["vcc"]); V(f"v_mov_b32 v{b}, {OOB}", [b]); S("s_nop 0")
    V(f"v_cndmask_b32 v{vOut8}, v{b}, v{vOut8}, vcc", [vOut8], [b, vOut8])
    if half == 1: S(f"s_mov_b32 s{sClr}, s{sT1}")
    S(f"s_lshl_b32 s{t0}, s{sD0}, 2"); S(f"s_add_u32 s{t0}, s{t0}, {BIAS + 128*ch}")
    S(f"s_lshl_b32 s{t1}, s{sS0}, 2"); S(f"s_add_u32 s{t1}, s{t1}, {BIAS}")
    V(f"v_lshlrev_b32 v{a}, 2, v0", [a]); V(f"v_add_u32 v{a}, {BIAS}, v{a}", [a], [a])
    V(f"v_lshl_add_u32 v{vBias}, v{hh}, 4, s{t0}", [vBias], [hh])
    s.wait(tokb)
    V(f"v_lshlrev_b32 v{b}, 16, v{vBiasS}", [b], [vBiasS])
    tb = s.ds_write("ds_write_b32", a, b, 1, 0)
    V(f"v_lshl_add_u32 v{vBiasS}, v{hh}, 4, s{t1}", [vBiasS], [hh])
    return tb, (hb0, hb1)

def gelu_group(s, regs, tb):
    ops = []
    T = [vT + (tb + i) % 8 for i in range(len(regs))]
    def V(text, **k): ops.append(lambda: s.valu(text, **k))
    for x, t in zip(regs, T): V(f"v_mul_f32 v{t}, v{x}, v{x}", wr=[t], rd=[x])
    for x, t in zip(regs, T): V(f"v_fma_f32 v{t}, v{t}, s{sGB}, v{vGA}", wr=[t], rd=[t, vGA])
    for x, t in zip(regs, T): V(f"v_mul_f32 v{t}, v{x}, v{t}", wr=[t], rd=[x, t])
    for x, t in zip(regs, T): V(f"v_exp_f32 v{t}, v{t}", wr=[t], rd=[t], trans=True)
    for x, t in zip(regs, T): V(f"v_add_f32 v{t}, 1.0, v{t}", wr=[t], rd=[t])
    for x, t in zip(regs, T): V(f"v_rcp_f32 v{t}, v{t}", wr=[t], rd=[t], trans=True)
    for x, t in zip(regs, T): V(f"v_mul_f32 v{x}, v{x}, v{t}", wr=[x], rd=[x, t])
    return ops
def cvt(s, d, a, b):
    return lambda: s.valu(f"v_cvt_pk_bf16_f32 v{d}, v{a}, v{b}", wr=[d], rd=[a, b])

def body(p, half, PLAN):
    BAR, ISSUE, BLK, LAND = PLAN
    s = Stream(p); ool = Stream(); ch = half
    utok = {}
    iss = Issuer(s, half, BLK, utok)
    def issue_all(bar):
        for u in ISSUE[bar]:
            for f in iss.pieces(u): f()
    issue_all(-3)
    if I(cfg.pfcode) == 2: code_prefetch(s, f"h{half}")
    if I(cfg.pfx):
        s0 = I(cfg.pfx); nl = 9 - s0; a_, b_ = vT+4, vT+5
        s.valu(f"v_mul_u32_u24 v{a_}, {-(-65536//nl)}, v{vLane}", wr=[a_], rd=[vLane]); s.valu(f"v_lshrrev_b32 v{a_}, 16, v{a_}", wr=[a_], rd=[a_])
        s.valu(f"v_mul_u32_u24 v{b_}, {nl}, v{a_}", wr=[b_], rd=[a_]); s.valu(f"v_sub_u32 v{b_}, v{vLane}, v{b_}", wr=[b_], rd=[vLane, b_])
        s.valu(f"v_mul_u32_u24 v{a_}, 1152, v{a_}", wr=[a_], rd=[a_]); s.valu(f"v_lshl_add_u32 v{a_}, v{b_}, 7, v{a_}", wr=[a_], rd=[a_, b_])
        s.valu(f"v_cmp_gt_u32 vcc, {4*nl}, v{vLane}", rd=[vLane], swr=["vcc"]); s.valu(f"v_mov_b32 v{b_}, {OOB}", wr=[b_])
        s.salu(f"s_and_b32 s{sT1}, s{sFS}, 3"); s.salu(f"s_lshl_b32 s{sT1}, s{sT1}, 3"); s.salu(f"s_add_u32 s{sT1}, s{sT1}, s{sW}")
        s.salu(f"s_lshl_b32 s{sU1}, s{sMT}, 5"); s.salu(f"s_add_u32 s{sT1}, s{sT1}, s{sU1}"); s.salu(f"s_mul_i32 s{sT1}, s{sT1}, {4*1152}"); s.salu(f"s_add_u32 s{sT1}, s{sT1}, {128*s0}")
        s.valu(f"v_cndmask_b32 v{a_}, v{b_}, v{a_}, vcc", wr=[a_], rd=[a_, b_])
        s.vload("buffer_load_dword", vDummy, 1, a_, R_X, f"s{sT1}")
        s.valu(f"v_mul_u32_u24 v{a_}, 9216, v{vLane}", wr=[a_], rd=[vLane]); s.valu(f"v_cmp_gt_u32 vcc, {nl}, v{vLane}", rd=[vLane], swr=["vcc"])
        s.salu(f"s_and_b32 s{sT1}, s{sMT}, 7"); s.salu(f"s_lshl_b32 s{sT1}, s{sT1}, 3"); s.salu(f"s_add_u32 s{sT1}, s{sT1}, s{sW}")
        s.salu(f"s_mul_i32 s{sT1}, s{sT1}, {nl*9216}"); s.salu(f"s_add_u32 s{sT1}, s{sT1}, {64*s0*9216}")
        s.salu(f"s_lshl_b32 s{sU1}, s{sD0}, 1"); s.salu(f"s_add_u32 s{sT1}, s{sT1}, s{sU1}"); s.salu(f"s_add_u32 s{sT1}, s{sT1}, s{sU0}")
        s.valu(f"v_cndmask_b32 v{a_}, v{b_}, v{a_}, vcc", wr=[a_], rd=[a_, b_])
        s.vload("buffer_load_dword", vDummy, 1, a_, R_W1, f"s{sT1}")
    tb, hb2 = setup_main(s, half)
    if cfg.stamps: s.valu(f"v_writelane_b32 v{vStamp}, s98, 0", wr=[vStamp])
    stamp(s, "setup")
    issue_all(-2)
    if half == 1:
        if "1" in cfg.pfpro: s.vload("buffer_load_dword", vDummy, 1, vPF, R_W1, f"s{sW1s}", flags=cfg.fl_pf)
        if "2" in cfg.pfpro: s.vload("buffer_load_dword", vDummy, 1, vPF, R_W2, f"s{sPF}", flags=cfg.fl_pf)
    if I(cfg.prio) == half: s.salu("s_setprio 1")

    xblk = lambda i: vXF + 16*i
    dead = [xblk(2*i + (1-ch)) for i in range(4)]
    used = [xblk(2*i + ch) for i in range(4)]
    Hreg = {(k, mt): dead[k//2] + (k % 2)*8 + mt*4 for k in range(8) for mt in range(2)}
    for mt in range(2): Hreg[(8, mt)] = xblk(8) + (1-ch)*8 + mt*4
    for k in range(8):
        for mt in range(2): Hreg[(9+k, mt)] = used[k//2] + (k % 2)*8 + mt*4
    for mt in range(2): Hreg[(17, mt)] = xblk(8) + ch*8 + mt*4
    accof = lambda pos: {0: vXR, 1: vS[1], 2: vS[0], 3: vS[1], 4: vS[0]}[pos]
    PK2 = vP

    fill = {}; cur = [-1]; need_bar = {}; need_mf = {}; prebar = {}
    def F(n, i, f):
        assert 0 <= n < NST and 0 <= i < ST[n].nm, (n, i)
        fill.setdefault((n, i), []).append(f)
    def spread(ops, n0, i0, n1, i1=None):
        gaps = [(n, i, 1.0 if ST[n].kind != "b" else 0.5) for n in range(n0, n1+1) for i in range(ST[n].nm)
                if not (n == n0 and i < i0) and not (n == n1 and i1 is not None and i > i1)]
        tot = sum(g[2] for g in gaps); acc = 0; k = 0
        for (n, i, w) in gaps:
            acc += w; tgt = int(round(len(ops)*acc/tot))
            while k < tgt: F(n, i, ops[k]); k += 1
    def hold(): return [None]
    def before_bar(n, h): need_bar.setdefault(min(b for b in BAR if b >= n), []).append(h)
    def before_mfma(n, i, h): need_mf.setdefault((n, i), []).append(h)

    if half == 1:
        hclr = hold()
        def clr():
            s.valu(f"v_lshlrev_b32 v{vTmp}, 8, v{vLane}", wr=[vTmp], rd=[vLane]); s.valu(f"v_mov_b32 v{vTmp2}, {OOB}", wr=[vTmp2])
            s.valu(f"v_mov_b32 v{vFv}, 0", wr=[vFv])
            s.vstore("buffer_store_dword", vFv, 1, vTmp, R_WS, f"s{sClr}", flags=cfg.st_flags)
            s.salu(f"s_add_u32 s{sClr}, s{sClr}, 16384")
            hclr[0] = s.vstore("buffer_store_dword", vFv, 1, vTmp, R_WS, f"s{sClr}", flags=cfg.st_flags)
            s.valu(f"v_cmp_eq_u32 vcc, 0, v{vLane}", rd=[vLane], swr=["vcc"]); s.salu("s_nop 1")
            s.valu(f"v_cndmask_b32 v{vOne}, v{vTmp2}, v{vFv}, vcc", wr=[vOne], rd=[vTmp2, vFv])
        assert all(u[0] != "x" for b in ISSUE if b >= I(cfg.clr_stage) for u in ISSUE[b])
        F(I(cfg.clr_stage), 3, clr)
        def arrive():
            srd(s, R_DBG, S_DBG, 256)
            s.salu(f"s_lshl_b32 s{sU0}, s{sMT}, 2")
            s.salu(f"s_cmp_lg_u32 s{sW}, 4"); s.salu(f"s_cselect_b32 s{sU0}, 1024, s{sU0}")
            s.salu(f"s_cmp_lg_u32 s{sFS}, 0"); s.salu(f"s_cselect_b32 s{sU0}, 1024, s{sU0}")
            s.wait(hclr[0])
            s.valu(f"v_mov_b32 v{vFv}, 1", wr=[vFv])
            s.vstore("buffer_atomic_add", vFv, 1, vOne, R_DBG, f"s{sU0}")
        F(7 if False else I(cfg.arr_stage), 2, arrive)
        if cfg.pf and "2" not in cfg.pfpro:
            n0, n1, nl = IL(cfg.pf); sh = I(cfg.pfshare); per = -(-2592//(sh*4)); cnt = -(-per//nl)
            for q in range(cnt):
                def pf(q=q):
                    s.vload("buffer_load_dword", vDummy, 1, vPF, R_W2, f"s{sPF}", flags=cfg.fl_pf)
                    s.salu(f"s_add_u32 s{sPF}, s{sPF}, {nl*128}")
                g = q*(n1 - n0 + 1)*4//cnt
                F(n0 + g//4, g % 4, pf)
        if cfg.pf1c and "1" not in cfg.pfpro:
            n0, n1 = IL(cfg.pf1c); nl = IL(cfg.pf)[2]; cnt = -(-41//nl)
            for q in range(cnt):
                def pf1c():
                    s.vload("buffer_load_dword", vDummy, 1, vPF, R_W1, f"s{sW1s}", flags=cfg.fl_pf)
                    s.salu(f"s_add_u32 s{sW1s}, s{sW1s}, {nl*128}")
                g = q*(n1 - n0 + 1)*4//cnt
                F(n0 + g//4, g % 4, pf1c)
        if cfg.pf1b:
            n0, n1, _ = IL(cfg.pf1b)
            for q in range(3):
                def pf1b():
                    s.vload("buffer_load_dword", vDummy, 1, vW1s, R_W1, f"s{sW1s}", flags=cfg.fl_pf)
                    s.salu(f"s_add_u32 s{sW1s}, s{sW1s}, {3*9216}")
                g = q*(n1 - n0 + 1)*4//3
                F(n0 + g//4, g % 4, pf1b)
        if cfg.pf1:
            n0, n1 = IL(cfg.pf1)
            for q in range(9):
                def pf1():
                    s.vload("buffer_load_dword", vDummy, 1, vPF, R_W1, f"s{sW1s}", flags=cfg.fl_pf)
                    s.salu(f"s_add_u32 s{sW1s}, s{sW1s}, 9216")
                g = q*(n1 - n0 + 1)*4//9
                F(n0 + g//4, g % 4, pf1)

    hst = [hold(), hold(), hold(), hold()]; hst0b = hold()
    late = []
    def LV(text, wr, rd): late.append(lambda: s.valu(text, wr=wr, rd=rd))
    a_, b_ = vTmp, vTmp2
    LV(f"v_bfe_u32 v{a_}, v{vLane}, 2, 3", [a_], [vLane]); LV(f"v_lshrrev_b32 v{b_}, 5, v{vLane}", [b_], [vLane])
    LV(f"v_lshl_add_u32 v{a_}, v{b_}, 4, v{a_}", [a_], [a_, b_]); LV(f"v_and_b32 v{b_}, 3, v{vLane}", [b_], [vLane])
    LV(f"v_lshlrev_b32 v{b_}, 3, v{b_}", [b_], [b_]); LV(f"v_lshl_add_u32 v{a_}, v{a_}, 6, v{b_}", [a_], [a_, b_])
    LV(f"v_bfe_u32 v{b_}, v{vLane}, 4, 1", [b_], [vLane])
    if ch: LV(f"v_xor_b32 v{b_}, 1, v{b_}", [b_], [b_])
    LV(f"v_lshl_add_u32 v{vW2cR}, v{b_}, 5, v{a_}", [vW2cR], [a_, b_])
    for k in (1, 2): LV(f"v_add_u32 v{vW2cR+k}, {65536*k}, v{vW2cR}", [vW2cR+k], [vW2cR])
    LV(f"v_add_u32 v{vHB[2]}, 131072, v{vHB[0]}", [vHB[2]], [vHB[0]])
    for f in late: F(36, 1, f)
    for j in range(4):
        S = vS[j % 2]; ops = []
        for e in range(2):
            if IL(cfg.gg)[0 if j < 3 else 1] == 8:
                ops += gelu_group(s, [S+8*e+i for i in range(8)], 0)
                for q in range(4): ops.append(cvt(s, vP+4*e+q, S+8*e+2*q, S+8*e+2*q+1))
            else:
                for g in (2*e, 2*e+1):
                    ops += gelu_group(s, [S+4*g+i for i in range(4)], 4*g)
                    ops.append(cvt(s, vP+2*g, S+4*g, S+4*g+1)); ops.append(cvt(s, vP+2*g+1, S+4*g+2, S+4*g+3))
            h = hold()
            def wr(h=h, e=e, j=j):
                assert cur[0] >= HWSTAGE[j], (j, cur[0])
                h[0] = s.ds_write("ds_write_b128", vHW, vP+4*e, 4, 2*j*8192 + e*512)
            ops.append(wr)
            def gw(e=e, j=j):
                s.salu(f"s_add_u32 s{sT1}, s{sHXw}, {2*j*8192 + e*512}" if not cfg.nohst else f"s_mov_b32 s{sT1}, {OOB}")
                hst[max(j-1, 0)][0] = s.vstore("buffer_store_dwordx4", vP+4*e, 4, vHW, R_WS, f"s{sT1}", flags=cfg.h_flags)
            if not (cfg.hdelay and j < 2): ops.append(gw)
            before_bar(min(9*(j+2), 36) if j < 3 else B0+1, h)
        if j < 3: spread(ops, 9*(j+1), 2, 9*(j+1)+7)
        else: spread(ops, 36, 2, *IL(cfg.g3end))
    if cfg.hdelay:
        n0, n1 = IL(cfg.hdelay); gaps = [(n, i) for n in range(n0, n1+1) for i in range(4)]
        for k in range(4):
            h = hold(); g = k*(len(gaps)-3)//4; R = vXR + 4*(k % 2)
            def rd(h=h, k=k, R=R):
                w_, o_ = win((HB+k)*8192 + ch*1024)
                h[0] = s.ds_read("ds_read_b128", R, 4, vHB[w_], o_)
            def st_(h=h, k=k, R=R):
                s.wait(h[0])
                s.salu(f"s_add_u32 s{sT1}, s{sHXw}, {k*8192 + HBASE + ch*1024}" if not cfg.nohst else f"s_mov_b32 s{sT1}, {OOB}")
                t = s.vstore("buffer_store_dwordx4", R, 4, vHB[0], R_WS, f"s{sT1}", flags=cfg.h_flags)
                hst0b[0] = t
            F(*gaps[g], rd); F(*gaps[g+3], st_)
        before_bar(IL(cfg.hpub)[0], hst0b)
    for j in range(1, 5):
        S = vS[j % 2]
        if j == 4 and ch == 1: continue
        for g in range(4):
            h = hold()
            def rd(h=h, g=g, j=j, S=S):
                h[0] = s.ds_read("ds_read_b128", S+4*g, 4, vBias if j < 4 else vBiasS, (j*256 if j < 4 else 0) + g*32)
            F(9*j-1, g, rd); before_mfma(9*j, 0, h)
    S = vS[0]; snd = S + 8*(1-ch); own = S + 8*ch
    for e in range(2):
        h = hold()
        def wr(h=h, e=e): h[0] = s.ds_write("ds_write_b128", vEXW, snd+4*e, 4, e*1024)
        F(B0, 3+e, wr); before_bar(B0+1, h)
    hx = []
    for e in range(2):
        h = hold(); hx.append(h)
        def rd(h=h, e=e): h[0] = s.ds_read("ds_read_b128", snd+4*e, 4, vEXR, e*1024)
        F(B0+1, 0, rd); before_bar(B0+2, h)
    ops = [lambda: s.wait(hx[0][0], hx[1][0])]
    for i in range(8):
        ops.append(lambda i=i: s.valu(f"v_add_f32 v{own+i}, v{own+i}, v{snd+i}", wr=[own+i], rd=[own+i, snd+i]))
    if IL(cfg.gg)[1] == 8:
        ops += gelu_group(s, [own+i for i in range(8)], 0)
        for q in range(4): ops.append(cvt(s, PK2+q, own+2*q, own+2*q+1))
    else:
        for g in range(2):
            ops += gelu_group(s, [own+4*g+i for i in range(4)], 4*g)
            ops.append(cvt(s, PK2+2*g, own+4*g, own+4*g+1)); ops.append(cvt(s, PK2+2*g+1, own+4*g+2, own+4*g+3))
    h = hold()
    def wr8(h=h): h[0] = s.ds_write("ds_write_b128", vHW8, PK2, 4, 0)
    def gw8(): hst[3][0] = s.vstore("buffer_store_dwordx4", PK2, 4, vHW8, R_WS, f"s{sHXw}", flags=cfg.st_flags)
    ops.append(wr8); ops.append(gw8); before_bar(B0+5, h)
    spread(ops, B0+1, 3, B0+4, 6)
    hrd = {}
    def hread(k, n, i):
        blk = HB + k if k < 9 else BLK[("h", k)]
        for mt in range(2):
            h = hold(); hrd[(k, mt)] = h
            def rd(h=h, k=k, mt=mt):
                w_, o_ = win(blk*8192 + mt*1024)
                h[0] = s.ds_read("ds_read_b128", Hreg[(k, mt)], 4, vHB[w_], o_)
            F(n, i, rd); before_bar(n+2, h)
    for k in range(18): hread(k, HREAD[k], 1 + 2*(k % 2) if ST[HREAD[k]].nm == 4 else 1 + 2*(k % 4))

    nslow = [0]
    vPollR = vSec
    def check(test, tok, reload):
        nslow[0] += 1; k = f"{half}_{nslow[0]}"
        assert tok is not None or cfg.nopoll
        s.wait(tok); test(s)
        if cfg.inl:
            t = Stream()
            s.salu(f"s_cbranch_scc0 L_back_{k}")
        else:
            t = ool
            s.salu(f"s_cbranch_scc1 L_slow_{k}"); s.raw(f"L_back_{k}:")
            t.raw(f"L_slow_{k}:")
        t.salu(f"s_mov_b32 s{sSpin}, {SPIN}")
        t.raw(f"L_spin_{k}:")
        if I(cfg.backoff): t.salu(f"s_sleep {I(cfg.backoff)}")
        reload(t); t.wait_all(l=False); test(t)
        t.salu(f"s_cbranch_scc0 L_back_{k}")
        t.salu(f"s_sub_u32 s{sSpin}, s{sSpin}, 1"); t.salu(f"s_cmp_lg_u32 s{sSpin}, 0")
        t.salu(f"s_cbranch_scc1 L_spin_{k}")
        if cfg.inl:
            s.raw(t.text()); s.raw(f"L_back_{k}:")
        else: t.salu(f"s_branch L_back_{k}")
    def below(tgt, mul=1):
        def test(st):
            st.valu(f"v_readfirstlane_b32 s{sU1}, v{vPollR}", rd=[vPollR], swr=[sU1])
            if mul > 1:
                st.salu(f"s_mul_i32 s{sU0}, {tgt}, {mul}"); st.salu("s_nop 2"); st.salu(f"s_cmp_lt_u32 s{sU1}, s{sU0}")
            else:
                st.salu("s_nop 3"); st.salu(f"s_cmp_lt_u32 s{sU1}, {tgt}")
        return test
    def poll(st, base, idx):
        if cfg.nopoll:
            st.valu(f"v_mov_b32 v{vPollR}, 16", wr=[vPollR]); return None
        return st.vload("buffer_load_dword", vPollR, 1, vOne, R_WS, f"s{base}", off=256*idx, flags=cfg.poll_flags)
    def gate(base, idx, tgt, nb, name, mul=1):
        if half != 1: return
        hp = hold()
        F(nb - I(cfg.polllead), min(2, ST[nb - I(cfg.polllead)].nm-1), lambda: hp.__setitem__(0, poll(s, base, idx)))
        def chk():
            stamp(s, f"{name}0"); check(below(f"s{tgt}", mul), hp[0], lambda st: poll(st, base, idx)); stamp(s, f"{name}1")
        prebar.setdefault(nb, []).append(chk)
    def publish(base, idx):
        def go():
            if half == 1 and not cfg.nopub: s.vstore("buffer_atomic_add", vFv, 1, vOne, R_WS, f"s{base}", off=256*idx)
        return go
    if half == 1:
        hc = hold()
        def ld_cnt(st):
            st.salu(f"s_lshl_b32 s{sU0}, s{sMT}, 2")
            return st.vload("buffer_load_dword", vPollR, 1, vOne, R_DBG, f"s{sU0}", flags=cfg.poll_flags)
        F(I(cfg.cchk) - 4, 2, lambda: hc.__setitem__(0, ld_cnt(s)))
        assert I(cfg.cchk) in BAR
        prebar.setdefault(I(cfg.cchk), []).append(lambda: check(below("1"), hc[0], ld_cnt))
    for lv, (pb, cb) in enumerate(zip(IL(cfg.hpub), IL(cfg.hchk))):
        assert pb in BAR and cb in BAR and pb < cb
        assert pb > I(cfg.cchk)
        before_bar(pb, hst[lv])
        if cb in IL(cfg.hchk)[lv+1:]: continue
        F(pb, 1, publish(sHfW, lv)); gate(sHfR, lv, sTgt1, cb, f"h{lv}")
    last_stage = {}
    for a in ST[B0:]:
        for (pos, dl, k, u, sl) in a.parts: last_stage[(pos, dl)] = a.n
    pk_of = lambda pos: vP
    stok = {}
    def store_ops(pos, dls):
        A = accof(pos); PK = pk_of(pos); ops = []; stok.setdefault(pos, hold())
        for dl in dls:
            for mt in range(2):
                for e in range(2): ops.append(cvt(s, PK+4*dl+2*mt+e, A+8*dl+4*mt+2*e, A+8*dl+4*mt+2*e+1))
            def st_(dl=dl):
                if cfg.nostore: s.salu(f"s_mov_b32 s{sT1}, {OOB}")
                elif pos == 0: s.salu(f"s_mov_b32 s{sT1}, s{sPc}")
                else: s.salu(f"s_add_u32 s{sT1}, s{sPc+pos}, s{sDt+dl}")
                stok[pos][0] = s.vstore("buffer_store_dwordx4", PK+4*dl, 4, vL16, R_WS, f"s{sT1}", flags=cfg.st_flags)
            ops.append(st_)
        return ops
    sts = IL(cfg.stst)
    for (pos, dl), n in zip([(1, 0), (1, 1), (2, 0), (2, 1), (0, 0), (3, 0), (3, 1)], sts):
        assert n > last_stage[(pos, dl)]
        spread(store_ops(pos, (dl,)), n, 1, n, min(5, ST[n].nm-1))
    assert sts[1] < 64 and sts[3] < LAST0
    n8 = last_stage[(4, 0)]
    spread(store_ops(4, (0,)), n8, 6, n8+1, 2)
    pA, cA, pF = I(cfg.pubA), I(cfg.chkA), I(cfg.pubF)
    assert pA in BAR and cA in BAR
    before_bar(pA, stok[0]); F(pA, 1, publish(sCnt, 0)); gate(sCnt, 0, sTgt8, cA, "cA")
    if pF in BAR: before_bar(pF, stok[4]); F(pF, 0, publish(sCnt, 2))
    LAND_OF = {8: vXR, 1: Hreg[(0, 0)], 2: Hreg[(1, 0)], 3: Hreg[(2, 0)], 0: vXR+4}
    ptk = {}
    def piece(k, e):
        def go():
            if k == 8:
                ptk[k] = s.vload("buffer_load_dwordx4", LAND_OF[k]+4*e, 4, vP8off, R_WS, f"s{sP8}", flags=cfg.ld_flags)
            else:
                ptk[k] = s.vload("buffer_load_dwordx4", LAND_OF[k]+4*e, 4, vL16, R_WS, f"s{sCo+k}", off=1024*e, flags=cfg.ld_flags)
        return go
    def load_k(k):
        for e in range(1 if k in (0, 8) else 2): piece(k, e)()
    SUM = accof(4) + 8
    def add_k(k):
        if k == 8: return step8()
        s.wait(ptk[k])
        for v_ in range(LAND_OF[k], LAND_OF[k] + (4 if k == 0 else 8)):
            r = (v_ - LAND_OF[k]) % 4
            s.valu(f"v_lshlrev_b32 v{vTmp}, 16, v{v_}", wr=[vTmp], rd=[v_])
            s.valu(f"v_and_b32 v{v_}, s{sMask}, v{v_}", wr=[v_], rd=[v_])
            s.valu(f"v_add_f32 v{SUM+2*r}, v{SUM+2*r}, v{vTmp}", wr=[SUM+2*r], rd=[SUM+2*r, vTmp])
            s.valu(f"v_add_f32 v{SUM+2*r+1}, v{SUM+2*r+1}, v{v_}", wr=[SUM+2*r+1], rd=[SUM+2*r+1, v_])
    def step8():
        V = lambda text, wr, rd: s.valu(text, wr=wr, rd=rd)
        R = vWF; L8 = LAND_OF[8]
        s.wait(ptk[8], hb2[1])
        for r in range(4):
            V(f"v_lshlrev_b32 v{R+2*r}, 16, v{L8+r}", [R+2*r], [L8+r]); V(f"v_and_b32 v{R+2*r+1}, s{sMask}, v{L8+r}", [R+2*r+1], [L8+r])
        for i in range(4): V(f"v_permlane32_swap_b32 v{R+i}, v{R+4+i}", [R+i, R+4+i], [R+i, R+4+i])
        for i in range(4): V(f"v_add_f32 v{R+i}, v{R+i}, v{R+4+i}", [R+i], [R+i, R+4+i])
        for i in range(2): V(f"v_permlane16_swap_b32 v{R+i}, v{R+2+i}", [R+i, R+2+i], [R+i, R+2+i])
        for i in range(2): V(f"v_add_f32 v{R+i}, v{R+i}, v{R+2+i}", [R+i], [R+i, R+2+i])
        for i in range(2): V(f"v_add_f32_dpp v{R+2+i}, v{R+i}, v{R+i} row_ror:8 row_mask:0xf bank_mask:0xf", [R+2+i], [R+i])
        V(f"v_lshlrev_b32 v{R}, 16, v{vB28}", [R], [vB28]); V(f"v_and_b32 v{R+1}, s{sMask}, v{vB28}", [R+1], [vB28])
        for i in range(2): V(f"v_add_f32 v{R+i}, v{R+i}, v{R+2+i}", [R+i], [R+i, R+2+i])
        cvt(s, R, R, R+1)()
        s.vstore("buffer_store_dword", R, 1, vOut8, R_OUT, f"s{sOut8}", flags=cfg.out_flags)
    lastread = {}
    for a in ST[B0:]:
        for i, (f, mt) in enumerate(a.order): lastread[(a.parts[f][2], mt)] = (a.n, i)
    for q, ((k, e), n) in enumerate(zip([(8, 0), (1, 0), (1, 1), (2, 0), (2, 1)], IL(cfg.ldst))):
        g = 1 + q
        assert n >= cA
        if k != 8: assert (n, g) >= lastread[(k-1, e)], (k, e, n, lastread[(k-1, e)])
        F(n, g, piece(k, e))

    freebufs = [vWF+4*i for i in range(4)]
    frag = {}
    def plan_frag(n, f):
        a = ST[n]; hs = [hold(), hold()]; ent = [None, hs]; frag[(n, f)] = ent
        def mk(rd):
            def go():
                if rd == 0: ent[0] = freebufs.pop(0)
                if a.kind == "d": base, off = vW1dR, BLK[("w", n)]*8192 + (16*f + 4*rd)*128
                elif a.kind == "s":
                    ks = (4*ch + f) if a.i < 4 else (4 + 2*ch + f)
                    base, off = vW1sR, BLK[("w", n)]*8192 + (16*ks + 4*rd)*64
                else:
                    (pos, dl, k, u, sl) = a.parts[f]
                    if a.sub == "d": base, off = vW2R + 3*dl, BLK[("w", u)]*8192 + sl*4096 + rd*1024
                    else: base, off = vW2cR, BLK[("w", u)]*8192 + sl*2048 + rd*512
                w_, o_ = win(off)
                hs[rd][0] = s.ds_read("ds_read_b64_tr_b16", ent[0] + 2*rd, 2, base + w_, o_)
            return go
        return [mk(0), mk(1)]
    nfrag = lambda n: ST[n].nm if ST[n].kind != "b" else len(ST[n].parts)
    xtok = {}
    def xread(n, sp):
        w_, o_ = win(BLK[("x", n)]*8192 - XWIN0)
        def go(): xtok[(n, sp)] = s.ds_read("ds_read_b128", vXF + 16*n + 4*sp, 4, vXR + 4*w_ + sp, o_)
        return go
    pre = {}; pend = {}
    def P(n, i, f): pre.setdefault((n, i), []).append(f)
    for n in range(1, NST):
        prev = ST[n-1]; rds = []
        for f in range(nfrag(n)): rds += plan_frag(n, f)
        pend[n-1] = rds
        if n < 9:
            for sp in range(4): P(n-1, sp, xread(n, sp))

    s.wait(tb, *[utok.get(u) for u in LAND[-1]])
    s.barrier()
    stamp(s, "data")
    for g in range(4):
        h = hold(); h[0] = s.ds_read("ds_read_b128", vS[0]+4*g, 4, vBias, g*32); before_mfma(0, 0, h)
    for f in range(4):
        xread(0, f)()
        for r in plan_frag(0, f): r()
    issue_all(-1)

    started = set()
    for a in ST:
        n = a.n
        if n == B0 + 5: freebufs.extend([vT, vT+4])
        stamp(s, f"s{n}")
        uses = {f: i for i, (f, mt) in enumerate(a.order)} if a.kind == "b" else {}
        dq = [f for u in ISSUE.get(n, []) for f in iss.pieces(u)]
        slots = [g for g in IL(cfg.dposB if a.kind == "b" else cfg.dposA) if g < a.nm] or [a.nm-1]
        if len(dq) > len(slots): slots = list(range(a.nm)) if len(dq) <= a.nm else list(range(a.nm))
        dat = {}; ndone = 0
        for q, f in enumerate(dq): dat.setdefault(slots[q*len(slots)//len(dq)], []).append(f)
        for i in range(a.nm):
            toks = [h[0] for h in need_mf.get((n, i), [])]
            cur[0] = n
            if a.kind in "ds":
                reg, hs = frag[(n, i)]
                toks += [hs[0][0], hs[1][0]]
                if a.kind == "d" and a.j == 0: toks.append(xtok[(n, i)])
                assert all(t is not None for t in toks), (n, i)
                s.wait(*toks)
                if a.kind == "d": s.mfma32(vS[a.j % 2], reg, vXF + 16*a.s + 4*i, vS[a.j % 2])
                else:
                    ks = (8*a.i + 4*ch + i) if a.i < 4 else (32 + 2*ch + i)
                    s.mfma32(vS[0], reg, vXF + 4*ks, None if (a.i == 0 and i == 0 and ch == 1) else vS[0])
                freebufs.append(reg)
            else:
                f, mt = a.order[i]
                (pos, dl, k, u, sl) = a.parts[f]
                reg, hs = frag[(n, f)]
                toks += [hs[0][0], hs[1][0], hrd[(k, mt)][0]]
                if cfg.wait2 and i+1 < a.nm and n > B0:
                    f2, mt2 = a.order[i+1]
                    toks += [frag[(n, f2)][1][0][0], frag[(n, f2)][1][1][0]]
                assert all(t is not None for t in toks), (n, i)
                s.wait(*toks)
                d = accof(pos) + 8*dl + 4*mt; key = (pos, dl, mt)
                s.mfma16(d, reg, Hreg[(k, mt)], d if key in started else None)
                started.add(key)
                if uses[f] == i: freebufs.append(reg)
            if i == 0 and n in BAR:
                assert all(h[0] is not None for h in need_bar.get(n, [])), n
                for f in prebar.get(n, []): f()
                s.wait(*([utok.get(u) for u in LAND.get(n, [])] + [h[0] for h in need_bar.get(n, [])]))
                s.barrier()
            rds = pend.get(n, []); per = -(-len(rds)//a.nm)
            while ndone < min(len(rds), per*(i+1) if i < a.nm-1 else 99) and (ndone % 2 == 1 or freebufs or i == a.nm-1):
                rds[ndone](); ndone += 1
            for f in pre.get((n, i), []): f()
            for f in dat.get(i, []): f()
            for f in fill.get((n, i), []): f()
    stamp(s, "tail")
    if pF not in BAR:
        s.wait(stok[4][0]); s.barrier(); publish(sCnt, 2)()
    stamp(s, "T1")
    s.wait(hb2[0])
    for r in range(2):
        s.valu(f"v_lshlrev_b32 v{vP+4+2*r}, 16, v{vB2m+r}", wr=[vP+4+2*r], rd=[vB2m+r])
        s.valu(f"v_and_b32 v{vP+4+2*r+1}, s{sMask}, v{vB2m+r}", wr=[vP+4+2*r+1], rd=[vB2m+r])
    for i in range(8):
        s.valu(f"v_add_f32 v{SUM+i}, v{SUM+i}, v{vP+4 + i % 4}", wr=[SUM+i], rd=[SUM+i, vP+4 + i % 4])
    pre_ = [8, 1, 2][:I(cfg.tailpoll)]
    for k in pre_: add_k(k)
    if half == 1:
        hp = poll(s, sCnt, 2)
        check(below(f"s{sTgt8}"), hp, lambda st: poll(st, sCnt, 2))
    s.barrier()
    stamp(s, "T2")
    load_k(3); load_k(0)
    for k in [8, 1, 2][I(cfg.tailpoll):] + [3, 0]: add_k(k)
    stamp(s, "fin")
    for k in range(4): cvt(s, vP+k, SUM+2*k, SUM+2*k+1)()
    s.vstore("buffer_store_dwordx2", vP, 2, vOutM, R_OUT, f"s{sOutM}", flags=cfg.out_flags)
    s.salu(f"s_add_u32 s{sOutM}, s{sOutM}, {16*1152}")
    s.vstore("buffer_store_dwordx2", vP+2, 2, vOutM, R_OUT, f"s{sOutM}", flags=cfg.out_flags)
    if cfg.stamps: s.wait_all()
    stamp(s, "end")
    stamp_flush(s)
    s.salu("s_endpgm")
    return s, ool

def kd(name, vg, sg):
    return f""".amdhsa_kernel {name}
  .amdhsa_next_free_vgpr {vg}
  .amdhsa_next_free_sgpr {sg}
  .amdhsa_accum_offset {(vg+3)//4*4}
  .amdhsa_group_segment_fixed_size 0
  .amdhsa_kernarg_size 64
  .amdhsa_user_sgpr_count 2
  .amdhsa_user_sgpr_kernarg_segment_ptr 1
  .amdhsa_system_sgpr_workgroup_id_x 1
  .amdhsa_float_denorm_mode_32 3
.end_amdhsa_kernel
"""

def generate(aslist=False):
    PLAN = plan()
    p = Stream()
    prologue(p)
    p.salu(f"s_cmp_ge_u32 s{sW}, 4", srd=[sW]); p.salu("s_cbranch_scc1 L_half1")
    h0, o0 = body(p, 0, PLAN); h1, o1 = body(p, 1, PLAN)
    mk = (p.text() + "\n" + h0.text() + "\n" + o0.text() + "\n.p2align 6\nL_half1:\n" + h1.text() + "\n" + o1.text()
          + "\nL_main_end:\n    s_endpgm\n")
    k1 = NAME + "_kernel"
    launch = (f"; @launch kernel={k1} grid=(256,1,1) block=(512,1,1) lds=163840" if aslist
              else "; @launch grid=(256,1,1) block=(512,1,1) lds=163840")
    out = f"""; fused MLP  out = gelu_tanh(x@w1+b1)@w2+b2   (emitted by my generator script)
{launch}
.amdgcn_target "amdgcn-amd-amdhsa--gfx950"
.text
.globl {k1}
.p2align 8
.type {k1},@function
{k1}:
{mk}
.section .rodata,"a"
.p2align 6
{kd(k1, 256, 102)}"""
    nb = [sum(1 for i in h.ins if i.kind == "bar") for h in (h0, h1)]
    assert nb[0] == nb[1], nb
    return out, (h0.nops, h1.nops, len(h0.ins), len(h1.ins), nb[0]), PLAN

if __name__ == "__main__":
    aslist = False; verbose = False
    for a in sys.argv[2:]:
        if a == "-v": verbose = True; continue
        k, v = a.split("=", 1)
        if k == "aslist": aslist = True; continue
        assert hasattr(cfg, k) or k == "pubextra", k
        setattr(cfg, k, {"True": True, "False": False}.get(v, v.replace("+", " ")))
    txt, stats, PLAN = generate(aslist)
    open(sys.argv[1], "w").write(txt)
    print("nops/ins/bars:", stats, "bytes", len(txt))
    if verbose:
        BAR, ISSUE, BLK, LAND = PLAN
        print(" ".join(f"{b}:{','.join(k+str(m)+'@'+str(BLK[(k,m)]) for k,m in ISSUE[b])}" for b in sorted(ISSUE)))
```

```python
import sys, struct
from emit import Stream, vr, sr, rng

NAME = "standalone__dense_activation_gelu__prompt"
M, D, F = 2048, 576, 4608
def f2u(x): return struct.unpack("<I", struct.pack("<f", x))[0]
GA = -2.0*0.7978845608028654*1.4426950408889634
GB = GA*0.044715

class Cfg:
    st_flags = "sc1"; ld_flags = "sc1"; poll_flags = "sc1"
    stamps = False; cyc = False
    barA = 2; barB = 1; lastbar = "81"
    prio = -1
    fl_x = ""; fl_w1 = ""; fl_w2 = ""; fl_pf = ""
    g0 = 3
    g1 = 5
    look0 = 5
    lookA = 9; lookA2 = 9; lookB = 12
    dposA = "1,3"; dposB = "1,5"
    wait2 = True
    fdirect = False
    ins3 = 2
    ticks = 0
    skew = True
    gwin = "2,8,1"
    tcost = 2.0
    tmpbuf = 4
    pfcode = 1
    inl = False
    gg = "4,4"
    pf = "6,6,41"
    pfx = 0
    out_flags = ""
    pfpro = "1"
    pf1c = "3,3"
    pf1b = ""
    pf1 = ""
    pfshare = 16
    g3end = "40,1"
    hpub = "37,38,45,50"
    hchk = "43,43,52,56"
    hiss = "43,44,46,47,49,50,52,54,56"
    stst = "64,65,66,67,68,73,74"
    hdelay = ""
    pubA = 72; chkA = 81; pubF = 81; tailpoll = 1
    ldst = "81,81,81,81,81"
    publag = 5; polllead = 3; backoff = 4
    clr_stage = 5; arr_stage = 12; cchk = 36
    nohst = False; h_flags = "sc1"; hl_flags = "sc1"; nohld = False; hrate = 2; nopoll = False; nopub = False; noload = False; nostore = False
cfg = Cfg()
def I(x): return int(x)
def IL(x): return [int(v) for v in str(x).split(",") if v != ""]

PART_BYTES = 32*72*8*1024
HX = PART_BYTES
FLG = HX + 256*9*8192
WS_BYTES = FLG + 16*128*256
OOB = 0x40000000
SPIN = 1000000

S_X, S_W1, S_B1, S_W2, S_B2, S_OUT, S_DBG, S_WS = 4, 6, 8, 10, 12, 14, 16, 18
R_X, R_W1, R_W2, R_WS, R_B1 = 20, 24, 28, 32, 36
R_DBG = 36
R_B2, R_OUT = 4, 8
sW, sRG, sMT, sFS, sD0, sS0 = 40, 41, 42, 43, 44, 45
sXo, sW1d, sW1s, sLx, sLw, sT0, sT1, sGB = 46, 47, 48, 49, 50, 51, 52, 53
sPC, sE = 54, 55
sW2, sC3, sPc, sCo, sDt = 56, 68, 71, 76, 80
sHXw, sHXr, sCnt, sHfW, sHfR, sTgt8, sTgt1, sClr = 82, 83, 84, 85, 86, 87, 88, 89
sE2, sPF, sP8, sSpin, sOutM, sOut8, sMask = 90, 91, 92, 93, 94, 95, 3
sU0, sU1 = 96, 97
vLane, vL16 = 1, 2
vX0, vX1, vW2, vTmp, vTmp2 = 3, 4, 5, 6, 7
vW1dR, vW1sR, vW2R = 8, 11, 14
vW1d, vW1s, vHW, vHW8 = 20, 21, 22, 23
vHB = (28, 29, 30)
vEXW, vEXR, vBias, vGA = 24, 25, 26, 27
vBiasS, vDummy = 30, 31
vXR = 32
vP8off, vOutM, vB2m, vOut8, vB28 = 40, 41, 42, 44, 45
vW2c, vW2cR = 47, 8
vSec, vPF = 46, 47
vT, vP, vWF = 48, 56, 64
vS = (80, 96)
vXF = 112
vStamp = 0
vFW, vFR = 11, 13
vOne, vFv, vPoll = vX0, vX1, 12

NBLK, HB = 20, 10
HBASE, BIAS, EXB, XWIN0 = HB*8192, 19*8192, 18*8192, 7*8192

INS3 = int(([a.split('=')[1] for a in sys.argv if a.startswith('ins3=')] or ['2'])[0])
class St: pass
def build_stages():
    st = []
    for j in range(4):
        for s in range(9):
            a = St(); a.kind = "d"; a.j = j; a.s = s; a.nm = 4; st.append(a)
    for i in range(5):
        a = St(); a.kind = "s"; a.i = i; a.nm = 4 if i < 4 else 2; a.rowbase = 128*i if i < 4 else 448; st.append(a)
    KB = {"o": 0, "r": 9}
    def dbl(pos, t, i=0):
        a = St(); a.kind = "b"; a.sub = "d"; a.pos = pos; a.t = t; a.i = i
        ks = (8, 17) if t == "m" else (KB[t]+2*i, KB[t]+2*i+1)
        a.parts = [(pos, dl, ks[kk], None, kk) for dl in range(2) for kk in range(2)]
        a.order = [(2*(q//4) + q % 2, (q//2) % 2) for q in range(8)]
        return a
    def sgl(t, i=0):
        a = St(); a.kind = "b"; a.sub = "c"; a.pos = 0; a.t = t; a.i = i
        ks = (8, 17) if t == "m" else [KB[t]+4*i+q for q in range(4)]
        a.parts = [(0, 0, k, None, q) for q, k in enumerate(ks)]
        a.order = [(2*(q//4) + q % 2, (q//2) % 2) for q in range(2*len(ks))]
        return a
    st += [dbl(1, "o", i) for i in range(4)] + [sgl("o", 0), sgl("o", 1)] + [dbl(2, "o", i) for i in range(4)]
    st += [dbl(1, "r", 0), dbl(2, "r", 0), dbl(1, "r", 1), dbl(2, "r", 1), sgl("r", 0), dbl(1, "r", 2), dbl(2, "r", 2)]
    blocks = [("o", i) for i in range(4)] + [("r", i) for i in range(4)] + [("m", 0)]
    st += [dbl(3, t, i) for t, i in blocks[:INS3]]
    st += [dbl(1, "r", 3), dbl(2, "r", 3), sgl("r", 1), dbl(1, "m"), dbl(2, "m"), sgl("m")]
    st += [dbl(3, t, i) for t, i in blocks[INS3:]]
    L0 = len(st)
    fr = []
    for dl in range(2):
        for bi, (t, i) in enumerate(blocks):
            ks = (8, 17) if t == "m" else (KB[t]+2*i, KB[t]+2*i+1)
            fr += [(4, dl, ks[0], L0+bi, 0), (4, dl, ks[1], L0+bi, 1)]
    for gi in range(9):
        a = St(); a.kind = "b"; a.sub = "d"; a.pos = 4; a.t, a.i = blocks[gi]; a.parts = fr[4*gi:4*gi+4]
        a.order = [(2*(q//4) + q % 2, (q//2) % 2) for q in range(8)]
        st.append(a)
    for n, a in enumerate(st):
        a.n = n
        if a.kind == "b":
            a.nm = len(a.order)
            a.parts = [(p, d, k, (n if u is None else u), sl) for (p, d, k, u, sl) in a.parts]
    return st, L0
ST, LAST0 = build_stages()
NST = len(ST)
B0 = 41
HWSTAGE = {0: 9+3, 1: 18+3, 2: 27+3, 3: 36+1}
FIRSTUSE = {}
for a_ in ST[B0:]:
    for (p_, d_, k_, u_, s_) in a_.parts: FIRSTUSE.setdefault(k_, a_.n)
HREAD = {0: 37, 1: 37, 2: 38, 3: 38, 4: 39, 5: 39, 6: B0+1, 7: B0+1, 8: B0+6}
for k_ in range(9, 18): HREAD[k_] = FIRSTUSE[k_] - 2
HFREE_OWN = {k: HREAD[k] + 2 for k in range(9)}

def plan():
    BAR = set()
    for n in range(NST):
        if n >= LAST0:
            if n in IL(cfg.lastbar): BAR.add(n)
        elif n < 9 or 35 <= n <= 64 + INS3 or n in IL(cfg.hpub) + IL(cfg.hchk) + [I(cfg.cchk)]: BAR.add(n)
        elif n < 35:
            if (n - 9) % I(cfg.barA) == 0: BAR.add(n)
        elif (LAST0 - 1 - n) % I(cfg.barB) == 0: BAR.add(n)
    bars = sorted(BAR)
    def first_read(u):
        if u[0] == "h": return HREAD[u[1]]
        return LAST0 - 1 if (u[0] == "w" and u[1] >= LAST0) else u[1] - 1
    def last_use(u):
        if u[0] == "h": return HREAD[u[1]] + 1
        return NST if (u[0] == "w" and u[1] >= LAST0) else u[1]
    res = {HB+k: (HWSTAGE[k//2], HFREE_OWN[k]) for k in range(8)}
    res[HB+8] = (B0, HFREE_OWN[8]); res[19] = (-99, B0+2)
    units = []
    for n in range(NST):
        if n < 9: units.append(("x", n))
        units.append(("w", n))
    hc = IL(cfg.hchk)
    hq = [(("h", k), IL(cfg.hiss)[k-9]) for k in range(9, 18)]
    for (u, b) in hq: assert b >= hc[[0, 0, 0, 0, 1, 1, 2, 2, 3][u[1]-9]]
    allunits = units + [u for u, _ in hq]
    busy = {}; issue = {}; blk = {}; land = {}
    ui = 0
    def freebar(u):
        c = [b for b in bars if b >= last_use(u)+1]
        return c[0] if c else 10**6
    def ok(b, u, bar):
        if b in busy: return False
        if b in res:
            a0, a1 = res[b]
            lb = max([x for x in [-3, -2, -1]+bars if x <= a0] or [-99])
            if not (freebar(u) <= lb or bar >= a1): return False
        return True
    for bar in [-3, -2, -1] + bars:
        for b in [b for b, u in busy.items() if freebar(u) <= bar]: del busy[b]
        lst = []
        nxt = min([b for b in bars if b > bar] or [NST])
        cap = 2*(nxt - bar) if bar >= 0 else 99
        if bar == -3: horizon = I(cfg.g0) - 1
        elif bar == -2: horizon = I(cfg.g1) - 1
        elif bar < 4: horizon = bar + I(cfg.look0)
        elif bar < IL(cfg.hiss)[0] - 4: horizon = nxt - 1 + I(cfg.lookA)
        elif bar < B0 - 2: horizon = nxt - 1 + I(cfg.lookA2)
        else: horizon = nxt - 1 + I(cfg.lookB)
        nh = 0
        while hq and hq[0][1] <= bar and nh < I(cfg.hrate):
            u = hq[0][0]; c = [b for b in range(NBLK) if ok(b, u, bar)]
            if not c: break
            busy[c[0]] = u; blk[u] = c[0]; lst.append(u); hq.pop(0); nh += 1
        while ui < len(units):
            u = units[ui]; kind, m = u
            if min(m, LAST0) > horizon: break
            if hq and hq[0][1] <= bar + 1 and m > bar + 5: break
            if kind == "x":
                c = [b for b in range(7, 18, 2) if ok(b, u, bar) and ok(b+1, u, bar)]
                if not c: break
                b = c[0]; busy[b] = u; busy[b+1] = u
            else:
                c = [b for b in range(NBLK) if ok(b, u, bar)]
                if any(k == "x" for k, _ in units[ui:]): c = [b for b in c if b < 7]
                if not c: break
                b = c[0]; busy[b] = u
            blk[u] = b; lst.append(u); ui += 1
            if len([x for x in lst if x[0] == "w"]) >= cap: break
        issue[bar] = lst
    assert ui == len(units) and not hq
    for u in allunits:
        lb = max(b for b in [-1]+bars if b <= first_read(u))
        land.setdefault(lb, []).append(u)
        ib = [bar for bar, l in issue.items() if u in l][0]
        assert ib < lb, (u, ib, lb)
    return BAR, issue, blk, land

def win(a): return a // 65536, a % 65536

NSTAMP = 16
def snames(): return cfg.stamps.split(",") if isinstance(cfg.stamps, str) else []
def stamp(s, name):
    if name not in snames(): return
    s.wait_all(v=False)
    s.salu("s_memtime s[100:101]" if cfg.cyc else "s_memrealtime s[100:101]")
    s.wait_all(v=False)
    s.valu(f"v_writelane_b32 v{vStamp}, s100, {snames().index(name)+1}", wr=[vStamp])
def stamp_flush(s):
    if not cfg.stamps: return
    s.salu(f"s_lshl_b32 s{sT0}, s2, 3"); s.salu(f"s_add_u32 s{sT0}, s{sT0}, s{sW}"); s.salu(f"s_mul_i32 s{sT0}, s{sT0}, {4*NSTAMP}")
    s.salu(f"s_add_u32 s{sT0}, s{sT0}, {128<<20}")
    s.salu(f"s_mov_b32 s{R_WS+2}, 0x10000000")
    s.valu(f"v_lshlrev_b32 v{vTmp}, 2, v{vLane}", wr=[vTmp], rd=[vLane])
    s.valu(f"v_cmp_gt_u32 vcc, {NSTAMP}, v{vLane}", rd=[vLane], swr=["vcc"])
    s.valu(f"v_mov_b32 v{vTmp2}, {OOB}", wr=[vTmp2])
    s.salu("s_nop 1")
    s.valu(f"v_cndmask_b32 v{vTmp}, v{vTmp2}, v{vTmp}, vcc", wr=[vTmp], rd=[vTmp, vTmp2])
    s.vstore("buffer_store_dword", vStamp, 1, vTmp, R_WS, f"s{sT0}")

def srd(s, r, base, size):
    if r != base:
        s.salu(f"s_mov_b32 s{r}, s{base}"); s.salu(f"s_mov_b32 s{r+1}, s{base+1}")
    s.salu(f"s_mov_b32 s{r+2}, {size}"); s.salu(f"s_mov_b32 s{r+3}, 0x20000")

class Ops:
    def __init__(self, s): self.s = s
    q = None; cnt = 0
    def tick(self, text):
        if not self.q: return
        self.cnt += 1
        if self.cnt >= I(cfg.ticks) and not text.startswith(("s_cmp", "s_cselect")):
            self.cnt = 0; self.q.pop(0)()
    def V(self, text, wr=(), rd=(), **k): self.s.valu(text, wr=wr, rd=rd, **k); self.tick(text)
    def S(self, text, **k): self.s.salu(text, **k); self.tick(text)

def prologue(p):
    o = Ops(p); V, S = o.V, o.S
    S("s_cmp_ge_u32 s2, 256"); S("s_cbranch_scc1 L_main_end")
    if cfg.stamps: S("s_memtime s[98:99]" if cfg.cyc else "s_memrealtime s[98:99]")
    S("s_load_dwordx16 s[4:19], s[0:1], 0")
    L = vLane; a, b = vTmp, vTmp2
    V(f"v_lshrrev_b32 v{a}, 6, v0", [a]); V(f"v_and_b32 v{L}, 63, v0", [L])
    V(f"v_readfirstlane_b32 s{sW}, v{a}", rd=[a], swr=[sW])
    S(f"s_and_b32 s{sT0}, s2, 7"); S(f"s_lshr_b32 s{sT1}, s2, 3")
    S(f"s_and_b32 s{sMT}, s{sT0}, 1"); S(f"s_lshl_b32 s{sMT}, s{sMT}, 3")
    S(f"s_lshr_b32 s{sFS}, s{sT1}, 2"); S(f"s_add_u32 s{sMT}, s{sMT}, s{sFS}")
    S(f"s_lshr_b32 s{sFS}, s{sT0}, 1"); S(f"s_lshl_b32 s{sFS}, s{sFS}, 2")
    S(f"s_and_b32 s{sT1}, s{sT1}, 3"); S(f"s_add_u32 s{sFS}, s{sFS}, s{sT1}")
    S(f"s_and_b32 s{sRG}, s{sW}, 3", srd=[sW])
    S(f"s_and_b32 s{sE}, s{sFS}, 1"); S(f"s_lshl_b32 s{sD0}, s{sE}, 5")
    S(f"s_lshl_b32 s{sT0}, s{sMT}, 7"); S(f"s_lshl_b32 s{sT1}, s{sRG}, 5"); S(f"s_add_u32 s{sT0}, s{sT0}, s{sT1}")
    S(f"s_mul_i32 s{sXo}, s{sT0}, 1152")
    S(f"s_lshl_b32 s{sLx}, s{sRG}, 12"); S(f"s_lshl_b32 s{sLw}, s{sRG}, 11")
    S(f"s_mul_i32 s{sU0}, s{sFS}, 576")
    S(f"s_mul_i32 s{sT1}, s{sRG}, {16*9216}"); S(f"s_add_u32 s{sW1d}, s{sU0}, s{sT1}")
    S(f"s_lshl_b32 s{sT1}, s{sD0}, 1"); S(f"s_add_u32 s{sW1d}, s{sW1d}, s{sT1}")
    V(f"v_lshrrev_b32 v{a}, 3, v{L}", [a], [L])
    V(f"v_mul_u32_u24 v{vX0}, 1152, v{a}", [vX0], [a])
    V(f"v_mul_u32_u24 v{vW1d}, 9216, v{a}", [vW1d], [a])
    V(f"v_mov_b32 v{vW2}, v{vX0}", [vW2], [vX0])
    V(f"v_lshrrev_b32 v{a}, 4, v{L}", [a], [L])
    V(f"v_and_b32 v{b}, 7, v{L}", [b], [L])
    V(f"v_xor_b32 v{vX1}, v{a}, v{b}", [vX1], [a, b])
    V(f"v_lshl_add_u32 v{vX0}, v{vX1}, 4, v{vX0}", [vX0], [vX1, vX0])
    V(f"v_xor_b32 v{vX1}, 64, v{vX0}", [vX1], [vX0])
    V(f"v_add_u32 v{vX1}, {9216-1024}, v{vX1}", [vX1], [vX1])
    V(f"v_and_b32 v{a}, 1, v{a}", [a], [a]); V(f"v_lshlrev_b32 v{a}, 2, v{a}", [a], [a])
    V(f"v_xor_b32 v{b}, v{a}, v{b}", [b], [a, b])
    V(f"v_lshl_add_u32 v{vW1d}, v{b}, 4, v{vW1d}", [vW1d], [b, vW1d])
    V(f"v_lshlrev_b32 v{vBias}, 1, v0", [vBias])
    if I(cfg.pfcode) == 1: code_prefetch(p, "p")
    p.wait_all(v=False)
    srd(p, R_X, S_X, M*D*2); srd(p, R_W1, S_W1, D*F*2)

def code_prefetch(s, tag):
    a = vT+6
    s.salu(f"s_getpc_b64 s[{sPc}:{sPc+1}]" if sPc % 2 == 0 else f"s_getpc_b64 s[{sPc+1}:{sPc+2}]")
    b = sPc if sPc % 2 == 0 else sPc + 1
    s.raw(f"L_pc_{tag}:")
    s.salu(f"s_sub_u32 s{b}, s{b}, L_pc_{tag}-{NAME}_kernel"); s.salu(f"s_subb_u32 s{b+1}, s{b+1}, 0")
    s.salu(f"s_lshr_b32 s{sU1}, s2, 3"); s.salu(f"s_lshl_b32 s{sU1}, s{sU1}, 3"); s.salu(f"s_add_u32 s{sU1}, s{sU1}, s{sW}", srd=[sW]); s.salu(f"s_lshl_b32 s{sU1}, s{sU1}, 8")
    s.valu(f"v_and_b32 v{a}, 1, v{vLane}", wr=[a], rd=[vLane]); s.valu(f"v_lshl_add_u32 v{a}, v{a}, 7, s{sU1}", wr=[a], rd=[a])
    s.valu(f"v_min_u32 v{a}, L_main_end-{NAME}_kernel, v{a}", wr=[a], rd=[a])
    from emit import Ins
    s.add(Ins(f"global_load_dword v{vDummy}, v{a}, s[{b}:{b+1}]", "vld", rd=[a], wr=[vDummy])); s._tok("v")

def dma2(s, voff, r, soff, second):
    t = s.dma(voff, r, soff, {R_X: cfg.fl_x, R_W1: cfg.fl_w1, R_W2: cfg.fl_w2, R_WS: cfg.hl_flags}[r])
    if second: s.ins[-1].text = s.ins[-1].text.replace(" offen", " offen offset:1024")
    return t

class Issuer:
    def __init__(self, s, half, BLK, utok): self.s, self.half, self.BLK, self.utok = s, half, BLK, utok; self.sec = None
    def pieces(self, u):
        s, half = self.s, self.half
        kind, m = u; b = self.BLK[u]; out = []
        if kind == "x":
            def first():
                s.salu(f"s_add_u32 m0, s{sLx}, {b*8192 + half*2048}", swr=["m0"])
                s.salu(f"s_add_u32 s{sT0}, s{sXo}, {16*half*1152 + m*128}")
                self.utok[u] = dma2(s, vX0, R_X, f"s{sT0}", False)
            def second(): self.utok[u] = dma2(s, vX1, R_X, f"s{sT0}", True)
            return [first, second]
        if kind == "h":
            if half != 1: return []
            def first():
                s.salu(f"s_add_u32 m0, s{sLw}, {b*8192}", swr=["m0"])
                s.salu(f"s_add_u32 s{sT0}, s{sHXr}, {(m-9)*8192}" if not cfg.nohld else f"s_mov_b32 s{sT0}, {OOB}")
                self.utok[u] = dma2(s, vL16, R_WS, f"s{sT0}", False)
            def second(): self.utok[u] = dma2(s, vL16, R_WS, f"s{sT0}", True)
            return [first, second]
        a = ST[m]
        if m < 9:
            def one():
                s.salu(f"s_add_u32 m0, s{sLw}, {b*8192 + half*1024}", swr=["m0"])
                s.salu(f"s_add_u32 s{sT0}, s{sW1d}, {(64*a.s + 8*half)*9216}")
                self.utok[u] = dma2(s, vW1d, R_W1, f"s{sT0}", False)
            return [one]
        if half != 0: return []
        if a.kind == "d": v, r, base, imm, step = vW1d, R_W1, sW1d, 64*a.s*9216 + a.j*128, 8*9216
        elif a.kind == "s": v, r, base, imm, step = vW1s, R_W1, sW1s, a.rowbase*9216, 16*9216
        elif a.sub == "d": v, r, base, imm, step = vW2, R_W2, sW2 + 4*"orm".index(a.t) + a.pos-1, 64*a.i*1152, 8*1152
        else: v, r, base, imm, step = vW2c, R_W2, sC3 + "orm".index(a.t), 128*a.i*1152, 16*1152
        def first():
            if self.sec != v:
                s.valu(f"v_add_u32 v{vSec}, {step-1024}, v{v}", wr=[vSec], rd=[v]); self.sec = v
            s.salu(f"s_add_u32 m0, s{sLw}, {b*8192}", swr=["m0"])
            if imm: s.salu(f"s_add_u32 s{sT0}, s{base}, {imm}")
            else: s.salu("s_nop 0")
            self.so = f"s{sT0}" if imm else f"s{base}"
            self.utok[u] = dma2(s, v, r, self.so, False)
        def second(): self.utok[u] = dma2(s, vSec, r, self.so, True)
        return [first, second]

def setup_main(s, half, q=None):
    o = Ops(s); V, S = o.V, o.S
    o.q = q
    L = vLane; a, b = vTmp, vTmp2; ch = half
    r, c8, t, hh = vT, vT+1, vT+2, vT+3
    srd(s, R_B1, S_B1, F*2)
    tokb = s.vload("buffer_load_ushort", vBiasS, 1, vBias, R_B1, f"s{sU0}")
    V(f"v_bfe_u32 v{r}, v{L}, 2, 2", [r], [L]); V(f"v_and_b32 v{c8}, 3, v{L}", [c8], [L]); V(f"v_lshlrev_b32 v{c8}, 3, v{c8}", [c8], [c8])
    V(f"v_lshrrev_b32 v{hh}, 5, v{L}", [hh], [L])
    V(f"v_lshl_add_u32 v{t}, v{hh}, 3, v{r}", [t], [hh, r])
    V(f"v_bfe_u32 v{b}, v{L}, 4, 1", [b], [L]); V(f"v_lshl_add_u32 v{b}, v{b}, 5, v{c8}", [b], [b, c8])
    V(f"v_lshl_add_u32 v{vW1sR}, v{t}, 6, v{b}", [vW1sR], [t, b])
    V(f"v_lshl_add_u32 v{vW1dR}, v{t}, 7, v{b}", [vW1dR], [t, b])
    V(f"v_lshrrev_b32 v{t}, 1, v{r}", [t], [r])
    if ch: V(f"v_xor_b32 v{t}, 1, v{t}", [t], [t])
    V(f"v_lshl_add_u32 v{vW1dR}, v{t}, 6, v{vW1dR}", [vW1dR], [t, vW1dR])
    for k in (1, 2):
        V(f"v_add_u32 v{vW1dR+k}, {65536*k}, v{vW1dR}", [vW1dR+k], [vW1dR]); V(f"v_add_u32 v{vW1sR+k}, {65536*k}, v{vW1sR}", [vW1sR+k], [vW1sR])
    V(f"v_and_b32 v{b}, 31, v{L}", [b], [L]); V(f"v_bfe_u32 v{t}, v{L}, 1, 3", [t], [L])
    V(f"v_xor_b32 v{t}, v{t}, v{hh}", [t], [t, hh]); V(f"v_lshlrev_b32 v{t}, 4, v{t}", [t], [t])
    V(f"v_lshl_add_u32 v{t}, v{b}, 7, v{t}", [t], [b, t]); V(f"v_add_u32 v{t}, s{sLx}, v{t}", [t], [t])
    for sp in range(4):
        V(f"v_xor_b32 v{vXR+sp}, {32*sp}, v{t}", [vXR+sp], [t])
        V(f"v_add_u32 v{vXR+4+sp}, {XWIN0+65536}, v{vXR+sp}", [vXR+4+sp], [vXR+sp])
        V(f"v_add_u32 v{vXR+sp}, {XWIN0}, v{vXR+sp}", [vXR+sp], [vXR+sp])
    V(f"v_lshlrev_b32 v{vL16}, 4, v{L}", [vL16], [L])
    V(f"v_mov_b32 v{vGA}, 0x{f2u(GA):08x}", [vGA]); S(f"s_mov_b32 s{sGB}, 0x{f2u(GB):08x}")
    S(f"s_lshr_b32 s{sPC}, s{sFS}, 2"); S(f"s_bfe_u32 s{sE2}, s{sFS}, 0x10001"); S(f"s_xor_b32 s{sT1}, s{sE}, 1"); S(f"s_lshl_b32 s{sS0}, s{sT1}, 8")
    if half == 0:
        S(f"s_mul_i32 s{sT1}, s{sRG}, {32*9216}"); S(f"s_add_u32 s{sW1s}, s{sU0}, s{sT1}")
        S(f"s_lshl_b32 s{sT1}, s{sS0}, 1"); S(f"s_add_u32 s{sW1s}, s{sW1s}, s{sT1}")
        V(f"v_lshrrev_b32 v{a}, 2, v{L}", [a], [L]); V(f"v_mul_u32_u24 v{vW1s}, 9216, v{a}", [vW1s], [a])
        V(f"v_lshl_add_u32 v{vW1s}, v{c8}, 1, v{vW1s}", [vW1s], [c8, vW1s])
        V(f"v_bfe_u32 v{a}, v{L}, 1, 2", [a], [L]); V(f"v_lshrrev_b32 v{b}, 4, v{L}", [b], [L]); V(f"v_xor_b32 v{a}, v{a}, v{b}", [a], [a, b])
        V(f"v_lshl_add_u32 v{vW2}, v{a}, 5, v{vW2}", [vW2], [a, vW2])
        V(f"v_and_b32 v{a}, 1, v{L}", [a], [L]); V(f"v_lshl_add_u32 v{vW2}, v{a}, 4, v{vW2}", [vW2], [a, vW2])
        V(f"v_lshrrev_b32 v{t}, 2, v{L}", [t], [L]); V(f"v_mul_u32_u24 v{vW2c}, 1152, v{t}", [vW2c], [t])
        V(f"v_lshl_add_u32 v{vW2c}, v{a}, 4, v{vW2c}", [vW2c], [a, vW2c])
        V(f"v_lshrrev_b32 v{a}, 1, v{L}", [a], [L]); V(f"v_xor_b32 v{a}, v{a}, v{b}", [a], [a, b]); V(f"v_and_b32 v{a}, 1, v{a}", [a], [a])
        V(f"v_lshl_add_u32 v{vW2c}, v{a}, 5, v{vW2c}", [vW2c], [a, vW2c])
    V(f"v_and_b32 v{a}, 15, v{L}", [a], [L]); V(f"v_mul_u32_u24 v{vOutM}, 1152, v{a}", [vOutM], [a])
    V(f"v_lshlrev_b32 v{vHW}, 4, v{a}", [vHW], [a])
    V(f"v_bfe_u32 v{a}, v{L}, 4, 1", [a], [L]); V(f"v_lshl_add_u32 v{vHW}, v{a}, 10, v{vHW}", [vHW], [a, vHW])
    V(f"v_lshl_add_u32 v{vHW}, v{hh}, 8, v{vHW}", [vHW], [hh, vHW]); V(f"v_add_u32 v{vHW}, s{sLw}, v{vHW}", [vHW], [vHW])
    V(f"v_add_u32 v{vHW8}, {HBASE + 8*8192 + ch*512}, v{vHW}", [vHW8], [vHW]); V(f"v_add_u32 v{vHW}, {HBASE + ch*8192}, v{vHW}", [vHW], [vHW])
    V(f"v_add_u32 v{vHB[0]}, s{sLw}, v{vL16}", [vHB[0]], [vL16])
    V(f"v_add_u32 v{vEXW}, {EXB + ch*8192}, v{vHB[0]}", [vEXW], [vHB[0]]); V(f"v_add_u32 v{vEXR}, {EXB + (1-ch)*8192}, v{vHB[0]}", [vEXR], [vHB[0]])
    V(f"v_add_u32 v{vHB[1]}, 65536, v{vHB[0]}", [vHB[1]], [vHB[0]])
    V(f"v_bfe_u32 v{a}, v{L}, 2, 3", [a], [L]); V(f"v_lshl_add_u32 v{b}, v{hh}, 4, v{a}", [b], [a, hh])
    V(f"v_lshl_add_u32 v{vW2R}, v{b}, 7, v{c8}", [vW2R], [b, c8])
    V(f"v_lshrrev_b32 v{a}, 1, v{a}", [a], [a]); V(f"v_xor_b32 v{a}, {2*ch+1}, v{a}", [a], [a]); V(f"v_xor_b32 v{a}, s{sE2}, v{a}", [a], [a])
    V(f"v_lshl_add_u32 v{vW2R}, v{a}, 5, v{vW2R}", [vW2R], [a, vW2R]); V(f"v_xor_b32 v{vW2R+3}, 32, v{vW2R}", [vW2R+3], [vW2R])
    for dl in range(2):
        for k in (1, 2): V(f"v_add_u32 v{vW2R+3*dl+k}, {65536*k}, v{vW2R+3*dl}", [vW2R+3*dl+k], [vW2R+3*dl])
    t0, t1, t2 = sU0, sU1, sSpin
    srd(s, R_W2, S_W2, F*D*2); srd(s, R_WS, S_WS, WS_BYTES)
    srd(s, R_B2, S_B2, D*2); srd(s, R_OUT, S_OUT, M*D*2)
    t3 = sP8
    for k in range(1, 4): S(f"s_add_u32 s{sPc+k}, s{sPC}, {k}"); S(f"s_and_b32 s{sPc+k}, s{sPc+k}, 3")
    S(f"s_mov_b32 s{sPc+4}, s{sPC}")
    S(f"s_lshr_b32 s{sClr}, s{sFS}, 1")
    if half == 0:
        S(f"s_mul_i32 s{t0}, s{sClr}, 576")
        S(f"s_mul_i32 s{t3}, s{sE}, 640")
        for ti in range(3):
            if ti == 0: S(f"s_mul_i32 s{t1}, s{sE}, 320")
            elif ti == 1: S(f"s_xor_b32 s{t1}, s{sE}, 1"); S(f"s_mul_i32 s{t1}, s{t1}, 320")
            if ti < 2:
                S(f"s_add_u32 s{t1}, s{t1}, s{t0}")
                S(f"s_lshl_b32 s{t2}, s{sRG}, 5"); S(f"s_add_u32 s{t2}, s{t2}, s{t1}"); S(f"s_mul_i32 s{sC3+ti}, s{t2}, 1152")
                S(f"s_lshl_b32 s{t2}, s{sRG}, 4"); S(f"s_add_u32 s{t1}, s{t1}, s{t2}")
            else:
                S(f"s_and_b32 s{t1}, s{sRG}, 1"); S(f"s_xor_b32 s{t2}, s{t1}, s{sE}"); S(f"s_lshl_b32 s{t2}, s{t2}, 5")
                S(f"s_add_u32 s{t2}, s{t2}, s{t0}"); S(f"s_add_u32 s{t2}, s{t2}, 256"); S(f"s_mul_i32 s{sC3+ti}, s{t2}, 1152")
                S(f"s_lshl_b32 s{t1}, s{t1}, 4"); S(f"s_lshr_b32 s{t2}, s{sRG}, 1"); S(f"s_xor_b32 s{t2}, s{t2}, s{sE}"); S(f"s_lshl_b32 s{t2}, s{t2}, 5")
                S(f"s_add_u32 s{t1}, s{t1}, s{t2}"); S(f"s_add_u32 s{t1}, s{t1}, s{t0}"); S(f"s_add_u32 s{t1}, s{t1}, 256")
            S(f"s_mul_i32 s{t1}, s{t1}, 1152"); S(f"s_add_u32 s{t1}, s{t1}, s{t3}")
            for pos in range(1, 5): S(f"s_lshl_b32 s{t2}, s{sPc+pos}, 7"); S(f"s_add_u32 s{sW2+4*ti+pos-1}, s{t1}, s{t2}")
        S(f"s_lshl_b32 s{t2}, s{sE}, 6"); S(f"s_add_u32 s{t2}, s{t2}, 512")
        for ti in range(3): S(f"s_add_u32 s{sC3+ti}, s{sC3+ti}, s{t2}")
    S(f"s_lshl_b32 s{t0}, s{sMT}, 1"); S(f"s_add_u32 s{t0}, s{t0}, s{sE}"); S(f"s_mul_i32 s{t0}, s{t0}, 72")
    S(f"s_lshl_b32 s{t3}, s{sClr}, 10")
    S(f"s_add_u32 s{t1}, s{t0}, s{sW}"); S(f"s_add_u32 s{t2}, s{t1}, 64"); S(f"s_lshl_b32 s{t2}, s{t2}, 13"); S(f"s_add_u32 s{sPc}, s{t2}, s{t3}")
    S(f"s_add_u32 s{t1}, s{t1}, s{sW}")
    S(f"s_lshl_b32 s{t2}, s{t1}, 13"); S(f"s_add_u32 s{t2}, s{t2}, s{t3}")
    for pos in range(1, 5): S(f"s_lshl_b32 s{sPc+pos}, s{sPc+pos}, 17"); S(f"s_add_u32 s{sPc+pos}, s{sPc+pos}, s{t2}")
    S(f"s_lshl_b32 s{sDt+1}, s{sE2}, 13"); S(f"s_xor_b32 s{sDt}, s{sDt+1}, 8192")
    S(f"s_lshl_b32 s{t2}, s{sPC}, 4"); S(f"s_add_u32 s{t1}, s{t1}, s{t2}"); S(f"s_add_u32 s{t1}, s{t1}, s{sE2}"); S(f"s_lshl_b32 s{t1}, s{t1}, 13")
    for k in range(1, 4):
        S(f"s_sub_u32 s{t2}, s{sPC}, {k}"); S(f"s_and_b32 s{t2}, s{t2}, 3"); S(f"s_lshl_b32 s{t2}, s{t2}, 11"); S(f"s_add_u32 s{sCo+k}, s{t1}, s{t2}")
    S(f"s_xor_b32 s{t2}, s{t3}, 1024"); S(f"s_add_u32 s{sCo}, s{t1}, s{t2}")
    S(f"s_add_u32 s{t0}, s{t0}, s{sClr}"); S(f"s_add_u32 s{t0}, s{t0}, 64"); S(f"s_lshl_b32 s{sP8}, s{t0}, 13")
    S(f"s_lshl_b32 s{t0}, s{sMT}, 4"); S(f"s_add_u32 s{t0}, s{t0}, s{sFS}"); S(f"s_xor_b32 s{t1}, s{t0}, 1")
    S(f"s_mul_i32 s{t0}, s{t0}, {9*8192}"); S(f"s_add_u32 s{sHXw}, s{t0}, {HX - HBASE}")
    S(f"s_mul_i32 s{t1}, s{t1}, {9*8192}"); S(f"s_add_u32 s{t1}, s{t1}, {HX}"); S(f"s_add_u32 s{sHXr}, s{t1}, s{sLw}")
    if cfg.noload:
        for k in range(4): S(f"s_mov_b32 s{sCo+k}, {OOB}")
        S(f"s_mov_b32 s{sP8}, {OOB}")
    S(f"s_mov_b32 s{sMask}, 0xffff0000")
    if half == 1:
        S(f"s_lshl_b32 s{t0}, s{sMT}, 15"); S(f"s_add_u32 s{t0}, s{t0}, {FLG}")
        S(f"s_cmp_eq_u32 s{sW}, 4"); S(f"s_cselect_b32 s{t0}, s{t0}, {OOB}"); S(f"s_cselect_b32 s{sTgt8}, 8, 0"); S(f"s_cselect_b32 s{sTgt1}, 1, 0")
        S(f"s_lshl_b32 s{t1}, s{sE}, 10"); S(f"s_add_u32 s{sCnt}, s{t0}, s{t1}")
        S(f"s_mul_i32 s{t1}, s{sFS}, 1024"); S(f"s_add_u32 s{t1}, s{t1}, 4096"); S(f"s_add_u32 s{sHfR}, s{t0}, s{t1}")
        S(f"s_xor_b32 s{t1}, s{sFS}, 1"); S(f"s_mul_i32 s{t1}, s{t1}, 1024"); S(f"s_add_u32 s{t1}, s{t1}, 4096"); S(f"s_add_u32 s{sHfW}, s{t0}, s{t1}")
        S(f"s_cmp_eq_u32 s{sFS}, 0"); S(f"s_cselect_b32 s{sT1}, s{t0}, {OOB}")
        if cfg.pf:
            nl = IL(cfg.pf)[2]; sh = I(cfg.pfshare); per = 2592//(sh*4) + (1 if 2592 % (sh*4) else 0)
            S(f"s_and_b32 s{t0}, s{sMT}, {sh-1}"); S(f"s_lshl_b32 s{t0}, s{t0}, 2"); S(f"s_add_u32 s{t0}, s{t0}, s{sRG}")
            S(f"s_mul_i32 s{t0}, s{t0}, {per*128}"); S(f"s_mul_i32 s{t1}, s{sFS}, {288*1152}"); S(f"s_add_u32 s{sPF}, s{t0}, s{t1}")
            if cfg.pf1b:
                nlr = IL(cfg.pf1b)[2]
                V(f"v_mul_u32_u24 v{a}, {-(-65536//nlr)}, v{L}", [a], [L]); V(f"v_lshrrev_b32 v{a}, 16, v{a}", [a], [a])
                V(f"v_mul_u32_u24 v{b}, {nlr}, v{a}", [b], [a]); V(f"v_sub_u32 v{b}, v{L}, v{b}", [b], [L, b])
                V(f"v_add_u32 v{b}, {5-nlr}, v{b}", [b], [b]); V(f"v_add_u32 v{b}, s{sE}, v{b}", [b], [b])
                V(f"v_cmp_eq_u32 vcc, 5, v{b}", rd=[b], swr=["vcc"]); V(f"v_mul_u32_u24 v{a}, 9216, v{a}", [a], [a]); S("s_nop 0")
                V(f"v_cndmask_b32 v{b}, v{b}, 0, vcc", [b], [b])
                V(f"v_lshl_add_u32 v{a}, v{b}, 7, v{a}", [a], [a, b])
                V(f"v_cmp_gt_u32 vcc, {3*nlr}, v{L}", rd=[L], swr=["vcc"]); V(f"v_mov_b32 v{b}, {OOB}", [b]); S("s_nop 0")
                V(f"v_cndmask_b32 v{vW1s}, v{b}, v{a}, vcc", [vW1s], [a, b])
            if cfg.pf1c:
                S(f"s_lshl_b32 s{t0}, s2, 2"); S(f"s_add_u32 s{t0}, s{t0}, s{sRG}"); S(f"s_mul_i32 s{sW1s}, s{t0}, {81*64}")
                S(f"s_and_b32 s{sW1s}, s{sW1s}, 0xffffff80")
            if cfg.pf1 or cfg.pf1b:
                S(f"s_lshl_b32 s{t0}, s{sMT}, 2"); S(f"s_add_u32 s{t0}, s{t0}, s{sRG}"); S(f"s_mul_i32 s{t0}, s{t0}, {9*9216}")
                S(f"s_mul_i32 s{t1}, s{sFS}, 576"); S(f"s_and_b32 s{t1}, s{t1}, 0xffffff80"); S(f"s_add_u32 s{sW1s}, s{t0}, s{t1}")
            V(f"v_lshlrev_b32 v{a}, 7, v{L}", [a], [L]); V(f"v_cmp_gt_u32 vcc, {nl}, v{L}", rd=[L], swr=["vcc"]); V(f"v_mov_b32 v{b}, {OOB}", [b]); S("s_nop 0")
            V(f"v_cndmask_b32 v{vPF}, v{b}, v{a}, vcc", [vPF], [a, b])
    V(f"v_lshrrev_b32 v{a}, 3, v{L}", [a], [L]); V(f"v_lshlrev_b32 v{a}, 10, v{a}", [a], [a])
    V(f"v_and_b32 v{t}, 7, v{L}", [t], [L]); V(f"v_lshl_add_u32 v{a}, v{t}, 4, v{a}", [a], [a, t])
    S(f"s_lshl_b32 s{t0}, s{sW}, 7"); V(f"v_add_u32 v{vP8off}, s{t0}, v{a}", [vP8off], [a])
    V(f"v_lshrrev_b32 v{b}, 4, v{L}", [b], [L]); V(f"v_lshlrev_b32 v{b}, 3, v{b}", [b], [b]); V(f"v_add_u32 v{vOutM}, v{vOutM}, v{b}", [vOutM], [vOutM, b])
    S(f"s_lshl_b32 s{t0}, s{sPC}, 7"); S(f"s_lshl_b32 s{t1}, s{sE2}, 5"); S(f"s_add_u32 s{t0}, s{t0}, s{t1}"); S(f"s_add_u32 s{t0}, s{t0}, {64*ch}")
    S(f"s_mul_i32 s{t1}, s{sE}, 640"); S(f"s_add_u32 s{t0}, s{t0}, s{t1}")
    S(f"s_add_u32 s{sOutM}, s{sXo}, s{t0}")
    hb0 = s.vload("buffer_load_dwordx2", vB2m, 2, b, R_B2, f"s{t0}")
    S(f"s_and_b32 s{t0}, s{sW}, 1"); S(f"s_lshl_b32 s{t0}, s{t0}, 3")
    V(f"v_add_u32 v{a}, s{t0}, v{t}", [a], [t]); V(f"v_lshl_add_u32 v{a}, v{hh}, 4, v{a}", [a], [a, hh]); V(f"v_mul_u32_u24 v{a}, 1152, v{a}", [a], [a])
    V(f"v_bfe_u32 v{b}, v{L}, 4, 1", [b], [L]); V(f"v_lshlrev_b32 v{b}, 2, v{b}", [b], [b]); V(f"v_add_u32 v{vOut8}, v{a}, v{b}", [vOut8], [a, b])
    S(f"s_lshr_b32 s{t0}, s{sClr}, 2"); S(f"s_lshl_b32 s{t0}, s{t0}, 5"); S(f"s_lshl_b32 s{t1}, s{sE}, 6"); S(f"s_add_u32 s{t0}, s{t0}, s{t1}")
    S(f"s_lshr_b32 s{t1}, s{sW}, 1"); S(f"s_lshl_b32 s{t1}, s{t1}, 3"); S(f"s_add_u32 s{t0}, s{t0}, s{t1}"); S(f"s_add_u32 s{t0}, s{t0}, 512")
    hb1 = s.vload("buffer_load_dword", vB28, 1, b, R_B2, f"s{t0}")
    S(f"s_and_b32 s{t1}, s{sClr}, 3"); S(f"s_lshl_b32 s{t1}, s{t1}, 5"); S(f"s_lshl_b32 s{sOut8}, s{sMT}, 7"); S(f"s_add_u32 s{t1}, s{t1}, s{sOut8}")
    S(f"s_mul_i32 s{t1}, s{t1}, 1152"); S(f"s_add_u32 s{sOut8}, s{t1}, s{t0}")
    V(f"v_and_b32 v{a}, 8, v{L}", [a], [L]); V(f"v_cmp_eq_u32 vcc, 0, v{a}", rd=[a], swr=["vcc"]); V(f"v_mov_b32 v{b}, {OOB}", [b]); S("s_nop 0")
    V(f"v_cndmask_b32 v{vOut8}, v{b}, v{vOut8}, vcc", [vOut8], [b, vOut8])
    if half == 1: S(f"s_mov_b32 s{sClr}, s{sT1}")
    S(f"s_lshl_b32 s{t0}, s{sD0}, 2"); S(f"s_add_u32 s{t0}, s{t0}, {BIAS + 128*ch}")
    S(f"s_lshl_b32 s{t1}, s{sS0}, 2"); S(f"s_add_u32 s{t1}, s{t1}, {BIAS}")
    V(f"v_lshlrev_b32 v{a}, 2, v0", [a]); V(f"v_add_u32 v{a}, {BIAS}, v{a}", [a], [a])
    V(f"v_lshl_add_u32 v{vBias}, v{hh}, 4, s{t0}", [vBias], [hh])
    s.wait(tokb)
    V(f"v_lshlrev_b32 v{b}, 16, v{vBiasS}", [b], [vBiasS])
    tb = s.ds_write("ds_write_b32", a, b, 1, 0)
    V(f"v_lshl_add_u32 v{vBiasS}, v{hh}, 4, s{t1}", [vBiasS], [hh])
    return tb, (hb0, hb1)

def gelu_group(s, regs, tb):
    ops = []
    T = [vT + (tb + i) % 8 for i in range(len(regs))]
    def V(text, **k): ops.append(lambda: s.valu(text, **k))
    for x, t in zip(regs, T): V(f"v_mul_f32 v{t}, v{x}, v{x}", wr=[t], rd=[x])
    for x, t in zip(regs, T): V(f"v_fma_f32 v{t}, v{t}, s{sGB}, v{vGA}", wr=[t], rd=[t, vGA])
    for x, t in zip(regs, T): V(f"v_mul_f32 v{t}, v{x}, v{t}", wr=[t], rd=[x, t])
    for x, t in zip(regs, T): V(f"v_exp_f32 v{t}, v{t}", wr=[t], rd=[t], trans=True)
    for x, t in zip(regs, T): V(f"v_add_f32 v{t}, 1.0, v{t}", wr=[t], rd=[t])
    for x, t in zip(regs, T): V(f"v_rcp_f32 v{t}, v{t}", wr=[t], rd=[t], trans=True)
    for x, t in zip(regs, T): V(f"v_mul_f32 v{x}, v{x}, v{t}", wr=[x], rd=[x, t])
    return ops
class W:
    def __init__(self, f, c): self.f, self.c = f, c
    def __call__(self): return self.f()
def gelu_skew(s, regs, after):
    ops = []; n = len(regs); tc = float(cfg.tcost)
    def mk(k, x, t):
        return [(f"v_mul_f32 v{t}, v{x}, v{x}", [t], [x], 0), (f"v_fma_f32 v{t}, v{t}, s{sGB}, v{vGA}", [t], [t, vGA], 0),
                (f"v_mul_f32 v{t}, v{x}, v{t}", [t], [x, t], 0), (f"v_exp_f32 v{t}, v{t}", [t], [t], 1),
                (f"v_add_f32 v{t}, 1.0, v{t}", [t], [t], 0), (f"v_rcp_f32 v{t}, v{t}", [t], [t], 1),
                (f"v_mul_f32 v{x}, v{x}, v{t}", [x], [x, t], 0)][k]
    for t in range(n + 7):
        for k in (6, 3, 4, 2, 5, 1, 0):
            e = t - k
            if 0 <= e < n:
                tx, wr, rd, tr = mk(k, regs[e], vT + e % 8)
                ops.append(W(lambda tx=tx, wr=wr, rd=rd, tr=tr: s.valu(tx, wr=wr, rd=rd, trans=bool(tr)), tc if tr else 1.0))
        e = t - 7
        if 0 <= e < n: ops += after.get(e, [])
    return ops
def cvt(s, d, a, b):
    return lambda: s.valu(f"v_cvt_pk_bf16_f32 v{d}, v{a}, v{b}", wr=[d], rd=[a, b])

def body(p, half, PLAN):
    BAR, ISSUE, BLK, LAND = PLAN
    s = Stream(p); ool = Stream(); ch = half
    utok = {}
    iss = Issuer(s, half, BLK, utok)
    def issue_all(bar):
        for u in ISSUE[bar]:
            for f in iss.pieces(u): f()
    issue_all(-3)
    if I(cfg.pfcode) == 2: code_prefetch(s, f"h{half}")
    if I(cfg.pfx):
        s0 = I(cfg.pfx); nl = 9 - s0; a_, b_ = vT+4, vT+5
        s.valu(f"v_mul_u32_u24 v{a_}, {-(-65536//nl)}, v{vLane}", wr=[a_], rd=[vLane]); s.valu(f"v_lshrrev_b32 v{a_}, 16, v{a_}", wr=[a_], rd=[a_])
        s.valu(f"v_mul_u32_u24 v{b_}, {nl}, v{a_}", wr=[b_], rd=[a_]); s.valu(f"v_sub_u32 v{b_}, v{vLane}, v{b_}", wr=[b_], rd=[vLane, b_])
        s.valu(f"v_mul_u32_u24 v{a_}, 1152, v{a_}", wr=[a_], rd=[a_]); s.valu(f"v_lshl_add_u32 v{a_}, v{b_}, 7, v{a_}", wr=[a_], rd=[a_, b_])
        s.valu(f"v_cmp_gt_u32 vcc, {4*nl}, v{vLane}", rd=[vLane], swr=["vcc"]); s.valu(f"v_mov_b32 v{b_}, {OOB}", wr=[b_])
        s.salu(f"s_and_b32 s{sT1}, s{sFS}, 3"); s.salu(f"s_lshl_b32 s{sT1}, s{sT1}, 3"); s.salu(f"s_add_u32 s{sT1}, s{sT1}, s{sW}")
        s.salu(f"s_lshl_b32 s{sU1}, s{sMT}, 5"); s.salu(f"s_add_u32 s{sT1}, s{sT1}, s{sU1}"); s.salu(f"s_mul_i32 s{sT1}, s{sT1}, {4*1152}"); s.salu(f"s_add_u32 s{sT1}, s{sT1}, {128*s0}")
        s.valu(f"v_cndmask_b32 v{a_}, v{b_}, v{a_}, vcc", wr=[a_], rd=[a_, b_])
        s.vload("buffer_load_dword", vDummy, 1, a_, R_X, f"s{sT1}")
        s.valu(f"v_mul_u32_u24 v{a_}, 9216, v{vLane}", wr=[a_], rd=[vLane]); s.valu(f"v_cmp_gt_u32 vcc, {nl}, v{vLane}", rd=[vLane], swr=["vcc"])
        s.salu(f"s_and_b32 s{sT1}, s{sMT}, 7"); s.salu(f"s_lshl_b32 s{sT1}, s{sT1}, 3"); s.salu(f"s_add_u32 s{sT1}, s{sT1}, s{sW}")
        s.salu(f"s_mul_i32 s{sT1}, s{sT1}, {nl*9216}"); s.salu(f"s_add_u32 s{sT1}, s{sT1}, {64*s0*9216}")
        s.salu(f"s_lshl_b32 s{sU1}, s{sD0}, 1"); s.salu(f"s_add_u32 s{sT1}, s{sT1}, s{sU1}"); s.salu(f"s_add_u32 s{sT1}, s{sT1}, s{sU0}")
        s.valu(f"v_cndmask_b32 v{a_}, v{b_}, v{a_}, vcc", wr=[a_], rd=[a_, b_])
        s.vload("buffer_load_dword", vDummy, 1, a_, R_W1, f"s{sT1}")
    q2 = [f for u in ISSUE[-2] for f in iss.pieces(u)]
    tb, hb2 = setup_main(s, half, q2 if I(cfg.ticks) else None)
    if cfg.stamps: s.valu(f"v_writelane_b32 v{vStamp}, s98, 0", wr=[vStamp])
    stamp(s, "setup")
    for f in q2: f()
    if half == 1:
        if "1" in cfg.pfpro: s.vload("buffer_load_dword", vDummy, 1, vPF, R_W1, f"s{sW1s}", flags=cfg.fl_pf)
        if "2" in cfg.pfpro: s.vload("buffer_load_dword", vDummy, 1, vPF, R_W2, f"s{sPF}", flags=cfg.fl_pf)
    if I(cfg.prio) == half: s.salu("s_setprio 1")

    xblk = lambda i: vXF + 16*i
    dead = [xblk(2*i + (1-ch)) for i in range(4)]
    used = [xblk(2*i + ch) for i in range(4)]
    Hreg = {(k, mt): dead[k//2] + (k % 2)*8 + mt*4 for k in range(8) for mt in range(2)}
    for mt in range(2): Hreg[(8, mt)] = xblk(8) + (1-ch)*8 + mt*4
    for k in range(8):
        for mt in range(2): Hreg[(9+k, mt)] = used[k//2] + (k % 2)*8 + mt*4
    for mt in range(2): Hreg[(17, mt)] = xblk(8) + ch*8 + mt*4
    def acc(pos, dl, mt):
        if pos == 3 and INS3: return (vT, vT+4, vW1d, vEXW)[2*dl + mt]
        return {0: vXR, 1: vS[1], 2: vS[0], 3: vS[1], 4: vS[0]}[pos] + 8*dl + 4*mt
    PK2 = vP

    fill = {}; cur = [-1]; need_bar = {}; need_mf = {}; prebar = {}
    def F(n, i, f):
        assert 0 <= n < NST and 0 <= i < ST[n].nm, (n, i)
        fill.setdefault((n, i), []).append(f)
    def spread(ops, n0, i0, n1, i1=None):
        gaps = [(n, i, 1.0 if ST[n].kind != "b" else 0.5) for n in range(n0, n1+1) for i in range(ST[n].nm)
                if not (n == n0 and i < i0) and not (n == n1 and i1 is not None and i > i1)]
        tot = sum(g[2] for g in gaps); acc = 0; k = 0
        cost = [getattr(o, "c", 1.0) for o in ops]; ctot = sum(cost); cdone = 0
        for (n, i, w) in gaps:
            acc += w
            while k < len(ops) and cdone + cost[k]/2 <= ctot*acc/tot + 1e-9: F(n, i, ops[k]); cdone += cost[k]; k += 1
        assert k == len(ops)
    def hold(): return [None]
    def before_bar(n, h): need_bar.setdefault(min(b for b in BAR if b >= n), []).append(h)
    def before_mfma(n, i, h): need_mf.setdefault((n, i), []).append(h)

    if half == 1:
        hclr = hold()
        def clr():
            s.valu(f"v_lshlrev_b32 v{vTmp}, 8, v{vLane}", wr=[vTmp], rd=[vLane]); s.valu(f"v_mov_b32 v{vTmp2}, {OOB}", wr=[vTmp2])
            s.valu(f"v_mov_b32 v{vFv}, 0", wr=[vFv])
            s.vstore("buffer_store_dword", vFv, 1, vTmp, R_WS, f"s{sClr}", flags=cfg.st_flags)
            s.salu(f"s_add_u32 s{sClr}, s{sClr}, 16384")
            hclr[0] = s.vstore("buffer_store_dword", vFv, 1, vTmp, R_WS, f"s{sClr}", flags=cfg.st_flags)
            s.valu(f"v_cmp_eq_u32 vcc, 0, v{vLane}", rd=[vLane], swr=["vcc"]); s.salu("s_nop 1")
            s.valu(f"v_cndmask_b32 v{vOne}, v{vTmp2}, v{vFv}, vcc", wr=[vOne], rd=[vTmp2, vFv])
        assert all(u[0] != "x" for b in ISSUE if b >= I(cfg.clr_stage) for u in ISSUE[b])
        F(I(cfg.clr_stage), 3, clr)
        def arrive():
            srd(s, R_DBG, S_DBG, 256)
            s.salu(f"s_lshl_b32 s{sU0}, s{sMT}, 2")
            s.salu(f"s_cmp_lg_u32 s{sW}, 4"); s.salu(f"s_cselect_b32 s{sU0}, 1024, s{sU0}")
            s.salu(f"s_cmp_lg_u32 s{sFS}, 0"); s.salu(f"s_cselect_b32 s{sU0}, 1024, s{sU0}")
            s.wait(hclr[0])
            s.valu(f"v_mov_b32 v{vFv}, 1", wr=[vFv])
            s.vstore("buffer_atomic_add", vFv, 1, vOne, R_DBG, f"s{sU0}")
        F(7 if False else I(cfg.arr_stage), 2, arrive)
        if cfg.pf and "2" not in cfg.pfpro:
            n0, n1, nl = IL(cfg.pf); sh = I(cfg.pfshare); per = -(-2592//(sh*4)); cnt = -(-per//nl)
            for q in range(cnt):
                def pf(q=q):
                    s.vload("buffer_load_dword", vDummy, 1, vPF, R_W2, f"s{sPF}", flags=cfg.fl_pf)
                    s.salu(f"s_add_u32 s{sPF}, s{sPF}, {nl*128}")
                g = q*(n1 - n0 + 1)*4//cnt
                F(n0 + g//4, g % 4, pf)
        if cfg.pf1c and "1" not in cfg.pfpro:
            n0, n1 = IL(cfg.pf1c); nl = IL(cfg.pf)[2]; cnt = -(-41//nl)
            for q in range(cnt):
                def pf1c():
                    s.vload("buffer_load_dword", vDummy, 1, vPF, R_W1, f"s{sW1s}", flags=cfg.fl_pf)
                    s.salu(f"s_add_u32 s{sW1s}, s{sW1s}, {nl*128}")
                g = q*(n1 - n0 + 1)*4//cnt
                F(n0 + g//4, g % 4, pf1c)
        if cfg.pf1b:
            n0, n1, _ = IL(cfg.pf1b)
            for q in range(3):
                def pf1b():
                    s.vload("buffer_load_dword", vDummy, 1, vW1s, R_W1, f"s{sW1s}", flags=cfg.fl_pf)
                    s.salu(f"s_add_u32 s{sW1s}, s{sW1s}, {3*9216}")
                g = q*(n1 - n0 + 1)*4//3
                F(n0 + g//4, g % 4, pf1b)
        if cfg.pf1:
            n0, n1 = IL(cfg.pf1)
            for q in range(9):
                def pf1():
                    s.vload("buffer_load_dword", vDummy, 1, vPF, R_W1, f"s{sW1s}", flags=cfg.fl_pf)
                    s.salu(f"s_add_u32 s{sW1s}, s{sW1s}, 9216")
                g = q*(n1 - n0 + 1)*4//9
                F(n0 + g//4, g % 4, pf1)

    hst = [hold(), hold(), hold(), hold()]; hst0b = hold()
    late = []
    def LV(text, wr, rd): late.append(lambda: s.valu(text, wr=wr, rd=rd))
    a_, b_ = vTmp, vTmp2
    LV(f"v_bfe_u32 v{a_}, v{vLane}, 2, 3", [a_], [vLane]); LV(f"v_lshrrev_b32 v{b_}, 5, v{vLane}", [b_], [vLane])
    LV(f"v_lshl_add_u32 v{a_}, v{b_}, 4, v{a_}", [a_], [a_, b_]); LV(f"v_and_b32 v{b_}, 3, v{vLane}", [b_], [vLane])
    LV(f"v_lshlrev_b32 v{b_}, 3, v{b_}", [b_], [b_]); LV(f"v_lshl_add_u32 v{a_}, v{a_}, 6, v{b_}", [a_], [a_, b_])
    LV(f"v_bfe_u32 v{b_}, v{vLane}, 4, 1", [b_], [vLane])
    if ch: LV(f"v_xor_b32 v{b_}, 1, v{b_}", [b_], [b_])
    LV(f"v_lshl_add_u32 v{vW2cR}, v{b_}, 5, v{a_}", [vW2cR], [a_, b_])
    for k in (1, 2): LV(f"v_add_u32 v{vW2cR+k}, {65536*k}, v{vW2cR}", [vW2cR+k], [vW2cR])
    LV(f"v_add_u32 v{vHB[2]}, 131072, v{vHB[0]}", [vHB[2]], [vHB[0]])
    for f in late: F(36, 1, f)
    if half == 1 and cfg.fdirect:
        def ftab():
            s.salu(f"s_mul_i32 s{sU0}, s{sFS}, 768"); s.salu(f"s_lshl_b32 s{sU1}, s{sE}, 10"); s.salu(f"s_sub_u32 s{sU0}, s{sU0}, s{sU1}"); s.salu(f"s_add_u32 s{sU0}, s{sU0}, {80*256}")
            s.valu(f"v_lshl_add_u32 v{vTmp}, v{vLane}, 8, s{sU0}", wr=[vTmp], rd=[vLane]); s.valu(f"v_mov_b32 v{vTmp2}, {OOB}", wr=[vTmp2])
            s.valu(f"v_cmp_gt_u32 vcc, 3, v{vLane}", rd=[vLane], swr=["vcc"]); s.valu(f"v_mov_b32 v{vFW}, {OOB}", wr=[vFW]); s.salu("s_nop 0")
            s.valu(f"v_cndmask_b32 v{vFR}, v{vTmp2}, v{vTmp}, vcc", wr=[vFR], rd=[vTmp, vTmp2])
            s.salu(f"s_xor_b32 s{sU0}, s{sFS}, 2"); s.salu(f"s_mul_i32 s{sU0}, s{sU0}, 768"); s.salu(f"s_sub_u32 s{sU0}, s{sU0}, s{sU1}"); s.salu(f"s_add_u32 s{sU0}, s{sU0}, {80*256}")
            s.valu(f"v_writelane_b32 v{vFW}, s{sU0}, 0", wr=[vFW])
            s.salu(f"s_add_u32 s{sU0}, s{sPC}, 3"); s.salu(f"s_and_b32 s{sU0}, s{sU0}, 3"); s.salu(f"s_lshl_b32 s{sU0}, s{sU0}, 2"); s.salu(f"s_add_u32 s{sU0}, s{sU0}, s{sE}")
            s.salu(f"s_mul_i32 s{sU0}, s{sU0}, 768"); s.salu(f"s_sub_u32 s{sU0}, s{sU0}, s{sU1}"); s.salu(f"s_add_u32 s{sU0}, s{sU0}, {81*256}")
            s.salu(f"s_lshl_b32 s{sU1}, s{sE2}, 8"); s.salu(f"s_add_u32 s{sU0}, s{sU0}, s{sU1}")
            s.valu(f"v_writelane_b32 v{vFW}, s{sU0}, 1", wr=[vFW])
            s.salu(f"s_add_u32 s{sU0}, s{sU0}, {2*768}")
            s.valu(f"v_writelane_b32 v{vFW}, s{sU0}, 2", wr=[vFW])
        F(47, 6, ftab)
    biasrd = {}
    for j in range(1, 5):
        S = vS[j % 2]
        if j == 4 and ch == 1: continue
        for g in range(4):
            h = hold()
            def rd(h=h, g=g, j=j, S=S):
                h[0] = s.ds_read("ds_read_b128", S+4*g, 4, vBias if j < 4 else vBiasS, (j*256 if j < 4 else 0) + g*32)
            biasrd[(j, g)] = rd; before_mfma(9*j, 0, h)
    for g in range(4): F(8, g, biasrd[(1, g)])
    gw0, gw1, gw2 = IL(cfg.gwin)
    for j in range(4):
        S = vS[j % 2]; ops = []; after = {}
        for e in range(2):
            h = hold()
            def wr(h=h, e=e, j=j):
                assert cur[0] >= HWSTAGE[j], (j, cur[0])
                h[0] = s.ds_write("ds_write_b128", vHW, vP+4*e, 4, 2*j*8192 + e*512)
            def gw(e=e, j=j):
                s.salu(f"s_add_u32 s{sT1}, s{sHXw}, {2*j*8192 + e*512}" if not cfg.nohst else f"s_mov_b32 s{sT1}, {OOB}")
                hst[max(j-1, 0)][0] = s.vstore("buffer_store_dwordx4", vP+4*e, 4, vHW, R_WS, f"s{sT1}", flags=cfg.h_flags)
            fin = [W(wr, 2.0)] + ([] if (cfg.hdelay and j < 2) else [W(gw, 2.0)])
            before_bar(min(9*(j+2), 36) if j < 3 else B0+1, h)
            if cfg.skew:
                for q in range(4):
                    after.setdefault(8*e+2*q+1, []).append(cvt(s, vP+4*e+q, S+8*e+2*q, S+8*e+2*q+1))
                    if q % 2 == 1 and (j+2, 2*e + q//2) in biasrd: after[8*e+2*q+1].append(biasrd[(j+2, 2*e + q//2)])
                after[8*e+7] += fin
            else:
                for g in (2*e, 2*e+1):
                    ops += gelu_group(s, [S+4*g+i for i in range(4)], 4*g)
                    ops.append(cvt(s, vP+2*g, S+4*g, S+4*g+1)); ops.append(cvt(s, vP+2*g+1, S+4*g+2, S+4*g+3))
                ops += fin
        if cfg.skew: ops = gelu_skew(s, [S+i for i in range(16)], after)
        else:
            for g in range(4):
                if (j+2, g) in biasrd: F(9*(j+2)-1, g, biasrd[(j+2, g)])
        if j < 3:
            if cfg.skew: spread(ops, 9*(j+1), gw0, 9*(j+1)+gw1, gw2)
            else: spread(ops, 9*(j+1), 2, 9*(j+1)+7)
        else: spread(ops, 36, gw0 if cfg.skew else 2, *IL(cfg.g3end))
    if cfg.hdelay:
        n0, n1 = IL(cfg.hdelay); gaps = [(n, i) for n in range(n0, n1+1) for i in range(4)]
        for k in range(4):
            h = hold(); g = k*(len(gaps)-3)//4; R = vXR + 4*(k % 2)
            def rd(h=h, k=k, R=R):
                w_, o_ = win((HB+k)*8192 + ch*1024)
                h[0] = s.ds_read("ds_read_b128", R, 4, vHB[w_], o_)
            def st_(h=h, k=k, R=R):
                s.wait(h[0])
                s.salu(f"s_add_u32 s{sT1}, s{sHXw}, {k*8192 + HBASE + ch*1024}" if not cfg.nohst else f"s_mov_b32 s{sT1}, {OOB}")
                t = s.vstore("buffer_store_dwordx4", R, 4, vHB[0], R_WS, f"s{sT1}", flags=cfg.h_flags)
                hst0b[0] = t
            F(*gaps[g], rd); F(*gaps[g+3], st_)
        before_bar(IL(cfg.hpub)[0], hst0b)
    S = vS[0]; snd = S + 8*(1-ch); own = S + 8*ch
    for e in range(2):
        h = hold()
        def wr(h=h, e=e): h[0] = s.ds_write("ds_write_b128", vEXW, snd+4*e, 4, e*1024)
        F(B0, 3+e, wr); before_bar(B0+1, h)
    hx = []
    for e in range(2):
        h = hold(); hx.append(h)
        def rd(h=h, e=e): h[0] = s.ds_read("ds_read_b128", snd+4*e, 4, vEXR, e*1024)
        F(B0+1, 0, rd); before_bar(B0+2, h)
    ops = [lambda: s.wait(hx[0][0], hx[1][0])]
    for i in range(8):
        ops.append(lambda i=i: s.valu(f"v_add_f32 v{own+i}, v{own+i}, v{snd+i}", wr=[own+i], rd=[own+i, snd+i]))
    if cfg.skew:
        ops += gelu_skew(s, [own+i for i in range(8)], {2*q+1: [cvt(s, PK2+q, own+2*q, own+2*q+1)] for q in range(4)})
    else:
        for g in range(2):
            ops += gelu_group(s, [own+4*g+i for i in range(4)], 4*g)
            ops.append(cvt(s, PK2+2*g, own+4*g, own+4*g+1)); ops.append(cvt(s, PK2+2*g+1, own+4*g+2, own+4*g+3))
    h = hold()
    def wr8(h=h): h[0] = s.ds_write("ds_write_b128", vHW8, PK2, 4, 0)
    def gw8(): hst[3][0] = s.vstore("buffer_store_dwordx4", PK2, 4, vHW8, R_WS, f"s{sHXw}", flags=cfg.st_flags)
    ops.append(wr8); ops.append(gw8); before_bar(B0+5, h)
    spread(ops, B0+1, 3, B0+4, 6)
    hrd = {}
    def hread(k, n, i):
        blk = HB + k if k < 9 else BLK[("h", k)]
        for mt in range(2):
            h = hold(); hrd[(k, mt)] = h
            def rd(h=h, k=k, mt=mt):
                w_, o_ = win(blk*8192 + mt*1024)
                h[0] = s.ds_read("ds_read_b128", Hreg[(k, mt)], 4, vHB[w_], o_)
            F(n, i, rd); before_bar(n+2, h)
    for k in range(18): hread(k, HREAD[k], 1 + 2*(k % 2) if ST[HREAD[k]].nm == 4 else 1 + 2*(k % 4))

    nslow = [0]
    vPollR = vSec
    def check(test, tok, reload):
        nslow[0] += 1; k = f"{half}_{nslow[0]}"
        assert tok is not None or cfg.nopoll
        s.wait(tok); test(s)
        if cfg.inl:
            t = Stream()
            s.salu(f"s_cbranch_scc0 L_back_{k}")
        else:
            t = ool
            s.salu(f"s_cbranch_scc1 L_slow_{k}"); s.raw(f"L_back_{k}:")
            t.raw(f"L_slow_{k}:")
        t.salu(f"s_mov_b32 s{sSpin}, {SPIN}")
        t.raw(f"L_spin_{k}:")
        if I(cfg.backoff): t.salu(f"s_sleep {I(cfg.backoff)}")
        reload(t); t.wait_all(l=False); test(t)
        t.salu(f"s_cbranch_scc0 L_back_{k}")
        t.salu(f"s_sub_u32 s{sSpin}, s{sSpin}, 1"); t.salu(f"s_cmp_lg_u32 s{sSpin}, 0")
        t.salu(f"s_cbranch_scc1 L_spin_{k}")
        if cfg.inl:
            s.raw(t.text()); s.raw(f"L_back_{k}:")
        else: t.salu(f"s_branch L_back_{k}")
    def below(tgt, mul=1):
        def test(st):
            st.valu(f"v_readfirstlane_b32 s{sU1}, v{vPollR}", rd=[vPollR], swr=[sU1])
            if mul > 1:
                st.salu(f"s_mul_i32 s{sU0}, {tgt}, {mul}"); st.salu("s_nop 2"); st.salu(f"s_cmp_lt_u32 s{sU1}, s{sU0}")
            else:
                st.salu("s_nop 3"); st.salu(f"s_cmp_lt_u32 s{sU1}, {tgt}")
        return test
    def poll(st, base, idx):
        if cfg.nopoll:
            st.valu(f"v_mov_b32 v{vPollR}, 16", wr=[vPollR]); return None
        return st.vload("buffer_load_dword", vPollR, 1, vOne, R_WS, f"s{base}", off=256*idx, flags=cfg.poll_flags)
    def gate(base, idx, tgt, nb, name, mul=1):
        if half != 1: return
        hp = hold()
        F(nb - I(cfg.polllead), min(2, ST[nb - I(cfg.polllead)].nm-1), lambda: hp.__setitem__(0, poll(s, base, idx)))
        def chk():
            stamp(s, f"{name}0"); check(below(f"s{tgt}", mul), hp[0], lambda st: poll(st, base, idx)); stamp(s, f"{name}1")
        prebar.setdefault(nb, []).append(chk)
    def publish(base, idx):
        def go():
            if half == 1 and not cfg.nopub: s.vstore("buffer_atomic_add", vFv, 1, vOne, R_WS, f"s{base}", off=256*idx)
        return go
    if half == 1:
        hc = hold()
        def ld_cnt(st):
            st.salu(f"s_lshl_b32 s{sU0}, s{sMT}, 2")
            return st.vload("buffer_load_dword", vPollR, 1, vOne, R_DBG, f"s{sU0}", flags=cfg.poll_flags)
        F(I(cfg.cchk) - 4, 2, lambda: hc.__setitem__(0, ld_cnt(s)))
        assert I(cfg.cchk) in BAR
        prebar.setdefault(I(cfg.cchk), []).append(lambda: check(below("1"), hc[0], ld_cnt))
    for lv, (pb, cb) in enumerate(zip(IL(cfg.hpub), IL(cfg.hchk))):
        assert pb in BAR and cb in BAR and pb < cb
        assert pb > I(cfg.cchk)
        before_bar(pb, hst[lv])
        if cb in IL(cfg.hchk)[lv+1:]: continue
        F(pb, 1, publish(sHfW, lv)); gate(sHfR, lv, sTgt1, cb, f"h{lv}")
    last_stage = {}
    for a in ST[B0:]:
        for (pos, dl, k, u, sl) in a.parts: last_stage[(pos, dl)] = a.n
    pk_of = lambda pos: vP
    stok = {}
    def store_ops(pos, dls):
        PK = pk_of(pos); ops = []; stok.setdefault(pos, hold())
        for dl in dls:
            for mt in range(2):
                for e in range(2): ops.append(cvt(s, PK+4*dl+2*mt+e, acc(pos, dl, mt)+2*e, acc(pos, dl, mt)+2*e+1))
            def st_(dl=dl):
                if cfg.nostore: s.salu(f"s_mov_b32 s{sT1}, {OOB}")
                elif pos == 0: s.salu(f"s_mov_b32 s{sT1}, s{sPc}")
                else: s.salu(f"s_add_u32 s{sT1}, s{sPc+pos}, s{sDt+dl}")
                stok[pos][0] = s.vstore("buffer_store_dwordx4", PK+4*dl, 4, vL16, R_WS, f"s{sT1}", flags=cfg.st_flags)
            ops.append(st_)
        return ops
    sts = IL(cfg.stst)
    for (pos, dl), n in zip([(1, 0), (1, 1), (2, 0), (2, 1), (0, 0), (3, 0), (3, 1)], sts):
        assert n > last_stage[(pos, dl)]
        spread(store_ops(pos, (dl,)), n, 1, n, min(5, ST[n].nm-1))
    assert (INS3 or sts[1] < 64) and sts[3] < LAST0
    n8 = last_stage[(4, 0)]
    spread(store_ops(4, (0,)), n8, 6, n8+1, 2)
    pA, cA, pF = I(cfg.pubA), I(cfg.chkA), I(cfg.pubF)
    assert pA in BAR and cA in BAR
    before_bar(pA, stok[0]); F(pA, 1, publish(sCnt, 0)); gate(sCnt, 0, sTgt8, cA, "cA")
    def pubF():
        if not cfg.fdirect: return publish(sCnt, 2)()
        if half == 1 and not cfg.nopub: s.vstore("buffer_atomic_add", vFv, 1, vFW, R_WS, f"s{sCnt}")
    def pollF(st):
        if not cfg.fdirect or cfg.nopoll: return poll(st, sCnt, 2)
        return st.vload("buffer_load_dword", vPollR, 1, vFR, R_WS, f"s{sCnt}", flags=cfg.poll_flags)
    def testF(st):
        if not cfg.fdirect or cfg.nopoll: return below(f"s{sTgt8}")(st)
        st.valu(f"v_cmp_gt_u32 vcc, s{sTgt1}, v{vPollR}", rd=[vPollR], swr=["vcc"]); st.salu("s_nop 3")
        st.salu("s_and_b32 vcc_lo, vcc_lo, 7")
    if pF in BAR: before_bar(pF, stok[4]); F(pF, 0, pubF)
    LAND_OF = {8: vXR, 1: Hreg[(0, 0)], 2: Hreg[(1, 0)], 3: Hreg[(2, 0)], 0: vXR+4}
    ptk = {}
    def piece(k, e):
        def go():
            if k == 8:
                ptk[k] = s.vload("buffer_load_dwordx4", LAND_OF[k]+4*e, 4, vP8off, R_WS, f"s{sP8}", flags=cfg.ld_flags)
            else:
                ptk[k] = s.vload("buffer_load_dwordx4", LAND_OF[k]+4*e, 4, vL16, R_WS, f"s{sCo+k}", off=1024*e, flags=cfg.ld_flags)
        return go
    def load_k(k):
        for e in range(1 if k in (0, 8) else 2): piece(k, e)()
    SUM = acc(4, 1, 0)
    def add_k(k):
        if k == 8: return step8()
        s.wait(ptk[k])
        for v_ in range(LAND_OF[k], LAND_OF[k] + (4 if k == 0 else 8)):
            r = (v_ - LAND_OF[k]) % 4
            s.valu(f"v_lshlrev_b32 v{vTmp}, 16, v{v_}", wr=[vTmp], rd=[v_])
            s.valu(f"v_and_b32 v{v_}, s{sMask}, v{v_}", wr=[v_], rd=[v_])
            s.valu(f"v_add_f32 v{SUM+2*r}, v{SUM+2*r}, v{vTmp}", wr=[SUM+2*r], rd=[SUM+2*r, vTmp])
            s.valu(f"v_add_f32 v{SUM+2*r+1}, v{SUM+2*r+1}, v{v_}", wr=[SUM+2*r+1], rd=[SUM+2*r+1, v_])
    def step8():
        V = lambda text, wr, rd: s.valu(text, wr=wr, rd=rd)
        R = vWF; L8 = LAND_OF[8]
        s.wait(ptk[8], hb2[1])
        for r in range(4):
            V(f"v_lshlrev_b32 v{R+2*r}, 16, v{L8+r}", [R+2*r], [L8+r]); V(f"v_and_b32 v{R+2*r+1}, s{sMask}, v{L8+r}", [R+2*r+1], [L8+r])
        for i in range(4): V(f"v_permlane32_swap_b32 v{R+i}, v{R+4+i}", [R+i, R+4+i], [R+i, R+4+i])
        for i in range(4): V(f"v_add_f32 v{R+i}, v{R+i}, v{R+4+i}", [R+i], [R+i, R+4+i])
        for i in range(2): V(f"v_permlane16_swap_b32 v{R+i}, v{R+2+i}", [R+i, R+2+i], [R+i, R+2+i])
        for i in range(2): V(f"v_add_f32 v{R+i}, v{R+i}, v{R+2+i}", [R+i], [R+i, R+2+i])
        for i in range(2): V(f"v_add_f32_dpp v{R+2+i}, v{R+i}, v{R+i} row_ror:8 row_mask:0xf bank_mask:0xf", [R+2+i], [R+i])
        V(f"v_lshlrev_b32 v{R}, 16, v{vB28}", [R], [vB28]); V(f"v_and_b32 v{R+1}, s{sMask}, v{vB28}", [R+1], [vB28])
        for i in range(2): V(f"v_add_f32 v{R+i}, v{R+i}, v{R+2+i}", [R+i], [R+i, R+2+i])
        cvt(s, R, R, R+1)()
        s.vstore("buffer_store_dword", R, 1, vOut8, R_OUT, f"s{sOut8}", flags=cfg.out_flags)
    lastread = {}
    for a in ST[B0:]:
        for i, (f, mt) in enumerate(a.order): lastread[(a.parts[f][2], mt)] = (a.n, i)
    for q, ((k, e), n) in enumerate(zip([(8, 0), (1, 0), (1, 1), (2, 0), (2, 1)], IL(cfg.ldst))):
        g = 1 + q
        assert n >= cA
        if k != 8: assert (n, g) >= lastread[(k-1, e)], (k, e, n, lastread[(k-1, e)])
        F(n, g, piece(k, e))

    freebufs = [vWF+4*i for i in range(4)]
    frag = {}
    def plan_frag(n, f):
        a = ST[n]; hs = [hold(), hold()]; ent = [None, hs]; frag[(n, f)] = ent
        def mk(rd):
            def go():
                if rd == 0: ent[0] = freebufs.pop(0)
                if a.kind == "d": base, off = vW1dR, BLK[("w", n)]*8192 + (16*f + 4*rd)*128
                elif a.kind == "s":
                    ks = (4*ch + f) if a.i < 4 else (4 + 2*ch + f)
                    base, off = vW1sR, BLK[("w", n)]*8192 + (16*ks + 4*rd)*64
                else:
                    (pos, dl, k, u, sl) = a.parts[f]
                    if a.sub == "d": base, off = vW2R + 3*dl, BLK[("w", u)]*8192 + sl*4096 + rd*1024
                    else: base, off = vW2cR, BLK[("w", u)]*8192 + sl*2048 + rd*512
                w_, o_ = win(off)
                hs[rd][0] = s.ds_read("ds_read_b64_tr_b16", ent[0] + 2*rd, 2, base + w_, o_)
            return go
        return [mk(0), mk(1)]
    nfrag = lambda n: ST[n].nm if ST[n].kind != "b" else len(ST[n].parts)
    xtok = {}
    def xread(n, sp):
        w_, o_ = win(BLK[("x", n)]*8192 - XWIN0)
        def go(): xtok[(n, sp)] = s.ds_read("ds_read_b128", vXF + 16*n + 4*sp, 4, vXR + 4*w_ + sp, o_)
        return go
    pre = {}; pend = {}
    def P(n, i, f): pre.setdefault((n, i), []).append(f)
    for n in range(1, NST):
        prev = ST[n-1]; rds = []
        for f in range(nfrag(n)): rds += plan_frag(n, f)
        pend[n-1] = rds
        if n < 9:
            for sp in range(4): P(n-1, sp, xread(n, sp))

    s.wait(tb, *[utok.get(u) for u in LAND[-1]])
    s.barrier()
    stamp(s, "data")
    for g in range(4):
        h = hold(); h[0] = s.ds_read("ds_read_b128", vS[0]+4*g, 4, vBias, g*32); before_mfma(0, 0, h)
    for f in range(4):
        xread(0, f)()
        for r in plan_frag(0, f): r()
    issue_all(-1)

    started = set()
    tmpb = [used[3] + 4*q for q in range(I(cfg.tmpbuf))]; TMPEND = HREAD[15] - 3
    for a in ST:
        n = a.n
        if n == B0 - 1: freebufs.extend(tmpb)
        if n == B0 + 5 and not INS3: freebufs.extend([vT, vT+4])
        if INS3 and n == sts[1] + 1: freebufs.extend([vS[1], vS[1]+4])
        if n == TMPEND: freebufs[:] = [b for b in freebufs if b not in tmpb]
        if n == TMPEND + 2: assert not any(e[0] in tmpb for (m, f), e in frag.items() if m >= n and e[0] is not None)
        stamp(s, f"s{n}")
        uses = {f: i for i, (f, mt) in enumerate(a.order)} if a.kind == "b" else {}
        dq = [f for u in ISSUE.get(n, []) for f in iss.pieces(u)]
        slots = [g for g in IL(cfg.dposB if a.kind == "b" else cfg.dposA) if g < a.nm] or [a.nm-1]
        if len(dq) > len(slots): slots = list(range(a.nm)) if len(dq) <= a.nm else list(range(a.nm))
        dat = {}; ndone = 0
        for q, f in enumerate(dq): dat.setdefault(slots[q*len(slots)//len(dq)], []).append(f)
        for i in range(a.nm):
            toks = [h[0] for h in need_mf.get((n, i), [])]
            cur[0] = n
            if a.kind in "ds":
                reg, hs = frag[(n, i)]
                toks += [hs[0][0], hs[1][0]]
                if a.kind == "d" and a.j == 0: toks.append(xtok[(n, i)])
                assert all(t is not None for t in toks), (n, i)
                s.wait(*toks)
                if a.kind == "d": s.mfma32(vS[a.j % 2], reg, vXF + 16*a.s + 4*i, vS[a.j % 2])
                else:
                    ks = (8*a.i + 4*ch + i) if a.i < 4 else (32 + 2*ch + i)
                    s.mfma32(vS[0], reg, vXF + 4*ks, None if (a.i == 0 and i == 0 and ch == 1) else vS[0])
                freebufs.append(reg)
            else:
                f, mt = a.order[i]
                (pos, dl, k, u, sl) = a.parts[f]
                reg, hs = frag[(n, f)]
                toks += [hs[0][0], hs[1][0], hrd[(k, mt)][0]]
                if cfg.wait2 and i+1 < a.nm and n > B0 and i % 2 == 0:
                    f2, mt2 = a.order[i+1]
                    toks += [frag[(n, f2)][1][0][0], frag[(n, f2)][1][1][0]]
                assert all(t is not None for t in toks), (n, i)
                s.wait(*toks)
                d = acc(pos, dl, mt); key = (pos, dl, mt)
                s.mfma16(d, reg, Hreg[(k, mt)], d if key in started else None)
                started.add(key)
                if uses[f] == i and not (n >= TMPEND - 1 and reg in tmpb): freebufs.append(reg)
            if i == 0 and n in BAR:
                assert all(h[0] is not None for h in need_bar.get(n, [])), n
                for f in prebar.get(n, []): f()
                s.wait(*([utok.get(u) for u in LAND.get(n, [])] + [h[0] for h in need_bar.get(n, [])]))
                s.barrier()
            rds = pend.get(n, []); per = -(-len(rds)//a.nm)
            while ndone < min(len(rds), per*(i+1) if i < a.nm-1 else 99) and (ndone % 2 == 1 or freebufs or i == a.nm-1):
                rds[ndone](); ndone += 1
            for f in pre.get((n, i), []): f()
            for f in dat.get(i, []): f()
            for f in fill.get((n, i), []): f()
    stamp(s, "tail")
    if pF not in BAR:
        s.wait(stok[4][0]); s.barrier(); pubF()
    stamp(s, "T1")
    s.wait(hb2[0])
    for r in range(2):
        s.valu(f"v_lshlrev_b32 v{vP+4+2*r}, 16, v{vB2m+r}", wr=[vP+4+2*r], rd=[vB2m+r])
        s.valu(f"v_and_b32 v{vP+4+2*r+1}, s{sMask}, v{vB2m+r}", wr=[vP+4+2*r+1], rd=[vB2m+r])
    for i in range(8):
        s.valu(f"v_add_f32 v{SUM+i}, v{SUM+i}, v{vP+4 + i % 4}", wr=[SUM+i], rd=[SUM+i, vP+4 + i % 4])
    pre_ = [8, 1, 2][:I(cfg.tailpoll)]
    for k in pre_: add_k(k)
    if half == 1:
        hp = pollF(s)
        check(testF, hp, pollF)
    s.barrier()
    stamp(s, "T2")
    load_k(3); load_k(0)
    for k in [8, 1, 2][I(cfg.tailpoll):] + [3, 0]: add_k(k)
    stamp(s, "fin")
    for k in range(4): cvt(s, vP+k, SUM+2*k, SUM+2*k+1)()
    s.vstore("buffer_store_dwordx2", vP, 2, vOutM, R_OUT, f"s{sOutM}", flags=cfg.out_flags)
    s.salu(f"s_add_u32 s{sOutM}, s{sOutM}, {16*1152}")
    s.vstore("buffer_store_dwordx2", vP+2, 2, vOutM, R_OUT, f"s{sOutM}", flags=cfg.out_flags)
    if cfg.stamps: s.wait_all()
    stamp(s, "end")
    stamp_flush(s)
    s.salu("s_endpgm")
    return s, ool

def kd(name, vg, sg):
    return f""".amdhsa_kernel {name}
  .amdhsa_next_free_vgpr {vg}
  .amdhsa_next_free_sgpr {sg}
  .amdhsa_accum_offset {(vg+3)//4*4}
  .amdhsa_group_segment_fixed_size 0
  .amdhsa_kernarg_size 64
  .amdhsa_user_sgpr_count 2
  .amdhsa_user_sgpr_kernarg_segment_ptr 1
  .amdhsa_system_sgpr_workgroup_id_x 1
  .amdhsa_float_denorm_mode_32 3
.end_amdhsa_kernel
"""

def generate(aslist=False):
    PLAN = plan()
    p = Stream()
    prologue(p)
    p.salu(f"s_cmp_ge_u32 s{sW}, 4", srd=[sW]); p.salu("s_cbranch_scc1 L_half1")
    h0, o0 = body(p, 0, PLAN); h1, o1 = body(p, 1, PLAN)
    mk = (p.text() + "\n" + h0.text() + "\n" + o0.text() + "\n.p2align 6\nL_half1:\n" + h1.text() + "\n" + o1.text()
          + "\nL_main_end:\n    s_endpgm\n")
    k1 = NAME + "_kernel"
    launch = (f"; @launch kernel={k1} grid=(256,1,1) block=(512,1,1) lds=163840" if aslist
              else "; @launch grid=(256,1,1) block=(512,1,1) lds=163840")
    out = f"""; fused MLP  out = gelu_tanh(x@w1+b1)@w2+b2   (emitted by my generator script)
{launch}
.amdgcn_target "amdgcn-amd-amdhsa--gfx950"
.text
.globl {k1}
.p2align 8
.type {k1},@function
{k1}:
{mk}
.section .rodata,"a"
.p2align 6
{kd(k1, 256, 102)}"""
    nb = [sum(1 for i in h.ins if i.kind == "bar") for h in (h0, h1)]
    assert nb[0] == nb[1], nb
    return out, (h0.nops, h1.nops, len(h0.ins), len(h1.ins), nb[0]), PLAN

if __name__ == "__main__":
    aslist = False; verbose = False
    for a in sys.argv[2:]:
        if a == "-v": verbose = True; continue
        k, v = a.split("=", 1)
        if k == "aslist": aslist = True; continue
        assert hasattr(cfg, k) or k == "pubextra", k
        setattr(cfg, k, {"True": True, "False": False}.get(v, v.replace("+", " ")))
    txt, stats, PLAN = generate(aslist)
    open(sys.argv[1], "w").write(txt)
    print("nops/ins/bars:", stats, "bytes", len(txt))
    if verbose:
        BAR, ISSUE, BLK, LAND = PLAN
        print(" ".join(f"{b}:{','.join(k+str(m)+'@'+str(BLK[(k,m)]) for k,m in ISSUE[b])}" for b in sorted(ISSUE)))
```

```python
import sys, struct
from emit import Stream, vr, sr, rng

NAME = "standalone__dense_activation_gelu__prompt"
M, D, F = 2048, 576, 4608
def f2u(x): return struct.unpack("<I", struct.pack("<f", x))[0]
GA = -2.0*0.7978845608028654*1.4426950408889634
GB = GA*0.044715

class Cfg:
    st_flags = "sc1"; ld_flags = "sc1"; poll_flags = "sc1"
    stamps = False; cyc = False
    barA = 2; barB = 1; lastbar = "81"
    prio = -1
    fl_x = ""; fl_w1 = ""; fl_w2 = ""; fl_pf = ""
    g0 = 3
    g1 = 5
    look0 = 5
    lookA = 9; lookA2 = 9; lookB = 12
    dposA = "1,3"; dposB = "1,5"
    wait2 = True
    fdirect = False
    ins3 = 2
    ticks = 0
    skew = True
    gwin = "2,8,1"
    tcost = 2.0
    tmpbuf = 4
    pfcode = 3
    inl = False
    gg = "4,4"
    pf = "6,6,41"
    pfx = 0
    out_flags = ""
    pfpro = "1"
    pf1c = "3,3"
    pf1b = ""
    pf1 = ""
    pfshare = 16
    g3end = "40,1"
    hpub = "37,38,45,50"
    hchk = "43,43,52,56"
    hiss = "43,44,46,47,49,50,52,54,56"
    stst = "64,65,66,67,68,73,74"
    hdelay = ""
    pubA = 72; chkA = 81; pubF = 81; tailpoll = 1
    ldst = "81,81,81,81,81"
    publag = 5; polllead = 3; backoff = 4
    clr_stage = 5; arr_stage = 12; cchk = 36
    nohst = False; h_flags = "sc1"; hl_flags = "sc1"; nohld = False; hrate = 2; nopoll = False; nopub = False; noload = False; nostore = False
cfg = Cfg()
def I(x): return int(x)
def IL(x): return [int(v) for v in str(x).split(",") if v != ""]

PART_BYTES = 32*72*8*1024
HX = PART_BYTES
FLG = HX + 256*9*8192
WS_BYTES = FLG + 16*128*256
OOB = 0x40000000
SPIN = 1000000

S_X, S_W1, S_B1, S_W2, S_B2, S_OUT, S_DBG, S_WS = 4, 6, 8, 10, 12, 14, 16, 18
R_X, R_W1, R_W2, R_WS, R_B1 = 20, 24, 28, 32, 36
R_DBG = 36
R_B2, R_OUT = 4, 8
sW, sRG, sMT, sFS, sD0, sS0 = 40, 41, 42, 43, 44, 45
sXo, sW1d, sW1s, sLx, sLw, sT0, sT1, sGB = 46, 47, 48, 49, 50, 51, 52, 53
sPC, sE = 54, 55
sW2, sC3, sPc, sCo, sDt = 56, 68, 71, 76, 80
sHXw, sHXr, sCnt, sHfW, sHfR, sTgt8, sTgt1, sClr = 82, 83, 84, 85, 86, 87, 88, 89
sE2, sPF, sP8, sSpin, sOutM, sOut8, sMask = 90, 91, 92, 93, 94, 95, 3
sU0, sU1 = 96, 97
vLane, vL16 = 1, 2
vX0, vX1, vW2, vTmp, vTmp2 = 3, 4, 5, 6, 7
vW1dR, vW1sR, vW2R = 8, 11, 14
vW1d, vW1s, vHW, vHW8 = 20, 21, 22, 23
vHB = (28, 29, 30)
vEXW, vEXR, vBias, vGA = 24, 25, 26, 27
vBiasS, vDummy = 30, 31
vXR = 32
vP8off, vOutM, vB2m, vOut8, vB28 = 40, 41, 42, 44, 45
vW2c, vW2cR = 47, 8
vSec, vPF = 46, 47
vT, vP, vWF = 48, 56, 64
vS = (80, 96)
vXF = 112
vStamp = 0
vFW, vFR = 11, 13
vOne, vFv, vPoll = vX0, vX1, 12

NBLK, HB = 20, 10
HBASE, BIAS, EXB, XWIN0 = HB*8192, 19*8192, 18*8192, 7*8192

INS3 = int(([a.split('=')[1] for a in sys.argv if a.startswith('ins3=')] or ['2'])[0])
class St: pass
def build_stages():
    st = []
    for j in range(4):
        for s in range(9):
            a = St(); a.kind = "d"; a.j = j; a.s = s; a.nm = 4; st.append(a)
    for i in range(5):
        a = St(); a.kind = "s"; a.i = i; a.nm = 4 if i < 4 else 2; a.rowbase = 128*i if i < 4 else 448; st.append(a)
    KB = {"o": 0, "r": 9}
    def dbl(pos, t, i=0):
        a = St(); a.kind = "b"; a.sub = "d"; a.pos = pos; a.t = t; a.i = i
        ks = (8, 17) if t == "m" else (KB[t]+2*i, KB[t]+2*i+1)
        a.parts = [(pos, dl, ks[kk], None, kk) for dl in range(2) for kk in range(2)]
        a.order = [(2*(q//4) + q % 2, (q//2) % 2) for q in range(8)]
        return a
    def sgl(t, i=0):
        a = St(); a.kind = "b"; a.sub = "c"; a.pos = 0; a.t = t; a.i = i
        ks = (8, 17) if t == "m" else [KB[t]+4*i+q for q in range(4)]
        a.parts = [(0, 0, k, None, q) for q, k in enumerate(ks)]
        a.order = [(2*(q//4) + q % 2, (q//2) % 2) for q in range(2*len(ks))]
        return a
    st += [dbl(1, "o", i) for i in range(4)] + [sgl("o", 0), sgl("o", 1)] + [dbl(2, "o", i) for i in range(4)]
    st += [dbl(1, "r", 0), dbl(2, "r", 0), dbl(1, "r", 1), dbl(2, "r", 1), sgl("r", 0), dbl(1, "r", 2), dbl(2, "r", 2)]
    blocks = [("o", i) for i in range(4)] + [("r", i) for i in range(4)] + [("m", 0)]
    st += [dbl(3, t, i) for t, i in blocks[:INS3]]
    st += [dbl(1, "r", 3), dbl(2, "r", 3), sgl("r", 1), dbl(1, "m"), dbl(2, "m"), sgl("m")]
    st += [dbl(3, t, i) for t, i in blocks[INS3:]]
    L0 = len(st)
    fr = []
    for dl in range(2):
        for bi, (t, i) in enumerate(blocks):
            ks = (8, 17) if t == "m" else (KB[t]+2*i, KB[t]+2*i+1)
            fr += [(4, dl, ks[0], L0+bi, 0), (4, dl, ks[1], L0+bi, 1)]
    for gi in range(9):
        a = St(); a.kind = "b"; a.sub = "d"; a.pos = 4; a.t, a.i = blocks[gi]; a.parts = fr[4*gi:4*gi+4]
        a.order = [(2*(q//4) + q % 2, (q//2) % 2) for q in range(8)]
        st.append(a)
    for n, a in enumerate(st):
        a.n = n
        if a.kind == "b":
            a.nm = len(a.order)
            a.parts = [(p, d, k, (n if u is None else u), sl) for (p, d, k, u, sl) in a.parts]
    return st, L0
ST, LAST0 = build_stages()
NST = len(ST)
B0 = 41
HWSTAGE = {0: 9+3, 1: 18+3, 2: 27+3, 3: 36+1}
FIRSTUSE = {}
for a_ in ST[B0:]:
    for (p_, d_, k_, u_, s_) in a_.parts: FIRSTUSE.setdefault(k_, a_.n)
HREAD = {0: 37, 1: 37, 2: 38, 3: 38, 4: 39, 5: 39, 6: B0+1, 7: B0+1, 8: B0+6}
for k_ in range(9, 18): HREAD[k_] = FIRSTUSE[k_] - 2
HFREE_OWN = {k: HREAD[k] + 2 for k in range(9)}

def plan():
    BAR = set()
    for n in range(NST):
        if n >= LAST0:
            if n in IL(cfg.lastbar): BAR.add(n)
        elif n < 9 or 35 <= n <= 64 + INS3 or n in IL(cfg.hpub) + IL(cfg.hchk) + [I(cfg.cchk)]: BAR.add(n)
        elif n < 35:
            if (n - 9) % I(cfg.barA) == 0: BAR.add(n)
        elif (LAST0 - 1 - n) % I(cfg.barB) == 0: BAR.add(n)
    bars = sorted(BAR)
    def first_read(u):
        if u[0] == "h": return HREAD[u[1]]
        return LAST0 - 1 if (u[0] == "w" and u[1] >= LAST0) else u[1] - 1
    def last_use(u):
        if u[0] == "h": return HREAD[u[1]] + 1
        return NST if (u[0] == "w" and u[1] >= LAST0) else u[1]
    res = {HB+k: (HWSTAGE[k//2], HFREE_OWN[k]) for k in range(8)}
    res[HB+8] = (B0, HFREE_OWN[8]); res[19] = (-99, B0+2)
    units = []
    for n in range(NST):
        if n < 9: units.append(("x", n))
        units.append(("w", n))
    hc = IL(cfg.hchk)
    hq = [(("h", k), IL(cfg.hiss)[k-9]) for k in range(9, 18)]
    for (u, b) in hq: assert b >= hc[[0, 0, 0, 0, 1, 1, 2, 2, 3][u[1]-9]]
    allunits = units + [u for u, _ in hq]
    busy = {}; issue = {}; blk = {}; land = {}
    ui = 0
    def freebar(u):
        c = [b for b in bars if b >= last_use(u)+1]
        return c[0] if c else 10**6
    def ok(b, u, bar):
        if b in busy: return False
        if b in res:
            a0, a1 = res[b]
            lb = max([x for x in [-3, -2, -1]+bars if x <= a0] or [-99])
            if not (freebar(u) <= lb or bar >= a1): return False
        return True
    for bar in [-3, -2, -1] + bars:
        for b in [b for b, u in busy.items() if freebar(u) <= bar]: del busy[b]
        lst = []
        nxt = min([b for b in bars if b > bar] or [NST])
        cap = 2*(nxt - bar) if bar >= 0 else 99
        if bar == -3: horizon = I(cfg.g0) - 1
        elif bar == -2: horizon = I(cfg.g1) - 1
        elif bar < 4: horizon = bar + I(cfg.look0)
        elif bar < IL(cfg.hiss)[0] - 4: horizon = nxt - 1 + I(cfg.lookA)
        elif bar < B0 - 2: horizon = nxt - 1 + I(cfg.lookA2)
        else: horizon = nxt - 1 + I(cfg.lookB)
        nh = 0
        while hq and hq[0][1] <= bar and nh < I(cfg.hrate):
            u = hq[0][0]; c = [b for b in range(NBLK) if ok(b, u, bar)]
            if not c: break
            busy[c[0]] = u; blk[u] = c[0]; lst.append(u); hq.pop(0); nh += 1
        while ui < len(units):
            u = units[ui]; kind, m = u
            if min(m, LAST0) > horizon: break
            if hq and hq[0][1] <= bar + 1 and m > bar + 5: break
            if kind == "x":
                c = [b for b in range(7, 18, 2) if ok(b, u, bar) and ok(b+1, u, bar)]
                if not c: break
                b = c[0]; busy[b] = u; busy[b+1] = u
            else:
                c = [b for b in range(NBLK) if ok(b, u, bar)]
                if any(k == "x" for k, _ in units[ui:]): c = [b for b in c if b < 7]
                if not c: break
                b = c[0]; busy[b] = u
            blk[u] = b; lst.append(u); ui += 1
            if len([x for x in lst if x[0] == "w"]) >= cap: break
        issue[bar] = lst
    assert ui == len(units) and not hq
    for u in allunits:
        lb = max(b for b in [-1]+bars if b <= first_read(u))
        land.setdefault(lb, []).append(u)
        ib = [bar for bar, l in issue.items() if u in l][0]
        assert ib < lb, (u, ib, lb)
    return BAR, issue, blk, land

def win(a): return a // 65536, a % 65536

NSTAMP = 16
def snames(): return cfg.stamps.split(",") if isinstance(cfg.stamps, str) else []
def stamp(s, name):
    if name not in snames(): return
    s.wait_all(v=False)
    s.salu("s_memtime s[100:101]" if cfg.cyc else "s_memrealtime s[100:101]")
    s.wait_all(v=False)
    s.valu(f"v_writelane_b32 v{vStamp}, s100, {snames().index(name)+1}", wr=[vStamp])
def stamp_flush(s):
    if not cfg.stamps: return
    s.salu(f"s_lshl_b32 s{sT0}, s2, 3"); s.salu(f"s_add_u32 s{sT0}, s{sT0}, s{sW}"); s.salu(f"s_mul_i32 s{sT0}, s{sT0}, {4*NSTAMP}")
    s.salu(f"s_add_u32 s{sT0}, s{sT0}, {128<<20}")
    s.salu(f"s_mov_b32 s{R_WS+2}, 0x10000000")
    s.valu(f"v_lshlrev_b32 v{vTmp}, 2, v{vLane}", wr=[vTmp], rd=[vLane])
    s.valu(f"v_cmp_gt_u32 vcc, {NSTAMP}, v{vLane}", rd=[vLane], swr=["vcc"])
    s.valu(f"v_mov_b32 v{vTmp2}, {OOB}", wr=[vTmp2])
    s.salu("s_nop 1")
    s.valu(f"v_cndmask_b32 v{vTmp}, v{vTmp2}, v{vTmp}, vcc", wr=[vTmp], rd=[vTmp, vTmp2])
    s.vstore("buffer_store_dword", vStamp, 1, vTmp, R_WS, f"s{sT0}")

def srd(s, r, base, size):
    if r != base:
        s.salu(f"s_mov_b32 s{r}, s{base}"); s.salu(f"s_mov_b32 s{r+1}, s{base+1}")
    s.salu(f"s_mov_b32 s{r+2}, {size}"); s.salu(f"s_mov_b32 s{r+3}, 0x20000")

class Ops:
    def __init__(self, s): self.s = s
    q = None; cnt = 0
    def tick(self, text):
        if not self.q: return
        self.cnt += 1
        if self.cnt >= I(cfg.ticks) and not text.startswith(("s_cmp", "s_cselect")):
            self.cnt = 0; self.q.pop(0)()
    def V(self, text, wr=(), rd=(), **k): self.s.valu(text, wr=wr, rd=rd, **k); self.tick(text)
    def S(self, text, **k): self.s.salu(text, **k); self.tick(text)

def prologue(p):
    o = Ops(p); V, S = o.V, o.S
    S("s_cmp_ge_u32 s2, 256"); S("s_cbranch_scc1 L_main_end")
    if cfg.stamps: S("s_memtime s[98:99]" if cfg.cyc else "s_memrealtime s[98:99]")
    if I(cfg.pfcode) == 4: code_prefetch_top(p)
    S("s_load_dwordx16 s[4:19], s[0:1], 0")
    if I(cfg.pfcode) == 3: code_prefetch_top(p)
    L = vLane; a, b = vTmp, vTmp2
    V(f"v_lshrrev_b32 v{a}, 6, v0", [a]); V(f"v_and_b32 v{L}, 63, v0", [L])
    V(f"v_readfirstlane_b32 s{sW}, v{a}", rd=[a], swr=[sW])
    S(f"s_and_b32 s{sT0}, s2, 7"); S(f"s_lshr_b32 s{sT1}, s2, 3")
    S(f"s_and_b32 s{sMT}, s{sT0}, 1"); S(f"s_lshl_b32 s{sMT}, s{sMT}, 3")
    S(f"s_lshr_b32 s{sFS}, s{sT1}, 2"); S(f"s_add_u32 s{sMT}, s{sMT}, s{sFS}")
    S(f"s_lshr_b32 s{sFS}, s{sT0}, 1"); S(f"s_lshl_b32 s{sFS}, s{sFS}, 2")
    S(f"s_and_b32 s{sT1}, s{sT1}, 3"); S(f"s_add_u32 s{sFS}, s{sFS}, s{sT1}")
    S(f"s_and_b32 s{sRG}, s{sW}, 3", srd=[sW])
    S(f"s_and_b32 s{sE}, s{sFS}, 1"); S(f"s_lshl_b32 s{sD0}, s{sE}, 5")
    S(f"s_lshl_b32 s{sT0}, s{sMT}, 7"); S(f"s_lshl_b32 s{sT1}, s{sRG}, 5"); S(f"s_add_u32 s{sT0}, s{sT0}, s{sT1}")
    S(f"s_mul_i32 s{sXo}, s{sT0}, 1152")
    S(f"s_lshl_b32 s{sLx}, s{sRG}, 12"); S(f"s_lshl_b32 s{sLw}, s{sRG}, 11")
    S(f"s_mul_i32 s{sU0}, s{sFS}, 576")
    S(f"s_mul_i32 s{sT1}, s{sRG}, {16*9216}"); S(f"s_add_u32 s{sW1d}, s{sU0}, s{sT1}")
    S(f"s_lshl_b32 s{sT1}, s{sD0}, 1"); S(f"s_add_u32 s{sW1d}, s{sW1d}, s{sT1}")
    V(f"v_lshrrev_b32 v{a}, 3, v{L}", [a], [L])
    V(f"v_mul_u32_u24 v{vX0}, 1152, v{a}", [vX0], [a])
    V(f"v_mul_u32_u24 v{vW1d}, 9216, v{a}", [vW1d], [a])
    V(f"v_mov_b32 v{vW2}, v{vX0}", [vW2], [vX0])
    V(f"v_lshrrev_b32 v{a}, 4, v{L}", [a], [L])
    V(f"v_and_b32 v{b}, 7, v{L}", [b], [L])
    V(f"v_xor_b32 v{vX1}, v{a}, v{b}", [vX1], [a, b])
    V(f"v_lshl_add_u32 v{vX0}, v{vX1}, 4, v{vX0}", [vX0], [vX1, vX0])
    V(f"v_xor_b32 v{vX1}, 64, v{vX0}", [vX1], [vX0])
    V(f"v_add_u32 v{vX1}, {9216-1024}, v{vX1}", [vX1], [vX1])
    V(f"v_and_b32 v{a}, 1, v{a}", [a], [a]); V(f"v_lshlrev_b32 v{a}, 2, v{a}", [a], [a])
    V(f"v_xor_b32 v{b}, v{a}, v{b}", [b], [a, b])
    V(f"v_lshl_add_u32 v{vW1d}, v{b}, 4, v{vW1d}", [vW1d], [b, vW1d])
    V(f"v_lshlrev_b32 v{vBias}, 1, v0", [vBias])
    if I(cfg.pfcode) == 1: code_prefetch(p, "p")
    p.wait_all(v=False)
    srd(p, R_X, S_X, M*D*2); srd(p, R_W1, S_W1, D*F*2)

def code_prefetch(s, tag):
    a = vT+6
    s.salu(f"s_getpc_b64 s[{sPc}:{sPc+1}]" if sPc % 2 == 0 else f"s_getpc_b64 s[{sPc+1}:{sPc+2}]")
    b = sPc if sPc % 2 == 0 else sPc + 1
    s.raw(f"L_pc_{tag}:")
    s.salu(f"s_sub_u32 s{b}, s{b}, L_pc_{tag}-{NAME}_kernel"); s.salu(f"s_subb_u32 s{b+1}, s{b+1}, 0")
    s.salu(f"s_lshr_b32 s{sU1}, s2, 3"); s.salu(f"s_lshl_b32 s{sU1}, s{sU1}, 3"); s.salu(f"s_add_u32 s{sU1}, s{sU1}, s{sW}", srd=[sW]); s.salu(f"s_lshl_b32 s{sU1}, s{sU1}, 8")
    s.valu(f"v_and_b32 v{a}, 1, v{vLane}", wr=[a], rd=[vLane]); s.valu(f"v_lshl_add_u32 v{a}, v{a}, 7, s{sU1}", wr=[a], rd=[a])
    s.valu(f"v_min_u32 v{a}, L_main_end-{NAME}_kernel, v{a}", wr=[a], rd=[a])
    from emit import Ins
    s.add(Ins(f"global_load_dword v{vDummy}, v{a}, s[{b}:{b+1}]", "vld", rd=[a], wr=[vDummy])); s._tok("v")

def code_prefetch_top(s):
    from emit import Ins
    a, c = vT+6, vT+7; b = 72
    s.salu(f"s_getpc_b64 s[{b}:{b+1}]")
    s.raw("L_pc_top:")
    s.salu(f"s_lshr_b32 s{sU1}, s2, 3"); s.valu(f"v_lshrrev_b32 v{a}, 5, v0", wr=[a])
    s.salu(f"s_lshl_b32 s{sU1}, s{sU1}, 11"); s.valu(f"v_lshl_add_u32 v{a}, v{a}, 7, s{sU1}", wr=[a], rd=[a])
    s.valu(f"v_min_u32 v{a}, L_main_end-L_pc_top, v{a}", wr=[a], rd=[a])
    s.add(Ins(f"global_load_dword v{vDummy}, v{a}, s[{b}:{b+1}]", "vld", rd=[a], wr=[vDummy])); s._tok("v")

def dma2(s, voff, r, soff, second):
    t = s.dma(voff, r, soff, {R_X: cfg.fl_x, R_W1: cfg.fl_w1, R_W2: cfg.fl_w2, R_WS: cfg.hl_flags}[r])
    if second: s.ins[-1].text = s.ins[-1].text.replace(" offen", " offen offset:1024")
    return t

class Issuer:
    def __init__(self, s, half, BLK, utok): self.s, self.half, self.BLK, self.utok = s, half, BLK, utok; self.sec = None
    def pieces(self, u):
        s, half = self.s, self.half
        kind, m = u; b = self.BLK[u]; out = []
        if kind == "x":
            def first():
                s.salu(f"s_add_u32 m0, s{sLx}, {b*8192 + half*2048}", swr=["m0"])
                s.salu(f"s_add_u32 s{sT0}, s{sXo}, {16*half*1152 + m*128}")
                self.utok[u] = dma2(s, vX0, R_X, f"s{sT0}", False)
            def second(): self.utok[u] = dma2(s, vX1, R_X, f"s{sT0}", True)
            return [first, second]
        if kind == "h":
            if half != 1: return []
            def first():
                s.salu(f"s_add_u32 m0, s{sLw}, {b*8192}", swr=["m0"])
                s.salu(f"s_add_u32 s{sT0}, s{sHXr}, {(m-9)*8192}" if not cfg.nohld else f"s_mov_b32 s{sT0}, {OOB}")
                self.utok[u] = dma2(s, vL16, R_WS, f"s{sT0}", False)
            def second(): self.utok[u] = dma2(s, vL16, R_WS, f"s{sT0}", True)
            return [first, second]
        a = ST[m]
        if m < 9:
            def one():
                s.salu(f"s_add_u32 m0, s{sLw}, {b*8192 + half*1024}", swr=["m0"])
                s.salu(f"s_add_u32 s{sT0}, s{sW1d}, {(64*a.s + 8*half)*9216}")
                self.utok[u] = dma2(s, vW1d, R_W1, f"s{sT0}", False)
            return [one]
        if half != 0: return []
        if a.kind == "d": v, r, base, imm, step = vW1d, R_W1, sW1d, 64*a.s*9216 + a.j*128, 8*9216
        elif a.kind == "s": v, r, base, imm, step = vW1s, R_W1, sW1s, a.rowbase*9216, 16*9216
        elif a.sub == "d": v, r, base, imm, step = vW2, R_W2, sW2 + 4*"orm".index(a.t) + a.pos-1, 64*a.i*1152, 8*1152
        else: v, r, base, imm, step = vW2c, R_W2, sC3 + "orm".index(a.t), 128*a.i*1152, 16*1152
        def first():
            if self.sec != v:
                s.valu(f"v_add_u32 v{vSec}, {step-1024}, v{v}", wr=[vSec], rd=[v]); self.sec = v
            s.salu(f"s_add_u32 m0, s{sLw}, {b*8192}", swr=["m0"])
            if imm: s.salu(f"s_add_u32 s{sT0}, s{base}, {imm}")
            else: s.salu("s_nop 0")
            self.so = f"s{sT0}" if imm else f"s{base}"
            self.utok[u] = dma2(s, v, r, self.so, False)
        def second(): self.utok[u] = dma2(s, vSec, r, self.so, True)
        return [first, second]

def setup_main(s, half, q=None):
    o = Ops(s); V, S = o.V, o.S
    o.q = q
    L = vLane; a, b = vTmp, vTmp2; ch = half
    r, c8, t, hh = vT, vT+1, vT+2, vT+3
    srd(s, R_B1, S_B1, F*2)
    tokb = s.vload("buffer_load_ushort", vBiasS, 1, vBias, R_B1, f"s{sU0}")
    V(f"v_bfe_u32 v{r}, v{L}, 2, 2", [r], [L]); V(f"v_and_b32 v{c8}, 3, v{L}", [c8], [L]); V(f"v_lshlrev_b32 v{c8}, 3, v{c8}", [c8], [c8])
    V(f"v_lshrrev_b32 v{hh}, 5, v{L}", [hh], [L])
    V(f"v_lshl_add_u32 v{t}, v{hh}, 3, v{r}", [t], [hh, r])
    V(f"v_bfe_u32 v{b}, v{L}, 4, 1", [b], [L]); V(f"v_lshl_add_u32 v{b}, v{b}, 5, v{c8}", [b], [b, c8])
    V(f"v_lshl_add_u32 v{vW1sR}, v{t}, 6, v{b}", [vW1sR], [t, b])
    V(f"v_lshl_add_u32 v{vW1dR}, v{t}, 7, v{b}", [vW1dR], [t, b])
    V(f"v_lshrrev_b32 v{t}, 1, v{r}", [t], [r])
    if ch: V(f"v_xor_b32 v{t}, 1, v{t}", [t], [t])
    V(f"v_lshl_add_u32 v{vW1dR}, v{t}, 6, v{vW1dR}", [vW1dR], [t, vW1dR])
    for k in (1, 2):
        V(f"v_add_u32 v{vW1dR+k}, {65536*k}, v{vW1dR}", [vW1dR+k], [vW1dR]); V(f"v_add_u32 v{vW1sR+k}, {65536*k}, v{vW1sR}", [vW1sR+k], [vW1sR])
    V(f"v_and_b32 v{b}, 31, v{L}", [b], [L]); V(f"v_bfe_u32 v{t}, v{L}, 1, 3", [t], [L])
    V(f"v_xor_b32 v{t}, v{t}, v{hh}", [t], [t, hh]); V(f"v_lshlrev_b32 v{t}, 4, v{t}", [t], [t])
    V(f"v_lshl_add_u32 v{t}, v{b}, 7, v{t}", [t], [b, t]); V(f"v_add_u32 v{t}, s{sLx}, v{t}", [t], [t])
    for sp in range(4):
        V(f"v_xor_b32 v{vXR+sp}, {32*sp}, v{t}", [vXR+sp], [t])
        V(f"v_add_u32 v{vXR+4+sp}, {XWIN0+65536}, v{vXR+sp}", [vXR+4+sp], [vXR+sp])
        V(f"v_add_u32 v{vXR+sp}, {XWIN0}, v{vXR+sp}", [vXR+sp], [vXR+sp])
    V(f"v_lshlrev_b32 v{vL16}, 4, v{L}", [vL16], [L])
    V(f"v_mov_b32 v{vGA}, 0x{f2u(GA):08x}", [vGA]); S(f"s_mov_b32 s{sGB}, 0x{f2u(GB):08x}")
    S(f"s_lshr_b32 s{sPC}, s{sFS}, 2"); S(f"s_bfe_u32 s{sE2}, s{sFS}, 0x10001"); S(f"s_xor_b32 s{sT1}, s{sE}, 1"); S(f"s_lshl_b32 s{sS0}, s{sT1}, 8")
    if half == 0:
        S(f"s_mul_i32 s{sT1}, s{sRG}, {32*9216}"); S(f"s_add_u32 s{sW1s}, s{sU0}, s{sT1}")
        S(f"s_lshl_b32 s{sT1}, s{sS0}, 1"); S(f"s_add_u32 s{sW1s}, s{sW1s}, s{sT1}")
        V(f"v_lshrrev_b32 v{a}, 2, v{L}", [a], [L]); V(f"v_mul_u32_u24 v{vW1s}, 9216, v{a}", [vW1s], [a])
        V(f"v_lshl_add_u32 v{vW1s}, v{c8}, 1, v{vW1s}", [vW1s], [c8, vW1s])
        V(f"v_bfe_u32 v{a}, v{L}, 1, 2", [a], [L]); V(f"v_lshrrev_b32 v{b}, 4, v{L}", [b], [L]); V(f"v_xor_b32 v{a}, v{a}, v{b}", [a], [a, b])
        V(f"v_lshl_add_u32 v{vW2}, v{a}, 5, v{vW2}", [vW2], [a, vW2])
        V(f"v_and_b32 v{a}, 1, v{L}", [a], [L]); V(f"v_lshl_add_u32 v{vW2}, v{a}, 4, v{vW2}", [vW2], [a, vW2])
        V(f"v_lshrrev_b32 v{t}, 2, v{L}", [t], [L]); V(f"v_mul_u32_u24 v{vW2c}, 1152, v{t}", [vW2c], [t])
        V(f"v_lshl_add_u32 v{vW2c}, v{a}, 4, v{vW2c}", [vW2c], [a, vW2c])
        V(f"v_lshrrev_b32 v{a}, 1, v{L}", [a], [L]); V(f"v_xor_b32 v{a}, v{a}, v{b}", [a], [a, b]); V(f"v_and_b32 v{a}, 1, v{a}", [a], [a])
        V(f"v_lshl_add_u32 v{vW2c}, v{a}, 5, v{vW2c}", [vW2c], [a, vW2c])
    V(f"v_and_b32 v{a}, 15, v{L}", [a], [L]); V(f"v_mul_u32_u24 v{vOutM}, 1152, v{a}", [vOutM], [a])
    V(f"v_lshlrev_b32 v{vHW}, 4, v{a}", [vHW], [a])
    V(f"v_bfe_u32 v{a}, v{L}, 4, 1", [a], [L]); V(f"v_lshl_add_u32 v{vHW}, v{a}, 10, v{vHW}", [vHW], [a, vHW])
    V(f"v_lshl_add_u32 v{vHW}, v{hh}, 8, v{vHW}", [vHW], [hh, vHW]); V(f"v_add_u32 v{vHW}, s{sLw}, v{vHW}", [vHW], [vHW])
    V(f"v_add_u32 v{vHW8}, {HBASE + 8*8192 + ch*512}, v{vHW}", [vHW8], [vHW]); V(f"v_add_u32 v{vHW}, {HBASE + ch*8192}, v{vHW}", [vHW], [vHW])
    V(f"v_add_u32 v{vHB[0]}, s{sLw}, v{vL16}", [vHB[0]], [vL16])
    V(f"v_add_u32 v{vEXW}, {EXB + ch*8192}, v{vHB[0]}", [vEXW], [vHB[0]]); V(f"v_add_u32 v{vEXR}, {EXB + (1-ch)*8192}, v{vHB[0]}", [vEXR], [vHB[0]])
    V(f"v_add_u32 v{vHB[1]}, 65536, v{vHB[0]}", [vHB[1]], [vHB[0]])
    V(f"v_bfe_u32 v{a}, v{L}, 2, 3", [a], [L]); V(f"v_lshl_add_u32 v{b}, v{hh}, 4, v{a}", [b], [a, hh])
    V(f"v_lshl_add_u32 v{vW2R}, v{b}, 7, v{c8}", [vW2R], [b, c8])
    V(f"v_lshrrev_b32 v{a}, 1, v{a}", [a], [a]); V(f"v_xor_b32 v{a}, {2*ch+1}, v{a}", [a], [a]); V(f"v_xor_b32 v{a}, s{sE2}, v{a}", [a], [a])
    V(f"v_lshl_add_u32 v{vW2R}, v{a}, 5, v{vW2R}", [vW2R], [a, vW2R]); V(f"v_xor_b32 v{vW2R+3}, 32, v{vW2R}", [vW2R+3], [vW2R])
    for dl in range(2):
        for k in (1, 2): V(f"v_add_u32 v{vW2R+3*dl+k}, {65536*k}, v{vW2R+3*dl}", [vW2R+3*dl+k], [vW2R+3*dl])
    t0, t1, t2 = sU0, sU1, sSpin
    srd(s, R_W2, S_W2, F*D*2); srd(s, R_WS, S_WS, WS_BYTES)
    srd(s, R_B2, S_B2, D*2); srd(s, R_OUT, S_OUT, M*D*2)
    t3 = sP8
    for k in range(1, 4): S(f"s_add_u32 s{sPc+k}, s{sPC}, {k}"); S(f"s_and_b32 s{sPc+k}, s{sPc+k}, 3")
    S(f"s_mov_b32 s{sPc+4}, s{sPC}")
    S(f"s_lshr_b32 s{sClr}, s{sFS}, 1")
    if half == 0:
        S(f"s_mul_i32 s{t0}, s{sClr}, 576")
        S(f"s_mul_i32 s{t3}, s{sE}, 640")
        for ti in range(3):
            if ti == 0: S(f"s_mul_i32 s{t1}, s{sE}, 320")
            elif ti == 1: S(f"s_xor_b32 s{t1}, s{sE}, 1"); S(f"s_mul_i32 s{t1}, s{t1}, 320")
            if ti < 2:
                S(f"s_add_u32 s{t1}, s{t1}, s{t0}")
                S(f"s_lshl_b32 s{t2}, s{sRG}, 5"); S(f"s_add_u32 s{t2}, s{t2}, s{t1}"); S(f"s_mul_i32 s{sC3+ti}, s{t2}, 1152")
                S(f"s_lshl_b32 s{t2}, s{sRG}, 4"); S(f"s_add_u32 s{t1}, s{t1}, s{t2}")
            else:
                S(f"s_and_b32 s{t1}, s{sRG}, 1"); S(f"s_xor_b32 s{t2}, s{t1}, s{sE}"); S(f"s_lshl_b32 s{t2}, s{t2}, 5")
                S(f"s_add_u32 s{t2}, s{t2}, s{t0}"); S(f"s_add_u32 s{t2}, s{t2}, 256"); S(f"s_mul_i32 s{sC3+ti}, s{t2}, 1152")
                S(f"s_lshl_b32 s{t1}, s{t1}, 4"); S(f"s_lshr_b32 s{t2}, s{sRG}, 1"); S(f"s_xor_b32 s{t2}, s{t2}, s{sE}"); S(f"s_lshl_b32 s{t2}, s{t2}, 5")
                S(f"s_add_u32 s{t1}, s{t1}, s{t2}"); S(f"s_add_u32 s{t1}, s{t1}, s{t0}"); S(f"s_add_u32 s{t1}, s{t1}, 256")
            S(f"s_mul_i32 s{t1}, s{t1}, 1152"); S(f"s_add_u32 s{t1}, s{t1}, s{t3}")
            for pos in range(1, 5): S(f"s_lshl_b32 s{t2}, s{sPc+pos}, 7"); S(f"s_add_u32 s{sW2+4*ti+pos-1}, s{t1}, s{t2}")
        S(f"s_lshl_b32 s{t2}, s{sE}, 6"); S(f"s_add_u32 s{t2}, s{t2}, 512")
        for ti in range(3): S(f"s_add_u32 s{sC3+ti}, s{sC3+ti}, s{t2}")
    S(f"s_lshl_b32 s{t0}, s{sMT}, 1"); S(f"s_add_u32 s{t0}, s{t0}, s{sE}"); S(f"s_mul_i32 s{t0}, s{t0}, 72")
    S(f"s_lshl_b32 s{t3}, s{sClr}, 10")
    S(f"s_add_u32 s{t1}, s{t0}, s{sW}"); S(f"s_add_u32 s{t2}, s{t1}, 64"); S(f"s_lshl_b32 s{t2}, s{t2}, 13"); S(f"s_add_u32 s{sPc}, s{t2}, s{t3}")
    S(f"s_add_u32 s{t1}, s{t1}, s{sW}")
    S(f"s_lshl_b32 s{t2}, s{t1}, 13"); S(f"s_add_u32 s{t2}, s{t2}, s{t3}")
    for pos in range(1, 5): S(f"s_lshl_b32 s{sPc+pos}, s{sPc+pos}, 17"); S(f"s_add_u32 s{sPc+pos}, s{sPc+pos}, s{t2}")
    S(f"s_lshl_b32 s{sDt+1}, s{sE2}, 13"); S(f"s_xor_b32 s{sDt}, s{sDt+1}, 8192")
    S(f"s_lshl_b32 s{t2}, s{sPC}, 4"); S(f"s_add_u32 s{t1}, s{t1}, s{t2}"); S(f"s_add_u32 s{t1}, s{t1}, s{sE2}"); S(f"s_lshl_b32 s{t1}, s{t1}, 13")
    for k in range(1, 4):
        S(f"s_sub_u32 s{t2}, s{sPC}, {k}"); S(f"s_and_b32 s{t2}, s{t2}, 3"); S(f"s_lshl_b32 s{t2}, s{t2}, 11"); S(f"s_add_u32 s{sCo+k}, s{t1}, s{t2}")
    S(f"s_xor_b32 s{t2}, s{t3}, 1024"); S(f"s_add_u32 s{sCo}, s{t1}, s{t2}")
    S(f"s_add_u32 s{t0}, s{t0}, s{sClr}"); S(f"s_add_u32 s{t0}, s{t0}, 64"); S(f"s_lshl_b32 s{sP8}, s{t0}, 13")
    S(f"s_lshl_b32 s{t0}, s{sMT}, 4"); S(f"s_add_u32 s{t0}, s{t0}, s{sFS}"); S(f"s_xor_b32 s{t1}, s{t0}, 1")
    S(f"s_mul_i32 s{t0}, s{t0}, {9*8192}"); S(f"s_add_u32 s{sHXw}, s{t0}, {HX - HBASE}")
    S(f"s_mul_i32 s{t1}, s{t1}, {9*8192}"); S(f"s_add_u32 s{t1}, s{t1}, {HX}"); S(f"s_add_u32 s{sHXr}, s{t1}, s{sLw}")
    if cfg.noload:
        for k in range(4): S(f"s_mov_b32 s{sCo+k}, {OOB}")
        S(f"s_mov_b32 s{sP8}, {OOB}")
    S(f"s_mov_b32 s{sMask}, 0xffff0000")
    if half == 1:
        S(f"s_lshl_b32 s{t0}, s{sMT}, 15"); S(f"s_add_u32 s{t0}, s{t0}, {FLG}")
        S(f"s_cmp_eq_u32 s{sW}, 4"); S(f"s_cselect_b32 s{t0}, s{t0}, {OOB}"); S(f"s_cselect_b32 s{sTgt8}, 8, 0"); S(f"s_cselect_b32 s{sTgt1}, 1, 0")
        S(f"s_lshl_b32 s{t1}, s{sE}, 10"); S(f"s_add_u32 s{sCnt}, s{t0}, s{t1}")
        S(f"s_mul_i32 s{t1}, s{sFS}, 1024"); S(f"s_add_u32 s{t1}, s{t1}, 4096"); S(f"s_add_u32 s{sHfR}, s{t0}, s{t1}")
        S(f"s_xor_b32 s{t1}, s{sFS}, 1"); S(f"s_mul_i32 s{t1}, s{t1}, 1024"); S(f"s_add_u32 s{t1}, s{t1}, 4096"); S(f"s_add_u32 s{sHfW}, s{t0}, s{t1}")
        S(f"s_cmp_eq_u32 s{sFS}, 0"); S(f"s_cselect_b32 s{sT1}, s{t0}, {OOB}")
        if cfg.pf:
            nl = IL(cfg.pf)[2]; sh = I(cfg.pfshare); per = 2592//(sh*4) + (1 if 2592 % (sh*4) else 0)
            S(f"s_and_b32 s{t0}, s{sMT}, {sh-1}"); S(f"s_lshl_b32 s{t0}, s{t0}, 2"); S(f"s_add_u32 s{t0}, s{t0}, s{sRG}")
            S(f"s_mul_i32 s{t0}, s{t0}, {per*128}"); S(f"s_mul_i32 s{t1}, s{sFS}, {288*1152}"); S(f"s_add_u32 s{sPF}, s{t0}, s{t1}")
            if cfg.pf1b:
                nlr = IL(cfg.pf1b)[2]
                V(f"v_mul_u32_u24 v{a}, {-(-65536//nlr)}, v{L}", [a], [L]); V(f"v_lshrrev_b32 v{a}, 16, v{a}", [a], [a])
                V(f"v_mul_u32_u24 v{b}, {nlr}, v{a}", [b], [a]); V(f"v_sub_u32 v{b}, v{L}, v{b}", [b], [L, b])
                V(f"v_add_u32 v{b}, {5-nlr}, v{b}", [b], [b]); V(f"v_add_u32 v{b}, s{sE}, v{b}", [b], [b])
                V(f"v_cmp_eq_u32 vcc, 5, v{b}", rd=[b], swr=["vcc"]); V(f"v_mul_u32_u24 v{a}, 9216, v{a}", [a], [a]); S("s_nop 0")
                V(f"v_cndmask_b32 v{b}, v{b}, 0, vcc", [b], [b])
                V(f"v_lshl_add_u32 v{a}, v{b}, 7, v{a}", [a], [a, b])
                V(f"v_cmp_gt_u32 vcc, {3*nlr}, v{L}", rd=[L], swr=["vcc"]); V(f"v_mov_b32 v{b}, {OOB}", [b]); S("s_nop 0")
                V(f"v_cndmask_b32 v{vW1s}, v{b}, v{a}, vcc", [vW1s], [a, b])
            if cfg.pf1c:
                S(f"s_lshl_b32 s{t0}, s2, 2"); S(f"s_add_u32 s{t0}, s{t0}, s{sRG}"); S(f"s_mul_i32 s{sW1s}, s{t0}, {81*64}")
                S(f"s_and_b32 s{sW1s}, s{sW1s}, 0xffffff80")
            if cfg.pf1 or cfg.pf1b:
                S(f"s_lshl_b32 s{t0}, s{sMT}, 2"); S(f"s_add_u32 s{t0}, s{t0}, s{sRG}"); S(f"s_mul_i32 s{t0}, s{t0}, {9*9216}")
                S(f"s_mul_i32 s{t1}, s{sFS}, 576"); S(f"s_and_b32 s{t1}, s{t1}, 0xffffff80"); S(f"s_add_u32 s{sW1s}, s{t0}, s{t1}")
            V(f"v_lshlrev_b32 v{a}, 7, v{L}", [a], [L]); V(f"v_cmp_gt_u32 vcc, {nl}, v{L}", rd=[L], swr=["vcc"]); V(f"v_mov_b32 v{b}, {OOB}", [b]); S("s_nop 0")
            V(f"v_cndmask_b32 v{vPF}, v{b}, v{a}, vcc", [vPF], [a, b])
    V(f"v_lshrrev_b32 v{a}, 3, v{L}", [a], [L]); V(f"v_lshlrev_b32 v{a}, 10, v{a}", [a], [a])
    V(f"v_and_b32 v{t}, 7, v{L}", [t], [L]); V(f"v_lshl_add_u32 v{a}, v{t}, 4, v{a}", [a], [a, t])
    S(f"s_lshl_b32 s{t0}, s{sW}, 7"); V(f"v_add_u32 v{vP8off}, s{t0}, v{a}", [vP8off], [a])
    V(f"v_lshrrev_b32 v{b}, 4, v{L}", [b], [L]); V(f"v_lshlrev_b32 v{b}, 3, v{b}", [b], [b]); V(f"v_add_u32 v{vOutM}, v{vOutM}, v{b}", [vOutM], [vOutM, b])
    S(f"s_lshl_b32 s{t0}, s{sPC}, 7"); S(f"s_lshl_b32 s{t1}, s{sE2}, 5"); S(f"s_add_u32 s{t0}, s{t0}, s{t1}"); S(f"s_add_u32 s{t0}, s{t0}, {64*ch}")
    S(f"s_mul_i32 s{t1}, s{sE}, 640"); S(f"s_add_u32 s{t0}, s{t0}, s{t1}")
    S(f"s_add_u32 s{sOutM}, s{sXo}, s{t0}")
    hb0 = s.vload("buffer_load_dwordx2", vB2m, 2, b, R_B2, f"s{t0}")
    S(f"s_and_b32 s{t0}, s{sW}, 1"); S(f"s_lshl_b32 s{t0}, s{t0}, 3")
    V(f"v_add_u32 v{a}, s{t0}, v{t}", [a], [t]); V(f"v_lshl_add_u32 v{a}, v{hh}, 4, v{a}", [a], [a, hh]); V(f"v_mul_u32_u24 v{a}, 1152, v{a}", [a], [a])
    V(f"v_bfe_u32 v{b}, v{L}, 4, 1", [b], [L]); V(f"v_lshlrev_b32 v{b}, 2, v{b}", [b], [b]); V(f"v_add_u32 v{vOut8}, v{a}, v{b}", [vOut8], [a, b])
    S(f"s_lshr_b32 s{t0}, s{sClr}, 2"); S(f"s_lshl_b32 s{t0}, s{t0}, 5"); S(f"s_lshl_b32 s{t1}, s{sE}, 6"); S(f"s_add_u32 s{t0}, s{t0}, s{t1}")
    S(f"s_lshr_b32 s{t1}, s{sW}, 1"); S(f"s_lshl_b32 s{t1}, s{t1}, 3"); S(f"s_add_u32 s{t0}, s{t0}, s{t1}"); S(f"s_add_u32 s{t0}, s{t0}, 512")
    hb1 = s.vload("buffer_load_dword", vB28, 1, b, R_B2, f"s{t0}")
    S(f"s_and_b32 s{t1}, s{sClr}, 3"); S(f"s_lshl_b32 s{t1}, s{t1}, 5"); S(f"s_lshl_b32 s{sOut8}, s{sMT}, 7"); S(f"s_add_u32 s{t1}, s{t1}, s{sOut8}")
    S(f"s_mul_i32 s{t1}, s{t1}, 1152"); S(f"s_add_u32 s{sOut8}, s{t1}, s{t0}")
    V(f"v_and_b32 v{a}, 8, v{L}", [a], [L]); V(f"v_cmp_eq_u32 vcc, 0, v{a}", rd=[a], swr=["vcc"]); V(f"v_mov_b32 v{b}, {OOB}", [b]); S("s_nop 0")
    V(f"v_cndmask_b32 v{vOut8}, v{b}, v{vOut8}, vcc", [vOut8], [b, vOut8])
    if half == 1: S(f"s_mov_b32 s{sClr}, s{sT1}")
    S(f"s_lshl_b32 s{t0}, s{sD0}, 2"); S(f"s_add_u32 s{t0}, s{t0}, {BIAS + 128*ch}")
    S(f"s_lshl_b32 s{t1}, s{sS0}, 2"); S(f"s_add_u32 s{t1}, s{t1}, {BIAS}")
    V(f"v_lshlrev_b32 v{a}, 2, v0", [a]); V(f"v_add_u32 v{a}, {BIAS}, v{a}", [a], [a])
    V(f"v_lshl_add_u32 v{vBias}, v{hh}, 4, s{t0}", [vBias], [hh])
    s.wait(tokb)
    V(f"v_lshlrev_b32 v{b}, 16, v{vBiasS}", [b], [vBiasS])
    tb = s.ds_write("ds_write_b32", a, b, 1, 0)
    V(f"v_lshl_add_u32 v{vBiasS}, v{hh}, 4, s{t1}", [vBiasS], [hh])
    return tb, (hb0, hb1)

def gelu_group(s, regs, tb):
    ops = []
    T = [vT + (tb + i) % 8 for i in range(len(regs))]
    def V(text, **k): ops.append(lambda: s.valu(text, **k))
    for x, t in zip(regs, T): V(f"v_mul_f32 v{t}, v{x}, v{x}", wr=[t], rd=[x])
    for x, t in zip(regs, T): V(f"v_fma_f32 v{t}, v{t}, s{sGB}, v{vGA}", wr=[t], rd=[t, vGA])
    for x, t in zip(regs, T): V(f"v_mul_f32 v{t}, v{x}, v{t}", wr=[t], rd=[x, t])
    for x, t in zip(regs, T): V(f"v_exp_f32 v{t}, v{t}", wr=[t], rd=[t], trans=True)
    for x, t in zip(regs, T): V(f"v_add_f32 v{t}, 1.0, v{t}", wr=[t], rd=[t])
    for x, t in zip(regs, T): V(f"v_rcp_f32 v{t}, v{t}", wr=[t], rd=[t], trans=True)
    for x, t in zip(regs, T): V(f"v_mul_f32 v{x}, v{x}, v{t}", wr=[x], rd=[x, t])
    return ops
class W:
    def __init__(self, f, c): self.f, self.c = f, c
    def __call__(self): return self.f()
def gelu_skew(s, regs, after):
    ops = []; n = len(regs); tc = float(cfg.tcost)
    def mk(k, x, t):
        return [(f"v_mul_f32 v{t}, v{x}, v{x}", [t], [x], 0), (f"v_fma_f32 v{t}, v{t}, s{sGB}, v{vGA}", [t], [t, vGA], 0),
                (f"v_mul_f32 v{t}, v{x}, v{t}", [t], [x, t], 0), (f"v_exp_f32 v{t}, v{t}", [t], [t], 1),
                (f"v_add_f32 v{t}, 1.0, v{t}", [t], [t], 0), (f"v_rcp_f32 v{t}, v{t}", [t], [t], 1),
                (f"v_mul_f32 v{x}, v{x}, v{t}", [x], [x, t], 0)][k]
    for t in range(n + 7):
        for k in (6, 3, 4, 2, 5, 1, 0):
            e = t - k
            if 0 <= e < n:
                tx, wr, rd, tr = mk(k, regs[e], vT + e % 8)
                ops.append(W(lambda tx=tx, wr=wr, rd=rd, tr=tr: s.valu(tx, wr=wr, rd=rd, trans=bool(tr)), tc if tr else 1.0))
        e = t - 7
        if 0 <= e < n: ops += after.get(e, [])
    return ops
def cvt(s, d, a, b):
    return lambda: s.valu(f"v_cvt_pk_bf16_f32 v{d}, v{a}, v{b}", wr=[d], rd=[a, b])

def body(p, half, PLAN):
    BAR, ISSUE, BLK, LAND = PLAN
    s = Stream(p); ool = Stream(); ch = half
    utok = {}
    iss = Issuer(s, half, BLK, utok)
    def issue_all(bar):
        for u in ISSUE[bar]:
            for f in iss.pieces(u): f()
    issue_all(-3)
    if I(cfg.pfcode) == 2: code_prefetch(s, f"h{half}")
    if I(cfg.pfx):
        s0 = I(cfg.pfx); nl = 9 - s0; a_, b_ = vT+4, vT+5
        s.valu(f"v_mul_u32_u24 v{a_}, {-(-65536//nl)}, v{vLane}", wr=[a_], rd=[vLane]); s.valu(f"v_lshrrev_b32 v{a_}, 16, v{a_}", wr=[a_], rd=[a_])
        s.valu(f"v_mul_u32_u24 v{b_}, {nl}, v{a_}", wr=[b_], rd=[a_]); s.valu(f"v_sub_u32 v{b_}, v{vLane}, v{b_}", wr=[b_], rd=[vLane, b_])
        s.valu(f"v_mul_u32_u24 v{a_}, 1152, v{a_}", wr=[a_], rd=[a_]); s.valu(f"v_lshl_add_u32 v{a_}, v{b_}, 7, v{a_}", wr=[a_], rd=[a_, b_])
        s.valu(f"v_cmp_gt_u32 vcc, {4*nl}, v{vLane}", rd=[vLane], swr=["vcc"]); s.valu(f"v_mov_b32 v{b_}, {OOB}", wr=[b_])
        s.salu(f"s_and_b32 s{sT1}, s{sFS}, 3"); s.salu(f"s_lshl_b32 s{sT1}, s{sT1}, 3"); s.salu(f"s_add_u32 s{sT1}, s{sT1}, s{sW}")
        s.salu(f"s_lshl_b32 s{sU1}, s{sMT}, 5"); s.salu(f"s_add_u32 s{sT1}, s{sT1}, s{sU1}"); s.salu(f"s_mul_i32 s{sT1}, s{sT1}, {4*1152}"); s.salu(f"s_add_u32 s{sT1}, s{sT1}, {128*s0}")
        s.valu(f"v_cndmask_b32 v{a_}, v{b_}, v{a_}, vcc", wr=[a_], rd=[a_, b_])
        s.vload("buffer_load_dword", vDummy, 1, a_, R_X, f"s{sT1}")
        s.valu(f"v_mul_u32_u24 v{a_}, 9216, v{vLane}", wr=[a_], rd=[vLane]); s.valu(f"v_cmp_gt_u32 vcc, {nl}, v{vLane}", rd=[vLane], swr=["vcc"])
        s.salu(f"s_and_b32 s{sT1}, s{sMT}, 7"); s.salu(f"s_lshl_b32 s{sT1}, s{sT1}, 3"); s.salu(f"s_add_u32 s{sT1}, s{sT1}, s{sW}")
        s.salu(f"s_mul_i32 s{sT1}, s{sT1}, {nl*9216}"); s.salu(f"s_add_u32 s{sT1}, s{sT1}, {64*s0*9216}")
        s.salu(f"s_lshl_b32 s{sU1}, s{sD0}, 1"); s.salu(f"s_add_u32 s{sT1}, s{sT1}, s{sU1}"); s.salu(f"s_add_u32 s{sT1}, s{sT1}, s{sU0}")
        s.valu(f"v_cndmask_b32 v{a_}, v{b_}, v{a_}, vcc", wr=[a_], rd=[a_, b_])
        s.vload("buffer_load_dword", vDummy, 1, a_, R_W1, f"s{sT1}")
    q2 = [f for u in ISSUE[-2] for f in iss.pieces(u)]
    tb, hb2 = setup_main(s, half, q2 if I(cfg.ticks) else None)
    if cfg.stamps: s.valu(f"v_writelane_b32 v{vStamp}, s98, 0", wr=[vStamp])
    stamp(s, "setup")
    for f in q2: f()
    if half == 1:
        if "1" in cfg.pfpro: s.vload("buffer_load_dword", vDummy, 1, vPF, R_W1, f"s{sW1s}", flags=cfg.fl_pf)
        if "2" in cfg.pfpro: s.vload("buffer_load_dword", vDummy, 1, vPF, R_W2, f"s{sPF}", flags=cfg.fl_pf)
    if I(cfg.prio) == half: s.salu("s_setprio 1")

    xblk = lambda i: vXF + 16*i
    dead = [xblk(2*i + (1-ch)) for i in range(4)]
    used = [xblk(2*i + ch) for i in range(4)]
    Hreg = {(k, mt): dead[k//2] + (k % 2)*8 + mt*4 for k in range(8) for mt in range(2)}
    for mt in range(2): Hreg[(8, mt)] = xblk(8) + (1-ch)*8 + mt*4
    for k in range(8):
        for mt in range(2): Hreg[(9+k, mt)] = used[k//2] + (k % 2)*8 + mt*4
    for mt in range(2): Hreg[(17, mt)] = xblk(8) + ch*8 + mt*4
    def acc(pos, dl, mt):
        if pos == 3 and INS3: return (vT, vT+4, vW1d, vEXW)[2*dl + mt]
        return {0: vXR, 1: vS[1], 2: vS[0], 3: vS[1], 4: vS[0]}[pos] + 8*dl + 4*mt
    PK2 = vP

    fill = {}; cur = [-1]; need_bar = {}; need_mf = {}; prebar = {}
    def F(n, i, f):
        assert 0 <= n < NST and 0 <= i < ST[n].nm, (n, i)
        fill.setdefault((n, i), []).append(f)
    def spread(ops, n0, i0, n1, i1=None):
        gaps = [(n, i, 1.0 if ST[n].kind != "b" else 0.5) for n in range(n0, n1+1) for i in range(ST[n].nm)
                if not (n == n0 and i < i0) and not (n == n1 and i1 is not None and i > i1)]
        tot = sum(g[2] for g in gaps); acc = 0; k = 0
        cost = [getattr(o, "c", 1.0) for o in ops]; ctot = sum(cost); cdone = 0
        for (n, i, w) in gaps:
            acc += w
            while k < len(ops) and cdone + cost[k]/2 <= ctot*acc/tot + 1e-9: F(n, i, ops[k]); cdone += cost[k]; k += 1
        assert k == len(ops)
    def hold(): return [None]
    def before_bar(n, h): need_bar.setdefault(min(b for b in BAR if b >= n), []).append(h)
    def before_mfma(n, i, h): need_mf.setdefault((n, i), []).append(h)

    if half == 1:
        hclr = hold()
        def clr():
            s.valu(f"v_lshlrev_b32 v{vTmp}, 8, v{vLane}", wr=[vTmp], rd=[vLane]); s.valu(f"v_mov_b32 v{vTmp2}, {OOB}", wr=[vTmp2])
            s.valu(f"v_mov_b32 v{vFv}, 0", wr=[vFv])
            s.vstore("buffer_store_dword", vFv, 1, vTmp, R_WS, f"s{sClr}", flags=cfg.st_flags)
            s.salu(f"s_add_u32 s{sClr}, s{sClr}, 16384")
            hclr[0] = s.vstore("buffer_store_dword", vFv, 1, vTmp, R_WS, f"s{sClr}", flags=cfg.st_flags)
            s.valu(f"v_cmp_eq_u32 vcc, 0, v{vLane}", rd=[vLane], swr=["vcc"]); s.salu("s_nop 1")
            s.valu(f"v_cndmask_b32 v{vOne}, v{vTmp2}, v{vFv}, vcc", wr=[vOne], rd=[vTmp2, vFv])
        assert all(u[0] != "x" for b in ISSUE if b >= I(cfg.clr_stage) for u in ISSUE[b])
        F(I(cfg.clr_stage), 3, clr)
        def arrive():
            srd(s, R_DBG, S_DBG, 256)
            s.salu(f"s_lshl_b32 s{sU0}, s{sMT}, 2")
            s.salu(f"s_cmp_lg_u32 s{sW}, 4"); s.salu(f"s_cselect_b32 s{sU0}, 1024, s{sU0}")
            s.salu(f"s_cmp_lg_u32 s{sFS}, 0"); s.salu(f"s_cselect_b32 s{sU0}, 1024, s{sU0}")
            s.wait(hclr[0])
            s.valu(f"v_mov_b32 v{vFv}, 1", wr=[vFv])
            s.vstore("buffer_atomic_add", vFv, 1, vOne, R_DBG, f"s{sU0}")
        F(7 if False else I(cfg.arr_stage), 2, arrive)
        if cfg.pf and "2" not in cfg.pfpro:
            n0, n1, nl = IL(cfg.pf); sh = I(cfg.pfshare); per = -(-2592//(sh*4)); cnt = -(-per//nl)
            for q in range(cnt):
                def pf(q=q):
                    s.vload("buffer_load_dword", vDummy, 1, vPF, R_W2, f"s{sPF}", flags=cfg.fl_pf)
                    s.salu(f"s_add_u32 s{sPF}, s{sPF}, {nl*128}")
                g = q*(n1 - n0 + 1)*4//cnt
                F(n0 + g//4, g % 4, pf)
        if cfg.pf1c and "1" not in cfg.pfpro:
            n0, n1 = IL(cfg.pf1c); nl = IL(cfg.pf)[2]; cnt = -(-41//nl)
            for q in range(cnt):
                def pf1c():
                    s.vload("buffer_load_dword", vDummy, 1, vPF, R_W1, f"s{sW1s}", flags=cfg.fl_pf)
                    s.salu(f"s_add_u32 s{sW1s}, s{sW1s}, {nl*128}")
                g = q*(n1 - n0 + 1)*4//cnt
                F(n0 + g//4, g % 4, pf1c)
        if cfg.pf1b:
            n0, n1, _ = IL(cfg.pf1b)
            for q in range(3):
                def pf1b():
                    s.vload("buffer_load_dword", vDummy, 1, vW1s, R_W1, f"s{sW1s}", flags=cfg.fl_pf)
                    s.salu(f"s_add_u32 s{sW1s}, s{sW1s}, {3*9216}")
                g = q*(n1 - n0 + 1)*4//3
                F(n0 + g//4, g % 4, pf1b)
        if cfg.pf1:
            n0, n1 = IL(cfg.pf1)
            for q in range(9):
                def pf1():
                    s.vload("buffer_load_dword", vDummy, 1, vPF, R_W1, f"s{sW1s}", flags=cfg.fl_pf)
                    s.salu(f"s_add_u32 s{sW1s}, s{sW1s}, 9216")
                g = q*(n1 - n0 + 1)*4//9
                F(n0 + g//4, g % 4, pf1)

    hst = [hold(), hold(), hold(), hold()]; hst0b = hold()
    late = []
    def LV(text, wr, rd): late.append(lambda: s.valu(text, wr=wr, rd=rd))
    a_, b_ = vTmp, vTmp2
    LV(f"v_bfe_u32 v{a_}, v{vLane}, 2, 3", [a_], [vLane]); LV(f"v_lshrrev_b32 v{b_}, 5, v{vLane}", [b_], [vLane])
    LV(f"v_lshl_add_u32 v{a_}, v{b_}, 4, v{a_}", [a_], [a_, b_]); LV(f"v_and_b32 v{b_}, 3, v{vLane}", [b_], [vLane])
    LV(f"v_lshlrev_b32 v{b_}, 3, v{b_}", [b_], [b_]); LV(f"v_lshl_add_u32 v{a_}, v{a_}, 6, v{b_}", [a_], [a_, b_])
    LV(f"v_bfe_u32 v{b_}, v{vLane}, 4, 1", [b_], [vLane])
    if ch: LV(f"v_xor_b32 v{b_}, 1, v{b_}", [b_], [b_])
    LV(f"v_lshl_add_u32 v{vW2cR}, v{b_}, 5, v{a_}", [vW2cR], [a_, b_])
    for k in (1, 2): LV(f"v_add_u32 v{vW2cR+k}, {65536*k}, v{vW2cR}", [vW2cR+k], [vW2cR])
    LV(f"v_add_u32 v{vHB[2]}, 131072, v{vHB[0]}", [vHB[2]], [vHB[0]])
    for f in late: F(36, 1, f)
    if half == 1 and cfg.fdirect:
        def ftab():
            s.salu(f"s_mul_i32 s{sU0}, s{sFS}, 768"); s.salu(f"s_lshl_b32 s{sU1}, s{sE}, 10"); s.salu(f"s_sub_u32 s{sU0}, s{sU0}, s{sU1}"); s.salu(f"s_add_u32 s{sU0}, s{sU0}, {80*256}")
            s.valu(f"v_lshl_add_u32 v{vTmp}, v{vLane}, 8, s{sU0}", wr=[vTmp], rd=[vLane]); s.valu(f"v_mov_b32 v{vTmp2}, {OOB}", wr=[vTmp2])
            s.valu(f"v_cmp_gt_u32 vcc, 3, v{vLane}", rd=[vLane], swr=["vcc"]); s.valu(f"v_mov_b32 v{vFW}, {OOB}", wr=[vFW]); s.salu("s_nop 0")
            s.valu(f"v_cndmask_b32 v{vFR}, v{vTmp2}, v{vTmp}, vcc", wr=[vFR], rd=[vTmp, vTmp2])
            s.salu(f"s_xor_b32 s{sU0}, s{sFS}, 2"); s.salu(f"s_mul_i32 s{sU0}, s{sU0}, 768"); s.salu(f"s_sub_u32 s{sU0}, s{sU0}, s{sU1}"); s.salu(f"s_add_u32 s{sU0}, s{sU0}, {80*256}")
            s.valu(f"v_writelane_b32 v{vFW}, s{sU0}, 0", wr=[vFW])
            s.salu(f"s_add_u32 s{sU0}, s{sPC}, 3"); s.salu(f"s_and_b32 s{sU0}, s{sU0}, 3"); s.salu(f"s_lshl_b32 s{sU0}, s{sU0}, 2"); s.salu(f"s_add_u32 s{sU0}, s{sU0}, s{sE}")
            s.salu(f"s_mul_i32 s{sU0}, s{sU0}, 768"); s.salu(f"s_sub_u32 s{sU0}, s{sU0}, s{sU1}"); s.salu(f"s_add_u32 s{sU0}, s{sU0}, {81*256}")
            s.salu(f"s_lshl_b32 s{sU1}, s{sE2}, 8"); s.salu(f"s_add_u32 s{sU0}, s{sU0}, s{sU1}")
            s.valu(f"v_writelane_b32 v{vFW}, s{sU0}, 1", wr=[vFW])
            s.salu(f"s_add_u32 s{sU0}, s{sU0}, {2*768}")
            s.valu(f"v_writelane_b32 v{vFW}, s{sU0}, 2", wr=[vFW])
        F(47, 6, ftab)
    biasrd = {}
    for j in range(1, 5):
        S = vS[j % 2]
        if j == 4 and ch == 1: continue
        for g in range(4):
            h = hold()
            def rd(h=h, g=g, j=j, S=S):
                h[0] = s.ds_read("ds_read_b128", S+4*g, 4, vBias if j < 4 else vBiasS, (j*256 if j < 4 else 0) + g*32)
            biasrd[(j, g)] = rd; before_mfma(9*j, 0, h)
    for g in range(4): F(8, g, biasrd[(1, g)])
    gw0, gw1, gw2 = IL(cfg.gwin)
    for j in range(4):
        S = vS[j % 2]; ops = []; after = {}
        for e in range(2):
            h = hold()
            def wr(h=h, e=e, j=j):
                assert cur[0] >= HWSTAGE[j], (j, cur[0])
                h[0] = s.ds_write("ds_write_b128", vHW, vP+4*e, 4, 2*j*8192 + e*512)
            def gw(e=e, j=j):
                s.salu(f"s_add_u32 s{sT1}, s{sHXw}, {2*j*8192 + e*512}" if not cfg.nohst else f"s_mov_b32 s{sT1}, {OOB}")
                hst[max(j-1, 0)][0] = s.vstore("buffer_store_dwordx4", vP+4*e, 4, vHW, R_WS, f"s{sT1}", flags=cfg.h_flags)
            fin = [W(wr, 2.0)] + ([] if (cfg.hdelay and j < 2) else [W(gw, 2.0)])
            before_bar(min(9*(j+2), 36) if j < 3 else B0+1, h)
            if cfg.skew:
                for q in range(4):
                    after.setdefault(8*e+2*q+1, []).append(cvt(s, vP+4*e+q, S+8*e+2*q, S+8*e+2*q+1))
                    if q % 2 == 1 and (j+2, 2*e + q//2) in biasrd: after[8*e+2*q+1].append(biasrd[(j+2, 2*e + q//2)])
                after[8*e+7] += fin
            else:
                for g in (2*e, 2*e+1):
                    ops += gelu_group(s, [S+4*g+i for i in range(4)], 4*g)
                    ops.append(cvt(s, vP+2*g, S+4*g, S+4*g+1)); ops.append(cvt(s, vP+2*g+1, S+4*g+2, S+4*g+3))
                ops += fin
        if cfg.skew: ops = gelu_skew(s, [S+i for i in range(16)], after)
        else:
            for g in range(4):
                if (j+2, g) in biasrd: F(9*(j+2)-1, g, biasrd[(j+2, g)])
        if j < 3:
            if cfg.skew: spread(ops, 9*(j+1), gw0, 9*(j+1)+gw1, gw2)
            else: spread(ops, 9*(j+1), 2, 9*(j+1)+7)
        else: spread(ops, 36, gw0 if cfg.skew else 2, *IL(cfg.g3end))
    if cfg.hdelay:
        n0, n1 = IL(cfg.hdelay); gaps = [(n, i) for n in range(n0, n1+1) for i in range(4)]
        for k in range(4):
            h = hold(); g = k*(len(gaps)-3)//4; R = vXR + 4*(k % 2)
            def rd(h=h, k=k, R=R):
                w_, o_ = win((HB+k)*8192 + ch*1024)
                h[0] = s.ds_read("ds_read_b128", R, 4, vHB[w_], o_)
            def st_(h=h, k=k, R=R):
                s.wait(h[0])
                s.salu(f"s_add_u32 s{sT1}, s{sHXw}, {k*8192 + HBASE + ch*1024}" if not cfg.nohst else f"s_mov_b32 s{sT1}, {OOB}")
                t = s.vstore("buffer_store_dwordx4", R, 4, vHB[0], R_WS, f"s{sT1}", flags=cfg.h_flags)
                hst0b[0] = t
            F(*gaps[g], rd); F(*gaps[g+3], st_)
        before_bar(IL(cfg.hpub)[0], hst0b)
    S = vS[0]; snd = S + 8*(1-ch); own = S + 8*ch
    for e in range(2):
        h = hold()
        def wr(h=h, e=e): h[0] = s.ds_write("ds_write_b128", vEXW, snd+4*e, 4, e*1024)
        F(B0, 3+e, wr); before_bar(B0+1, h)
    hx = []
    for e in range(2):
        h = hold(); hx.append(h)
        def rd(h=h, e=e): h[0] = s.ds_read("ds_read_b128", snd+4*e, 4, vEXR, e*1024)
        F(B0+1, 0, rd); before_bar(B0+2, h)
    ops = [lambda: s.wait(hx[0][0], hx[1][0])]
    for i in range(8):
        ops.append(lambda i=i: s.valu(f"v_add_f32 v{own+i}, v{own+i}, v{snd+i}", wr=[own+i], rd=[own+i, snd+i]))
    if cfg.skew:
        ops += gelu_skew(s, [own+i for i in range(8)], {2*q+1: [cvt(s, PK2+q, own+2*q, own+2*q+1)] for q in range(4)})
    else:
        for g in range(2):
            ops += gelu_group(s, [own+4*g+i for i in range(4)], 4*g)
            ops.append(cvt(s, PK2+2*g, own+4*g, own+4*g+1)); ops.append(cvt(s, PK2+2*g+1, own+4*g+2, own+4*g+3))
    h = hold()
    def wr8(h=h): h[0] = s.ds_write("ds_write_b128", vHW8, PK2, 4, 0)
    def gw8(): hst[3][0] = s.vstore("buffer_store_dwordx4", PK2, 4, vHW8, R_WS, f"s{sHXw}", flags=cfg.st_flags)
    ops.append(wr8); ops.append(gw8); before_bar(B0+5, h)
    spread(ops, B0+1, 3, B0+4, 6)
    hrd = {}
    def hread(k, n, i):
        blk = HB + k if k < 9 else BLK[("h", k)]
        for mt in range(2):
            h = hold(); hrd[(k, mt)] = h
            def rd(h=h, k=k, mt=mt):
                w_, o_ = win(blk*8192 + mt*1024)
                h[0] = s.ds_read("ds_read_b128", Hreg[(k, mt)], 4, vHB[w_], o_)
            F(n, i, rd); before_bar(n+2, h)
    for k in range(18): hread(k, HREAD[k], 1 + 2*(k % 2) if ST[HREAD[k]].nm == 4 else 1 + 2*(k % 4))

    nslow = [0]
    vPollR = vSec
    def check(test, tok, reload):
        nslow[0] += 1; k = f"{half}_{nslow[0]}"
        assert tok is not None or cfg.nopoll
        s.wait(tok); test(s)
        if cfg.inl:
            t = Stream()
            s.salu(f"s_cbranch_scc0 L_back_{k}")
        else:
            t = ool
            s.salu(f"s_cbranch_scc1 L_slow_{k}"); s.raw(f"L_back_{k}:")
            t.raw(f"L_slow_{k}:")
        t.salu(f"s_mov_b32 s{sSpin}, {SPIN}")
        t.raw(f"L_spin_{k}:")
        if I(cfg.backoff): t.salu(f"s_sleep {I(cfg.backoff)}")
        reload(t); t.wait_all(l=False); test(t)
        t.salu(f"s_cbranch_scc0 L_back_{k}")
        t.salu(f"s_sub_u32 s{sSpin}, s{sSpin}, 1"); t.salu(f"s_cmp_lg_u32 s{sSpin}, 0")
        t.salu(f"s_cbranch_scc1 L_spin_{k}")
        if cfg.inl:
            s.raw(t.text()); s.raw(f"L_back_{k}:")
        else: t.salu(f"s_branch L_back_{k}")
    def below(tgt, mul=1):
        def test(st):
            st.valu(f"v_readfirstlane_b32 s{sU1}, v{vPollR}", rd=[vPollR], swr=[sU1])
            if mul > 1:
                st.salu(f"s_mul_i32 s{sU0}, {tgt}, {mul}"); st.salu("s_nop 2"); st.salu(f"s_cmp_lt_u32 s{sU1}, s{sU0}")
            else:
                st.salu("s_nop 3"); st.salu(f"s_cmp_lt_u32 s{sU1}, {tgt}")
        return test
    def poll(st, base, idx):
        if cfg.nopoll:
            st.valu(f"v_mov_b32 v{vPollR}, 16", wr=[vPollR]); return None
        return st.vload("buffer_load_dword", vPollR, 1, vOne, R_WS, f"s{base}", off=256*idx, flags=cfg.poll_flags)
    def gate(base, idx, tgt, nb, name, mul=1):
        if half != 1: return
        hp = hold()
        F(nb - I(cfg.polllead), min(2, ST[nb - I(cfg.polllead)].nm-1), lambda: hp.__setitem__(0, poll(s, base, idx)))
        def chk():
            stamp(s, f"{name}0"); check(below(f"s{tgt}", mul), hp[0], lambda st: poll(st, base, idx)); stamp(s, f"{name}1")
        prebar.setdefault(nb, []).append(chk)
    def publish(base, idx):
        def go():
            if half == 1 and not cfg.nopub: s.vstore("buffer_atomic_add", vFv, 1, vOne, R_WS, f"s{base}", off=256*idx)
        return go
    if half == 1:
        hc = hold()
        def ld_cnt(st):
            st.salu(f"s_lshl_b32 s{sU0}, s{sMT}, 2")
            return st.vload("buffer_load_dword", vPollR, 1, vOne, R_DBG, f"s{sU0}", flags=cfg.poll_flags)
        F(I(cfg.cchk) - 4, 2, lambda: hc.__setitem__(0, ld_cnt(s)))
        assert I(cfg.cchk) in BAR
        prebar.setdefault(I(cfg.cchk), []).append(lambda: check(below("1"), hc[0], ld_cnt))
    for lv, (pb, cb) in enumerate(zip(IL(cfg.hpub), IL(cfg.hchk))):
        assert pb in BAR and cb in BAR and pb < cb
        assert pb > I(cfg.cchk)
        before_bar(pb, hst[lv])
        if cb in IL(cfg.hchk)[lv+1:]: continue
        F(pb, 1, publish(sHfW, lv)); gate(sHfR, lv, sTgt1, cb, f"h{lv}")
    last_stage = {}
    for a in ST[B0:]:
        for (pos, dl, k, u, sl) in a.parts: last_stage[(pos, dl)] = a.n
    pk_of = lambda pos: vP
    stok = {}
    def store_ops(pos, dls):
        PK = pk_of(pos); ops = []; stok.setdefault(pos, hold())
        for dl in dls:
            for mt in range(2):
                for e in range(2): ops.append(cvt(s, PK+4*dl+2*mt+e, acc(pos, dl, mt)+2*e, acc(pos, dl, mt)+2*e+1))
            def st_(dl=dl):
                if cfg.nostore: s.salu(f"s_mov_b32 s{sT1}, {OOB}")
                elif pos == 0: s.salu(f"s_mov_b32 s{sT1}, s{sPc}")
                else: s.salu(f"s_add_u32 s{sT1}, s{sPc+pos}, s{sDt+dl}")
                stok[pos][0] = s.vstore("buffer_store_dwordx4", PK+4*dl, 4, vL16, R_WS, f"s{sT1}", flags=cfg.st_flags)
            ops.append(st_)
        return ops
    sts = IL(cfg.stst)
    for (pos, dl), n in zip([(1, 0), (1, 1), (2, 0), (2, 1), (0, 0), (3, 0), (3, 1)], sts):
        assert n > last_stage[(pos, dl)]
        spread(store_ops(pos, (dl,)), n, 1, n, min(5, ST[n].nm-1))
    assert (INS3 or sts[1] < 64) and sts[3] < LAST0
    n8 = last_stage[(4, 0)]
    spread(store_ops(4, (0,)), n8, 6, n8+1, 2)
    pA, cA, pF = I(cfg.pubA), I(cfg.chkA), I(cfg.pubF)
    assert pA in BAR and cA in BAR
    before_bar(pA, stok[0]); F(pA, 1, publish(sCnt, 0)); gate(sCnt, 0, sTgt8, cA, "cA")
    def pubF():
        if not cfg.fdirect: return publish(sCnt, 2)()
        if half == 1 and not cfg.nopub: s.vstore("buffer_atomic_add", vFv, 1, vFW, R_WS, f"s{sCnt}")
    def pollF(st):
        if not cfg.fdirect or cfg.nopoll: return poll(st, sCnt, 2)
        return st.vload("buffer_load_dword", vPollR, 1, vFR, R_WS, f"s{sCnt}", flags=cfg.poll_flags)
    def testF(st):
        if not cfg.fdirect or cfg.nopoll: return below(f"s{sTgt8}")(st)
        st.valu(f"v_cmp_gt_u32 vcc, s{sTgt1}, v{vPollR}", rd=[vPollR], swr=["vcc"]); st.salu("s_nop 3")
        st.salu("s_and_b32 vcc_lo, vcc_lo, 7")
    if pF in BAR: before_bar(pF, stok[4]); F(pF, 0, pubF)
    LAND_OF = {8: vXR, 1: Hreg[(0, 0)], 2: Hreg[(1, 0)], 3: Hreg[(2, 0)], 0: vXR+4}
    ptk = {}
    def piece(k, e):
        def go():
            if k == 8:
                ptk[k] = s.vload("buffer_load_dwordx4", LAND_OF[k]+4*e, 4, vP8off, R_WS, f"s{sP8}", flags=cfg.ld_flags)
            else:
                ptk[k] = s.vload("buffer_load_dwordx4", LAND_OF[k]+4*e, 4, vL16, R_WS, f"s{sCo+k}", off=1024*e, flags=cfg.ld_flags)
        return go
    def load_k(k):
        for e in range(1 if k in (0, 8) else 2): piece(k, e)()
    SUM = acc(4, 1, 0)
    def add_k(k):
        if k == 8: return step8()
        s.wait(ptk[k])
        for v_ in range(LAND_OF[k], LAND_OF[k] + (4 if k == 0 else 8)):
            r = (v_ - LAND_OF[k]) % 4
            s.valu(f"v_lshlrev_b32 v{vTmp}, 16, v{v_}", wr=[vTmp], rd=[v_])
            s.valu(f"v_and_b32 v{v_}, s{sMask}, v{v_}", wr=[v_], rd=[v_])
            s.valu(f"v_add_f32 v{SUM+2*r}, v{SUM+2*r}, v{vTmp}", wr=[SUM+2*r], rd=[SUM+2*r, vTmp])
            s.valu(f"v_add_f32 v{SUM+2*r+1}, v{SUM+2*r+1}, v{v_}", wr=[SUM+2*r+1], rd=[SUM+2*r+1, v_])
    def step8():
        V = lambda text, wr, rd: s.valu(text, wr=wr, rd=rd)
        R = vWF; L8 = LAND_OF[8]
        s.wait(ptk[8], hb2[1])
        for r in range(4):
            V(f"v_lshlrev_b32 v{R+2*r}, 16, v{L8+r}", [R+2*r], [L8+r]); V(f"v_and_b32 v{R+2*r+1}, s{sMask}, v{L8+r}", [R+2*r+1], [L8+r])
        for i in range(4): V(f"v_permlane32_swap_b32 v{R+i}, v{R+4+i}", [R+i, R+4+i], [R+i, R+4+i])
        for i in range(4): V(f"v_add_f32 v{R+i}, v{R+i}, v{R+4+i}", [R+i], [R+i, R+4+i])
        for i in range(2): V(f"v_permlane16_swap_b32 v{R+i}, v{R+2+i}", [R+i, R+2+i], [R+i, R+2+i])
        for i in range(2): V(f"v_add_f32 v{R+i}, v{R+i}, v{R+2+i}", [R+i], [R+i, R+2+i])
        for i in range(2): V(f"v_add_f32_dpp v{R+2+i}, v{R+i}, v{R+i} row_ror:8 row_mask:0xf bank_mask:0xf", [R+2+i], [R+i])
        V(f"v_lshlrev_b32 v{R}, 16, v{vB28}", [R], [vB28]); V(f"v_and_b32 v{R+1}, s{sMask}, v{vB28}", [R+1], [vB28])
        for i in range(2): V(f"v_add_f32 v{R+i}, v{R+i}, v{R+2+i}", [R+i], [R+i, R+2+i])
        cvt(s, R, R, R+1)()
        s.vstore("buffer_store_dword", R, 1, vOut8, R_OUT, f"s{sOut8}", flags=cfg.out_flags)
    lastread = {}
    for a in ST[B0:]:
        for i, (f, mt) in enumerate(a.order): lastread[(a.parts[f][2], mt)] = (a.n, i)
    for q, ((k, e), n) in enumerate(zip([(8, 0), (1, 0), (1, 1), (2, 0), (2, 1)], IL(cfg.ldst))):
        g = 1 + q
        assert n >= cA
        if k != 8: assert (n, g) >= lastread[(k-1, e)], (k, e, n, lastread[(k-1, e)])
        F(n, g, piece(k, e))

    freebufs = [vWF+4*i for i in range(4)]
    frag = {}
    def plan_frag(n, f):
        a = ST[n]; hs = [hold(), hold()]; ent = [None, hs]; frag[(n, f)] = ent
        def mk(rd):
            def go():
                if rd == 0: ent[0] = freebufs.pop(0)
                if a.kind == "d": base, off = vW1dR, BLK[("w", n)]*8192 + (16*f + 4*rd)*128
                elif a.kind == "s":
                    ks = (4*ch + f) if a.i < 4 else (4 + 2*ch + f)
                    base, off = vW1sR, BLK[("w", n)]*8192 + (16*ks + 4*rd)*64
                else:
                    (pos, dl, k, u, sl) = a.parts[f]
                    if a.sub == "d": base, off = vW2R + 3*dl, BLK[("w", u)]*8192 + sl*4096 + rd*1024
                    else: base, off = vW2cR, BLK[("w", u)]*8192 + sl*2048 + rd*512
                w_, o_ = win(off)
                hs[rd][0] = s.ds_read("ds_read_b64_tr_b16", ent[0] + 2*rd, 2, base + w_, o_)
            return go
        return [mk(0), mk(1)]
    nfrag = lambda n: ST[n].nm if ST[n].kind != "b" else len(ST[n].parts)
    xtok = {}
    def xread(n, sp):
        w_, o_ = win(BLK[("x", n)]*8192 - XWIN0)
        def go(): xtok[(n, sp)] = s.ds_read("ds_read_b128", vXF + 16*n + 4*sp, 4, vXR + 4*w_ + sp, o_)
        return go
    pre = {}; pend = {}
    def P(n, i, f): pre.setdefault((n, i), []).append(f)
    for n in range(1, NST):
        prev = ST[n-1]; rds = []
        for f in range(nfrag(n)): rds += plan_frag(n, f)
        pend[n-1] = rds
        if n < 9:
            for sp in range(4): P(n-1, sp, xread(n, sp))

    s.wait(tb, *[utok.get(u) for u in LAND[-1]])
    s.barrier()
    stamp(s, "data")
    for g in range(4):
        h = hold(); h[0] = s.ds_read("ds_read_b128", vS[0]+4*g, 4, vBias, g*32); before_mfma(0, 0, h)
    for f in range(4):
        xread(0, f)()
        for r in plan_frag(0, f): r()
    issue_all(-1)

    started = set()
    tmpb = [used[3] + 4*q for q in range(I(cfg.tmpbuf))]; TMPEND = HREAD[15] - 3
    for a in ST:
        n = a.n
        if n == B0 - 1: freebufs.extend(tmpb)
        if n == B0 + 5 and not INS3: freebufs.extend([vT, vT+4])
        if INS3 and n == sts[1] + 1: freebufs.extend([vS[1], vS[1]+4])
        if n == TMPEND: freebufs[:] = [b for b in freebufs if b not in tmpb]
        if n == TMPEND + 2: assert not any(e[0] in tmpb for (m, f), e in frag.items() if m >= n and e[0] is not None)
        stamp(s, f"s{n}")
        uses = {f: i for i, (f, mt) in enumerate(a.order)} if a.kind == "b" else {}
        dq = [f for u in ISSUE.get(n, []) for f in iss.pieces(u)]
        slots = [g for g in IL(cfg.dposB if a.kind == "b" else cfg.dposA) if g < a.nm] or [a.nm-1]
        if len(dq) > len(slots): slots = list(range(a.nm)) if len(dq) <= a.nm else list(range(a.nm))
        dat = {}; ndone = 0
        for q, f in enumerate(dq): dat.setdefault(slots[q*len(slots)//len(dq)], []).append(f)
        for i in range(a.nm):
            toks = [h[0] for h in need_mf.get((n, i), [])]
            cur[0] = n
            if a.kind in "ds":
                reg, hs = frag[(n, i)]
                toks += [hs[0][0], hs[1][0]]
                if a.kind == "d" and a.j == 0: toks.append(xtok[(n, i)])
                assert all(t is not None for t in toks), (n, i)
                s.wait(*toks)
                if a.kind == "d": s.mfma32(vS[a.j % 2], reg, vXF + 16*a.s + 4*i, vS[a.j % 2])
                else:
                    ks = (8*a.i + 4*ch + i) if a.i < 4 else (32 + 2*ch + i)
                    s.mfma32(vS[0], reg, vXF + 4*ks, None if (a.i == 0 and i == 0 and ch == 1) else vS[0])
                freebufs.append(reg)
            else:
                f, mt = a.order[i]
                (pos, dl, k, u, sl) = a.parts[f]
                reg, hs = frag[(n, f)]
                toks += [hs[0][0], hs[1][0], hrd[(k, mt)][0]]
                if cfg.wait2 and i+1 < a.nm and n > B0 and i % 2 == 0:
                    f2, mt2 = a.order[i+1]
                    toks += [frag[(n, f2)][1][0][0], frag[(n, f2)][1][1][0]]
                assert all(t is not None for t in toks), (n, i)
                s.wait(*toks)
                d = acc(pos, dl, mt); key = (pos, dl, mt)
                s.mfma16(d, reg, Hreg[(k, mt)], d if key in started else None)
                started.add(key)
                if uses[f] == i and not (n >= TMPEND - 1 and reg in tmpb): freebufs.append(reg)
            if i == 0 and n in BAR:
                assert all(h[0] is not None for h in need_bar.get(n, [])), n
                for f in prebar.get(n, []): f()
                s.wait(*([utok.get(u) for u in LAND.get(n, [])] + [h[0] for h in need_bar.get(n, [])]))
                s.barrier()
            rds = pend.get(n, []); per = -(-len(rds)//a.nm)
            while ndone < min(len(rds), per*(i+1) if i < a.nm-1 else 99) and (ndone % 2 == 1 or freebufs or i == a.nm-1):
                rds[ndone](); ndone += 1
            for f in pre.get((n, i), []): f()
            for f in dat.get(i, []): f()
            for f in fill.get((n, i), []): f()
    stamp(s, "tail")
    if pF not in BAR:
        s.wait(stok[4][0]); s.barrier(); pubF()
    stamp(s, "T1")
    s.wait(hb2[0])
    for r in range(2):
        s.valu(f"v_lshlrev_b32 v{vP+4+2*r}, 16, v{vB2m+r}", wr=[vP+4+2*r], rd=[vB2m+r])
        s.valu(f"v_and_b32 v{vP+4+2*r+1}, s{sMask}, v{vB2m+r}", wr=[vP+4+2*r+1], rd=[vB2m+r])
    for i in range(8):
        s.valu(f"v_add_f32 v{SUM+i}, v{SUM+i}, v{vP+4 + i % 4}", wr=[SUM+i], rd=[SUM+i, vP+4 + i % 4])
    pre_ = [8, 1, 2][:I(cfg.tailpoll)]
    for k in pre_: add_k(k)
    if half == 1:
        hp = pollF(s)
        check(testF, hp, pollF)
    s.barrier()
    stamp(s, "T2")
    load_k(3); load_k(0)
    for k in [8, 1, 2][I(cfg.tailpoll):] + [3, 0]: add_k(k)
    stamp(s, "fin")
    for k in range(4): cvt(s, vP+k, SUM+2*k, SUM+2*k+1)()
    s.vstore("buffer_store_dwordx2", vP, 2, vOutM, R_OUT, f"s{sOutM}", flags=cfg.out_flags)
    s.salu(f"s_add_u32 s{sOutM}, s{sOutM}, {16*1152}")
    s.vstore("buffer_store_dwordx2", vP+2, 2, vOutM, R_OUT, f"s{sOutM}", flags=cfg.out_flags)
    if cfg.stamps: s.wait_all()
    stamp(s, "end")
    stamp_flush(s)
    s.salu("s_endpgm")
    return s, ool

def kd(name, vg, sg):
    return f""".amdhsa_kernel {name}
  .amdhsa_next_free_vgpr {vg}
  .amdhsa_next_free_sgpr {sg}
  .amdhsa_accum_offset {(vg+3)//4*4}
  .amdhsa_group_segment_fixed_size 0
  .amdhsa_kernarg_size 64
  .amdhsa_user_sgpr_count 2
  .amdhsa_user_sgpr_kernarg_segment_ptr 1
  .amdhsa_system_sgpr_workgroup_id_x 1
  .amdhsa_float_denorm_mode_32 3
.end_amdhsa_kernel
"""

def generate(aslist=False):
    PLAN = plan()
    p = Stream()
    prologue(p)
    p.salu(f"s_cmp_ge_u32 s{sW}, 4", srd=[sW]); p.salu("s_cbranch_scc1 L_half1")
    h0, o0 = body(p, 0, PLAN); h1, o1 = body(p, 1, PLAN)
    mk = (p.text() + "\n" + h0.text() + "\n" + o0.text() + "\n.p2align 6\nL_half1:\n" + h1.text() + "\n" + o1.text()
          + "\nL_main_end:\n    s_endpgm\n")
    k1 = NAME + "_kernel"
    launch = (f"; @launch kernel={k1} grid=(256,1,1) block=(512,1,1) lds=163840" if aslist
              else "; @launch grid=(256,1,1) block=(512,1,1) lds=163840")
    out = f"""; fused MLP  out = gelu_tanh(x@w1+b1)@w2+b2   (emitted by my generator script)
{launch}
.amdgcn_target "amdgcn-amd-amdhsa--gfx950"
.text
.globl {k1}
.p2align 8
.type {k1},@function
{k1}:
{mk}
.section .rodata,"a"
.p2align 6
{kd(k1, 256, 102)}"""
    nb = [sum(1 for i in h.ins if i.kind == "bar") for h in (h0, h1)]
    assert nb[0] == nb[1], nb
    return out, (h0.nops, h1.nops, len(h0.ins), len(h1.ins), nb[0]), PLAN

if __name__ == "__main__":
    aslist = False; verbose = False
    for a in sys.argv[2:]:
        if a == "-v": verbose = True; continue
        k, v = a.split("=", 1)
        if k == "aslist": aslist = True; continue
        assert hasattr(cfg, k) or k == "pubextra", k
        setattr(cfg, k, {"True": True, "False": False}.get(v, v.replace("+", " ")))
    txt, stats, PLAN = generate(aslist)
    open(sys.argv[1], "w").write(txt)
    print("nops/ins/bars:", stats, "bytes", len(txt))
    if verbose:
        BAR, ISSUE, BLK, LAND = PLAN
        print(" ".join(f"{b}:{','.join(k+str(m)+'@'+str(BLK[(k,m)]) for k,m in ISSUE[b])}" for b in sorted(ISSUE)))
```

```python
import sys, struct
from emit import Stream, Ins

NAME = "standalone__dense_activation_gelu__prompt"
M, D, F = 2048, 576, 4608
def f2u(x): return struct.unpack("<I", struct.pack("<f", x))[0]
GA = -2.0*0.7978845608028654*1.4426950408889634
GB = GA*0.044715

class Cfg:
    st_flags = "sc1"; ld_flags = "sc1"; poll_flags = "sc1"
    stamps = False; cyc = False
    barA = 2; barB = 1; lastbar = "81"
    prio = -1
    g0 = 3
    g1 = 5
    look0 = 5
    lookA = 9; lookB = 12
    dpos = "1,5"
    ins3 = 2
    skew = False; tcost = 2.0
    gwin = "3,8,3"
    g3end = "40,3"
    g4win = "41,1,43,7"
    pfcode = 1
    pf1 = -1
    pf2 = 6
    hpub = "38,45,49"
    hchk = "43,52,55"
    hiss = "43,44,46,47,49,50,52,54,56"
    stst = "64,65,66,67,68,73,74"
    pubA = 72; chkA = 81; pubF = 81; tailpoll = 1
    ldst = "81,81,81,81,81"
    polllead = 3; backoff = 4
    clr_stage = 5; arr_stage = 12; cchk = 36
    nohst = False; nohld = False; nopoll = False; nopub = False; noload = False; nostore = False
cfg = Cfg()
def I(x): return int(x)
def IL(x): return [int(v) for v in str(x).split(",") if v != ""]

PART_BYTES = 32*72*8*1024
HX = PART_BYTES
FLG = HX + 256*9*8192
WS_BYTES = FLG + 16*64*256
OOB = 0x40000000
SPIN = 1000000

S_X, S_W1, S_B1, S_W2, S_B2, S_OUT, S_DBG, S_WS = 4, 6, 8, 10, 12, 14, 16, 18
R_X, R_W1, R_W2, R_WS, R_B1 = 20, 24, 28, 32, 36
R_DBG = 36
R_B2, R_OUT = 4, 8
sW, sRG, sMT, sFS, sD0, sS0 = 40, 41, 42, 43, 44, 45
sXo, sW1d, sW1s, sLx, sLw, sT0, sT1, sGB = 46, 47, 48, 49, 50, 51, 52, 53
sPC, sE = 54, 55
sW2, sC3, sPc, sCo, sDt = 56, 68, 71, 76, 80
sHXw, sHXr, sCnt, sHfW, sHfR, sTgt8, sTgt1, sClr = 82, 83, 84, 85, 86, 87, 88, 89
sE2, sPF, sP8, sSpin, sOutM, sOut8, sMask = 90, 91, 92, 93, 94, 95, 3
sU0, sU1 = 96, 97
vStamp, vLane, vL16 = 0, 1, 2
vX0, vX1, vW2, vTmp, vTmp2 = 3, 4, 5, 6, 7
vOne, vFv = vX0, vX1
vW1dR, vW2R = 8, 14
vW2cR = 8
vW1d, vW1s, vHW8, vGA = 20, 21, 22, 23
vBias, vW1sR = 24, 25
vHB = (28, 29, 30)
vBiasS = 31
vXR = 32
vP8off, vOutM, vB2m, vOut8, vB28 = 40, 41, 42, 44, 45
vSec = 46
vW2c = vPF = 47
vT, vP, vWF = 48, 56, 64
vS = (80, 96)
vXF = 112
vDumP = 255

NBLK, HB = 20, 10
HBASE, BIAS, XWIN0 = HB*8192, 19*8192, 7*8192

INS3 = int(([a.split('=')[1] for a in sys.argv if a.startswith('ins3=')] or [Cfg.ins3])[0])
class St: pass
PAIRS = lambda n: [(2*(q//4) + q % 2, (q//2) % 2) for q in range(n)]
def build_stages():
    st = []
    for j in range(4):
        for s in range(9):
            a = St(); a.kind = "d"; a.j = j; a.s = s; a.nf = 4; st.append(a)
    for i in range(5):
        a = St(); a.kind = "s"; a.i = i; a.nf = 4 if i < 4 else 2; a.rowbase = 128*i if i < 4 else 448; st.append(a)
    KB = {"o": 0, "r": 9}
    def dbl(pos, t, i=0):
        a = St(); a.kind = "b"; a.sub = "d"; a.pos = pos; a.t = t; a.i = i
        ks = (8, 17) if t == "m" else (KB[t]+2*i, KB[t]+2*i+1)
        a.parts = [(pos, dl, ks[kk], None, kk) for dl in range(2) for kk in range(2)]
        return a
    def sgl(t, i=0):
        a = St(); a.kind = "b"; a.sub = "c"; a.pos = 0; a.t = t; a.i = i
        ks = (8, 17) if t == "m" else [KB[t]+4*i+q for q in range(4)]
        a.parts = [(0, 0, k, None, q) for q, k in enumerate(ks)]
        return a
    st += [dbl(1, "o", i) for i in range(4)] + [sgl("o", 0), sgl("o", 1)] + [dbl(2, "o", i) for i in range(4)]
    st += [dbl(1, "r", 0), dbl(2, "r", 0), dbl(1, "r", 1), dbl(2, "r", 1), sgl("r", 0), dbl(1, "r", 2), dbl(2, "r", 2)]
    blocks = [("o", i) for i in range(4)] + [("r", i) for i in range(4)] + [("m", 0)]
    st += [dbl(3, t, i) for t, i in blocks[:INS3]]
    st += [dbl(1, "r", 3), dbl(2, "r", 3), sgl("r", 1), dbl(1, "m"), dbl(2, "m"), sgl("m")]
    st += [dbl(3, t, i) for t, i in blocks[INS3:]]
    L0 = len(st)
    fr = []
    for dl in range(2):
        for bi, (t, i) in enumerate(blocks):
            ks = (8, 17) if t == "m" else (KB[t]+2*i, KB[t]+2*i+1)
            fr += [(4, dl, ks[0], L0+bi, 0), (4, dl, ks[1], L0+bi, 1)]
    for gi in range(9):
        a = St(); a.kind = "b"; a.sub = "d"; a.pos = 4; a.t, a.i = blocks[gi]; a.parts = fr[4*gi:4*gi+4]
        st.append(a)
    for n, a in enumerate(st):
        a.n = n
        if a.kind == "b":
            a.nf = len(a.parts)
            a.parts = [(p, d, k, (n if u is None else u), sl) for (p, d, k, u, sl) in a.parts]
        a.nm = 2*a.nf; a.order = PAIRS(a.nm)
    return st, L0
ST, LAST0 = build_stages()
NST = len(ST)
B0 = 41
HWSTAGE = {0: 9+3, 1: 18+3, 2: 27+3, 3: 36+1, 4: B0+1}
FIRSTUSE = {}
for a_ in ST[B0:]:
    for (p_, d_, k_, u_, s_) in a_.parts: FIRSTUSE.setdefault(k_, a_.n)
HREAD = {0: 37, 1: 37, 2: 38, 3: 38, 4: 39, 5: 39, 6: B0+1, 7: B0+1, 8: B0+6}
for k_ in range(9, 18): HREAD[k_] = FIRSTUSE[k_] - 2
HFREE_OWN = {k: HREAD[k] + 2 for k in range(9)}

def plan():
    BAR = set()
    for n in range(NST):
        if n >= LAST0:
            if n in IL(cfg.lastbar): BAR.add(n)
        elif n < 9 or 35 <= n <= 64 + INS3 or n in IL(cfg.hpub) + IL(cfg.hchk) + [I(cfg.cchk)]: BAR.add(n)
        elif n < 35:
            if (n - 9) % I(cfg.barA) == 0: BAR.add(n)
        elif (LAST0 - 1 - n) % I(cfg.barB) == 0: BAR.add(n)
    bars = sorted(BAR)
    def first_read(u):
        if u[0] == "h": return HREAD[u[1]]
        return LAST0 - 1 if (u[0] == "w" and u[1] >= LAST0) else u[1] - 1
    def last_use(u):
        if u[0] == "h": return HREAD[u[1]] + 1
        return NST if (u[0] == "w" and u[1] >= LAST0) else u[1]
    res = {HB+k: (HWSTAGE[k//2], HFREE_OWN[k]) for k in range(9)}
    res[19] = (-99, 37)
    units = []
    for n in range(NST):
        if n < 9: units.append(("x", n))
        units.append(("w", n))
    hc = IL(cfg.hchk)
    hq = [(("h", k), IL(cfg.hiss)[k-9]) for k in range(9, 18)]
    for (u, b) in hq: assert b >= hc[[0, 0, 0, 0, 0, 0, 1, 1, 2][u[1]-9]]
    allunits = units + [u for u, _ in hq]
    busy = {}; issue = {}; blk = {}; land = {}
    ui = 0
    def freebar(u):
        c = [b for b in bars if b >= last_use(u)+1]
        return c[0] if c else 10**6
    def ok(b, u, bar):
        if b in busy: return False
        if b in res:
            a0, a1 = res[b]
            lb = max([x for x in [-3, -2, -1]+bars if x <= a0] or [-99])
            if not (freebar(u) <= lb or bar >= a1): return False
        return True
    for bar in [-3, -2, -1] + bars:
        for b in [b for b, u in busy.items() if freebar(u) <= bar]: del busy[b]
        lst = []
        nxt = min([b for b in bars if b > bar] or [NST])
        cap = 2*(nxt - bar) if bar >= 0 else 99
        if bar == -3: horizon = I(cfg.g0) - 1
        elif bar == -2: horizon = I(cfg.g1) - 1
        elif bar < 4: horizon = bar + I(cfg.look0)
        elif bar < B0 - 2: horizon = nxt - 1 + I(cfg.lookA)
        else: horizon = nxt - 1 + I(cfg.lookB)
        nh = 0
        while hq and hq[0][1] <= bar and nh < 2:
            u = hq[0][0]; c = [b for b in range(NBLK) if ok(b, u, bar)]
            if not c: break
            busy[c[0]] = u; blk[u] = c[0]; lst.append(u); hq.pop(0); nh += 1
        while ui < len(units):
            u = units[ui]; kind, m = u
            if min(m, LAST0) > horizon: break
            if hq and hq[0][1] <= bar + 1 and m > bar + 5: break
            if kind == "x":
                c = [b for b in range(7, 18, 2) if ok(b, u, bar) and ok(b+1, u, bar)]
                if not c: break
                b = c[0]; busy[b] = u; busy[b+1] = u
            else:
                c = [b for b in range(NBLK) if ok(b, u, bar)]
                if any(k == "x" for k, _ in units[ui:]): c = [b for b in c if b < 7]
                if not c: break
                b = c[0]; busy[b] = u
            blk[u] = b; lst.append(u); ui += 1
            if len([x for x in lst if x[0] == "w"]) >= cap: break
        issue[bar] = lst
    assert ui == len(units) and not hq
    for u in allunits:
        lb = max(b for b in [-1]+bars if b <= first_read(u))
        land.setdefault(lb, []).append(u)
        ib = [bar for bar, l in issue.items() if u in l][0]
        assert ib < lb, (u, ib, lb)
    return BAR, issue, blk, land

def win(a): return a // 65536, a % 65536

NSTAMP = 16
def snames(): return cfg.stamps.split(",") if isinstance(cfg.stamps, str) else []
def stamp(s, name):
    if name not in snames(): return
    s.wait_all(v=False)
    s.salu("s_memtime s[100:101]" if cfg.cyc else "s_memrealtime s[100:101]")
    s.wait_all(v=False)
    s.valu(f"v_writelane_b32 v{vStamp}, s100, {snames().index(name)+1}", wr=[vStamp])
def stamp_flush(s):
    if not cfg.stamps: return
    s.salu(f"s_lshl_b32 s{sT0}, s2, 3"); s.salu(f"s_add_u32 s{sT0}, s{sT0}, s{sW}"); s.salu(f"s_mul_i32 s{sT0}, s{sT0}, {4*NSTAMP}")
    s.salu(f"s_add_u32 s{sT0}, s{sT0}, {128<<20}")
    s.salu(f"s_mov_b32 s{R_WS+2}, 0x10000000")
    s.valu(f"v_lshlrev_b32 v{vTmp}, 2, v{vLane}", wr=[vTmp], rd=[vLane])
    s.valu(f"v_cmp_gt_u32 vcc, {NSTAMP}, v{vLane}", rd=[vLane], swr=["vcc"])
    s.valu(f"v_mov_b32 v{vTmp2}, {OOB}", wr=[vTmp2])
    s.salu("s_nop 1")
    s.valu(f"v_cndmask_b32 v{vTmp}, v{vTmp2}, v{vTmp}, vcc", wr=[vTmp], rd=[vTmp, vTmp2])
    s.vstore("buffer_store_dword", vStamp, 1, vTmp, R_WS, f"s{sT0}")

def srd(s, r, base, size):
    s.salu(f"s_mov_b32 s{r}, s{base}"); s.salu(f"s_mov_b32 s{r+1}, s{base+1}")
    s.salu(f"s_mov_b32 s{r+2}, {size}"); s.salu(f"s_mov_b32 s{r+3}, 0x20000")

class Ops:
    def __init__(self, s): self.s = s
    def V(self, text, wr=(), rd=(), **k): self.s.valu(text, wr=wr, rd=rd, **k)
    def S(self, text, **k): self.s.salu(text, **k)

def prologue(p):
    o = Ops(p); V, S = o.V, o.S
    S("s_cmp_ge_u32 s2, 256"); S("s_cbranch_scc1 L_main_end")
    if cfg.stamps: S("s_memtime s[98:99]" if cfg.cyc else "s_memrealtime s[98:99]")
    S("s_load_dwordx16 s[4:19], s[0:1], 0")
    L = vLane; a, b = vTmp, vTmp2
    V(f"v_lshrrev_b32 v{a}, 6, v0", [a]); V(f"v_and_b32 v{L}, 63, v0", [L])
    V(f"v_readfirstlane_b32 s{sW}, v{a}", rd=[a], swr=[sW])
    S(f"s_and_b32 s{sT0}, s2, 7"); S(f"s_lshr_b32 s{sT1}, s2, 3")
    S(f"s_and_b32 s{sMT}, s{sT0}, 1"); S(f"s_lshl_b32 s{sMT}, s{sMT}, 3")
    S(f"s_lshr_b32 s{sFS}, s{sT1}, 2"); S(f"s_add_u32 s{sMT}, s{sMT}, s{sFS}")
    S(f"s_lshr_b32 s{sFS}, s{sT0}, 1"); S(f"s_lshl_b32 s{sFS}, s{sFS}, 2")
    S(f"s_and_b32 s{sT1}, s{sT1}, 3"); S(f"s_add_u32 s{sFS}, s{sFS}, s{sT1}")
    S(f"s_and_b32 s{sRG}, s{sW}, 3", srd=[sW])
    S(f"s_and_b32 s{sE}, s{sFS}, 1"); S(f"s_lshl_b32 s{sD0}, s{sE}, 5")
    S(f"s_lshl_b32 s{sT0}, s{sMT}, 7"); S(f"s_lshl_b32 s{sT1}, s{sRG}, 5"); S(f"s_add_u32 s{sT0}, s{sT0}, s{sT1}")
    S(f"s_mul_i32 s{sXo}, s{sT0}, 1152")
    S(f"s_lshl_b32 s{sLx}, s{sRG}, 12"); S(f"s_lshl_b32 s{sLw}, s{sRG}, 11")
    S(f"s_mul_i32 s{sU0}, s{sFS}, 576")
    S(f"s_mul_i32 s{sT1}, s{sRG}, {16*9216}"); S(f"s_add_u32 s{sW1d}, s{sU0}, s{sT1}")
    S(f"s_lshl_b32 s{sT1}, s{sD0}, 1"); S(f"s_add_u32 s{sW1d}, s{sW1d}, s{sT1}")
    V(f"v_lshrrev_b32 v{a}, 3, v{L}", [a], [L])
    V(f"v_mul_u32_u24 v{vX0}, 1152, v{a}", [vX0], [a])
    V(f"v_mul_u32_u24 v{vW1d}, 9216, v{a}", [vW1d], [a])
    V(f"v_mov_b32 v{vW2}, v{vX0}", [vW2], [vX0])
    V(f"v_lshrrev_b32 v{a}, 4, v{L}", [a], [L])
    V(f"v_and_b32 v{b}, 7, v{L}", [b], [L])
    V(f"v_xor_b32 v{vX1}, v{a}, v{b}", [vX1], [a, b])
    V(f"v_lshl_add_u32 v{vX0}, v{vX1}, 4, v{vX0}", [vX0], [vX1, vX0])
    V(f"v_xor_b32 v{vX1}, 64, v{vX0}", [vX1], [vX0])
    V(f"v_add_u32 v{vX1}, {9216-1024}, v{vX1}", [vX1], [vX1])
    V(f"v_and_b32 v{a}, 1, v{a}", [a], [a]); V(f"v_lshlrev_b32 v{a}, 1, v{a}", [a], [a])
    V(f"v_xor_b32 v{b}, v{a}, v{b}", [b], [a, b])
    V(f"v_lshl_add_u32 v{vW1d}, v{b}, 4, v{vW1d}", [vW1d], [b, vW1d])
    V(f"v_lshlrev_b32 v{vBias}, 1, v0", [vBias])
    if I(cfg.pfcode):
        c = vT+6
        S("s_getpc_b64 s[72:73]"); p.raw("L_pc:")
        S(f"s_sub_u32 s72, s72, L_pc-{NAME}_kernel"); S("s_subb_u32 s73, s73, 0")
        S(f"s_lshr_b32 s{sU1}, s2, 3"); S(f"s_lshl_b32 s{sU1}, s{sU1}, 3"); S(f"s_add_u32 s{sU1}, s{sU1}, s{sW}"); S(f"s_lshl_b32 s{sU1}, s{sU1}, 8")
        V(f"v_and_b32 v{c}, 1, v{L}", [c], [L]); V(f"v_lshl_add_u32 v{c}, v{c}, 7, s{sU1}", [c], [c])
        V(f"v_min_u32 v{c}, L_main_end-{NAME}_kernel, v{c}", [c], [c])
        p.add(Ins(f"global_load_dword v{vDumP}, v{c}, s[72:73]", "vld", rd=[c], wr=[vDumP])); p._tok("v")
    p.wait_all(v=False)
    srd(p, R_X, S_X, M*D*2); srd(p, R_W1, S_W1, D*F*2)

def dma2(s, voff, r, soff, second):
    t = s.dma(voff, r, soff, cfg.ld_flags if r == R_WS else "")
    if second: s.ins[-1].text = s.ins[-1].text.replace(" offen", " offen offset:1024")
    return t

class Issuer:
    def __init__(self, s, half, BLK, utok): self.s, self.half, self.BLK, self.utok = s, half, BLK, utok; self.sec = None
    def pieces(self, u):
        s, half = self.s, self.half
        kind, m = u; b = self.BLK[u]
        if kind == "x":
            def first():
                s.salu(f"s_add_u32 m0, s{sLx}, {b*8192 + half*2048}", swr=["m0"])
                s.salu(f"s_add_u32 s{sT0}, s{sXo}, {16*half*1152 + m*128}")
                self.utok[u] = dma2(s, vX0, R_X, f"s{sT0}", False)
            def second(): self.utok[u] = dma2(s, vX1, R_X, f"s{sT0}", True)
            return [first, second]
        if kind == "h":
            if half != 1: return []
            def first():
                s.salu(f"s_add_u32 m0, s{sLw}, {b*8192}", swr=["m0"])
                s.salu(f"s_add_u32 s{sT0}, s{sHXr}, {(m-9)*8192}" if not cfg.nohld else f"s_mov_b32 s{sT0}, {OOB}")
                self.utok[u] = dma2(s, vL16, R_WS, f"s{sT0}", False)
            def second(): self.utok[u] = dma2(s, vL16, R_WS, f"s{sT0}", True)
            return [first, second]
        a = ST[m]
        if m < 9:
            def one():
                s.salu(f"s_add_u32 m0, s{sLw}, {b*8192 + half*1024}", swr=["m0"])
                s.salu(f"s_add_u32 s{sT0}, s{sW1d}, {(64*a.s + 8*half)*9216}")
                self.utok[u] = dma2(s, vW1d, R_W1, f"s{sT0}", False)
            return [one]
        if half != 0: return []
        if a.kind == "d": v, r, base, imm, step = vW1d, R_W1, sW1d, 64*a.s*9216 + a.j*128, 8*9216
        elif a.kind == "s": v, r, base, imm, step = vW1s, R_W1, sW1s, a.rowbase*9216, 16*9216
        elif a.sub == "d": v, r, base, imm, step = vW2, R_W2, sW2 + 4*"orm".index(a.t) + a.pos-1, 64*a.i*1152, 8*1152
        else: v, r, base, imm, step = vW2c, R_W2, sC3 + "orm".index(a.t), 128*a.i*1152, 16*1152
        def first():
            if self.sec != v:
                if v == vW1d:
                    s.valu(f"v_xor_b32 v{vSec}, 64, v{v}", wr=[vSec], rd=[v]); s.valu(f"v_add_u32 v{vSec}, {step-1024}, v{vSec}", wr=[vSec], rd=[vSec])
                else: s.valu(f"v_add_u32 v{vSec}, {step-1024}, v{v}", wr=[vSec], rd=[v])
                self.sec = v
            s.salu(f"s_add_u32 m0, s{sLw}, {b*8192}", swr=["m0"])
            if imm: s.salu(f"s_add_u32 s{sT0}, s{base}, {imm}")
            else: s.salu("s_nop 0")
            self.so = f"s{sT0}" if imm else f"s{base}"
            self.utok[u] = dma2(s, v, r, self.so, False)
        def second(): self.utok[u] = dma2(s, vSec, r, self.so, True)
        return [first, second]

def setup_main(s, half):
    o = Ops(s); V, S = o.V, o.S
    L = vLane; a, b = vTmp, vTmp2; ch = half
    r, c, q, t, j15 = vT, vT+1, vT+2, vT+3, vT+4
    srd(s, R_B1, S_B1, F*2)
    tokb = s.vload("buffer_load_ushort", vBiasS, 1, vBias, R_B1, f"s{sU0}")
    V(f"v_bfe_u32 v{r}, v{L}, 2, 2", [r], [L]); V(f"v_and_b32 v{c}, 3, v{L}", [c], [L]); V(f"v_lshrrev_b32 v{q}, 4, v{L}", [q], [L])
    V(f"v_and_b32 v{j15}, 15, v{L}", [j15], [L])
    V(f"v_lshl_add_u32 v{t}, v{q}, 3, v{r}", [t], [q, r])
    V(f"v_lshlrev_b32 v{a}, 3, v{c}", [a], [c]); V(f"v_lshl_add_u32 v{vW1dR}, v{t}, 7, v{a}", [vW1dR], [t, a])
    V(f"v_and_b32 v{a}, 1, v{q}", [a], [q]); V(f"v_lshrrev_b32 v{b}, 1, v{r}", [b], [r]); V(f"v_lshl_add_u32 v{b}, v{a}, 1, v{b}", [b], [a, b])
    if ch: V(f"v_xor_b32 v{b}, 2, v{b}", [b], [b])
    V(f"v_lshl_add_u32 v{vW1dR}, v{b}, 5, v{vW1dR}", [vW1dR], [b, vW1dR]); V(f"v_xor_b32 v{vW1dR+3}, 32, v{vW1dR}", [vW1dR+3], [vW1dR])
    V(f"v_and_b32 v{b}, 1, v{c}", [b], [c]); V(f"v_lshl_add_u32 v{b}, v{b}, 1, v{a}", [b], [b, a])
    if ch: V(f"v_xor_b32 v{b}, 1, v{b}", [b], [b])
    V(f"v_lshlrev_b32 v{b}, 4, v{b}", [b], [b]); V(f"v_lshl_add_u32 v{vW1sR}, v{t}, 6, v{b}", [vW1sR], [t, b])
    V(f"v_lshrrev_b32 v{b}, 1, v{c}", [b], [c]); V(f"v_lshl_add_u32 v{vW1sR}, v{b}, 3, v{vW1sR}", [vW1sR], [b, vW1sR])
    for k in (1, 2):
        for base in (vW1dR, vW1dR+3, vW1sR): V(f"v_add_u32 v{base+k}, {65536*k}, v{base}", [base+k], [base])
    V(f"v_lshrrev_b32 v{b}, 1, v{j15}", [b], [j15]); V(f"v_xor_b32 v{b}, v{b}, v{q}", [b], [b, q]); V(f"v_lshlrev_b32 v{b}, 4, v{b}", [b], [b])
    V(f"v_lshl_add_u32 v{b}, v{j15}, 7, v{b}", [b], [j15, b]); V(f"v_add_u32 v{b}, s{sLx}, v{b}", [b], [b])
    V(f"v_xor_b32 v{t}, 64, v{b}", [t], [b])
    for sp, src in ((0, b), (1, t)):
        V(f"v_add_u32 v{vXR+sp}, {XWIN0}, v{src}", [vXR+sp], [src]); V(f"v_add_u32 v{vXR+2+sp}, {XWIN0+65536}, v{src}", [vXR+2+sp], [src])
    V(f"v_lshlrev_b32 v{vL16}, 4, v{L}", [vL16], [L])
    V(f"v_mov_b32 v{vGA}, 0x{f2u(GA):08x}", [vGA]); S(f"s_mov_b32 s{sGB}, 0x{f2u(GB):08x}")
    S(f"s_lshr_b32 s{sPC}, s{sFS}, 2"); S(f"s_bfe_u32 s{sE2}, s{sFS}, 0x10001"); S(f"s_xor_b32 s{sT1}, s{sE}, 1"); S(f"s_lshl_b32 s{sS0}, s{sT1}, 8")
    if half == 0:
        S(f"s_mul_i32 s{sT1}, s{sRG}, {32*9216}"); S(f"s_add_u32 s{sW1s}, s{sU0}, s{sT1}")
        S(f"s_lshl_b32 s{sT1}, s{sS0}, 1"); S(f"s_add_u32 s{sW1s}, s{sW1s}, s{sT1}")
        V(f"v_lshrrev_b32 v{t}, 2, v{L}", [t], [L]); V(f"v_mul_u32_u24 v{vW1s}, 9216, v{t}", [vW1s], [t]); V(f"v_mul_u32_u24 v{vW2c}, 1152, v{t}", [vW2c], [t])
        V(f"v_lshrrev_b32 v{b}, 5, v{L}", [b], [L]); V(f"v_xor_b32 v{b}, v{b}, v{c}", [b], [b, c])
        V(f"v_lshl_add_u32 v{vW1s}, v{b}, 4, v{vW1s}", [vW1s], [b, vW1s])
        V(f"v_bfe_u32 v{b}, v{L}, 1, 2", [b], [L]); V(f"v_xor_b32 v{b}, v{b}, v{q}", [b], [b, q])
        V(f"v_lshl_add_u32 v{vW2}, v{b}, 5, v{vW2}", [vW2], [b, vW2])
        V(f"v_and_b32 v{b}, 1, v{b}", [b], [b]); V(f"v_lshl_add_u32 v{vW2c}, v{b}, 5, v{vW2c}", [vW2c], [b, vW2c])
        V(f"v_and_b32 v{b}, 1, v{L}", [b], [L]); V(f"v_lshl_add_u32 v{vW2}, v{b}, 4, v{vW2}", [vW2], [b, vW2])
        V(f"v_lshl_add_u32 v{vW2c}, v{b}, 4, v{vW2c}", [vW2c], [b, vW2c])
    V(f"v_add_u32 v{vHB[0]}, s{sLw}, v{vL16}", [vHB[0]], [vL16])
    for k in (1, 2): V(f"v_add_u32 v{vHB[k]}, {65536*k}, v{vHB[0]}", [vHB[k]], [vHB[0]])
    V(f"v_lshlrev_b32 v{vHW8}, 4, v{j15}", [vHW8], [j15]); V(f"v_lshl_add_u32 v{vHW8}, v{a}, 10, v{vHW8}", [vHW8], [a, vHW8])
    V(f"v_lshrrev_b32 v{b}, 1, v{q}", [b], [q]); V(f"v_lshl_add_u32 v{vHW8}, v{b}, 8, v{vHW8}", [vHW8], [b, vHW8])
    V(f"v_add_u32 v{vHW8}, s{sLw}, v{vHW8}", [vHW8], [vHW8]); V(f"v_add_u32 v{vHW8}, {HBASE + 8*8192 + ch*512}, v{vHW8}", [vHW8], [vHW8])
    V(f"v_lshrrev_b32 v{t}, 2, v{L}", [t], [L]); V(f"v_lshlrev_b32 v{b}, 3, v{c}", [b], [c]); V(f"v_lshl_add_u32 v{vW2R}, v{t}, 7, v{b}", [vW2R], [t, b])
    V(f"v_bfe_u32 v{b}, v{L}, 3, 2", [b], [L]); V(f"v_xor_b32 v{b}, {2*ch+1}, v{b}", [b], [b]); V(f"v_xor_b32 v{b}, s{sE2}, v{b}", [b], [b])
    V(f"v_lshl_add_u32 v{vW2R}, v{b}, 5, v{vW2R}", [vW2R], [b, vW2R]); V(f"v_xor_b32 v{vW2R+3}, 32, v{vW2R}", [vW2R+3], [vW2R])
    for dl in range(2):
        for k in (1, 2): V(f"v_add_u32 v{vW2R+3*dl+k}, {65536*k}, v{vW2R+3*dl}", [vW2R+3*dl+k], [vW2R+3*dl])
    t0, t1, t2, t3 = sU0, sU1, sSpin, sP8
    srd(s, R_W2, S_W2, F*D*2); srd(s, R_WS, S_WS, WS_BYTES)
    srd(s, R_B2, S_B2, D*2); srd(s, R_OUT, S_OUT, M*D*2)
    for k in range(1, 4): S(f"s_add_u32 s{sPc+k}, s{sPC}, {k}"); S(f"s_and_b32 s{sPc+k}, s{sPc+k}, 3")
    S(f"s_mov_b32 s{sPc+4}, s{sPC}")
    S(f"s_lshr_b32 s{sClr}, s{sFS}, 1")
    if half == 0:
        S(f"s_mul_i32 s{t0}, s{sClr}, 576")
        S(f"s_mul_i32 s{t3}, s{sE}, 640")
        for ti in range(3):
            if ti == 0: S(f"s_mul_i32 s{t1}, s{sE}, 320")
            elif ti == 1: S(f"s_xor_b32 s{t1}, s{sE}, 1"); S(f"s_mul_i32 s{t1}, s{t1}, 320")
            if ti < 2:
                S(f"s_add_u32 s{t1}, s{t1}, s{t0}")
                S(f"s_lshl_b32 s{t2}, s{sRG}, 5"); S(f"s_add_u32 s{t2}, s{t2}, s{t1}"); S(f"s_mul_i32 s{sC3+ti}, s{t2}, 1152")
                S(f"s_lshl_b32 s{t2}, s{sRG}, 4"); S(f"s_add_u32 s{t1}, s{t1}, s{t2}")
            else:
                S(f"s_and_b32 s{t1}, s{sRG}, 1"); S(f"s_xor_b32 s{t2}, s{t1}, s{sE}"); S(f"s_lshl_b32 s{t2}, s{t2}, 5")
                S(f"s_add_u32 s{t2}, s{t2}, s{t0}"); S(f"s_add_u32 s{t2}, s{t2}, 256"); S(f"s_mul_i32 s{sC3+ti}, s{t2}, 1152")
                S(f"s_lshl_b32 s{t1}, s{t1}, 4"); S(f"s_lshr_b32 s{t2}, s{sRG}, 1"); S(f"s_xor_b32 s{t2}, s{t2}, s{sE}"); S(f"s_lshl_b32 s{t2}, s{t2}, 5")
                S(f"s_add_u32 s{t1}, s{t1}, s{t2}"); S(f"s_add_u32 s{t1}, s{t1}, s{t0}"); S(f"s_add_u32 s{t1}, s{t1}, 256")
            S(f"s_mul_i32 s{t1}, s{t1}, 1152"); S(f"s_add_u32 s{t1}, s{t1}, s{t3}")
            for pos in range(1, 5): S(f"s_lshl_b32 s{t2}, s{sPc+pos}, 7"); S(f"s_add_u32 s{sW2+4*ti+pos-1}, s{t1}, s{t2}")
        S(f"s_lshl_b32 s{t2}, s{sE}, 6"); S(f"s_add_u32 s{t2}, s{t2}, 512")
        for ti in range(3): S(f"s_add_u32 s{sC3+ti}, s{sC3+ti}, s{t2}")
    S(f"s_lshl_b32 s{t0}, s{sMT}, 1"); S(f"s_add_u32 s{t0}, s{t0}, s{sE}"); S(f"s_mul_i32 s{t0}, s{t0}, 72")
    S(f"s_lshl_b32 s{t3}, s{sClr}, 10")
    S(f"s_add_u32 s{t1}, s{t0}, s{sW}"); S(f"s_add_u32 s{t2}, s{t1}, 64"); S(f"s_lshl_b32 s{t2}, s{t2}, 13"); S(f"s_add_u32 s{sPc}, s{t2}, s{t3}")
    S(f"s_add_u32 s{t1}, s{t1}, s{sW}")
    S(f"s_lshl_b32 s{t2}, s{t1}, 13"); S(f"s_add_u32 s{t2}, s{t2}, s{t3}")
    for pos in range(1, 5): S(f"s_lshl_b32 s{sPc+pos}, s{sPc+pos}, 17"); S(f"s_add_u32 s{sPc+pos}, s{sPc+pos}, s{t2}")
    S(f"s_lshl_b32 s{sDt+1}, s{sE2}, 13"); S(f"s_xor_b32 s{sDt}, s{sDt+1}, 8192")
    S(f"s_lshl_b32 s{t2}, s{sPC}, 4"); S(f"s_add_u32 s{t1}, s{t1}, s{t2}"); S(f"s_add_u32 s{t1}, s{t1}, s{sE2}"); S(f"s_lshl_b32 s{t1}, s{t1}, 13")
    for k in range(1, 4):
        S(f"s_sub_u32 s{t2}, s{sPC}, {k}"); S(f"s_and_b32 s{t2}, s{t2}, 3"); S(f"s_lshl_b32 s{t2}, s{t2}, 11"); S(f"s_add_u32 s{sCo+k}, s{t1}, s{t2}")
    S(f"s_xor_b32 s{t2}, s{t3}, 1024"); S(f"s_add_u32 s{sCo}, s{t1}, s{t2}")
    S(f"s_add_u32 s{t0}, s{t0}, s{sClr}"); S(f"s_add_u32 s{t0}, s{t0}, 64"); S(f"s_lshl_b32 s{sP8}, s{t0}, 13")
    S(f"s_lshl_b32 s{t0}, s{sMT}, 4"); S(f"s_add_u32 s{t0}, s{t0}, s{sFS}"); S(f"s_xor_b32 s{t1}, s{t0}, 1")
    S(f"s_mul_i32 s{t0}, s{t0}, {9*8192}"); S(f"s_add_u32 s{sHXw}, s{t0}, {HX}")
    S(f"s_mul_i32 s{t1}, s{t1}, {9*8192}"); S(f"s_add_u32 s{t1}, s{t1}, {HX}"); S(f"s_add_u32 s{sHXr}, s{t1}, s{sLw}")
    if cfg.noload:
        for k in range(4): S(f"s_mov_b32 s{sCo+k}, {OOB}")
        S(f"s_mov_b32 s{sP8}, {OOB}")
    S(f"s_mov_b32 s{sMask}, 0xffff0000")
    if half == 1:
        S(f"s_lshl_b32 s{t0}, s{sMT}, 14"); S(f"s_add_u32 s{t0}, s{t0}, {FLG}")
        S(f"s_cmp_eq_u32 s{sW}, 4"); S(f"s_cselect_b32 s{t0}, s{t0}, {OOB}"); S(f"s_cselect_b32 s{sTgt8}, 8, 0"); S(f"s_cselect_b32 s{sTgt1}, 1, 0")
        S(f"s_lshl_b32 s{t1}, s{sE}, 10"); S(f"s_add_u32 s{sCnt}, s{t0}, s{t1}")
        S(f"s_mul_i32 s{t1}, s{sFS}, 768"); S(f"s_add_u32 s{t1}, s{t1}, 4096"); S(f"s_add_u32 s{sHfR}, s{t0}, s{t1}")
        S(f"s_xor_b32 s{t1}, s{sFS}, 1"); S(f"s_mul_i32 s{t1}, s{t1}, 768"); S(f"s_add_u32 s{t1}, s{t1}, 4096"); S(f"s_add_u32 s{sHfW}, s{t0}, s{t1}")
        S(f"s_cmp_eq_u32 s{sFS}, 0"); S(f"s_cselect_b32 s{sT1}, s{t0}, {OOB}")
        S(f"s_lshl_b32 s{t0}, s{sMT}, 2"); S(f"s_add_u32 s{t0}, s{t0}, s{sRG}")
        S(f"s_mul_i32 s{t0}, s{t0}, {41*128}"); S(f"s_mul_i32 s{t1}, s{sFS}, {288*1152}"); S(f"s_add_u32 s{sPF}, s{t0}, s{t1}")
        S(f"s_lshl_b32 s{t0}, s2, 2"); S(f"s_add_u32 s{t0}, s{t0}, s{sRG}"); S(f"s_mul_i32 s{sW1s}, s{t0}, {81*64}")
        S(f"s_and_b32 s{sW1s}, s{sW1s}, 0xffffff80")
        V(f"v_lshlrev_b32 v{t}, 7, v{L}", [t], [L]); V(f"v_cmp_gt_u32 vcc, 41, v{L}", rd=[L], swr=["vcc"]); V(f"v_mov_b32 v{b}, {OOB}", [b]); S("s_nop 0")
        V(f"v_cndmask_b32 v{vPF}, v{b}, v{t}, vcc", [vPF], [t, b])
    V(f"v_lshrrev_b32 v{b}, 3, v{L}", [b], [L]); V(f"v_and_b32 v{t}, 7, v{L}", [t], [L])
    S(f"s_lshl_b32 s{t0}, s{sW}, 7"); V(f"v_lshl_add_u32 v{b}, v{b}, 10, s{t0}", [b], [b]); V(f"v_lshl_add_u32 v{vP8off}, v{t}, 4, v{b}", [vP8off], [t, b])
    V(f"v_mul_u32_u24 v{vOutM}, 1152, v{j15}", [vOutM], [j15]); V(f"v_lshlrev_b32 v{b}, 3, v{q}", [b], [q]); V(f"v_add_u32 v{vOutM}, v{vOutM}, v{b}", [vOutM], [vOutM, b])
    S(f"s_lshl_b32 s{t0}, s{sPC}, 7"); S(f"s_lshl_b32 s{t1}, s{sE2}, 5"); S(f"s_add_u32 s{t0}, s{t0}, s{t1}"); S(f"s_add_u32 s{t0}, s{t0}, {64*ch}")
    S(f"s_mul_i32 s{t1}, s{sE}, 640"); S(f"s_add_u32 s{t0}, s{t0}, s{t1}")
    S(f"s_add_u32 s{sOutM}, s{sXo}, s{t0}")
    hb0 = s.vload("buffer_load_dwordx2", vB2m, 2, b, R_B2, f"s{t0}")
    S(f"s_and_b32 s{t0}, s{sW}, 1"); S(f"s_lshl_b32 s{t0}, s{t0}, 3")
    V(f"v_add_u32 v{t}, s{t0}, v{t}", [t], [t]); V(f"v_lshrrev_b32 v{b}, 5, v{L}", [b], [L]); V(f"v_lshl_add_u32 v{t}, v{b}, 4, v{t}", [t], [t, b])
    V(f"v_mul_u32_u24 v{t}, 1152, v{t}", [t], [t]); V(f"v_lshlrev_b32 v{b}, 2, v{a}", [b], [a]); V(f"v_add_u32 v{vOut8}, v{t}, v{b}", [vOut8], [t, b])
    S(f"s_lshr_b32 s{t0}, s{sClr}, 2"); S(f"s_lshl_b32 s{t0}, s{t0}, 5"); S(f"s_lshl_b32 s{t1}, s{sE}, 6"); S(f"s_add_u32 s{t0}, s{t0}, s{t1}")
    S(f"s_lshr_b32 s{t1}, s{sW}, 1"); S(f"s_lshl_b32 s{t1}, s{t1}, 3"); S(f"s_add_u32 s{t0}, s{t0}, s{t1}"); S(f"s_add_u32 s{t0}, s{t0}, 512")
    hb1 = s.vload("buffer_load_dword", vB28, 1, b, R_B2, f"s{t0}")
    S(f"s_and_b32 s{t1}, s{sClr}, 3"); S(f"s_lshl_b32 s{t1}, s{t1}, 5"); S(f"s_lshl_b32 s{sOut8}, s{sMT}, 7"); S(f"s_add_u32 s{t1}, s{t1}, s{sOut8}")
    S(f"s_mul_i32 s{t1}, s{t1}, 1152"); S(f"s_add_u32 s{sOut8}, s{t1}, s{t0}")
    V(f"v_and_b32 v{t}, 8, v{L}", [t], [L]); V(f"v_cmp_eq_u32 vcc, 0, v{t}", rd=[t], swr=["vcc"]); V(f"v_mov_b32 v{b}, {OOB}", [b]); S("s_nop 0")
    V(f"v_cndmask_b32 v{vOut8}, v{b}, v{vOut8}, vcc", [vOut8], [b, vOut8])
    if half == 1: S(f"s_mov_b32 s{sClr}, s{sT1}")
    S(f"s_lshl_b32 s{t0}, s{sD0}, 2"); S(f"s_add_u32 s{t0}, s{t0}, {BIAS + 128*ch}")
    S(f"s_lshl_b32 s{t1}, s{sS0}, 2"); S(f"s_add_u32 s{t1}, s{t1}, {BIAS + 32*ch}")
    V(f"v_lshl_add_u32 v{vBias}, v{q}, 4, s{t0}", [vBias], [q])
    V(f"v_lshrrev_b32 v{t}, 1, v{q}", [t], [q]); V(f"v_lshl_add_u32 v{t}, v{t}, 4, s{t1}", [t], [t])
    V(f"v_lshlrev_b32 v{c}, 2, v0", [c]); V(f"v_add_u32 v{c}, {BIAS}, v{c}", [c], [c])
    s.wait(tokb)
    V(f"v_lshlrev_b32 v{b}, 16, v{vBiasS}", [b], [vBiasS])
    tb = s.ds_write("ds_write_b32", c, b, 1, 0)
    V(f"v_lshl_add_u32 v{vBiasS}, v{a}, 6, v{t}", [vBiasS], [a, t])
    return tb, (hb0, hb1)

class W:
    def __init__(self, f, c): self.f, self.c = f, c
    def __call__(self): return self.f()
def gelu_ops(s, regs, after):
    ops = []; n = len(regs); tc = float(cfg.tcost)
    def mk(k, e):
        x, t = regs[e], vT + e % 8
        tx, wr, rd, tr = [(f"v_mul_f32 v{t}, v{x}, v{x}", [t], [x], 0), (f"v_fma_f32 v{t}, v{t}, s{sGB}, v{vGA}", [t], [t, vGA], 0),
                (f"v_mul_f32 v{t}, v{x}, v{t}", [t], [x, t], 0), (f"v_exp_f32 v{t}, v{t}", [t], [t], 1),
                (f"v_add_f32 v{t}, 1.0, v{t}", [t], [t], 0), (f"v_rcp_f32 v{t}, v{t}", [t], [t], 1),
                (f"v_mul_f32 v{x}, v{x}, v{t}", [x], [x, t], 0)][k]
        return W(lambda: s.valu(tx, wr=wr, rd=rd, trans=bool(tr)), tc if tr else 1.0)
    if cfg.skew:
        for t in range(n + 7):
            for k in (6, 3, 4, 2, 5, 1, 0):
                if 0 <= t - k < n: ops.append(mk(k, t - k))
            if 0 <= t - 7 < n: ops += after.get(t - 7, [])
    else:
        for g in range(0, n, 4):
            for k in range(7):
                for e in range(g, g+4): ops.append(mk(k, e))
            for e in range(g, g+4): ops += after.get(e, [])
    return ops
def cvt(s, d, a, b):
    return lambda: s.valu(f"v_cvt_pk_bf16_f32 v{d}, v{a}, v{b}", wr=[d], rd=[a, b])

def body(p, half, PLAN):
    BAR, ISSUE, BLK, LAND = PLAN
    s = Stream(p); ool = Stream(); ch = half
    utok = {}
    iss = Issuer(s, half, BLK, utok)
    def issue_all(bar):
        for u in ISSUE[bar]:
            for f in iss.pieces(u): f()
    if half == 1: s.valu(f"v_xor_b32 v{vW1d}, 64, v{vW1d}", wr=[vW1d], rd=[vW1d])
    issue_all(-3)
    tb, hb2 = setup_main(s, half)
    if cfg.stamps: s.valu(f"v_writelane_b32 v{vStamp}, s98, 0", wr=[vStamp])
    stamp(s, "setup")
    issue_all(-2)
    pfjobs = [(I(cfg.pf1), lambda: s.vload("buffer_load_dword", vSec, 1, vPF, R_W1, f"s{sW1s}")),
              (I(cfg.pf2), lambda: s.vload("buffer_load_dword", vSec, 1, vPF, R_W2, f"s{sPF}"))] if half == 1 else []
    for n, f in pfjobs:
        if n == -1: f()
    if I(cfg.prio) == half: s.salu("s_setprio 1")

    Hreg = {(k, mt): vXF + 8*k + 4*mt for k in range(18) for mt in range(2)}
    def acc(pos, dl, mt):
        if pos == 3 and INS3: return (vT, vT+4, vW1d, vBias)[2*dl + mt]
        return {0: vXR, 1: vS[1], 2: vS[0], 3: vS[1], 4: vS[0]}[pos] + 8*dl + 4*mt

    fill = {}; cur = [-1]; need_bar = {}; need_mf = {}; prebar = {}
    def F(n, i, f):
        assert 0 <= n < NST and 0 <= i < ST[n].nm, (n, i)
        fill.setdefault((n, i), []).append(f)
    def spread(ops, n0, i0, n1, i1=None):
        gaps = [(n, i) for n in range(n0, n1+1) for i in range(ST[n].nm)
                if not (n == n0 and i < i0) and not (n == n1 and i1 is not None and i > i1)]
        k = 0; cost = [getattr(o, "c", 1.0) for o in ops]; ctot = sum(cost); cdone = 0
        for gi, (n, i) in enumerate(gaps):
            while k < len(ops) and cdone + cost[k]/2 <= ctot*(gi+1)/len(gaps) + 1e-9: F(n, i, ops[k]); cdone += cost[k]; k += 1
        assert k == len(ops)
    def hold(): return [None]
    def before_bar(n, h): need_bar.setdefault(min(b for b in BAR if b >= n), []).append(h)
    def before_mfma(n, i, h): need_mf.setdefault((n, i), []).append(h)
    for n, f in pfjobs:
        if n >= 0: F(n, 0, f)

    if half == 1:
        hclr = hold()
        def clr():
            s.valu(f"v_lshlrev_b32 v{vTmp}, 8, v{vLane}", wr=[vTmp], rd=[vLane]); s.valu(f"v_mov_b32 v{vTmp2}, {OOB}", wr=[vTmp2])
            s.valu(f"v_mov_b32 v{vFv}, 0", wr=[vFv])
            hclr[0] = s.vstore("buffer_store_dword", vFv, 1, vTmp, R_WS, f"s{sClr}", flags=cfg.st_flags)
            s.valu(f"v_cmp_eq_u32 vcc, 0, v{vLane}", rd=[vLane], swr=["vcc"]); s.salu("s_nop 1")
            s.valu(f"v_cndmask_b32 v{vOne}, v{vTmp2}, v{vFv}, vcc", wr=[vOne], rd=[vTmp2, vFv])
        assert all(u[0] != "x" for b in ISSUE if b >= I(cfg.clr_stage) for u in ISSUE[b])
        F(I(cfg.clr_stage), 7, clr)
        def arrive():
            srd(s, R_DBG, S_DBG, 256)
            s.salu(f"s_lshl_b32 s{sU0}, s{sMT}, 2")
            s.salu(f"s_cmp_lg_u32 s{sW}, 4"); s.salu(f"s_cselect_b32 s{sU0}, 1024, s{sU0}")
            s.salu(f"s_cmp_lg_u32 s{sFS}, 0"); s.salu(f"s_cselect_b32 s{sU0}, 1024, s{sU0}")
            s.wait(hclr[0])
            s.valu(f"v_mov_b32 v{vFv}, 1", wr=[vFv])
            s.vstore("buffer_atomic_add", vFv, 1, vOne, R_DBG, f"s{sU0}")
        F(I(cfg.arr_stage), 2, arrive)

    def w2cr():
        V = lambda t_, wr, rd: s.valu(t_, wr=wr, rd=rd); a_, b_ = vTmp, vTmp2
        V(f"v_lshrrev_b32 v{a_}, 2, v{vLane}", [a_], [vLane]); V(f"v_and_b32 v{b_}, 3, v{vLane}", [b_], [vLane]); V(f"v_lshlrev_b32 v{b_}, 3, v{b_}", [b_], [b_])
        V(f"v_lshl_add_u32 v{a_}, v{a_}, 6, v{b_}", [a_], [a_, b_]); V(f"v_bfe_u32 v{b_}, v{vLane}, 4, 1", [b_], [vLane])
        if ch: V(f"v_xor_b32 v{b_}, 1, v{b_}", [b_], [b_])
        V(f"v_lshl_add_u32 v{vW2cR}, v{b_}, 5, v{a_}", [vW2cR], [a_, b_])
        for k in (1, 2): V(f"v_add_u32 v{vW2cR+k}, {65536*k}, v{vW2cR}", [vW2cR+k], [vW2cR])
    F(35, 7, w2cr)
    hst = [hold(), hold(), hold()]
    biasrd = {}
    for j in range(5):
        for g in range(4 if j < 4 else 2):
            h = hold()
            def rd(h=h, g=g, j=j):
                if j < 4: h[0] = s.ds_read("ds_read_b128", vS[j % 2]+4*g, 4, vBias, j*256 + (g % 2)*64)
                else: h[0] = s.ds_read("ds_read_b128", vS[0]+4*g, 4, vBiasS, 0)
            biasrd[(j, g)] = rd; before_mfma(9*j, 0, h)
    for g in range(4): F(8, 2*g, biasrd[(1, g)])
    gw0, gw1, gw2 = IL(cfg.gwin)
    for j in range(4):
        S = vS[j % 2]; after = {}
        for mt in range(2):
            h = hold(); kap = 2*j + ch
            def wr(h=h, mt=mt, j=j, kap=kap):
                assert cur[0] >= HWSTAGE[j], (j, cur[0])
                w_, o_ = win((HB+kap)*8192 + mt*1024)
                h[0] = s.ds_write("ds_write_b128", vHB[w_], vP+4*mt, 4, o_)
            def gw(mt=mt, j=j, kap=kap):
                s.salu(f"s_add_u32 s{sT1}, s{sHXw}, {kap*8192 + mt*1024}" if not cfg.nohst else f"s_mov_b32 s{sT1}, {OOB}")
                hst[0 if j < 3 else 1][0] = s.vstore("buffer_store_dwordx4", vP+4*mt, 4, vHB[0], R_WS, f"s{sT1}", flags=cfg.st_flags)
            before_bar(min(9*(j+2), 36) if j < 3 else B0+1, h)
            for q in range(4):
                after.setdefault(8*mt+2*q+1, []).append(cvt(s, vP+4*mt+q, S+8*mt+2*q, S+8*mt+2*q+1))
                if q % 2 == 1 and (j+2, 2*mt + q//2) in biasrd: after[8*mt+2*q+1].append(biasrd[(j+2, 2*mt + q//2)])
            after[8*mt+7] += [W(wr, 2.0), W(gw, 2.0)]
        ops = gelu_ops(s, [S+i for i in range(16)], after)
        if j < 3: spread(ops, 9*(j+1), gw0, 9*(j+1)+gw1, gw2)
        else: spread(ops, 36, gw0, *IL(cfg.g3end))
    S = vS[0]
    ops = gelu_ops(s, [S+i for i in range(8)], {2*q+1: [cvt(s, vP+q, S+2*q, S+2*q+1)] for q in range(4)})
    for i in range(2):
        ops.append(lambda i=i: s.valu(f"v_permlane16_swap_b32 v{vP+i}, v{vP+2+i}", wr=[vP+i, vP+2+i], rd=[vP+i, vP+2+i]))
    h = hold()
    def wr8(h=h):
        assert cur[0] >= HWSTAGE[4]
        h[0] = s.ds_write("ds_write_b128", vHW8, vP, 4, 0)
    def gw8():
        s.salu(f"s_sub_u32 s{sT1}, s{sHXw}, {HBASE}" if not cfg.nohst else f"s_mov_b32 s{sT1}, {OOB}")
        hst[2][0] = s.vstore("buffer_store_dwordx4", vP, 4, vHW8, R_WS, f"s{sT1}", flags=cfg.st_flags)
    ops.append(wr8); ops.append(gw8); before_bar(HREAD[8], h)
    spread(ops, *IL(cfg.g4win))
    hrd = {}
    for k in range(18):
        n = HREAD[k]; blk = HB + k if k < 9 else BLK[("h", k)]
        for mt in range(2):
            h = hold(); hrd[(k, mt)] = h
            def rd(h=h, k=k, mt=mt, blk=blk):
                w_, o_ = win(blk*8192 + mt*1024)
                h[0] = s.ds_read("ds_read_b128", Hreg[(k, mt)], 4, vHB[w_], o_)
            F(n, 1 + 4*(k % 2) + 2*mt, rd); before_bar(n+2, h)

    nslow = [0]
    def check(test, tok, reload):
        nslow[0] += 1; k = f"{half}_{nslow[0]}"
        assert tok is not None or cfg.nopoll
        s.wait(tok); test(s)
        s.salu(f"s_cbranch_scc1 L_slow_{k}"); s.raw(f"L_back_{k}:")
        ool.raw(f"L_slow_{k}:"); ool.salu(f"s_mov_b32 s{sSpin}, {SPIN}")
        ool.raw(f"L_spin_{k}:")
        if I(cfg.backoff): ool.salu(f"s_sleep {I(cfg.backoff)}")
        reload(ool); ool.wait_all(l=False); test(ool)
        ool.salu(f"s_cbranch_scc0 L_back_{k}")
        ool.salu(f"s_sub_u32 s{sSpin}, s{sSpin}, 1"); ool.salu(f"s_cmp_lg_u32 s{sSpin}, 0")
        ool.salu(f"s_cbranch_scc1 L_spin_{k}"); ool.salu(f"s_branch L_back_{k}")
    def below(tgt):
        def test(st):
            st.valu(f"v_readfirstlane_b32 s{sU1}, v{vSec}", rd=[vSec], swr=[sU1]); st.salu("s_nop 3")
            st.salu(f"s_cmp_lt_u32 s{sU1}, {tgt}")
        return test
    def poll(st, base, idx):
        if cfg.nopoll:
            st.valu(f"v_mov_b32 v{vSec}, 16", wr=[vSec]); return None
        return st.vload("buffer_load_dword", vSec, 1, vOne, R_WS, f"s{base}", off=256*idx, flags=cfg.poll_flags)
    def gate(base, idx, tgt, nb, name):
        if half != 1: return
        hp = hold()
        F(nb - I(cfg.polllead), 2, lambda: hp.__setitem__(0, poll(s, base, idx)))
        def chk():
            stamp(s, f"{name}0"); check(below(f"s{tgt}"), hp[0], lambda st: poll(st, base, idx)); stamp(s, f"{name}1")
        prebar.setdefault(nb, []).append(chk)
    def publish(base, idx):
        def go():
            if half == 1 and not cfg.nopub: s.vstore("buffer_atomic_add", vFv, 1, vOne, R_WS, f"s{base}", off=256*idx)
        return go
    if half == 1:
        hc = hold()
        def ld_cnt(st):
            st.salu(f"s_lshl_b32 s{sU0}, s{sMT}, 2")
            return st.vload("buffer_load_dword", vSec, 1, vOne, R_DBG, f"s{sU0}", flags=cfg.poll_flags)
        F(I(cfg.cchk) - 4, 2, lambda: hc.__setitem__(0, ld_cnt(s)))
        prebar.setdefault(I(cfg.cchk), []).append(lambda: check(below("1"), hc[0], ld_cnt))
    for lv, (pb, cb) in enumerate(zip(IL(cfg.hpub), IL(cfg.hchk))):
        assert pb in BAR and cb in BAR and I(cfg.cchk) < pb < cb
        before_bar(pb, hst[lv]); F(pb, 1, publish(sHfW, lv)); gate(sHfR, lv, sTgt1, cb, f"h{lv}")
    last_stage = {}
    for a in ST[B0:]:
        for (pos, dl, k, u, sl) in a.parts: last_stage[(pos, dl)] = a.n
    stok = {}
    def store_ops(pos, dl):
        ops = []; stok.setdefault(pos, hold())
        for mt in range(2):
            for e in range(2): ops.append(cvt(s, vP+4*dl+2*mt+e, acc(pos, dl, mt)+2*e, acc(pos, dl, mt)+2*e+1))
        def st_():
            if cfg.nostore: s.salu(f"s_mov_b32 s{sT1}, {OOB}")
            elif pos == 0: s.salu(f"s_mov_b32 s{sT1}, s{sPc}")
            else: s.salu(f"s_add_u32 s{sT1}, s{sPc+pos}, s{sDt+dl}")
            stok[pos][0] = s.vstore("buffer_store_dwordx4", vP+4*dl, 4, vL16, R_WS, f"s{sT1}", flags=cfg.st_flags)
        ops.append(st_)
        return ops
    sts = IL(cfg.stst)
    for (pos, dl), n in zip([(1, 0), (1, 1), (2, 0), (2, 1), (0, 0), (3, 0), (3, 1)], sts):
        assert n > last_stage[(pos, dl)]
        spread(store_ops(pos, dl), n, 1, n, min(5, ST[n].nm-1))
    assert (INS3 or sts[1] < 64) and sts[3] < LAST0 and sts == sorted(sts)
    n8 = last_stage[(4, 0)]
    spread(store_ops(4, 0), n8, 6, n8+1, 2)
    pA, cA, pF = I(cfg.pubA), I(cfg.chkA), I(cfg.pubF)
    assert pA in BAR and cA in BAR and sts[4] < pA < cA
    before_bar(pA, stok[0]); F(pA, 1, publish(sCnt, 0)); gate(sCnt, 0, sTgt8, cA, "cA")
    if pF in BAR: before_bar(pF, stok[4]); F(pF, 0, publish(sCnt, 2))
    LAND_OF = {8: vXR, 1: Hreg[(0, 0)], 2: Hreg[(1, 0)], 3: Hreg[(2, 0)], 0: vXR+4}
    ptk = {}
    def piece(k, e):
        def go():
            if k == 8: ptk[k] = s.vload("buffer_load_dwordx4", LAND_OF[k], 4, vP8off, R_WS, f"s{sP8}", flags=cfg.ld_flags)
            else: ptk[k] = s.vload("buffer_load_dwordx4", LAND_OF[k]+4*e, 4, vL16, R_WS, f"s{sCo+k}", off=1024*e, flags=cfg.ld_flags)
        return go
    def load_k(k):
        for e in range(1 if k in (0, 8) else 2): piece(k, e)()
    SUM = acc(4, 1, 0)
    def add_k(k):
        if k == 8: return step8()
        s.wait(ptk[k])
        for v_ in range(LAND_OF[k], LAND_OF[k] + (4 if k == 0 else 8)):
            r = (v_ - LAND_OF[k]) % 4
            s.valu(f"v_lshlrev_b32 v{vTmp}, 16, v{v_}", wr=[vTmp], rd=[v_])
            s.valu(f"v_and_b32 v{v_}, s{sMask}, v{v_}", wr=[v_], rd=[v_])
            s.valu(f"v_add_f32 v{SUM+2*r}, v{SUM+2*r}, v{vTmp}", wr=[SUM+2*r], rd=[SUM+2*r, vTmp])
            s.valu(f"v_add_f32 v{SUM+2*r+1}, v{SUM+2*r+1}, v{v_}", wr=[SUM+2*r+1], rd=[SUM+2*r+1, v_])
    def step8():
        V = lambda text, wr, rd: s.valu(text, wr=wr, rd=rd)
        R = vWF; L8 = LAND_OF[8]
        s.wait(ptk[8], hb2[1])
        for r in range(4):
            V(f"v_lshlrev_b32 v{R+2*r}, 16, v{L8+r}", [R+2*r], [L8+r]); V(f"v_and_b32 v{R+2*r+1}, s{sMask}, v{L8+r}", [R+2*r+1], [L8+r])
        for i in range(4): V(f"v_permlane32_swap_b32 v{R+i}, v{R+4+i}", [R+i, R+4+i], [R+i, R+4+i])
        for i in range(4): V(f"v_add_f32 v{R+i}, v{R+i}, v{R+4+i}", [R+i], [R+i, R+4+i])
        for i in range(2): V(f"v_permlane16_swap_b32 v{R+i}, v{R+2+i}", [R+i, R+2+i], [R+i, R+2+i])
        for i in range(2): V(f"v_add_f32 v{R+i}, v{R+i}, v{R+2+i}", [R+i], [R+i, R+2+i])
        for i in range(2): V(f"v_add_f32_dpp v{R+2+i}, v{R+i}, v{R+i} row_ror:8 row_mask:0xf bank_mask:0xf", [R+2+i], [R+i])
        V(f"v_lshlrev_b32 v{R}, 16, v{vB28}", [R], [vB28]); V(f"v_and_b32 v{R+1}, s{sMask}, v{vB28}", [R+1], [vB28])
        for i in range(2): V(f"v_add_f32 v{R+i}, v{R+i}, v{R+2+i}", [R+i], [R+i, R+2+i])
        cvt(s, R, R, R+1)()
        s.vstore("buffer_store_dword", R, 1, vOut8, R_OUT, f"s{sOut8}")
    lastread = {}
    for a in ST[B0:]:
        for i, (f, mt) in enumerate(a.order): lastread[(a.parts[f][2], mt)] = (a.n, i)
    for q, ((k, e), n) in enumerate(zip([(8, 0), (1, 0), (1, 1), (2, 0), (2, 1)], IL(cfg.ldst))):
        assert n >= cA
        if k != 8: assert (n, 1+q) >= lastread[(k-1, e)]
        F(n, 1+q, piece(k, e))

    freebufs = [vWF+4*i for i in range(4)] + [vXR+4]
    frag = {}
    def plan_frag(n, f):
        a = ST[n]; hs = [hold(), hold()]; ent = [None, hs]; frag[(n, f)] = ent
        def mk(rd):
            def go():
                if rd == 0: ent[0] = freebufs.pop(0)
                if a.kind == "d": base, off = vW1dR + 3*(f//2), BLK[("w", n)]*8192 + (f % 2)*4096 + rd*512
                elif a.kind == "s": base, off = vW1sR, BLK[("w", n)]*8192 + (f if a.i < 4 else 2+f)*2048 + rd*256
                else:
                    (pos, dl, k, u, sl) = a.parts[f]
                    if a.sub == "d": base, off = vW2R + 3*dl, BLK[("w", u)]*8192 + sl*4096 + rd*2048
                    else: base, off = vW2cR, BLK[("w", u)]*8192 + sl*2048 + rd*1024
                w_, o_ = win(off)
                hs[rd][0] = s.ds_read("ds_read_b64_tr_b16", ent[0] + 2*rd, 2, base + w_, o_)
            return go
        return [mk(0), mk(1)]
    xtok = {}
    def xread(n, kk, mt):
        w_, o_ = win(BLK[("x", n)]*8192 - XWIN0 + mt*2048)
        def go(): xtok[(n, kk, mt)] = s.ds_read("ds_read_b128", vXF + 16*n + 8*kk + 4*mt, 4, vXR + 2*w_ + kk, o_)
        return go
    pre = {}; pend = {}
    for n in range(1, NST):
        pend[n-1] = [r for f in range(ST[n].nf) for r in plan_frag(n, f)]
        if n < 9:
            for q, (kk, mt) in enumerate(((0, 0), (1, 0), (0, 1), (1, 1))): pre.setdefault((n-1, 2*q), []).append(xread(n, kk, mt))

    s.wait(tb, *[utok.get(u) for u in LAND[-1]])
    s.barrier()
    stamp(s, "data")
    for g in range(4): biasrd[(0, g)]()
    for f, (kk, mt) in enumerate(((0, 0), (1, 0), (0, 1), (1, 1))):
        xread(0, kk, mt)()
        for r in plan_frag(0, f): r()
    issue_all(-1)

    started = set()
    tmpb = [Hreg[(15, 0)] + 4*q for q in range(4)]; TMPEND = HREAD[15] - 3
    xb = [vXR, vXR+4]
    gone = set()
    for a in ST:
        n = a.n
        if n == 8: freebufs.append(vXR)
        if n == B0: freebufs.extend(tmpb); gone |= set(xb)
        if n == B0 + 5 and not INS3: freebufs.extend([vT, vT+4])
        if INS3 and n == sts[1] + 1: freebufs.extend([vS[1], vS[1]+4])
        if n == TMPEND - 1: gone |= set(tmpb)
        freebufs[:] = [b for b in freebufs if b not in gone]
        if n == B0 + 3: assert not any(e[0] in xb for (m, f), e in frag.items() if m >= n and e[0] is not None)
        if n == TMPEND + 2: assert not any(e[0] in tmpb for (m, f), e in frag.items() if m >= n and e[0] is not None)
        stamp(s, f"s{n}")
        uses = {f: i for i, (f, mt) in enumerate(a.order)}
        dq = [f for u in ISSUE.get(n, []) for f in iss.pieces(u)]
        slots = [g for g in IL(cfg.dpos) if g < a.nm] or [a.nm-1]
        if len(dq) > len(slots): slots = list(range(a.nm))
        dat = {}; ndone = 0
        for q, f in enumerate(dq): dat.setdefault(slots[q*len(slots)//len(dq)], []).append(f)
        for i in range(a.nm):
            toks = [h[0] for h in need_mf.get((n, i), [])]
            cur[0] = n
            f, mt = a.order[i]
            reg, hs = frag[(n, f)]
            toks += [hs[0][0], hs[1][0]]
            if i % 2 == 0 and n > 0:
                f2 = a.order[i+1][0]; toks += [frag[(n, f2)][1][0][0], frag[(n, f2)][1][1][0]]
            if a.kind == "d":
                d = vS[a.j % 2] + 8*mt + 4*(f//2); bop = vXF + 16*a.s + 8*(f % 2) + 4*mt; c_ = d
                if a.j == 0:
                    toks.append(xtok[(n, f % 2, mt)])
                    if i % 2 == 0 and n > 0: toks.append(xtok[(n, 1, mt)])
            elif a.kind == "s":
                d = vS[0] + 4*mt; bop = vXF + 8*(4*a.i + f) + 4*mt; c_ = d
            else:
                (pos, dl, k, u, sl) = a.parts[f]
                toks.append(hrd[(k, mt)][0])
                d = acc(pos, dl, mt); bop = Hreg[(k, mt)]; c_ = d if (pos, dl, mt) in started else None
                started.add((pos, dl, mt))
            assert all(t is not None for t in toks), (n, i)
            s.wait(*toks)
            s.mfma16(d, reg, bop, c_)
            if uses[f] == i and reg not in gone: freebufs.append(reg)
            if i == 0 and n in BAR:
                assert all(h[0] is not None for h in need_bar.get(n, [])), n
                for f_ in prebar.get(n, []): f_()
                s.wait(*([utok.get(u) for u in LAND.get(n, [])] + [h[0] for h in need_bar.get(n, [])]))
                s.barrier()
            rds = pend.get(n, []); per = -(-len(rds)//a.nm)
            while ndone < min(len(rds), per*(i+1) if i < a.nm-1 else 99) and (ndone % 2 == 1 or freebufs or i == a.nm-1):
                rds[ndone](); ndone += 1
            for f_ in pre.get((n, i), []): f_()
            for f_ in dat.get(i, []): f_()
            for f_ in fill.get((n, i), []): f_()
    stamp(s, "tail")
    if pF not in BAR:
        s.wait(stok[4][0]); s.barrier(); publish(sCnt, 2)()
    s.wait(hb2[0])
    for r in range(2):
        s.valu(f"v_lshlrev_b32 v{vP+4+2*r}, 16, v{vB2m+r}", wr=[vP+4+2*r], rd=[vB2m+r])
        s.valu(f"v_and_b32 v{vP+4+2*r+1}, s{sMask}, v{vB2m+r}", wr=[vP+4+2*r+1], rd=[vB2m+r])
    for i in range(8):
        s.valu(f"v_add_f32 v{SUM+i}, v{SUM+i}, v{vP+4 + i % 4}", wr=[SUM+i], rd=[SUM+i, vP+4 + i % 4])
    for k in [8, 1, 2][:I(cfg.tailpoll)]: add_k(k)
    if half == 1: check(below(f"s{sTgt8}"), poll(s, sCnt, 2), lambda st: poll(st, sCnt, 2))
    s.barrier()
    stamp(s, "T2")
    load_k(3); load_k(0)
    for k in [8, 1, 2][I(cfg.tailpoll):] + [3, 0]: add_k(k)
    stamp(s, "fin")
    for k in range(4): cvt(s, vP+k, SUM+2*k, SUM+2*k+1)()
    s.vstore("buffer_store_dwordx2", vP, 2, vOutM, R_OUT, f"s{sOutM}")
    s.salu(f"s_add_u32 s{sOutM}, s{sOutM}, {16*1152}")
    s.vstore("buffer_store_dwordx2", vP+2, 2, vOutM, R_OUT, f"s{sOutM}")
    if cfg.stamps: s.wait_all()
    stamp(s, "end")
    stamp_flush(s)
    s.salu("s_endpgm")
    return s, ool

def kd(name, vg, sg):
    return f""".amdhsa_kernel {name}
  .amdhsa_next_free_vgpr {vg}
  .amdhsa_next_free_sgpr {sg}
  .amdhsa_accum_offset {(vg+3)//4*4}
  .amdhsa_group_segment_fixed_size 0
  .amdhsa_kernarg_size 64
  .amdhsa_user_sgpr_count 2
  .amdhsa_user_sgpr_kernarg_segment_ptr 1
  .amdhsa_system_sgpr_workgroup_id_x 1
  .amdhsa_float_denorm_mode_32 3
.end_amdhsa_kernel
"""

def generate(aslist=False):
    PLAN = plan()
    p = Stream()
    prologue(p)
    p.salu(f"s_cmp_ge_u32 s{sW}, 4", srd=[sW]); p.salu("s_cbranch_scc1 L_half1")
    h0, o0 = body(p, 0, PLAN); h1, o1 = body(p, 1, PLAN)
    mk = (p.text() + "\n" + h0.text() + "\n" + o0.text() + "\n.p2align 6\nL_half1:\n" + h1.text() + "\n" + o1.text()
          + "\nL_main_end:\n    s_endpgm\n")
    k1 = NAME + "_kernel"
    launch = (f"; @launch kernel={k1} grid=(256,1,1) block=(512,1,1) lds=163840" if aslist
              else "; @launch grid=(256,1,1) block=(512,1,1) lds=163840")
    out = f"""; fused MLP  out = gelu_tanh(x@w1+b1)@w2+b2   (emitted by my generator script)
{launch}
.amdgcn_target "amdgcn-amd-amdhsa--gfx950"
.text
.globl {k1}
.p2align 8
.type {k1},@function
{k1}:
{mk}
.section .rodata,"a"
.p2align 6
{kd(k1, 256, 102)}"""
    nb = [sum(1 for i in h.ins if i.kind == "bar") for h in (h0, h1)]
    assert nb[0] == nb[1], nb
    return out, (h0.nops, h1.nops, len(h0.ins), len(h1.ins), nb[0]), PLAN

if __name__ == "__main__":
    aslist = False; verbose = False
    for a in sys.argv[2:]:
        if a == "-v": verbose = True; continue
        k, v = a.split("=", 1)
        if k == "aslist": aslist = True; continue
        assert hasattr(cfg, k), k
        setattr(cfg, k, {"True": True, "False": False}.get(v, v.replace("+", " ")))
    txt, stats, PLAN = generate(aslist)
    open(sys.argv[1], "w").write(txt)
    print("nops/ins/bars:", stats, "bytes", len(txt))
    if verbose:
        BAR, ISSUE, BLK, LAND = PLAN
        print(" ".join(f"{b}:{','.join(k+str(m)+'@'+str(BLK[(k,m)]) for k,m in ISSUE[b])}" for b in sorted(ISSUE)))
```

```python
import sys, struct
from emit import Stream, Ins

NAME = "standalone__dense_activation_gelu__prompt"
M, D, F = 2048, 576, 4608
def f2u(x): return struct.unpack("<I", struct.pack("<f", x))[0]
GA = -2.0*0.7978845608028654*1.4426950408889634
GB = GA*0.044715

class Cfg:
    st_flags = "sc1"; ld_flags = "sc1"; poll_flags = "sc1"
    stamps = False; cyc = False
    barA = 2; barB = 1; lastbar = "80"
    prio = -1
    g0 = 3
    g1 = 5
    look0 = 5
    lookA = 9; lookB = 12
    dpos = "1,5"
    ins3 = 2
    skew = False; tcost = 2.0
    gwin = "4,8,5"
    g3end = "40,3"
    g4win = "41,1,43,7"
    tlb = -9
    colmaj = True
    pfcode = 1
    pf1 = -1
    pf2 = 5
    hpub = "38,45,49"
    hchk = "43,52,55"
    hiss = "43,44,46,47,49,50,52,54,56"
    stst = "64,65,66,67,68,73,74"
    pubA = 72; chkA = 80; pubF = 80; tailpoll = 1
    ldst = "80,80,80,81,81"
    polllead = 3; backoff = 4
    clr_stage = 5; arr_stage = 12; cchk = 36
    nohst = False; nohld = False; nopoll = False; nopub = False; noload = False; nostore = False
cfg = Cfg()
def I(x): return int(x)
def IL(x): return [int(v) for v in str(x).split(",") if v != ""]

PART_BYTES = 32*72*8*1024
HX = PART_BYTES
FLG = HX + 256*9*8192
WS_BYTES = FLG + 16*64*256
OOB = 0x40000000
SPIN = 1000000

S_X, S_W1, S_B1, S_W2, S_B2, S_OUT, S_DBG, S_WS = 4, 6, 8, 10, 12, 14, 16, 18
R_X, R_W1, R_W2, R_WS, R_B1 = 20, 24, 28, 32, 36
R_DBG = 36
R_B2, R_OUT = 4, 8
sW, sRG, sMT, sFS, sD0, sS0 = 40, 41, 42, 43, 44, 45
sXo, sW1d, sW1s, sLx, sLw, sT0, sT1, sGB = 46, 47, 48, 49, 50, 51, 52, 53
sPC, sE = 54, 55
sW2, sC3, sPc, sCo, sDt = 56, 68, 71, 76, 80
sHXw, sHXr, sCnt, sHfW, sHfR, sTgt8, sTgt1, sClr = 82, 83, 84, 85, 86, 87, 88, 89
sE2, sPF, sP8, sSpin, sOutM, sOut8, sMask = 90, 91, 92, 93, 94, 95, 3
sU0, sU1 = 96, 97
vStamp, vLane, vL16 = 0, 1, 2
vX0, vX1, vW2, vTmp, vTmp2 = 3, 4, 5, 6, 7
vOne, vFv = vX0, vX1
vW1dR, vW2R = 8, 14
vW2cR = 8
vW1d, vW1s, vHW8, vGA = 20, 21, 22, 23
vBias, vW1sR = 24, 25
vHB = (28, 29, 30)
vBiasS = 31
vXR = 32
vP8off, vOutM, vB2m, vOut8, vB28 = 40, 41, 42, 44, 45
vSec = 46
vW2c = vPF = 47
vT, vP, vWF = 48, 56, 64
vS = (80, 96)
vXF = 112
vZero, vOut0 = 63, 62
vDumP = 255

NBLK, HB = 20, 10
HBASE, BIAS, XWIN0 = HB*8192, 19*8192, 7*8192

INS3 = int(([a.split('=')[1] for a in sys.argv if a.startswith('ins3=')] or [Cfg.ins3])[0])
class St: pass
PAIRS = lambda n: [(2*(q//4) + q % 2, (q//2) % 2) for q in range(n)]
def build_stages():
    st = []
    for j in range(4):
        for s in range(9):
            a = St(); a.kind = "d"; a.j = j; a.s = s; a.nf = 4; st.append(a)
    for i in range(5):
        a = St(); a.kind = "s"; a.i = i; a.nf = 4 if i < 4 else 2; a.rowbase = 128*i if i < 4 else 448; st.append(a)
    KB = {"o": 0, "r": 9}
    def dbl(pos, t, i=0):
        a = St(); a.kind = "b"; a.sub = "d"; a.pos = pos; a.t = t; a.i = i
        ks = (8, 17) if t == "m" else (KB[t]+2*i, KB[t]+2*i+1)
        a.parts = [(pos, dl, ks[kk], None, kk) for dl in range(2) for kk in range(2)]
        return a
    def sgl(t, i=0):
        a = St(); a.kind = "b"; a.sub = "c"; a.pos = 0; a.t = t; a.i = i
        ks = (8, 17) if t == "m" else [KB[t]+4*i+q for q in range(4)]
        a.parts = [(0, 0, k, None, q) for q, k in enumerate(ks)]
        return a
    st += [dbl(1, "o", i) for i in range(4)] + [sgl("o", 0), sgl("o", 1)] + [dbl(2, "o", i) for i in range(4)]
    st += [dbl(1, "r", 0), dbl(2, "r", 0), dbl(1, "r", 1), dbl(2, "r", 1), sgl("r", 0), dbl(1, "r", 2), dbl(2, "r", 2)]
    blocks = [("o", i) for i in range(4)] + [("r", i) for i in range(4)] + [("m", 0)]
    st += [dbl(3, t, i) for t, i in blocks[:INS3]]
    st += [dbl(1, "r", 3), dbl(2, "r", 3), sgl("r", 1), dbl(1, "m"), dbl(2, "m"), sgl("m")]
    st += [dbl(3, t, i) for t, i in blocks[INS3:]]
    L0 = len(st)
    fr = []
    for dl in range(2):
        for bi, (t, i) in enumerate(blocks):
            ks = (8, 17) if t == "m" else (KB[t]+2*i, KB[t]+2*i+1)
            fr += [(4, dl, ks[0], L0+bi, 0), (4, dl, ks[1], L0+bi, 1)]
    for gi in range(9):
        a = St(); a.kind = "b"; a.sub = "d"; a.pos = 4; a.t, a.i = blocks[gi]; a.parts = fr[4*gi:4*gi+4]
        st.append(a)
    for n, a in enumerate(st):
        a.n = n
        if a.kind == "b":
            a.nf = len(a.parts)
            a.parts = [(p, d, k, (n if u is None else u), sl) for (p, d, k, u, sl) in a.parts]
        a.nm = 2*a.nf; a.order = PAIRS(a.nm)
    return st, L0
ST, LAST0 = build_stages()
NST = len(ST)
B0 = 41
HWSTAGE = {0: 9+3, 1: 18+3, 2: 27+3, 3: 36+1, 4: B0+1}
FIRSTUSE = {}
for a_ in ST[B0:]:
    for (p_, d_, k_, u_, s_) in a_.parts: FIRSTUSE.setdefault(k_, a_.n)
HREAD = {0: 37, 1: 37, 2: 38, 3: 38, 4: 39, 5: 39, 6: B0+1, 7: B0+1, 8: B0+6}
for k_ in range(9, 18): HREAD[k_] = FIRSTUSE[k_] - 2
HFREE_OWN = {k: HREAD[k] + 2 for k in range(9)}

def plan():
    BAR = set()
    for n in range(NST):
        if n >= LAST0:
            if n in IL(cfg.lastbar): BAR.add(n)
        elif n < 9 or 35 <= n <= 64 + INS3 or n in IL(cfg.hpub) + IL(cfg.hchk) + [I(cfg.cchk)]: BAR.add(n)
        elif n < 35:
            if (n - 9) % I(cfg.barA) == 0: BAR.add(n)
        elif (LAST0 - 1 - n) % I(cfg.barB) == 0: BAR.add(n)
    bars = sorted(BAR)
    def first_read(u):
        if u[0] == "h": return HREAD[u[1]]
        return LAST0 - 1 if (u[0] == "w" and u[1] >= LAST0) else u[1] - 1
    def last_use(u):
        if u[0] == "h": return HREAD[u[1]] + 1
        return NST if (u[0] == "w" and u[1] >= LAST0) else u[1]
    res = {HB+k: (HWSTAGE[k//2], HFREE_OWN[k]) for k in range(9)}
    res[19] = (-99, 37)
    units = []
    for n in range(NST):
        if n < 9: units.append(("x", n))
        units.append(("w", n))
    hc = IL(cfg.hchk)
    hq = [(("h", k), IL(cfg.hiss)[k-9]) for k in range(9, 18)]
    for (u, b) in hq: assert b >= hc[[0, 0, 0, 0, 0, 0, 1, 1, 2][u[1]-9]]
    allunits = units + [u for u, _ in hq]
    busy = {}; issue = {}; blk = {}; land = {}
    ui = 0
    def freebar(u):
        c = [b for b in bars if b >= last_use(u)+1]
        return c[0] if c else 10**6
    def ok(b, u, bar):
        if b in busy: return False
        if b in res:
            a0, a1 = res[b]
            lb = max([x for x in [-3, -2, -1]+bars if x <= a0] or [-99])
            if not (freebar(u) <= lb or bar >= a1): return False
        return True
    for bar in [-3, -2, -1] + bars:
        for b in [b for b, u in busy.items() if freebar(u) <= bar]: del busy[b]
        lst = []
        nxt = min([b for b in bars if b > bar] or [NST])
        cap = 2*(nxt - bar) if bar >= 0 else 99
        if bar == -3: horizon = I(cfg.g0) - 1
        elif bar == -2: horizon = I(cfg.g1) - 1
        elif bar < 4: horizon = bar + I(cfg.look0)
        elif bar < B0 - 2: horizon = nxt - 1 + I(cfg.lookA)
        else: horizon = nxt - 1 + I(cfg.lookB)
        nh = 0
        while hq and hq[0][1] <= bar and nh < 2:
            u = hq[0][0]; c = [b for b in range(NBLK) if ok(b, u, bar)]
            if not c: break
            busy[c[0]] = u; blk[u] = c[0]; lst.append(u); hq.pop(0); nh += 1
        while ui < len(units):
            u = units[ui]; kind, m = u
            if min(m, LAST0) > horizon: break
            if hq and hq[0][1] <= bar + 1 and m > bar + 5: break
            if kind == "x":
                c = [b for b in range(7, 18, 2) if ok(b, u, bar) and ok(b+1, u, bar)]
                if not c: break
                b = c[0]; busy[b] = u; busy[b+1] = u
            else:
                c = [b for b in range(NBLK) if ok(b, u, bar)]
                if any(k == "x" for k, _ in units[ui:]): c = [b for b in c if b < 7]
                if not c: break
                b = c[0]; busy[b] = u
            blk[u] = b; lst.append(u); ui += 1
            if len([x for x in lst if x[0] == "w"]) >= cap: break
        issue[bar] = lst
    assert ui == len(units) and not hq
    for u in allunits:
        lb = max(b for b in [-1]+bars if b <= first_read(u))
        land.setdefault(lb, []).append(u)
        ib = [bar for bar, l in issue.items() if u in l][0]
        assert ib < lb, (u, ib, lb)
    return BAR, issue, blk, land

def win(a): return a // 65536, a % 65536

NSTAMP = 16
def snames(): return cfg.stamps.split(",") if isinstance(cfg.stamps, str) else []
def stamp(s, name):
    if name not in snames(): return
    s.wait_all(v=False)
    s.salu("s_memtime s[100:101]" if cfg.cyc else "s_memrealtime s[100:101]")
    s.wait_all(v=False)
    s.valu(f"v_writelane_b32 v{vStamp}, s100, {snames().index(name)+1}", wr=[vStamp])
def stamp_flush(s):
    if not cfg.stamps: return
    s.salu(f"s_lshl_b32 s{sT0}, s2, 3"); s.salu(f"s_add_u32 s{sT0}, s{sT0}, s{sW}"); s.salu(f"s_mul_i32 s{sT0}, s{sT0}, {4*NSTAMP}")
    s.salu(f"s_add_u32 s{sT0}, s{sT0}, {128<<20}")
    s.salu(f"s_mov_b32 s{R_WS+2}, 0x10000000")
    s.valu(f"v_lshlrev_b32 v{vTmp}, 2, v{vLane}", wr=[vTmp], rd=[vLane])
    s.valu(f"v_cmp_gt_u32 vcc, {NSTAMP}, v{vLane}", rd=[vLane], swr=["vcc"])
    s.valu(f"v_mov_b32 v{vTmp2}, {OOB}", wr=[vTmp2])
    s.salu("s_nop 1")
    s.valu(f"v_cndmask_b32 v{vTmp}, v{vTmp2}, v{vTmp}, vcc", wr=[vTmp], rd=[vTmp, vTmp2])
    s.vstore("buffer_store_dword", vStamp, 1, vTmp, R_WS, f"s{sT0}")

def srd(s, r, base, size):
    s.salu(f"s_mov_b32 s{r}, s{base}"); s.salu(f"s_mov_b32 s{r+1}, s{base+1}")
    s.salu(f"s_mov_b32 s{r+2}, {size}"); s.salu(f"s_mov_b32 s{r+3}, 0x20000")

class Ops:
    def __init__(self, s): self.s = s
    def V(self, text, wr=(), rd=(), **k): self.s.valu(text, wr=wr, rd=rd, **k)
    def S(self, text, **k): self.s.salu(text, **k)

def prologue(p):
    o = Ops(p); V, S = o.V, o.S
    S("s_cmp_ge_u32 s2, 256"); S("s_cbranch_scc1 L_main_end")
    if cfg.stamps: S("s_memtime s[98:99]" if cfg.cyc else "s_memrealtime s[98:99]")
    S("s_load_dwordx16 s[4:19], s[0:1], 0")
    L = vLane; a, b = vTmp, vTmp2
    V(f"v_lshrrev_b32 v{a}, 6, v0", [a]); V(f"v_and_b32 v{L}, 63, v0", [L])
    V(f"v_readfirstlane_b32 s{sW}, v{a}", rd=[a], swr=[sW])
    S(f"s_and_b32 s{sT0}, s2, 7"); S(f"s_lshr_b32 s{sT1}, s2, 3")
    S(f"s_and_b32 s{sMT}, s{sT0}, 1"); S(f"s_lshl_b32 s{sMT}, s{sMT}, 3")
    S(f"s_lshr_b32 s{sFS}, s{sT1}, 2"); S(f"s_add_u32 s{sMT}, s{sMT}, s{sFS}")
    S(f"s_lshr_b32 s{sFS}, s{sT0}, 1"); S(f"s_lshl_b32 s{sFS}, s{sFS}, 2")
    S(f"s_and_b32 s{sT1}, s{sT1}, 3"); S(f"s_add_u32 s{sFS}, s{sFS}, s{sT1}")
    S(f"s_and_b32 s{sRG}, s{sW}, 3", srd=[sW])
    S(f"s_and_b32 s{sE}, s{sFS}, 1"); S(f"s_lshl_b32 s{sD0}, s{sE}, 5")
    S(f"s_lshl_b32 s{sT0}, s{sMT}, 7"); S(f"s_lshl_b32 s{sT1}, s{sRG}, 5"); S(f"s_add_u32 s{sT0}, s{sT0}, s{sT1}")
    S(f"s_mul_i32 s{sXo}, s{sT0}, 1152")
    S(f"s_lshl_b32 s{sLx}, s{sRG}, 12"); S(f"s_lshl_b32 s{sLw}, s{sRG}, 11")
    S(f"s_mul_i32 s{sU0}, s{sFS}, 576")
    S(f"s_mul_i32 s{sT1}, s{sRG}, {16*9216}"); S(f"s_add_u32 s{sW1d}, s{sU0}, s{sT1}")
    S(f"s_lshl_b32 s{sT1}, s{sD0}, 1"); S(f"s_add_u32 s{sW1d}, s{sW1d}, s{sT1}")
    V(f"v_lshrrev_b32 v{a}, 3, v{L}", [a], [L])
    V(f"v_mul_u32_u24 v{vX0}, 1152, v{a}", [vX0], [a])
    V(f"v_mul_u32_u24 v{vW1d}, 9216, v{a}", [vW1d], [a])
    V(f"v_mov_b32 v{vW2}, v{vX0}", [vW2], [vX0])
    V(f"v_lshrrev_b32 v{a}, 4, v{L}", [a], [L])
    V(f"v_and_b32 v{b}, 7, v{L}", [b], [L])
    V(f"v_xor_b32 v{vX1}, v{a}, v{b}", [vX1], [a, b])
    V(f"v_lshl_add_u32 v{vX0}, v{vX1}, 4, v{vX0}", [vX0], [vX1, vX0])
    V(f"v_xor_b32 v{vX1}, 64, v{vX0}", [vX1], [vX0])
    V(f"v_add_u32 v{vX1}, {9216-1024}, v{vX1}", [vX1], [vX1])
    V(f"v_and_b32 v{a}, 1, v{a}", [a], [a]); V(f"v_lshlrev_b32 v{a}, 1, v{a}", [a], [a])
    V(f"v_xor_b32 v{b}, v{a}, v{b}", [b], [a, b])
    V(f"v_lshl_add_u32 v{vW1d}, v{b}, 4, v{vW1d}", [vW1d], [b, vW1d])
    V(f"v_lshlrev_b32 v{vBias}, 1, v0", [vBias])
    if I(cfg.pfcode):
        c = vT+6
        S("s_getpc_b64 s[72:73]"); p.raw("L_pc:")
        S(f"s_sub_u32 s72, s72, L_pc-{NAME}_kernel"); S("s_subb_u32 s73, s73, 0")
        S(f"s_lshr_b32 s{sU1}, s2, 3"); S(f"s_lshl_b32 s{sU1}, s{sU1}, 3"); S(f"s_add_u32 s{sU1}, s{sU1}, s{sW}"); S(f"s_lshl_b32 s{sU1}, s{sU1}, 8")
        V(f"v_and_b32 v{c}, 1, v{L}", [c], [L]); V(f"v_lshl_add_u32 v{c}, v{c}, 7, s{sU1}", [c], [c])
        V(f"v_min_u32 v{c}, L_main_end-{NAME}_kernel, v{c}", [c], [c])
        p.add(Ins(f"global_load_dword v{vDumP}, v{c}, s[72:73]", "vld", rd=[c], wr=[vDumP])); p._tok("v")
    p.wait_all(v=False)
    srd(p, R_X, S_X, M*D*2); srd(p, R_W1, S_W1, D*F*2)

def dma2(s, voff, r, soff, second):
    t = s.dma(voff, r, soff, cfg.ld_flags if r == R_WS else "")
    if second: s.ins[-1].text = s.ins[-1].text.replace(" offen", " offen offset:1024")
    return t

class Issuer:
    def __init__(self, s, half, BLK, utok): self.s, self.half, self.BLK, self.utok = s, half, BLK, utok; self.sec = None
    def pieces(self, u):
        s, half = self.s, self.half
        kind, m = u; b = self.BLK[u]
        if kind == "x":
            def first():
                s.salu(f"s_add_u32 m0, s{sLx}, {b*8192 + half*2048}", swr=["m0"])
                s.salu(f"s_add_u32 s{sT0}, s{sXo}, {16*half*1152 + m*128}")
                self.utok[u] = dma2(s, vX0, R_X, f"s{sT0}", False)
            def second(): self.utok[u] = dma2(s, vX1, R_X, f"s{sT0}", True)
            return [first, second]
        if kind == "h":
            if half != 1: return []
            def first():
                s.salu(f"s_add_u32 m0, s{sLw}, {b*8192}", swr=["m0"])
                s.salu(f"s_add_u32 s{sT0}, s{sHXr}, {(m-9)*8192}" if not cfg.nohld else f"s_mov_b32 s{sT0}, {OOB}")
                self.utok[u] = dma2(s, vL16, R_WS, f"s{sT0}", False)
            def second(): self.utok[u] = dma2(s, vL16, R_WS, f"s{sT0}", True)
            return [first, second]
        a = ST[m]
        if m < 9:
            def one():
                s.salu(f"s_add_u32 m0, s{sLw}, {b*8192 + half*1024}", swr=["m0"])
                s.salu(f"s_add_u32 s{sT0}, s{sW1d}, {(64*a.s + 8*half)*9216}")
                self.utok[u] = dma2(s, vW1d, R_W1, f"s{sT0}", False)
            return [one]
        if half != 0: return []
        if a.kind == "d": v, r, base, imm, step = vW1d, R_W1, sW1d, 64*a.s*9216 + a.j*128, 8*9216
        elif a.kind == "s": v, r, base, imm, step = vW1s, R_W1, sW1s, a.rowbase*9216, 16*9216
        elif a.sub == "d": v, r, base, imm, step = vW2, R_W2, sW2 + 4*"orm".index(a.t) + a.pos-1, 64*a.i*1152, 8*1152
        else: v, r, base, imm, step = vW2c, R_W2, sC3 + "orm".index(a.t), 128*a.i*1152, 16*1152
        def first():
            if self.sec != v:
                if v == vW1d:
                    s.valu(f"v_xor_b32 v{vSec}, 64, v{v}", wr=[vSec], rd=[v]); s.valu(f"v_add_u32 v{vSec}, {step-1024}, v{vSec}", wr=[vSec], rd=[vSec])
                else: s.valu(f"v_add_u32 v{vSec}, {step-1024}, v{v}", wr=[vSec], rd=[v])
                self.sec = v
            s.salu(f"s_add_u32 m0, s{sLw}, {b*8192}", swr=["m0"])
            if imm: s.salu(f"s_add_u32 s{sT0}, s{base}, {imm}")
            else: s.salu("s_nop 0")
            self.so = f"s{sT0}" if imm else f"s{base}"
            self.utok[u] = dma2(s, v, r, self.so, False)
        def second(): self.utok[u] = dma2(s, vSec, r, self.so, True)
        return [first, second]

def setup_main(s, half):
    o = Ops(s); V, S = o.V, o.S
    L = vLane; a, b = vTmp, vTmp2; ch = half
    r, c, q, t, j15 = vT, vT+1, vT+2, vT+3, vT+4
    srd(s, R_B1, S_B1, F*2)
    tokb = s.vload("buffer_load_ushort", vBiasS, 1, vBias, R_B1, f"s{sU0}")
    V(f"v_bfe_u32 v{r}, v{L}, 2, 2", [r], [L]); V(f"v_and_b32 v{c}, 3, v{L}", [c], [L]); V(f"v_lshrrev_b32 v{q}, 4, v{L}", [q], [L])
    V(f"v_and_b32 v{j15}, 15, v{L}", [j15], [L])
    V(f"v_lshl_add_u32 v{t}, v{q}, 3, v{r}", [t], [q, r])
    V(f"v_lshlrev_b32 v{a}, 3, v{c}", [a], [c]); V(f"v_lshl_add_u32 v{vW1dR}, v{t}, 7, v{a}", [vW1dR], [t, a])
    V(f"v_and_b32 v{a}, 1, v{q}", [a], [q]); V(f"v_lshrrev_b32 v{b}, 1, v{r}", [b], [r]); V(f"v_lshl_add_u32 v{b}, v{a}, 1, v{b}", [b], [a, b])
    if ch: V(f"v_xor_b32 v{b}, 2, v{b}", [b], [b])
    V(f"v_lshl_add_u32 v{vW1dR}, v{b}, 5, v{vW1dR}", [vW1dR], [b, vW1dR]); V(f"v_xor_b32 v{vW1dR+3}, 32, v{vW1dR}", [vW1dR+3], [vW1dR])
    V(f"v_and_b32 v{b}, 1, v{c}", [b], [c]); V(f"v_lshl_add_u32 v{b}, v{b}, 1, v{a}", [b], [b, a])
    if ch: V(f"v_xor_b32 v{b}, 1, v{b}", [b], [b])
    V(f"v_lshlrev_b32 v{b}, 4, v{b}", [b], [b]); V(f"v_lshl_add_u32 v{vW1sR}, v{t}, 6, v{b}", [vW1sR], [t, b])
    V(f"v_lshrrev_b32 v{b}, 1, v{c}", [b], [c]); V(f"v_lshl_add_u32 v{vW1sR}, v{b}, 3, v{vW1sR}", [vW1sR], [b, vW1sR])
    for k in (1, 2):
        for base in (vW1dR, vW1dR+3, vW1sR): V(f"v_add_u32 v{base+k}, {65536*k}, v{base}", [base+k], [base])
    V(f"v_lshrrev_b32 v{b}, 1, v{j15}", [b], [j15]); V(f"v_xor_b32 v{b}, v{b}, v{q}", [b], [b, q]); V(f"v_lshlrev_b32 v{b}, 4, v{b}", [b], [b])
    V(f"v_lshl_add_u32 v{b}, v{j15}, 7, v{b}", [b], [j15, b]); V(f"v_add_u32 v{b}, s{sLx}, v{b}", [b], [b])
    V(f"v_xor_b32 v{t}, 64, v{b}", [t], [b])
    for sp, src in ((0, b), (1, t)):
        V(f"v_add_u32 v{vXR+sp}, {XWIN0}, v{src}", [vXR+sp], [src]); V(f"v_add_u32 v{vXR+2+sp}, {XWIN0+65536}, v{src}", [vXR+2+sp], [src])
    V(f"v_lshlrev_b32 v{vL16}, 4, v{L}", [vL16], [L])
    V(f"v_mov_b32 v{vGA}, 0x{f2u(GA):08x}", [vGA]); S(f"s_mov_b32 s{sGB}, 0x{f2u(GB):08x}")
    S(f"s_lshr_b32 s{sPC}, s{sFS}, 2"); S(f"s_bfe_u32 s{sE2}, s{sFS}, 0x10001"); S(f"s_xor_b32 s{sT1}, s{sE}, 1"); S(f"s_lshl_b32 s{sS0}, s{sT1}, 8")
    if half == 0:
        S(f"s_mul_i32 s{sT1}, s{sRG}, {32*9216}"); S(f"s_add_u32 s{sW1s}, s{sU0}, s{sT1}")
        S(f"s_lshl_b32 s{sT1}, s{sS0}, 1"); S(f"s_add_u32 s{sW1s}, s{sW1s}, s{sT1}")
        V(f"v_lshrrev_b32 v{t}, 2, v{L}", [t], [L]); V(f"v_mul_u32_u24 v{vW1s}, 9216, v{t}", [vW1s], [t]); V(f"v_mul_u32_u24 v{vW2c}, 1152, v{t}", [vW2c], [t])
        V(f"v_lshrrev_b32 v{b}, 5, v{L}", [b], [L]); V(f"v_xor_b32 v{b}, v{b}, v{c}", [b], [b, c])
        V(f"v_lshl_add_u32 v{vW1s}, v{b}, 4, v{vW1s}", [vW1s], [b, vW1s])
        V(f"v_bfe_u32 v{b}, v{L}, 1, 2", [b], [L]); V(f"v_xor_b32 v{b}, v{b}, v{q}", [b], [b, q])
        V(f"v_lshl_add_u32 v{vW2}, v{b}, 5, v{vW2}", [vW2], [b, vW2])
        V(f"v_and_b32 v{b}, 1, v{b}", [b], [b]); V(f"v_lshl_add_u32 v{vW2c}, v{b}, 5, v{vW2c}", [vW2c], [b, vW2c])
        V(f"v_and_b32 v{b}, 1, v{L}", [b], [L]); V(f"v_lshl_add_u32 v{vW2}, v{b}, 4, v{vW2}", [vW2], [b, vW2])
        V(f"v_lshl_add_u32 v{vW2c}, v{b}, 4, v{vW2c}", [vW2c], [b, vW2c])
    V(f"v_add_u32 v{vHB[0]}, s{sLw}, v{vL16}", [vHB[0]], [vL16])
    for k in (1, 2): V(f"v_add_u32 v{vHB[k]}, {65536*k}, v{vHB[0]}", [vHB[k]], [vHB[0]])
    V(f"v_lshlrev_b32 v{vHW8}, 4, v{j15}", [vHW8], [j15]); V(f"v_lshl_add_u32 v{vHW8}, v{a}, 10, v{vHW8}", [vHW8], [a, vHW8])
    V(f"v_lshrrev_b32 v{b}, 1, v{q}", [b], [q]); V(f"v_lshl_add_u32 v{vHW8}, v{b}, 8, v{vHW8}", [vHW8], [b, vHW8])
    V(f"v_add_u32 v{vHW8}, s{sLw}, v{vHW8}", [vHW8], [vHW8]); V(f"v_add_u32 v{vHW8}, {HBASE + 8*8192 + ch*512}, v{vHW8}", [vHW8], [vHW8])
    V(f"v_lshrrev_b32 v{t}, 2, v{L}", [t], [L]); V(f"v_lshlrev_b32 v{b}, 3, v{c}", [b], [c]); V(f"v_lshl_add_u32 v{vW2R}, v{t}, 7, v{b}", [vW2R], [t, b])
    V(f"v_bfe_u32 v{b}, v{L}, 3, 2", [b], [L]); V(f"v_xor_b32 v{b}, {2+ch if cfg.colmaj else 2*ch+1}, v{b}", [b], [b])
    S(f"s_lshl_b32 s{sU1}, s{sE2}, {1 if cfg.colmaj else 0}"); V(f"v_xor_b32 v{b}, s{sU1}, v{b}", [b], [b])
    V(f"v_lshl_add_u32 v{vW2R}, v{b}, 5, v{vW2R}", [vW2R], [b, vW2R]); V(f"v_xor_b32 v{vW2R+3}, {64 if cfg.colmaj else 32}, v{vW2R}", [vW2R+3], [vW2R])
    for dl in range(2):
        for k in (1, 2): V(f"v_add_u32 v{vW2R+3*dl+k}, {65536*k}, v{vW2R+3*dl}", [vW2R+3*dl+k], [vW2R+3*dl])
    t0, t1, t2, t3 = sU0, sU1, sSpin, sP8
    srd(s, R_W2, S_W2, F*D*2); srd(s, R_WS, S_WS, WS_BYTES)
    srd(s, R_B2, S_B2, D*2); srd(s, R_OUT, S_OUT, M*D*2)
    for k in range(1, 4): S(f"s_add_u32 s{sPc+k}, s{sPC}, {k}"); S(f"s_and_b32 s{sPc+k}, s{sPc+k}, 3")
    S(f"s_mov_b32 s{sPc+4}, s{sPC}")
    S(f"s_lshr_b32 s{sClr}, s{sFS}, 1")
    if half == 0:
        S(f"s_mul_i32 s{t0}, s{sClr}, 576")
        S(f"s_mul_i32 s{t3}, s{sE}, 640")
        for ti in range(3):
            if ti == 0: S(f"s_mul_i32 s{t1}, s{sE}, 320")
            elif ti == 1: S(f"s_xor_b32 s{t1}, s{sE}, 1"); S(f"s_mul_i32 s{t1}, s{t1}, 320")
            if ti < 2:
                S(f"s_add_u32 s{t1}, s{t1}, s{t0}")
                S(f"s_lshl_b32 s{t2}, s{sRG}, 5"); S(f"s_add_u32 s{t2}, s{t2}, s{t1}"); S(f"s_mul_i32 s{sC3+ti}, s{t2}, 1152")
                S(f"s_lshl_b32 s{t2}, s{sRG}, 4"); S(f"s_add_u32 s{t1}, s{t1}, s{t2}")
            else:
                S(f"s_and_b32 s{t1}, s{sRG}, 1"); S(f"s_xor_b32 s{t2}, s{t1}, s{sE}"); S(f"s_lshl_b32 s{t2}, s{t2}, 5")
                S(f"s_add_u32 s{t2}, s{t2}, s{t0}"); S(f"s_add_u32 s{t2}, s{t2}, 256"); S(f"s_mul_i32 s{sC3+ti}, s{t2}, 1152")
                S(f"s_lshl_b32 s{t1}, s{t1}, 4"); S(f"s_lshr_b32 s{t2}, s{sRG}, 1"); S(f"s_xor_b32 s{t2}, s{t2}, s{sE}"); S(f"s_lshl_b32 s{t2}, s{t2}, 5")
                S(f"s_add_u32 s{t1}, s{t1}, s{t2}"); S(f"s_add_u32 s{t1}, s{t1}, s{t0}"); S(f"s_add_u32 s{t1}, s{t1}, 256")
            S(f"s_mul_i32 s{t1}, s{t1}, 1152"); S(f"s_add_u32 s{t1}, s{t1}, s{t3}")
            for pos in range(1, 5): S(f"s_lshl_b32 s{t2}, s{sPc+pos}, 7"); S(f"s_add_u32 s{sW2+4*ti+pos-1}, s{t1}, s{t2}")
        S(f"s_lshl_b32 s{t2}, s{sE}, 6"); S(f"s_add_u32 s{t2}, s{t2}, 512")
        for ti in range(3): S(f"s_add_u32 s{sC3+ti}, s{sC3+ti}, s{t2}")
    S(f"s_lshl_b32 s{t0}, s{sMT}, 1"); S(f"s_add_u32 s{t0}, s{t0}, s{sE}"); S(f"s_mul_i32 s{t0}, s{t0}, 72")
    S(f"s_lshl_b32 s{t3}, s{sClr}, 10")
    S(f"s_add_u32 s{t1}, s{t0}, s{sW}"); S(f"s_add_u32 s{t2}, s{t1}, 64"); S(f"s_lshl_b32 s{t2}, s{t2}, 13"); S(f"s_add_u32 s{sPc}, s{t2}, s{t3}")
    S(f"s_add_u32 s{t1}, s{t1}, s{sW}")
    S(f"s_lshl_b32 s{t2}, s{t1}, 13"); S(f"s_add_u32 s{t2}, s{t2}, s{t3}")
    for pos in range(1, 5): S(f"s_lshl_b32 s{sPc+pos}, s{sPc+pos}, 17"); S(f"s_add_u32 s{sPc+pos}, s{sPc+pos}, s{t2}")
    S(f"s_lshl_b32 s{sDt+1}, s{sE2}, 13"); S(f"s_xor_b32 s{sDt}, s{sDt+1}, 8192")
    S(f"s_lshl_b32 s{t2}, s{sPC}, 4"); S(f"s_add_u32 s{t1}, s{t1}, s{t2}"); S(f"s_add_u32 s{t1}, s{t1}, s{sE2}"); S(f"s_lshl_b32 s{t1}, s{t1}, 13")
    for k in range(1, 4):
        S(f"s_sub_u32 s{t2}, s{sPC}, {k}"); S(f"s_and_b32 s{t2}, s{t2}, 3"); S(f"s_lshl_b32 s{t2}, s{t2}, 11"); S(f"s_add_u32 s{sCo+k}, s{t1}, s{t2}")
    S(f"s_xor_b32 s{t2}, s{t3}, 1024"); S(f"s_add_u32 s{sCo}, s{t1}, s{t2}")
    S(f"s_add_u32 s{t0}, s{t0}, s{sClr}"); S(f"s_add_u32 s{t0}, s{t0}, 64"); S(f"s_lshl_b32 s{sP8}, s{t0}, 13")
    S(f"s_lshl_b32 s{t0}, s{sMT}, 4"); S(f"s_add_u32 s{t0}, s{t0}, s{sFS}"); S(f"s_xor_b32 s{t1}, s{t0}, 1")
    S(f"s_mul_i32 s{t0}, s{t0}, {9*8192}"); S(f"s_add_u32 s{sHXw}, s{t0}, {HX}")
    S(f"s_mul_i32 s{t1}, s{t1}, {9*8192}"); S(f"s_add_u32 s{t1}, s{t1}, {HX}"); S(f"s_add_u32 s{sHXr}, s{t1}, s{sLw}")
    if cfg.noload:
        for k in range(4): S(f"s_mov_b32 s{sCo+k}, {OOB}")
        S(f"s_mov_b32 s{sP8}, {OOB}")
    S(f"s_mov_b32 s{sMask}, 0xffff0000")
    if half == 1:
        S(f"s_lshl_b32 s{t0}, s{sMT}, 14"); S(f"s_add_u32 s{t0}, s{t0}, {FLG}")
        S(f"s_cmp_eq_u32 s{sW}, 4"); S(f"s_cselect_b32 s{t0}, s{t0}, {OOB}"); S(f"s_cselect_b32 s{sTgt8}, 8, 0"); S(f"s_cselect_b32 s{sTgt1}, 1, 0")
        S(f"s_lshl_b32 s{t1}, s{sE}, 10"); S(f"s_add_u32 s{sCnt}, s{t0}, s{t1}")
        S(f"s_mul_i32 s{t1}, s{sFS}, 768"); S(f"s_add_u32 s{t1}, s{t1}, 4096"); S(f"s_add_u32 s{sHfR}, s{t0}, s{t1}")
        S(f"s_xor_b32 s{t1}, s{sFS}, 1"); S(f"s_mul_i32 s{t1}, s{t1}, 768"); S(f"s_add_u32 s{t1}, s{t1}, 4096"); S(f"s_add_u32 s{sHfW}, s{t0}, s{t1}")
        S(f"s_cmp_eq_u32 s{sFS}, 0"); S(f"s_cselect_b32 s{sT1}, s{t0}, {OOB}")
        S(f"s_lshl_b32 s{t0}, s{sMT}, 2"); S(f"s_add_u32 s{t0}, s{t0}, s{sRG}")
        S(f"s_mul_i32 s{t0}, s{t0}, {41*128}"); S(f"s_mul_i32 s{t1}, s{sFS}, {288*1152}"); S(f"s_add_u32 s{sPF}, s{t0}, s{t1}")
        S(f"s_lshl_b32 s{t0}, s2, 2"); S(f"s_add_u32 s{t0}, s{t0}, s{sRG}"); S(f"s_mul_i32 s{sW1s}, s{t0}, {81*64}")
        S(f"s_and_b32 s{sW1s}, s{sW1s}, 0xffffff80")
        V(f"v_lshlrev_b32 v{t}, 7, v{L}", [t], [L]); V(f"v_cmp_gt_u32 vcc, 41, v{L}", rd=[L], swr=["vcc"]); V(f"v_mov_b32 v{b}, {OOB}", [b]); S("s_nop 0")
        V(f"v_cndmask_b32 v{vPF}, v{b}, v{t}, vcc", [vPF], [t, b])
    V(f"v_lshrrev_b32 v{b}, 3, v{L}", [b], [L]); V(f"v_and_b32 v{t}, 7, v{L}", [t], [L])
    S(f"s_lshl_b32 s{t0}, s{sW}, 7"); V(f"v_lshl_add_u32 v{b}, v{b}, 10, s{t0}", [b], [b]); V(f"v_lshl_add_u32 v{vP8off}, v{t}, 4, v{b}", [vP8off], [t, b])
    V(f"v_mul_u32_u24 v{vOutM}, 1152, v{j15}", [vOutM], [j15]); V(f"v_lshlrev_b32 v{b}, 3, v{q}", [b], [q]); V(f"v_add_u32 v{vOutM}, v{vOutM}, v{b}", [vOutM], [vOutM, b])
    S(f"s_lshl_b32 s{t0}, s{sPC}, 7"); S(f"s_lshl_b32 s{t1}, s{sE2}, {6 if cfg.colmaj else 5}"); S(f"s_add_u32 s{t0}, s{t0}, s{t1}"); S(f"s_add_u32 s{t0}, s{t0}, {(32 if cfg.colmaj else 64)*ch}")
    S(f"s_mul_i32 s{t1}, s{sE}, 640"); S(f"s_add_u32 s{t0}, s{t0}, s{t1}")
    S(f"s_add_u32 s{sOutM}, s{sXo}, s{t0}")
    hb0 = s.vload("buffer_load_dwordx2", vB2m, 2, b, R_B2, f"s{t0}")
    S(f"s_and_b32 s{t0}, s{sW}, 1"); S(f"s_lshl_b32 s{t0}, s{t0}, 3")
    V(f"v_add_u32 v{t}, s{t0}, v{t}", [t], [t]); V(f"v_lshrrev_b32 v{b}, 5, v{L}", [b], [L]); V(f"v_lshl_add_u32 v{t}, v{b}, 4, v{t}", [t], [t, b])
    V(f"v_mul_u32_u24 v{t}, 1152, v{t}", [t], [t]); V(f"v_lshlrev_b32 v{b}, 2, v{a}", [b], [a]); V(f"v_add_u32 v{vOut8}, v{t}, v{b}", [vOut8], [t, b])
    S(f"s_lshr_b32 s{t0}, s{sClr}, 2"); S(f"s_lshl_b32 s{t0}, s{t0}, 5"); S(f"s_lshl_b32 s{t1}, s{sE}, 6"); S(f"s_add_u32 s{t0}, s{t0}, s{t1}")
    S(f"s_lshr_b32 s{t1}, s{sW}, 1"); S(f"s_lshl_b32 s{t1}, s{t1}, 3"); S(f"s_add_u32 s{t0}, s{t0}, s{t1}"); S(f"s_add_u32 s{t0}, s{t0}, 512")
    hb1 = s.vload("buffer_load_dword", vB28, 1, b, R_B2, f"s{t0}")
    S(f"s_and_b32 s{t1}, s{sClr}, 3"); S(f"s_lshl_b32 s{t1}, s{t1}, 5"); S(f"s_lshl_b32 s{sOut8}, s{sMT}, 7"); S(f"s_add_u32 s{t1}, s{t1}, s{sOut8}")
    S(f"s_mul_i32 s{t1}, s{t1}, 1152"); S(f"s_add_u32 s{sOut8}, s{t1}, s{t0}")
    V(f"v_and_b32 v{t}, 8, v{L}", [t], [L]); V(f"v_cmp_eq_u32 vcc, 0, v{t}", rd=[t], swr=["vcc"]); V(f"v_mov_b32 v{b}, {OOB}", [b]); S("s_nop 0")
    V(f"v_cndmask_b32 v{vOut8}, v{b}, v{vOut8}, vcc", [vOut8], [b, vOut8])
    if half == 1: S(f"s_mov_b32 s{sClr}, s{sT1}")
    S(f"s_lshl_b32 s{t0}, s{sD0}, 2"); S(f"s_add_u32 s{t0}, s{t0}, {BIAS + 128*ch}")
    S(f"s_lshl_b32 s{t1}, s{sS0}, 2"); S(f"s_add_u32 s{t1}, s{t1}, {BIAS + 32*ch}")
    V(f"v_lshl_add_u32 v{vBias}, v{q}, 4, s{t0}", [vBias], [q])
    V(f"v_lshrrev_b32 v{t}, 1, v{q}", [t], [q]); V(f"v_lshl_add_u32 v{t}, v{t}, 4, s{t1}", [t], [t])
    V(f"v_lshlrev_b32 v{c}, 2, v0", [c]); V(f"v_add_u32 v{c}, {BIAS}, v{c}", [c], [c])
    s.wait(tokb)
    V(f"v_lshlrev_b32 v{b}, 16, v{vBiasS}", [b], [vBiasS])
    tb = s.ds_write("ds_write_b32", c, b, 1, 0)
    V(f"v_lshl_add_u32 v{vBiasS}, v{a}, 6, v{t}", [vBiasS], [a, t])
    return tb, (hb0, hb1)

class W:
    def __init__(self, f, c): self.f, self.c = f, c
    def __call__(self): return self.f()
def gelu_ops(s, regs, after):
    ops = []; n = len(regs); tc = float(cfg.tcost)
    def mk(k, e):
        x, t = regs[e], vT + e % 8
        tx, wr, rd, tr = [(f"v_mul_f32 v{t}, v{x}, v{x}", [t], [x], 0), (f"v_fma_f32 v{t}, v{t}, s{sGB}, v{vGA}", [t], [t, vGA], 0),
                (f"v_mul_f32 v{t}, v{x}, v{t}", [t], [x, t], 0), (f"v_exp_f32 v{t}, v{t}", [t], [t], 1),
                (f"v_add_f32 v{t}, 1.0, v{t}", [t], [t], 0), (f"v_rcp_f32 v{t}, v{t}", [t], [t], 1),
                (f"v_mul_f32 v{x}, v{x}, v{t}", [x], [x, t], 0)][k]
        return W(lambda: s.valu(tx, wr=wr, rd=rd, trans=bool(tr)), tc if tr else 1.0)
    if cfg.skew:
        for t in range(n + 7):
            for k in (6, 3, 4, 2, 5, 1, 0):
                if 0 <= t - k < n: ops.append(mk(k, t - k))
            if 0 <= t - 7 < n: ops += after.get(t - 7, [])
    else:
        for g in range(0, n, 4):
            for k in range(7):
                for e in range(g, g+4): ops.append(mk(k, e))
            for e in range(g, g+4): ops += after.get(e, [])
    return ops
def cvt(s, d, a, b):
    return lambda: s.valu(f"v_cvt_pk_bf16_f32 v{d}, v{a}, v{b}", wr=[d], rd=[a, b])

def body(p, half, PLAN):
    BAR, ISSUE, BLK, LAND = PLAN
    s = Stream(p); ool = Stream(); ch = half
    utok = {}
    iss = Issuer(s, half, BLK, utok)
    def issue_all(bar):
        for u in ISSUE[bar]:
            for f in iss.pieces(u): f()
    if half == 1: s.valu(f"v_xor_b32 v{vW1d}, 64, v{vW1d}", wr=[vW1d], rd=[vW1d])
    issue_all(-3)
    tb, hb2 = setup_main(s, half)
    if cfg.stamps: s.valu(f"v_writelane_b32 v{vStamp}, s98, 0", wr=[vStamp])
    stamp(s, "setup")
    issue_all(-2)
    pfjobs = [(I(cfg.pf1), lambda: s.vload("buffer_load_dword", vSec, 1, vPF, R_W1, f"s{sW1s}")),
              (I(cfg.pf2), lambda: s.vload("buffer_load_dword", vSec, 1, vPF, R_W2, f"s{sPF}"))] if half == 1 else []
    if half == 0 and I(cfg.tlb) >= -1:
        def tlb():
            for r, so in ((R_WS, sHXw), (R_WS, sPc), (R_WS, sPc+1), (R_WS, sPc+3), (R_OUT, sOutM)):
                s.vload("buffer_load_dword", vBiasS if False else vOut0, 1, vZero, r, f"s{so}")
        pfjobs = [(I(cfg.tlb), tlb)]
        s.valu(f"v_mov_b32 v{vZero}, 0", wr=[vZero])
    for n, f in pfjobs:
        if n == -1: f()
    if I(cfg.prio) == half: s.salu("s_setprio 1")

    Hreg = {(k, mt): vXF + 8*k + 4*mt for k in range(18) for mt in range(2)}
    def acc(pos, dl, mt):
        if pos == 3 and INS3: return (vT, vT+4, vW1d, vBias)[2*dl + mt]
        return {0: vXR, 1: vS[1], 2: vS[0], 3: vS[1], 4: vS[0]}[pos] + 8*dl + 4*mt

    fill = {}; cur = [-1]; need_bar = {}; need_mf = {}; prebar = {}
    def F(n, i, f):
        assert 0 <= n < NST and 0 <= i < ST[n].nm, (n, i)
        fill.setdefault((n, i), []).append(f)
    def spread(ops, n0, i0, n1, i1=None):
        gaps = [(n, i) for n in range(n0, n1+1) for i in range(ST[n].nm)
                if not (n == n0 and i < i0) and not (n == n1 and i1 is not None and i > i1)]
        k = 0; cost = [getattr(o, "c", 1.0) for o in ops]; ctot = sum(cost); cdone = 0
        for gi, (n, i) in enumerate(gaps):
            while k < len(ops) and cdone + cost[k]/2 <= ctot*(gi+1)/len(gaps) + 1e-9: F(n, i, ops[k]); cdone += cost[k]; k += 1
        assert k == len(ops)
    def hold(): return [None]
    def before_bar(n, h): need_bar.setdefault(min(b for b in BAR if b >= n), []).append(h)
    def before_mfma(n, i, h): need_mf.setdefault((n, i), []).append(h)
    for n, f in pfjobs:
        if n >= 0: F(n, 0, f)

    if half == 1:
        hclr = hold()
        def clr():
            s.valu(f"v_lshlrev_b32 v{vTmp}, 8, v{vLane}", wr=[vTmp], rd=[vLane]); s.valu(f"v_mov_b32 v{vTmp2}, {OOB}", wr=[vTmp2])
            s.valu(f"v_mov_b32 v{vFv}, 0", wr=[vFv])
            hclr[0] = s.vstore("buffer_store_dword", vFv, 1, vTmp, R_WS, f"s{sClr}", flags=cfg.st_flags)
            s.valu(f"v_cmp_eq_u32 vcc, 0, v{vLane}", rd=[vLane], swr=["vcc"]); s.salu("s_nop 1")
            s.valu(f"v_cndmask_b32 v{vOne}, v{vTmp2}, v{vFv}, vcc", wr=[vOne], rd=[vTmp2, vFv])
        assert all(u[0] != "x" for b in ISSUE if b >= I(cfg.clr_stage) for u in ISSUE[b])
        F(I(cfg.clr_stage), 7, clr)
        def arrive():
            srd(s, R_DBG, S_DBG, 256)
            s.salu(f"s_lshl_b32 s{sU0}, s{sMT}, 2")
            s.salu(f"s_cmp_lg_u32 s{sW}, 4"); s.salu(f"s_cselect_b32 s{sU0}, 1024, s{sU0}")
            s.salu(f"s_cmp_lg_u32 s{sFS}, 0"); s.salu(f"s_cselect_b32 s{sU0}, 1024, s{sU0}")
            s.wait(hclr[0])
            s.valu(f"v_mov_b32 v{vFv}, 1", wr=[vFv])
            s.vstore("buffer_atomic_add", vFv, 1, vOne, R_DBG, f"s{sU0}")
        F(I(cfg.arr_stage), 2, arrive)

    def w2cr():
        V = lambda t_, wr, rd: s.valu(t_, wr=wr, rd=rd); a_, b_ = vTmp, vTmp2
        V(f"v_lshrrev_b32 v{a_}, 2, v{vLane}", [a_], [vLane]); V(f"v_and_b32 v{b_}, 3, v{vLane}", [b_], [vLane]); V(f"v_lshlrev_b32 v{b_}, 3, v{b_}", [b_], [b_])
        V(f"v_lshl_add_u32 v{a_}, v{a_}, 6, v{b_}", [a_], [a_, b_]); V(f"v_bfe_u32 v{b_}, v{vLane}, 4, 1", [b_], [vLane])
        if ch: V(f"v_xor_b32 v{b_}, 1, v{b_}", [b_], [b_])
        V(f"v_lshl_add_u32 v{vW2cR}, v{b_}, 5, v{a_}", [vW2cR], [a_, b_])
        for k in (1, 2): V(f"v_add_u32 v{vW2cR+k}, {65536*k}, v{vW2cR}", [vW2cR+k], [vW2cR])
    F(35, 7, w2cr)
    hst = [hold(), hold(), hold()]
    biasrd = {}
    for j in range(5):
        for g in range(4 if j < 4 else 2):
            h = hold()
            def rd(h=h, g=g, j=j):
                if j < 4: h[0] = s.ds_read("ds_read_b128", vS[j % 2]+4*g, 4, vBias, j*256 + (g % 2)*64)
                else: h[0] = s.ds_read("ds_read_b128", vS[0]+4*g, 4, vBiasS, 0)
            biasrd[(j, g)] = rd; before_mfma(9*j, 0, h)
    for g in range(4): F(8, 2*g, biasrd[(1, g)])
    gw0, gw1, gw2 = IL(cfg.gwin)
    for j in range(4):
        S = vS[j % 2]; after = {}
        for mt in range(2):
            h = hold(); kap = 2*j + ch
            def wr(h=h, mt=mt, j=j, kap=kap):
                assert cur[0] >= HWSTAGE[j], (j, cur[0])
                w_, o_ = win((HB+kap)*8192 + mt*1024)
                h[0] = s.ds_write("ds_write_b128", vHB[w_], vP+4*mt, 4, o_)
            def gw(mt=mt, j=j, kap=kap):
                s.salu(f"s_add_u32 s{sT1}, s{sHXw}, {kap*8192 + mt*1024}" if not cfg.nohst else f"s_mov_b32 s{sT1}, {OOB}")
                hst[0 if j < 3 else 1][0] = s.vstore("buffer_store_dwordx4", vP+4*mt, 4, vHB[0], R_WS, f"s{sT1}", flags=cfg.st_flags)
            before_bar(min(9*(j+2), 36) if j < 3 else B0+1, h)
            for q in range(4):
                after.setdefault(8*mt+2*q+1, []).append(cvt(s, vP+4*mt+q, S+8*mt+2*q, S+8*mt+2*q+1))
                if q % 2 == 1 and (j+2, 2*mt + q//2) in biasrd: after[8*mt+2*q+1].append(biasrd[(j+2, 2*mt + q//2)])
            after[8*mt+7] += [W(wr, 2.0), W(gw, 2.0)]
        ops = gelu_ops(s, [S+i for i in range(16)], after)
        if j < 3: spread(ops, 9*(j+1), gw0, 9*(j+1)+gw1, gw2)
        else: spread(ops, 36, gw0, *IL(cfg.g3end))
    S = vS[0]
    ops = gelu_ops(s, [S+i for i in range(8)], {2*q+1: [cvt(s, vP+q, S+2*q, S+2*q+1)] for q in range(4)})
    for i in range(2):
        ops.append(lambda i=i: s.valu(f"v_permlane16_swap_b32 v{vP+i}, v{vP+2+i}", wr=[vP+i, vP+2+i], rd=[vP+i, vP+2+i]))
    h = hold()
    def wr8(h=h):
        assert cur[0] >= HWSTAGE[4]
        h[0] = s.ds_write("ds_write_b128", vHW8, vP, 4, 0)
    def gw8():
        s.salu(f"s_sub_u32 s{sT1}, s{sHXw}, {HBASE}" if not cfg.nohst else f"s_mov_b32 s{sT1}, {OOB}")
        hst[2][0] = s.vstore("buffer_store_dwordx4", vP, 4, vHW8, R_WS, f"s{sT1}", flags=cfg.st_flags)
    ops.append(wr8); ops.append(gw8); before_bar(HREAD[8], h)
    spread(ops, *IL(cfg.g4win))
    hrd = {}
    for k in range(18):
        n = HREAD[k]; blk = HB + k if k < 9 else BLK[("h", k)]
        for mt in range(2):
            h = hold(); hrd[(k, mt)] = h
            def rd(h=h, k=k, mt=mt, blk=blk):
                w_, o_ = win(blk*8192 + mt*1024)
                h[0] = s.ds_read("ds_read_b128", Hreg[(k, mt)], 4, vHB[w_], o_)
            F(n, 1 + 4*(k % 2) + 2*mt, rd); before_bar(n+2, h)

    nslow = [0]
    def check(test, tok, reload):
        nslow[0] += 1; k = f"{half}_{nslow[0]}"
        assert tok is not None or cfg.nopoll
        s.wait(tok); test(s)
        s.salu(f"s_cbranch_scc1 L_slow_{k}"); s.raw(f"L_back_{k}:")
        ool.raw(f"L_slow_{k}:"); ool.salu(f"s_mov_b32 s{sSpin}, {SPIN}")
        ool.raw(f"L_spin_{k}:")
        if I(cfg.backoff): ool.salu(f"s_sleep {I(cfg.backoff)}")
        reload(ool); ool.wait_all(l=False); test(ool)
        ool.salu(f"s_cbranch_scc0 L_back_{k}")
        ool.salu(f"s_sub_u32 s{sSpin}, s{sSpin}, 1"); ool.salu(f"s_cmp_lg_u32 s{sSpin}, 0")
        ool.salu(f"s_cbranch_scc1 L_spin_{k}"); ool.salu(f"s_branch L_back_{k}")
    def below(tgt):
        def test(st):
            st.valu(f"v_readfirstlane_b32 s{sU1}, v{vSec}", rd=[vSec], swr=[sU1]); st.salu("s_nop 3")
            st.salu(f"s_cmp_lt_u32 s{sU1}, {tgt}")
        return test
    def poll(st, base, idx):
        if cfg.nopoll:
            st.valu(f"v_mov_b32 v{vSec}, 16", wr=[vSec]); return None
        return st.vload("buffer_load_dword", vSec, 1, vOne, R_WS, f"s{base}", off=256*idx, flags=cfg.poll_flags)
    def gate(base, idx, tgt, nb, name):
        if half != 1: return
        hp = hold()
        F(nb - I(cfg.polllead), 2, lambda: hp.__setitem__(0, poll(s, base, idx)))
        def chk():
            stamp(s, f"{name}0"); check(below(f"s{tgt}"), hp[0], lambda st: poll(st, base, idx)); stamp(s, f"{name}1")
        prebar.setdefault(nb, []).append(chk)
    def publish(base, idx):
        def go():
            if half == 1 and not cfg.nopub: s.vstore("buffer_atomic_add", vFv, 1, vOne, R_WS, f"s{base}", off=256*idx)
        return go
    if half == 1:
        hc = hold()
        def ld_cnt(st):
            st.salu(f"s_lshl_b32 s{sU0}, s{sMT}, 2")
            return st.vload("buffer_load_dword", vSec, 1, vOne, R_DBG, f"s{sU0}", flags=cfg.poll_flags)
        F(I(cfg.cchk) - 4, 2, lambda: hc.__setitem__(0, ld_cnt(s)))
        prebar.setdefault(I(cfg.cchk), []).append(lambda: check(below("1"), hc[0], ld_cnt))
    for lv, (pb, cb) in enumerate(zip(IL(cfg.hpub), IL(cfg.hchk))):
        assert pb in BAR and cb in BAR and I(cfg.cchk) < pb < cb
        before_bar(pb, hst[lv]); F(pb, 1, publish(sHfW, lv)); gate(sHfR, lv, sTgt1, cb, f"h{lv}")
    last_stage = {}
    for a in ST[B0:]:
        for (pos, dl, k, u, sl) in a.parts: last_stage[(pos, dl)] = a.n
    stok = {}
    def store_ops(pos, dl):
        ops = []; stok.setdefault(pos, hold())
        for mt in range(2):
            for e in range(2): ops.append(cvt(s, vP+4*dl+2*mt+e, acc(pos, dl, mt)+2*e, acc(pos, dl, mt)+2*e+1))
        def st_():
            if cfg.nostore: s.salu(f"s_mov_b32 s{sT1}, {OOB}")
            elif pos == 0: s.salu(f"s_mov_b32 s{sT1}, s{sPc}")
            else: s.salu(f"s_add_u32 s{sT1}, s{sPc+pos}, s{sDt+dl}")
            stok[pos][0] = s.vstore("buffer_store_dwordx4", vP+4*dl, 4, vL16, R_WS, f"s{sT1}", flags=cfg.st_flags)
        ops.append(st_)
        return ops
    sts = IL(cfg.stst)
    for (pos, dl), n in zip([(1, 0), (1, 1), (2, 0), (2, 1), (0, 0), (3, 0), (3, 1)], sts):
        assert n > last_stage[(pos, dl)]
        spread(store_ops(pos, dl), n, 1, n, min(5, ST[n].nm-1))
    assert (INS3 or sts[1] < 64) and sts[3] < LAST0 and sts == sorted(sts)
    n8 = last_stage[(4, 0)]
    spread(store_ops(4, 0), n8, 6, n8+1, 2)
    pA, cA, pF = I(cfg.pubA), I(cfg.chkA), I(cfg.pubF)
    assert pA in BAR and cA in BAR and sts[4] < pA < cA
    before_bar(pA, stok[0]); F(pA, 1, publish(sCnt, 0)); gate(sCnt, 0, sTgt8, cA, "cA")
    if pF in BAR: before_bar(pF, stok[4]); F(pF, 0, publish(sCnt, 2))
    LAND_OF = {8: vXR, 1: Hreg[(0, 0)], 2: Hreg[(1, 0)], 3: Hreg[(2, 0)], 0: vXR+4}
    ptk = {}
    def piece(k, e):
        def go():
            if k == 8: ptk[k] = s.vload("buffer_load_dwordx4", LAND_OF[k], 4, vP8off, R_WS, f"s{sP8}", flags=cfg.ld_flags)
            else: ptk[k] = s.vload("buffer_load_dwordx4", LAND_OF[k]+4*e, 4, vL16, R_WS, f"s{sCo+k}", off=1024*e, flags=cfg.ld_flags)
        return go
    def load_k(k):
        for e in range(1 if k in (0, 8) else 2): piece(k, e)()
    SUM = acc(4, 1, 0)
    def add_k(k):
        if k == 8: return step8()
        s.wait(ptk[k])
        for v_ in range(LAND_OF[k], LAND_OF[k] + (4 if k == 0 else 8)):
            r = (v_ - LAND_OF[k]) % 4
            s.valu(f"v_lshlrev_b32 v{vTmp}, 16, v{v_}", wr=[vTmp], rd=[v_])
            s.valu(f"v_and_b32 v{v_}, s{sMask}, v{v_}", wr=[v_], rd=[v_])
            s.valu(f"v_add_f32 v{SUM+2*r}, v{SUM+2*r}, v{vTmp}", wr=[SUM+2*r], rd=[SUM+2*r, vTmp])
            s.valu(f"v_add_f32 v{SUM+2*r+1}, v{SUM+2*r+1}, v{v_}", wr=[SUM+2*r+1], rd=[SUM+2*r+1, v_])
    def step8():
        V = lambda text, wr, rd: s.valu(text, wr=wr, rd=rd)
        R = vWF; L8 = LAND_OF[8]
        s.wait(ptk[8], hb2[1])
        for r in range(4):
            V(f"v_lshlrev_b32 v{R+2*r}, 16, v{L8+r}", [R+2*r], [L8+r]); V(f"v_and_b32 v{R+2*r+1}, s{sMask}, v{L8+r}", [R+2*r+1], [L8+r])
        for i in range(4): V(f"v_permlane32_swap_b32 v{R+i}, v{R+4+i}", [R+i, R+4+i], [R+i, R+4+i])
        for i in range(4): V(f"v_add_f32 v{R+i}, v{R+i}, v{R+4+i}", [R+i], [R+i, R+4+i])
        for i in range(2): V(f"v_permlane16_swap_b32 v{R+i}, v{R+2+i}", [R+i, R+2+i], [R+i, R+2+i])
        for i in range(2): V(f"v_add_f32 v{R+i}, v{R+i}, v{R+2+i}", [R+i], [R+i, R+2+i])
        for i in range(2): V(f"v_add_f32_dpp v{R+2+i}, v{R+i}, v{R+i} row_ror:8 row_mask:0xf bank_mask:0xf", [R+2+i], [R+i])
        V(f"v_lshlrev_b32 v{R}, 16, v{vB28}", [R], [vB28]); V(f"v_and_b32 v{R+1}, s{sMask}, v{vB28}", [R+1], [vB28])
        for i in range(2): V(f"v_add_f32 v{R+i}, v{R+i}, v{R+2+i}", [R+i], [R+i, R+2+i])
        cvt(s, R, R, R+1)()
        s.vstore("buffer_store_dword", R, 1, vOut8, R_OUT, f"s{sOut8}")
    lastread = {}
    for a in ST[B0:]:
        for i, (f, mt) in enumerate(a.order): lastread[(a.parts[f][2], mt)] = (a.n, i)
    for q, ((k, e), n) in enumerate(zip([(8, 0), (1, 0), (1, 1), (2, 0), (2, 1)], IL(cfg.ldst))):
        assert n >= cA
        if k != 8: assert (n, 1+q) >= lastread[(k-1, e)]
        F(n, 1+q, piece(k, e))

    freebufs = [vWF+4*i for i in range(4)] + [vXR+4]
    frag = {}
    def plan_frag(n, f):
        a = ST[n]; hs = [hold(), hold()]; ent = [None, hs]; frag[(n, f)] = ent
        def mk(rd):
            def go():
                if rd == 0: ent[0] = freebufs.pop(0)
                if a.kind == "d": base, off = vW1dR + 3*(f//2), BLK[("w", n)]*8192 + (f % 2)*4096 + rd*512
                elif a.kind == "s": base, off = vW1sR, BLK[("w", n)]*8192 + (f if a.i < 4 else 2+f)*2048 + rd*256
                else:
                    (pos, dl, k, u, sl) = a.parts[f]
                    if a.sub == "d": base, off = vW2R + 3*dl, BLK[("w", u)]*8192 + sl*4096 + rd*2048
                    else: base, off = vW2cR, BLK[("w", u)]*8192 + sl*2048 + rd*1024
                w_, o_ = win(off)
                hs[rd][0] = s.ds_read("ds_read_b64_tr_b16", ent[0] + 2*rd, 2, base + w_, o_)
            return go
        return [mk(0), mk(1)]
    xtok = {}
    def xread(n, kk, mt):
        w_, o_ = win(BLK[("x", n)]*8192 - XWIN0 + mt*2048)
        def go(): xtok[(n, kk, mt)] = s.ds_read("ds_read_b128", vXF + 16*n + 8*kk + 4*mt, 4, vXR + 2*w_ + kk, o_)
        return go
    pre = {}; pend = {}
    for n in range(1, NST):
        pend[n-1] = [r for f in range(ST[n].nf) for r in plan_frag(n, f)]
        if n < 9:
            for q, (kk, mt) in enumerate(((0, 0), (1, 0), (0, 1), (1, 1))): pre.setdefault((n-1, 2*q), []).append(xread(n, kk, mt))

    s.wait(tb, *[utok.get(u) for u in LAND[-1]])
    s.barrier()
    stamp(s, "data")
    for g in range(4): biasrd[(0, g)]()
    for f, (kk, mt) in enumerate(((0, 0), (1, 0), (0, 1), (1, 1))):
        xread(0, kk, mt)()
        for r in plan_frag(0, f): r()
    issue_all(-1)

    started = set()
    tmpb = [Hreg[(15, 0)] + 4*q for q in range(4)]; TMPEND = HREAD[15] - 3
    xb = [vXR, vXR+4]
    gone = set()
    for a in ST:
        n = a.n
        if n == 8: freebufs.append(vXR)
        if n == B0: freebufs.extend(tmpb); gone |= set(xb)
        if n == B0 + 5 and not INS3: freebufs.extend([vT, vT+4])
        if INS3 and n == sts[1] + 1: freebufs.extend([vS[1], vS[1]+4])
        if n == TMPEND - 1: gone |= set(tmpb)
        freebufs[:] = [b for b in freebufs if b not in gone]
        if n == B0 + 3: assert not any(e[0] in xb for (m, f), e in frag.items() if m >= n and e[0] is not None)
        if n == TMPEND + 2: assert not any(e[0] in tmpb for (m, f), e in frag.items() if m >= n and e[0] is not None)
        stamp(s, f"s{n}")
        uses = {f: i for i, (f, mt) in enumerate(a.order)}
        dq = [f for u in ISSUE.get(n, []) for f in iss.pieces(u)]
        slots = [g for g in IL(cfg.dpos) if g < a.nm] or [a.nm-1]
        if len(dq) > len(slots): slots = list(range(a.nm))
        dat = {}; ndone = 0
        for q, f in enumerate(dq): dat.setdefault(slots[q*len(slots)//len(dq)], []).append(f)
        for i in range(a.nm):
            toks = [h[0] for h in need_mf.get((n, i), [])]
            cur[0] = n
            f, mt = a.order[i]
            reg, hs = frag[(n, f)]
            toks += [hs[0][0], hs[1][0]]
            if i % 2 == 0 and n > 0:
                f2 = a.order[i+1][0]; toks += [frag[(n, f2)][1][0][0], frag[(n, f2)][1][1][0]]
            if a.kind == "d":
                d = vS[a.j % 2] + 8*mt + 4*(f//2); bop = vXF + 16*a.s + 8*(f % 2) + 4*mt; c_ = d
                if a.j == 0:
                    toks.append(xtok[(n, f % 2, mt)])
                    if i % 2 == 0 and n > 0: toks.append(xtok[(n, 1, mt)])
            elif a.kind == "s":
                d = vS[0] + 4*mt; bop = vXF + 8*(4*a.i + f) + 4*mt; c_ = d
            else:
                (pos, dl, k, u, sl) = a.parts[f]
                toks.append(hrd[(k, mt)][0])
                d = acc(pos, dl, mt); bop = Hreg[(k, mt)]; c_ = d if (pos, dl, mt) in started else None
                started.add((pos, dl, mt))
            assert all(t is not None for t in toks), (n, i)
            s.wait(*toks)
            s.mfma16(d, reg, bop, c_)
            if uses[f] == i and reg not in gone: freebufs.append(reg)
            if i == 0 and n in BAR:
                assert all(h[0] is not None for h in need_bar.get(n, [])), n
                for f_ in prebar.get(n, []): f_()
                s.wait(*([utok.get(u) for u in LAND.get(n, [])] + [h[0] for h in need_bar.get(n, [])]))
                s.barrier()
            rds = pend.get(n, []); per = -(-len(rds)//a.nm)
            while ndone < min(len(rds), per*(i+1) if i < a.nm-1 else 99) and (ndone % 2 == 1 or freebufs or i == a.nm-1):
                rds[ndone](); ndone += 1
            for f_ in pre.get((n, i), []): f_()
            for f_ in dat.get(i, []): f_()
            for f_ in fill.get((n, i), []): f_()
    stamp(s, "tail")
    if pF not in BAR:
        s.wait(stok[4][0]); s.barrier(); publish(sCnt, 2)()
    s.wait(hb2[0])
    for r in range(2):
        s.valu(f"v_lshlrev_b32 v{vP+4+2*r}, 16, v{vB2m+r}", wr=[vP+4+2*r], rd=[vB2m+r])
        s.valu(f"v_and_b32 v{vP+4+2*r+1}, s{sMask}, v{vB2m+r}", wr=[vP+4+2*r+1], rd=[vB2m+r])
    for i in range(8):
        s.valu(f"v_add_f32 v{SUM+i}, v{SUM+i}, v{vP+4 + i % 4}", wr=[SUM+i], rd=[SUM+i, vP+4 + i % 4])
    for k in [8, 1, 2][:I(cfg.tailpoll)]: add_k(k)
    if half == 1: check(below(f"s{sTgt8}"), poll(s, sCnt, 2), lambda st: poll(st, sCnt, 2))
    s.barrier()
    stamp(s, "T2")
    load_k(3); load_k(0)
    for k in [8, 1, 2][I(cfg.tailpoll):] + [3, 0]: add_k(k)
    stamp(s, "fin")
    for k in range(4): cvt(s, vP+k, SUM+2*k, SUM+2*k+1)()
    s.vstore("buffer_store_dwordx2", vP, 2, vOutM, R_OUT, f"s{sOutM}")
    s.salu(f"s_add_u32 s{sOutM}, s{sOutM}, {16*1152}")
    s.vstore("buffer_store_dwordx2", vP+2, 2, vOutM, R_OUT, f"s{sOutM}")
    if cfg.stamps: s.wait_all()
    stamp(s, "end")
    stamp_flush(s)
    s.salu("s_endpgm")
    return s, ool

def kd(name, vg, sg):
    return f""".amdhsa_kernel {name}
  .amdhsa_next_free_vgpr {vg}
  .amdhsa_next_free_sgpr {sg}
  .amdhsa_accum_offset {(vg+3)//4*4}
  .amdhsa_group_segment_fixed_size 0
  .amdhsa_kernarg_size 64
  .amdhsa_user_sgpr_count 2
  .amdhsa_user_sgpr_kernarg_segment_ptr 1
  .amdhsa_system_sgpr_workgroup_id_x 1
  .amdhsa_float_denorm_mode_32 3
.end_amdhsa_kernel
"""

def generate(aslist=False):
    PLAN = plan()
    p = Stream()
    prologue(p)
    p.salu(f"s_cmp_ge_u32 s{sW}, 4", srd=[sW]); p.salu("s_cbranch_scc1 L_half1")
    h0, o0 = body(p, 0, PLAN); h1, o1 = body(p, 1, PLAN)
    mk = (p.text() + "\n" + h0.text() + "\n" + o0.text() + "\n.p2align 6\nL_half1:\n" + h1.text() + "\n" + o1.text()
          + "\nL_main_end:\n    s_endpgm\n")
    k1 = NAME + "_kernel"
    launch = (f"; @launch kernel={k1} grid=(256,1,1) block=(512,1,1) lds=163840" if aslist
              else "; @launch grid=(256,1,1) block=(512,1,1) lds=163840")
    out = f"""; fused MLP  out = gelu_tanh(x@w1+b1)@w2+b2   (emitted by my generator script)
{launch}
.amdgcn_target "amdgcn-amd-amdhsa--gfx950"
.text
.globl {k1}
.p2align 8
.type {k1},@function
{k1}:
{mk}
.section .rodata,"a"
.p2align 6
{kd(k1, 256, 102)}"""
    nb = [sum(1 for i in h.ins if i.kind == "bar") for h in (h0, h1)]
    assert nb[0] == nb[1], nb
    return out, (h0.nops, h1.nops, len(h0.ins), len(h1.ins), nb[0]), PLAN

if __name__ == "__main__":
    aslist = False; verbose = False
    for a in sys.argv[2:]:
        if a == "-v": verbose = True; continue
        k, v = a.split("=", 1)
        if k == "aslist": aslist = True; continue
        assert hasattr(cfg, k), k
        setattr(cfg, k, {"True": True, "False": False}.get(v, v.replace("+", " ")))
    txt, stats, PLAN = generate(aslist)
    open(sys.argv[1], "w").write(txt)
    print("nops/ins/bars:", stats, "bytes", len(txt))
    if verbose:
        BAR, ISSUE, BLK, LAND = PLAN
        print(" ".join(f"{b}:{','.join(k+str(m)+'@'+str(BLK[(k,m)]) for k,m in ISSUE[b])}" for b in sorted(ISSUE)))
```
